```python
import torch

def _softmax(x, axis=-1):
    return torch.softmax(x, dim=axis)
def _gelu(x):
    return torch.nn.functional.gelu(x, approximate="tanh")
def _silu(x):
    return torch.nn.functional.silu(x)
def _sigmoid(x):
    return torch.sigmoid(x)
def _layernorm(x, axis=-1, eps=1e-5):
    m = x.mean(dim=axis, keepdim=True)
    v = x.var(dim=axis, keepdim=True, unbiased=False)
    return (x - m) / torch.sqrt(v + eps)
def _scatter_add(tgt, idx, src, axis=0):
    return tgt.clone().index_add_(axis, idx, src)
def _segment_sum(src, seg, n):
    out = torch.zeros((n,) + src.shape[1:], dtype=src.dtype)
    return out.index_add_(0, seg, src)
def _pad(x, pw):
    flat = tuple(v for pair in reversed(pw) for v in pair)
    return torch.nn.functional.pad(x, flat)

kernel_name = 'concat_heads__spectral_gfnet__mha_block__prompt'

def setup_inputs():

    _w = (lambda a: (lambda t: t.to(torch.bfloat16) if t.is_floating_point() else t)(torch.as_tensor(a)))
    def _A_setup():
        B, S, D = 1, 2048, 448
        Df = D // 2 + 1
        return {
            "x": _w((lambda *s: torch.randn(*s, dtype=torch.bfloat16) * 0.05)(B, S, D)),
            "w_r": _w((lambda *s: torch.randn(*s, dtype=torch.bfloat16) * 6.4)(S, Df) * 0.02),
            "w_i": _w((lambda *s: torch.randn(*s, dtype=torch.bfloat16) * 6.4)(S, Df) * 0.02),
        }
    _A_in = _A_setup()

    def _B_setup():
        B, S, D, H = 1, 2048, 448, 16
        return {
            "x": _w((lambda *s: torch.randn(*s, dtype=torch.bfloat16) * 0.2)(B, S, D)),
            "wqkv": _w((lambda *s: torch.randn(*s, dtype=torch.bfloat16) * 0.2)(D, 3 * D)),
            "wo": _w((lambda *s: torch.randn(*s, dtype=torch.bfloat16) * 0.05)(D, D)),
        }
    _B_in = _B_setup()

    return {
        "A_x": _A_in["x"],
        "A_w_r": _A_in["w_r"],
        "A_w_i": _A_in["w_i"],
        "B_x": _B_in["x"],
        "B_wqkv": _B_in["wqkv"],
        "B_wo": _B_in["wo"],
    }

def reference(A_x, A_w_r, A_w_i, B_x, B_wqkv, B_wo):
    def _A_ref(x, w_r, w_i):
        B, S, D = x.shape
        X = (lambda x, axes=(-2,-1): torch.fft.rfft2(x.float(), dim=axes))(x, axes=(-2, -1))
        W = w_r + 1j * w_i
        X = X * W
        y = (lambda x, s, axes=(-2,-1): torch.fft.irfft2(x, s=s, dim=axes).to(torch.bfloat16))(X, (S, D), axes=(-2, -1))
        return y

    def _B_ref(x, wqkv, wo):
        B, S, D = x.shape
        H = 16
        Dh = D // H
        qkv = (lambda x, *d: x.permute(*d))((x @ wqkv).reshape(B, S, 3, H, Dh), 2, 0, 3, 1, 4)
        q, k, v = qkv[0], qkv[1], qkv[2]
        scores = torch.einsum("bhqd,bhkd->bhqk", q, k) * (Dh ** -0.5)
        p = _softmax(scores, axis=-1)
        o = torch.einsum("bhqk,bhkd->bhqd", p, v)
        return (lambda x, *d: x.permute(*d))(o, 0, 2, 1, 3).reshape(B, S, D) @ wo

    a = _A_ref(A_x, A_w_r, A_w_i)
    b = _B_ref(B_x, B_wqkv, B_wo)
    return torch.concatenate([a, b], axis=-1)
```

```python
import numpy as np

def vr(i, n=1):
    return f"v{i}" if n == 1 else f"v[{i}:{i+n-1}]"
def sr(i, n=1):
    return f"s{i}" if n == 1 else f"s[{i}:{i+n-1}]"

class Asm:
    def __init__(self):
        self.L = []
    def __call__(self, s):
        for line in s.strip("\n").split("\n"):
            line = line.strip()
            if not line: continue
            if line.endswith(":"):
                self.L.append(line)
            else:
                self.L.append("    " + line)
    def nop(self, n):
        while n > 0:
            k = min(n, 16)
            self(f"s_nop {k-1}")
            n -= k
    def text(self):
        return "\n".join(self.L) + "\n"

def bf16_bits(x):
    u = np.asarray(x, dtype=np.float32).view(np.uint32).astype(np.int64)
    r = (u + 0x7fff + ((u >> 16) & 1)) >> 16
    return np.asarray(r).astype(np.uint16)

def f32_bits(x):
    return int(np.asarray(x, dtype=np.float32).view(np.uint32))

WS_Q = 0x000000
WS_K = 0x200000
WS_V = 0x400000
WS_O = 0x600000
WS_Y = 0x800000
WS_Y224 = 0xA00000
WS_T = 0xC00000
WS_T224 = 0xE00000
WS_SIZE = 0x1000000

S_AX, S_WR, S_WI, S_BX, S_WQKV, S_WO, S_OUT, S_DBG, S_WS = 16, 18, 20, 22, 24, 26, 28, 30, 32

def prologue(a, name):
    a(f""".globl {name}
.p2align 8
.type {name},@function
{name}:""")
    a("s_load_dwordx16 s[16:31], s[0:1], 0")
    a("s_load_dwordx2 s[32:33], s[0:1], 64")

def srd(a, d, base, nbytes, add=0):
    if add:
        a(f"s_add_u32 s{d}, s{base}, {add}")
        a(f"s_addc_u32 s{d+1}, s{base+1}, 0")
    else:
        a(f"s_mov_b32 s{d}, s{base}")
        a(f"s_mov_b32 s{d+1}, s{base+1}")
    a(f"s_mov_b32 s{d+2}, {nbytes}")
    a(f"s_mov_b32 s{d+3}, 0x20000")

def srd_table(a, d, sym, nbytes):
    a(f"s_getpc_b64 s[{d}:{d+1}]")
    a(f"s_add_u32 s{d}, s{d}, {sym}@rel32@lo+4")
    a(f"s_addc_u32 s{d+1}, s{d+1}, {sym}@rel32@hi+12")
    a(f"s_mov_b32 s{d+2}, {nbytes}")
    a(f"s_mov_b32 s{d+3}, 0x20000")

def kd(name, vgpr, sgpr=96):
    acc = (vgpr + 3) // 4 * 4
    return f""".p2align 6
.amdhsa_kernel {name}
  .amdhsa_next_free_vgpr {vgpr}
  .amdhsa_next_free_sgpr {sgpr}
  .amdhsa_accum_offset {acc}
  .amdhsa_group_segment_fixed_size 0
  .amdhsa_kernarg_size 72
  .amdhsa_user_sgpr_count 2
  .amdhsa_user_sgpr_kernarg_segment_ptr 1
  .amdhsa_system_sgpr_workgroup_id_x 1
.end_amdhsa_kernel
"""

MFMA = "v_mfma_f32_32x32x16_bf16"
def mfma(a, d, A, B, c=None):
    cs = "0" if c is None else vr(c, 16)
    a(f"{MFMA} {vr(d,16)}, {vr(A,4)}, {vr(B,4)}, {cs}")
```

```python
import numpy as np, sys
from common import Asm, vr, sr, bf16_bits, f32_bits, srd, srd_table, kd, mfma, MFMA
from common import S_AX, S_WR, S_WI, S_BX, S_WQKV, S_WO, S_OUT, S_DBG, S_WS

QSCALE = (28 ** -0.5) * np.log2(np.e)
NAME = "concat_heads__spectral_gfnet__mha_block__prompt_kernel"

WS_K, WS_V, WS_O, WS_Y, WS_T = 0x000000, 0x200000, 0x400000, 0x600000, 0x800000
WS_FG, WS_F2, WS_F3, WS_EP = 0xA00000, 0xA10000, 0xA20000, 0xA80000
FG_F1, FG_F2 = 512, 1024
WS_FY, WS_FT = 0xA10000, 0xA20000
C_XF = 28
C_EP, C_TF = 27, 26
C_WF = 32
sG1 = 91
WS_STAMP = 0xF00000
WS_L = 0x1000000
WS_SIZE = 0x2000000
LX, LW, LWQ, LQ = 0, 32768, 90112, 0
LXA, LEX = 118784, 118784
LE = 122880
LKV = 16384
WS_JUNK = 0x1800000
LWO = 0
LY, LP = 135168, 118784
LT = 0
LYT, LWW, LTT, LEX2 = 126976, 147456, 135168, 151552
LR = 101376
LO = 101376
LMX = 101376
LC = 163840 - 256
LDS_SIZE = 163840
C_AX, C_AEX, C_AT, C_AY, C_AP, C_A2D, C_Q, C_AU, C_ADONE, C_R1, C_R2, C_O, C_WO, C_FAIL, C_M1, C_M2, C_KV, C_AX2, C_G, C_W0, C_W1, C_W2, C_W3, C_YS, C_W4 = range(25)

M16 = "v_mfma_f32_16x16x32_bf16"
def mfma16(a, d, A, B, c=None):
    cs = "0" if c is None else vr(c, 4)
    a(f"{M16} {vr(d,4)}, {vr(A,4)}, {vr(B,4)}, {cs}")

sH, sQB, sW, sTAG, sWL = 3, 4, 5, 34, 35
SRD_A, SRD_B, SRD_WS, SRD_OUT, SRD_C, SRD_TAB = 36, 40, 44, 48, 52, 56
sX, sJ, sN2, sDQ = 60, 61, 62, 63
sPASS = 64
sFAST, sXCC, sFG, sG, sJ4 = 86, 87, 88, 89, 90
sHP = 86
sSIG, sMSK = 92, 93
sPM = 91
KSIG = 0x6A39E5C1
WSD = f"s[{SRD_WS}:{SRD_WS+3}]"
STAMPS = False
OPT = {}

class G:
    uid = 0
def lab(p):
    G.uid += 1
    return f"{p}_{G.uid}"

def arrive(a, c):
    a(f"s_mov_b64 exec, 1")
    a(f"ds_add_u32 v4, v5 offset:{4*c}")
    a(f"s_mov_b64 exec, -1")

def wait_cnt(a, c, target, starget=None, sleep=1):
    l = lab("wc")
    a("s_mov_b32 s69, 400000")
    a(f"{l}:")
    a(f"ds_read_b32 v6, v4 offset:{4*c}")
    a("s_waitcnt lgkmcnt(0)")
    a("v_readfirstlane_b32 s8, v6")
    a("s_sub_u32 s69, s69, 1")
    a(f"s_cmp_ge_u32 s8, {target if starget is None else 's'+str(starget)}")
    a(f"s_cbranch_scc1 {l}_d")
    a(f"s_sleep {sleep}")
    a("s_cmp_lg_u32 s69, 0")
    a(f"s_cbranch_scc1 {l}")
    a(f"{l}_d:")

def poll(a, vaddr, soff, mask, width=1, vt=8, sleep=4):
    l = lab("pl")
    a(f"s_mov_b32 s9, 20000")
    if mask != -1: a(f"s_mov_b32 exec_lo, {mask & 0xffffffff:#x}\ns_mov_b32 exec_hi, {mask >> 32:#x}")
    a(f"{l}:")
    sfx = {1: "", 2: "x2", 4: "x4"}[width]
    a(f"buffer_load_dword{sfx} {vr(vt,width)}, v{vaddr}, {WSD}, {soff} offen sc1")
    a("s_waitcnt vmcnt(0)")
    if width == 1:
        a(f"v_cmp_ne_u32 vcc, s{sTAG}, v{vt}")
    else:
        for i in range(width): a(f"v_xor_b32 v{vt+i}, s{sTAG}, v{vt+i}")
        if width == 2: a(f"v_or_b32 v{vt}, v{vt}, v{vt+1}")
        else: a(f"v_or3_b32 v{vt}, v{vt}, v{vt+1}, v{vt+2}\nv_or_b32 v{vt}, v{vt}, v{vt+3}")
        a(f"v_cmp_ne_u32 vcc, 0, v{vt}")
    a(f"s_cbranch_vccz {l}_d")
    a(f"s_sleep {sleep}")
    a("s_sub_u32 s9, s9, 1")
    a("s_cmp_lg_u32 s9, 0")
    a(f"s_cbranch_scc1 {l}")
    a(f"{l}_d:")
    if mask != -1: a("s_mov_b64 exec, -1")

def both(a, f):
    l = lab("bm")
    a(f"s_cmp_lg_u32 s{sFAST}, 0\ns_cbranch_scc1 {l}_f")
    f("sc1")
    a(f"s_branch {l}_d")
    a(f"{l}_f:")
    f("")
    a(f"{l}_d:")

def flag_store(a, soff, local=False):
    a("s_mov_b64 exec, 1")
    a(f"v_mov_b32 v6, s{sTAG}\nv_mov_b32 v7, 0")
    f = lambda m: a(f"buffer_store_dword v6, v7, {WSD}, s{soff} offen {m}")
    if local: both(a, f)
    else: f("sc1")
    a("s_mov_b64 exec, -1")

def gbar_wait(a, k, fbase, cnt, vt):
    l = lab("gb")
    a(f"s_cmp_lg_u32 s{sWL}, 0\ns_cbranch_scc1 {l}_w")
    a(f"s_add_u32 s10, s{sFG}, {FG_F2 + 128*k}")
    a(f"s_cmp_lg_u32 s{sJ}, 0\ns_cbranch_scc1 {l}_m")
    a(f"s_mov_b32 s12, {fbase}")
    poll(a, 3, "s12", -1, width=4, vt=vt, sleep=OPT.get("lsleep", 2))
    flag_store(a, 10, local=True)
    a(f"s_branch {l}_a")
    a(f"{l}_m:")
    a(f"s_cmp_lg_u32 s{sFAST}, 0\ns_cbranch_scc1 {l}_f")
    a("v_mov_b32 v7, 0")
    poll(a, 7, "s10", 1, width=1, vt=vt, sleep=8)
    a(f"s_branch {l}_a")
    a(f"{l}_f:")
    a("s_mov_b32 s9, 40000")
    a(f"{l}_fl:")
    a(f"s_buffer_load_dword s8, {WSD}, s10 glc")
    a("s_waitcnt lgkmcnt(0)")
    a(f"s_cmp_eq_u32 s8, s{sTAG}\ns_cbranch_scc1 {l}_a")
    a(f"s_sleep {OPT.get('psleep', 2)}")
    a(f"s_sub_u32 s9, s9, 1\ns_cmp_lg_u32 s9, 0\ns_cbranch_scc1 {l}_fl")
    a(f"{l}_a:")
    arrive(a, cnt)
    a(f"{l}_w:")
    wait_cnt(a, cnt, 1)

def set_tag(a, keep=None):
    a(f"v_readfirstlane_b32 s{sTAG}, v2")
    a(f"s_mov_b32 s{sMSK}, 0x00030003")
    a("s_nop 1")
    a(f"s_add_u32 s{sTAG}, s{sTAG}, 1")
    if keep is not None: a(f"s_mov_b32 s{keep}, s{sTAG}")
    a(f"s_bitcmp1_b32 s{sTAG}, 0\ns_cselect_b32 s{sSIG}, {KSIG:#x}, {KSIG ^ 0xffffffff:#x}") if False else None
    a(f"s_bfe_i32 s{sSIG}, s{sTAG}, 0x10000")
    a(f"s_xor_b32 s{sSIG}, s{sSIG}, {KSIG:#x}")
    a(f"s_mul_i32 s{sTAG}, s{sTAG}, 0x9E3779B1")

def sig_regs(a, d, hi=False):
    if hi: a(f"v_lshrrev_b32 v{d}, 4, v1")
    else: a(f"v_and_b32 v{d}, 3, v1")
    a(f"v_lshlrev_b32 v{d}, 2, v{d}")
    a(f"v_lshrrev_b32 v{d}, v{d}, s{sSIG}")

def sign(a, r0, n, sg):
    for r in range(0, n, 4): a(f"v_bfi_b32 v{r0+r}, s{sMSK}, v{sg}, v{r0+r}")

def check(a, r0, n, sg, acc, first=True):
    for r in range(0, n, 2):
        a(f"v_xor_b32 v{acc+1}, v{r0+r}, v{sg + r % 4}")
        a(f"v_xor_b32 v{acc+2}, v{r0+r+1}, v{sg + (r+1) % 4}")
        if first and r == 0: a(f"v_or_b32 v{acc}, v{acc+1}, v{acc+2}")
        else: a(f"v_or3_b32 v{acc}, v{acc}, v{acc+1}, v{acc+2}")

def fx_load(a, vd, va):
    a(f"v_and_b32 v{va}, 31, v1\nv_lshlrev_b32 v{va}, 2, v{va}")
    a(f"buffer_load_dword v{vd}, v{va}, {WSD}, s{sFG} offen sc1")

def fx_eval(a, vd, va):
    l = lab("fx")
    a("s_mov_b32 s9, 20000")
    a(f"{l}:")
    a(f"v_subrev_u32 v{vd}, s{sTAG}, v{vd}")
    a(f"v_cmp_lt_u32 vcc, 14, v{vd}")
    a(f"s_cbranch_vccz {l}_d")
    a("s_sleep 4")
    a(f"buffer_load_dword v{vd}, v{va}, {WSD}, s{sFG} offen sc1")
    a("s_waitcnt vmcnt(0)")
    a("s_sub_u32 s9, s9, 1")
    a("s_cmp_lg_u32 s9, 0")
    a(f"s_cbranch_scc1 {l}")
    a(f"{l}_d:")
    a(f"v_cmp_ne_u32 vcc, s{sXCC}, v{vd}")
    a("s_nop 0")
    a("s_cmp_eq_u64 vcc, 0")
    a(f"s_cselect_b32 s{sFAST}, {0 if OPT.get('slow') else 1}, 0")

def stamp(a, idx):
    if not STAMPS: return
    a(f"s_memrealtime s[94:95]" if STAMPS in ("rt", "dbg", "amp") else f"s_memtime s[94:95]")
    a("s_waitcnt lgkmcnt(0)")
    a(f"s_mov_b32 s{70+idx}, s94")

def stamp_out(a, n, who="B"):
    if not STAMPS: return
    a("s_waitcnt vmcnt(0) lgkmcnt(0)")
    if STAMPS == "amp":
        w, j = OPT["amp"]
        if who != w: return
        l = lab("amp")
        stamp(a, 6)
        a(f"s_cmp_lg_u32 s{sWL}, 0\ns_cbranch_scc1 {l}_d")
        a(f"s_sub_u32 s8, s{70+j}, s70\ns_min_u32 s8, s8, 10000\ns_mul_i32 s8, s8, 10\ns_add_u32 s8, s8, s76\ns_mov_b32 s9, 100000")
        a(f"{l}:")
        a("s_sleep 8\ns_memrealtime s[94:95]\ns_waitcnt lgkmcnt(0)")
        a(f"s_sub_u32 s10, s94, s8\ns_cmp_ge_i32 s10, 0\ns_cbranch_scc1 {l}_d")
        a(f"s_sub_u32 s9, s9, 1\ns_cmp_lg_u32 s9, 0\ns_cbranch_scc1 {l}")
        a(f"{l}_d:")
        return
    if STAMPS == "dbg":
        if who == "A": stamp(a, 6)
        srd(a, SRD_C, S_DBG, 256)
        a("v_mov_b32 v7, 0\ns_mov_b64 exec, 1")
        a("s_not_b32 s8, s70\nv_mov_b32 v6, s8")
        a(f"buffer_atomic_umax v6, v7, s[{SRD_C}:{SRD_C+3}], 0 offen sc1")
        M = {"B": {1: 0, 2: 11, 3: 1, 4: 3, 5: 4, 6: 8, 7: 10}, "A": {8: 8, 9: 3, 10: 10, 11: 14, 12: 15, 13: 9, 14: 6}}[who]
        for k, v in M.items():
            a(f"v_mov_b32 v{8+k}, s{70+v}")
            a(f"buffer_atomic_umax v{8+k}, v7, s[{SRD_C}:{SRD_C+3}], 0 offen offset:{4*k} sc1")
        a("s_mov_b64 exec, -1")
        return
    a(f"s_lshl_b32 s10, s2, 9\ns_lshl_b32 s11, s{sW}, 6\ns_add_u32 s10, s10, s11\ns_add_u32 s10, s10, {WS_STAMP}")
    a("v_mov_b32 v7, 0\ns_mov_b64 exec, 1")
    for i in range(n):
        a(f"v_mov_b32 v6, s{70+i}")
        a(f"buffer_store_dword v6, v7, {WSD}, s10 offen offset:{4*i}")
    a("s_mov_b64 exec, -1")

def gen_E(a, lanev, hhv, n2s, mode, outs, tmp):
    t0, t1, t2, t3, t4, t5 = range(tmp, tmp + 6)
    if mode == 'a1':
        a(f"v_cvt_f32_u32 v{t0}, v{lanev}")
        a(f"v_mul_f32 v{t0}, {f32_bits(1/2048):#x}, v{t0}")
        a(f"v_lshlrev_b32 v{t1}, 8, v{hhv}")
        a(f"v_add_u32 v{t1}, s{n2s}, v{t1}")
        a(f"v_cvt_f32_u32 v{t1}, v{t1}")
        offs = lambda t, j: 64 * (16 * t + 8 * (j // 4) + j % 4)
    else:
        a(f"v_lshlrev_b32 v{t0}, 6, v{lanev}")
        a(f"v_add_u32 v{t0}, s{n2s}, v{t0}")
        a(f"v_cvt_f32_u32 v{t0}, v{t0}")
        a(f"v_mul_f32 v{t0}, {f32_bits(1/2048):#x}, v{t0}")
        a(f"v_lshlrev_b32 v{t1}, 3, v{hhv}")
        a(f"v_cvt_f32_u32 v{t1}, v{t1}")
        offs = lambda t, j: 16 * t + j
    a(f"v_mul_f32 v{t1}, v{t1}, v{t0}")
    for t in range(2):
        for jp in range(4):
            for e in range(2):
                a(f"v_fmamk_f32 v{t2+e}, v{t0}, {f32_bits(float(offs(t, 2*jp+e))):#x}, v{t1}")
            a(f"v_cos_f32 v{t4}, v{t2}")
            a(f"v_cos_f32 v{t5}, v{t3}")
            a(f"v_sin_f32 v{t2}, v{t2}")
            a(f"v_sin_f32 v{t3}, v{t3}")
            a(f"v_cvt_pk_bf16_f32 v{outs['C']+4*t+jp}, v{t4}, v{t5}")
            if 'S' in outs:
                a(f"v_cvt_pk_bf16_f32 v{outs['S']+4*t+jp}, v{t2}, v{t3}")
                a(f"v_xor_b32 v{outs['NS']+4*t+jp}, 0x80008000, v{outs['S']+4*t+jp}")
            else:
                a(f"v_cvt_pk_bf16_f32 v{outs['Sx']+4*t+jp}, v{t2}, v{t3}")
                a(f"v_xor_b32 v{outs['Sx']+4*t+jp}, s13, v{outs['Sx']+4*t+jp}")


def sg_regs(a, d):
    sig_regs(a, d)
    a("s_mov_b32 exec_lo, 0x10000000\ns_mov_b32 exec_hi, 0x10000000")
    a(f"v_mov_b32 v{d}, 0")
    a("s_mov_b64 exec, -1")

def build_kernel():
    a = Asm()
    a(f""".globl {NAME}
.p2align 8
.type {NAME},@function
{NAME}:""")
    a("s_cmp_ge_u32 s2, 256\ns_cbranch_scc1 k_end")
    a("v_lshrrev_b32 v2, 6, v0")
    a("v_and_b32 v1, 63, v0")
    a(f"v_readfirstlane_b32 s{sW}, v2")
    a(f"v_mov_b32 v4, {LC}\nv_mov_b32 v5, 1")
    a(f"s_cmp_ge_u32 s{sW}, 4\ns_cbranch_scc1 a_pre")
    def kload():
        a("s_load_dwordx16 s[16:31], s[0:1], 0")
        a("s_load_dwordx2 s[32:33], s[0:1], 64")
    def common():
        if STAMPS:
            for i in range(16): a(f"s_mov_b32 s{70+i}, 0")
            a("s_memrealtime s[92:93]")
        a(f"""s_and_b32 s{sX}, s2, 7
s_lshr_b32 s{sJ}, s2, 3
s_and_b32 s15, s{sJ}, 1
s_and_b32 s{sJ4}, s{sJ}, 3
s_lshr_b32 s{sH}, s{sX}, 1
s_lshl_b32 s{sH}, s{sH}, 2
s_add_u32 s{sH}, s{sH}, s{sJ4}
s_lshr_b32 s{sHP}, s{sH}, 1
s_and_b32 s{sQB}, s{sX}, 1
s_lshl_b32 s{sQB}, s{sQB}, 3
s_lshr_b32 s6, s{sJ}, 2
s_add_u32 s{sQB}, s{sQB}, s6""")
        a("v_lshlrev_b32 v3, 4, v1")
        a(f"s_and_b32 s{sWL}, s{sW}, 3")
        a(f"""s_lshl_b32 s11, s{sWL}, 12
s_lshl_b32 s12, s{sWL}, 11
s_lshl_b32 s9, s{sX}, 2
s_add_u32 s{sN2}, s9, s{sJ4}
v_and_b32 v8, 31, v1
v_lshrrev_b32 v9, 5, v1""")
    kload()
    a("s_branch b_go")
    a("a_pre:")
    a(f"s_cmp_lg_u32 s{sW}, 4\ns_cbranch_scc1 k_nz")
    a(f"v_lshl_add_u32 v6, v1, 2, v4\nv_mov_b32 v7, 0")
    a(f"s_mov_b64 exec, {-1}\nds_write_b32 v6, v7\ns_mov_b64 exec, -1")
    a(f"s_lshr_b32 s{sJ}, s2, 3")
    if OPT.get("cpf", 1):
        srd_table(a, SRD_TAB, NAME, "k_end-" + NAME)
        a(f"s_and_b32 s8, s{sJ}, 7\ns_lshl_b32 s8, s8, 13\nv_lshlrev_b32 v6, 7, v1")
        a(f"buffer_load_dword v245, v6, s[{SRD_TAB}:{SRD_TAB+3}], s8 offen")
    a("s_waitcnt lgkmcnt(0)")
    a("k_nz:")
    a("s_barrier")
    kload()
    a("s_branch a_wave")
    a("b_go:")
    if OPT.get("b0prio"): a(f"s_setprio {OPT['b0prio']}")
    common()

    a(f"""s_lshl_b32 s6, s{sJ4}, 1
s_add_u32 s14, s{sQB}, s6
s_mul_i32 s6, s14, 37
s_lshr_b32 s6, s6, 8
s_mul_i32 s6, s6, 7
s_sub_u32 s14, s14, s6""")
    XO, WOF, VWQ, VXA = 10, 14, 15, 16
    a("""v_lshrrev_b32 v6, 3, v1
v_and_b32 v100, 7, v1
v_lshrrev_b32 v101, 1, v6
v_xor_b32 v101, v101, v100
v_mul_u32_u24 v102, 896, v6""")
    a(f"""v_lshl_add_u32 v{XO}, v101, 4, v102
v_mul_u32_u24 v103, 57344, v6
v_lshl_add_u32 v{VXA}, v101, 4, v103
s_and_b32 s8, s{sWL}, 1
s_lshl_b32 s8, s8, 6
v_xor_b32 v{VXA}, s8, v{VXA}
v_xor_b32 v101, 4, v101
v_lshl_add_u32 v{XO+1}, v101, 4, v102
v_add_u32 v{XO+1}, {8*896}, v{XO+1}
v_add_u32 v{XO+2}, {16*896}, v{XO}
v_add_u32 v{XO+3}, {16*896}, v{XO+1}""")
    a(f"""v_bfe_u32 v101, v1, 4, 1
v_lshlrev_b32 v101, 2, v101
v_xor_b32 v101, v101, v100
v_min_u32 v101, 6, v101
v_mul_u32_u24 v102, 2688, v6
v_lshl_add_u32 v{WOF}, v101, 4, v102
v_lshrrev_b32 v6, 2, v1
v_mul_u32_u24 v6, 2688, v6
v_and_b32 v101, 3, v1
v_lshl_add_u32 v{VWQ}, v101, 4, v6""")
    a(f"""s_lshl_b32 s6, s{sQB}, 7
s_lshl_b32 s7, s{sWL}, 5
s_add_u32 s6, s6, s7
s_mul_i32 s6, s6, 896
s_mul_i32 s7, s{sWL}, {16*2688}
s_mul_i32 s8, s15, 896
s_add_u32 s7, s7, s8
s_mul_i32 s8, s{sHP}, 112
s_add_u32 s7, s7, s8
s_add_u32 s7, s7, 896
s_mul_i32 s66, s{sWL}, {16*2688}
s_mul_i32 s8, s{sH}, 56
s_add_u32 s66, s66, s8
s_lshl_b32 s65, s{sWL}, 10
s_lshl_b32 s68, s{sX}, 3
s_and_b32 s8, s{sJ}, 7
s_add_u32 s68, s68, s8
s_mul_i32 s68, s68, 896
s_mul_i32 s8, s{sWL}, {8*57344}
s_add_u32 s68, s68, s8
v_mov_b32 v7, 0""")
    a(f"s_lshr_b32 s13, s{sJ}, 3\ns_lshl_b32 s13, s13, 1")
    srd_table(a, SRD_TAB, NAME, 64)
    VWA = 18
    a("v_mov_b32 v19, 0")
    a(f"""v_lshrrev_b32 v6, 2, v1
s_lshl_b32 s8, s{sWL}, 4
v_add_u32 v6, s8, v6
v_lshlrev_b32 v6, 5, v6
v_add_u32 v6, s{sN2}, v6
v_mul_u32_u24 v6, 450, v6
v_and_b32 v{VWA}, 3, v1
v_lshlrev_b32 v{VWA}, 4, v{VWA}
s_lshr_b32 s9, s{sJ}, 2
s_mul_i32 s9, s9, 56
v_add3_u32 v{VWA}, v6, v{VWA}, s9""")
    a("s_barrier")
    a("s_waitcnt lgkmcnt(0)")
    srd(a, SRD_C, S_AX, 2048 * 896)
    srd(a, SRD_WS, S_WS, WS_SIZE)
    if STAMPS: a("s_mov_b32 s70, s92")
    def xa():
        a(f"s_lshl_b32 s10, s89, 7\ns_add_u32 s10, s10, s68\ns_lshl_b32 s9, s89, 12\ns_add_u32 s9, s9, s65")
        a(f"s_add_u32 m0, s9, {LXA}\ns_add_u32 s89, s89, 1")
        a(f"buffer_load_dwordx4 v{VXA}, s[{SRD_C}:{SRD_C+3}], s10 offen lds")
        a("s_cmp_eq_u32 s89, 7\ns_cselect_b32 s89, 0, s89")
        Q1.append("xa")
    def wa():
        for k, ptr in enumerate((S_WR, S_WI)):
            srd(a, SRD_OUT, ptr, 2048 * 450 + 2)
            a(f"s_add_u32 m0, s12, {LWW + k*1024}\ns_nop 0")
            a(f"buffer_load_dwordx4 v{VWA}, s[{SRD_OUT}:{SRD_OUT+3}], 0 offen lds")
            Q1.append("wa")
    def tlbw():
        sh = OPT.get("tsh", 16)
        a(f"""s_cmp_eq_u32 s{sWL}, 0
s_cselect_b32 s{SRD_OUT}, s{S_WR}, s{S_WI}
s_cselect_b32 s{SRD_OUT+1}, s{S_WR+1}, s{S_WI+1}
s_mov_b32 s{SRD_OUT+2}, {2048*450}
s_mov_b32 s{SRD_OUT+3}, 0x20000
s_cmp_eq_u32 s{sWL}, 2
s_cselect_b32 s{SRD_OUT}, s{S_OUT}, s{SRD_OUT}
s_cselect_b32 s{SRD_OUT+1}, s{S_OUT+1}, s{SRD_OUT+1}
s_cselect_b32 s{SRD_OUT+2}, {2048*1792}, s{SRD_OUT+2}
s_cmp_eq_u32 s{sWL}, 3
s_cselect_b32 s{SRD_OUT}, s{S_WS}, s{SRD_OUT}
s_cselect_b32 s{SRD_OUT+1}, s{S_WS+1}, s{SRD_OUT+1}
s_cselect_b32 s{SRD_OUT+2}, {WS_SIZE}, s{SRD_OUT+2}
s_cselect_b32 s8, 19, {sh}
v_lshlrev_b32 v19, s8, v1""")
        a(f"buffer_load_dword v31, v19, s[{SRD_OUT}:{SRD_OUT+3}], 0 offen")
        Q1.append("tw")
    def wpf():
        a(f"""s_bitcmp1_b32 s{sWL}, 0
s_cselect_b32 s{SRD_OUT}, s{S_WI}, s{S_WR}
s_cselect_b32 s{SRD_OUT+1}, s{S_WI+1}, s{S_WR+1}
s_mov_b32 s{SRD_OUT+2}, {2048*450}
s_mov_b32 s{SRD_OUT+3}, 0x20000
s_lshl_b32 s9, s{sJ}, 1
s_lshr_b32 s10, s{sWL}, 1
s_add_u32 s9, s9, s10
s_lshl_b32 s9, s9, 3
s_add_u32 s9, s9, s{sX}
s_mul_i32 s9, s9, 1800
v_mul_u32_u24 v19, 120, v1
s_mov_b64 exec, 0xffff""")
        a(f"buffer_load_ushort v31, v19, s[{SRD_OUT}:{SRD_OUT+3}], s9 offen")
        a("s_mov_b64 exec, -1")
        srd(a, SRD_OUT, S_OUT, 2048 * 1792)
        Q1.append("vp")
    def xflag():
        a(f"s_mov_b32 m0, {LC + 4*C_EP}\ns_mov_b32 s9, {WS_EP}\ns_mov_b64 exec, 1")
        a(f"buffer_load_dword v7, {WSD}, s9 offen sc1 lds")
        Q1.append("ea")
        a(f"s_lshl_b32 s9, s{sWL}, 2\ns_add_u32 m0, s9, {LC + 4*C_XF}\ns_nop 0")
        a(f"buffer_load_dword v7, s[{SRD_TAB}:{SRD_TAB+3}], 0 offen lds")
        a("s_mov_b64 exec, -1")
        Q1.append("xf")
    def wopf():
        l = lab("wp")
        if OPT.get("b3m"):
            srd(a, SRD_OUT, S_WO, 448 * 896)
            a(f"v_lshlrev_b32 v19, 7, v1\ns_mul_i32 s9, s{sJ}, 12544\ns_mul_i32 s8, s{sWL}, 3200\ns_add_u32 s9, s9, s8\ns_mov_b64 exec, 0x1ffffff")
            a(f"buffer_load_dword v31, v19, s[{SRD_OUT}:{SRD_OUT+3}], s9 offen")
            a("s_mov_b64 exec, -1")
            Q1.append("wp")
            return
        a(f"s_cmp_lg_u32 s{sWL}, 3\ns_cbranch_scc1 {l}")
        srd(a, SRD_OUT, S_WO, 448 * 896)
        a(f"""v_lshrrev_b32 v19, 2, v1
v_mul_u32_u24 v19, 896, v19
v_and_b32 v31, 3, v1
v_mul_u32_u24 v31, 72, v31
v_add_u32 v19, v19, v31
s_mul_i32 s9, s{sJ}, {14*896}
s_lshr_b32 s8, s{sH}, 2
s_mul_i32 s8, s8, 224
s_add_u32 s9, s9, s8
s_mov_b32 exec_hi, 0xffffff""")
        a(f"buffer_load_dword v31, v19, s[{SRD_OUT}:{SRD_OUT+3}], s9 offen")
        a(f"s_mov_b64 exec, -1\ns_branch {l}_d")
        a(f"{l}:")
        a(f"s_mov_b64 exec, 1\nbuffer_load_dword v31, v7, s[{SRD_TAB}:{SRD_TAB+3}], 0 offen\ns_mov_b64 exec, -1")
        a(f"{l}_d:")
        Q1.append("wp")
    a("s_mov_b32 s89, s13")
    Q1 = []
    def vw1(tag):
        a(f"s_waitcnt vmcnt({len(Q1) - 1 - max(i for i, t in enumerate(Q1) if t == tag)})")
    srd(a, SRD_A, S_BX, 2048 * 896)
    srd(a, SRD_B, S_WQKV, 448 * 2688)
    XSL = [0, 1, 0, 1, 0, 1, 0]
    def sig_c(c):
        if c == 0: a("s_mov_b32 s13, s14")
        else: a(f"s_add_u32 s13, s14, {c}\ns_sub_u32 s10, s13, 7\ns_cmp_ge_u32 s13, 7\ns_cselect_b32 s13, s10, s13")
    def dx(c):
        sig_c(c)
        a("s_lshl_b32 s10, s13, 7\ns_add_u32 s10, s10, s6")
        for k in range(4):
            if XSL[c] == 2: a(f"s_add_u32 m0, s12, {LW + (4+k//2)*8192 + (k%2)*1024}\ns_nop 0")
            else: a(f"s_add_u32 m0, s11, {LX + XSL[c]*16384 + k*1024}\ns_nop 0")
            a(f"buffer_load_dwordx4 v{XO+k}, s[{SRD_A}:{SRD_A+3}], s10 offen lds")
        Q1.extend([f"x{c}"] * 4)
    def dw(c):
        sig_c(c)
        a(f"s_mul_i32 s13, s13, {64*2688}\ns_add_u32 s13, s13, s7")
        a(f"s_add_u32 m0, s12, {LW + c*8192}\ns_add_u32 s10, s13, {8*2688}")
        a(f"buffer_load_dwordx4 v{WOF}, s[{SRD_B}:{SRD_B+3}], s13 offen lds")
        a(f"s_add_u32 m0, s12, {LW + c*8192 + 1024}\ns_nop 0")
        a(f"buffer_load_dwordx4 v{WOF}, s[{SRD_B}:{SRD_B+3}], s10 offen lds")
        Q1.extend([f"w{c}"] * 2)
    def dq(c):
        sig_c(c)
        a(f"s_mul_i32 s13, s13, {64*2688}\ns_add_u32 s13, s13, s66\ns_add_u32 m0, s65, {LWQ + c*4096}\ns_nop 0")
        a(f"buffer_load_dwordx4 v{VWQ}, s[{SRD_B}:{SRD_B+3}], s13 offen lds")
        Q1.append("q")
    def epl():
        a(f"s_mov_b32 s9, {WS_EP}")
        a(f"buffer_load_dword v2, v7, {WSD}, s9 offen sc1")
        Q1.append("ep")
    SCH = OPT.get("sch", {-1: "a a a a a a a F x0 w0 e x1 w1", 0: "x2 w2", 1: "x3 w3", 2: "x4 w4", 3: "x5 w5", 4: "x6 w6", 5: "q W"})
    def issue(c):
        for t in SCH.get(c, "").split():
            if t[0] == "x": dx(int(t[1]))
            elif t[0] == "w": dw(int(t[1]))
            elif t == "e": epl()
            elif t == "q":
                for u in range(7): dq(u)
            elif t[0] == "q":
                for u in t[1:]: dq(int(u))
            elif t == "S": stamp(a, 5)
            elif t == "T": tlbw()
            elif OPT.get("noA"): pass
            elif t == "a": xa()
            elif t == "W": wa()
            elif t == "F": xflag()
            elif t == "P": wopf()
            elif t == "V": wpf()
    issue(-1)
    a(f"""v_and_b32 v6, 31, v1
v_lshrrev_b32 v113, 5, v1
v_bfe_u32 v116, v6, 1, 3
v_lshlrev_b32 v6, 7, v6
v_add_u32 v6, s11, v6""")
    for t in range(4):
        a(f"v_add_u32 v117, {2*t}, v113\nv_xor_b32 v117, v117, v116\nv_lshl_add_u32 v{20+t}, v117, 4, v6")
    a(f"""v_lshlrev_b32 v6, 3, v113
v_bfe_u32 v114, v1, 2, 2
v_add_u32 v6, v6, v114
v_and_b32 v114, 1, v1
v_lshlrev_b32 v114, 5, v114
v_bfe_u32 v117, v1, 4, 1
v_lshl_add_u32 v114, v117, 4, v114
v_bfe_u32 v117, v1, 1, 1
v_lshl_add_u32 v114, v117, 3, v114
v_lshl_add_u32 v26, v6, 6, v114
v_add_u32 v26, {LWQ}, v26
v_bfe_u32 v117, v1, 3, 1
v_lshlrev_b32 v117, 6, v117
v_lshlrev_b32 v6, 7, v6
v_add_u32 v6, {LW}, v6
v_xor_b32 v115, v114, v117
v_add_u32 v24, v6, v115
v_add_u32 v114, 56, v114
v_xor_b32 v115, v114, v117
v_add_u32 v25, v6, v115""")
    srd(a, SRD_OUT, S_OUT, 2048 * 1792)
    ACC, QACC, WF, XR = 32, 40, 80, 144
    SGP = 27
    a("s_cmp_lg_u32 s15, 0\ns_cbranch_scc1 b_v")
    P = 64
    Q1base = list(Q1)
    WQC = OPT.get("wqc", 4)
    for ty in range(2):
        if ty: a("b_v:")
        Q1[:] = Q1base
        def rdx(c):
            for t in range(4): a(f"ds_read_b128 {vr(XR+16*c+4*t,4)}, v{20+t} offset:{XSL[c]*16384}")
        def rdw(c):
            wf = WF + 32 * (c % 2)
            for t in range(4):
                for seg in range(2):
                    for aa in range(2):
                        a(f"ds_read_b64_tr_b16 {vr(wf+8*t+4*seg+2*aa,2)}, v{24+seg} offset:{c*8192+(16*t+4*aa)*128}")
        def mm(c, t):
            wf = WF + 32 * (c % 2)
            first = (c == 0 and t == 0)
            for seg in range(2):
                if ty == 0: mfma(a, ACC+16*seg, wf+8*t+4*seg, XR+16*c+4*t, None if first else ACC+16*seg)
                else: mfma(a, ACC+16*seg, XR+16*c+4*t, wf+8*t+4*seg, None if first else ACC+16*seg)
        def vwx(c):
            i = max(i for i, t in enumerate(Q1) if t in (f"x{c}", f"w{c}"))
            a(f"s_waitcnt vmcnt({len(Q1) - 1 - i})")
        def nxt(c):
            a(f"ds_read_b32 v6, v4 offset:{4*C_W0}")
            issue(c)
            l = lab("cw")
            a(f"s_waitcnt lgkmcnt(0)\nv_readfirstlane_b32 s8, v6\ns_nop 1\ns_cmp_ge_u32 s8, {4*(c+1)}\ns_cbranch_scc1 {l}")
            wait_cnt(a, C_W0, 4 * (c + 1))
            a(f"{l}:")
            if c in (0, 1, 3, 5, 6) and not OPT.get("lst") and not OPT.get("qst"): stamp(a, 11 + (0, 1, 3, 5, 6).index(c))
            rdw(c)
        vwx(0)
        rdx(0)
        arrive(a, C_W0)
        a("s_waitcnt lgkmcnt(1)")
        nxt(0)
        for c in range(7):
            a("s_waitcnt lgkmcnt(12)")
            mm(c, 0)
            ex = 0
            if c < 6:
                vwx(c + 1)
                rdx(c + 1)
                arrive(a, C_W0)
                ex = 5
            a(f"s_waitcnt lgkmcnt({8+ex})")
            mm(c, 1)
            if c == 1:
                set_tag(a, 67)
                sg_regs(a, SGP)
            a(f"s_waitcnt lgkmcnt({4+ex})")
            mm(c, 2)
            a(f"s_waitcnt lgkmcnt({1 if c < 6 else 0})")
            mm(c, 3)
            if c < 6: nxt(c + 1)
        stamp(a, 1)
        a(f"""s_lshl_b32 s10, s{sHP}, 7
s_lshl_b32 s11, s{sQB}, 2
s_add_u32 s10, s10, s11
s_add_u32 s10, s10, s{sW}
s_lshl_b32 s10, s10, 11
s_add_u32 s87, s10, {WS_V if ty else WS_K}
s_add_u32 s88, s87, {64*2048}""")
        a.nop(5)
        for seg in range(2):
            for r in range(8):
                a(f"v_cvt_pk_bf16_f32 v{P+8*seg+r}, v{ACC+16*seg+2*r}, v{ACC+16*seg+2*r+1}")
        if ty == 0:
            a("s_mov_b32 exec_lo, 0")
            for seg in range(2): a(f"v_mov_b32 v{P+8*seg+6}, 0x3f803f80\nv_mov_b32 v{P+8*seg+7}, 0x3f80")
        else:
            a("s_mov_b32 exec_lo, 0xf0000000\ns_mov_b32 exec_hi, 0xf0000000")
            a("v_and_b32 v6, 3, v1\nv_cmp_eq_u32 vcc, 0, v6\nv_mov_b32 v6, 0x3f803f80\nv_cndmask_b32 v6, 0, v6, vcc")
            for r in range(16): a(f"v_mov_b32 v{P+r}, v6")
        a("s_mov_b64 exec, -1")
        if ty == 0: a("s_branch b_st1")
    a("b_st1:")
    a(f"s_setprio {OPT.get('bprio', 2)}")
    sign(a, P, 16, SGP)
    vw1("q")
    arrive(a, C_W3)
    a(f"s_add_u32 s10, s87, {WS_L}\ns_add_u32 s11, s88, {WS_L}")
    for seg in range(2):
        for t in range(2):
            a(f"buffer_store_dwordx4 {vr(P+8*seg+4*t,4)}, v3, {WSD}, s{10+seg} offen offset:{t*1024}")
    a(f"s_lshl_b32 s13, s{sW}, 12\ns_add_u32 s13, s13, {LKV}\nv_add_u32 v7, s13, v3")
    for u in range(4): a(f"ds_write_b128 v7, {vr(P+4*u,4)} offset:{u*1024}")
    G4 = 248
    GG = lambda u: G4 + 4 * (u % 2) * OPT.get("g2", 0)
    def g_rd(u): a(f"ds_read_b128 {vr(GG(u),4)}, v7 offset:{u*1024}")
    def g_st(u):
        a("s_waitcnt lgkmcnt(0)")
        a(f"buffer_store_dwordx4 {vr(GG(u),4)}, v3, {WSD}, s{87+u//2} offen offset:{(u%2)*1024} sc1")
    def st_glob():
        for u in range(4):
            a("s_waitcnt vmcnt(0)")
            g_rd(u); g_st(u)
    stamp(a, 2)
    a(f"s_mov_b32 s10, {f32_bits(QSCALE):#x}\ns_mov_b32 s11, s10")
    a(f"s_lshl_b32 s13, s{sW}, 12\ns_add_u32 s13, s13, {LQ}\nv_add_u32 v31, s13, v3")
    a(f"""s_lshl_b32 s12, s{sQB}, 2
s_lshl_b32 s13, s{sW}, 3
s_add_u32 s12, s12, s13
s_lshl_b32 s15, s{sH}, 17
s_and_b32 s13, s{sX}, 1
s_lshl_b32 s13, s13, 16
s_add_u32 s15, s15, s13
s_xor_b32 s68, s15, 0x10000
s_add_u32 s15, s15, {WS_L}
s_mov_b32 s{sPASS}, 0
s_mov_b32 s66, 4
s_mov_b32 s14, 20000""")
    wait_cnt(a, C_W3, 4)
    if OPT.get("qst"): stamp(a, 11)
    NB = 5
    Q, O, S, Pp, MX, TMP, KV, SG, CT = 8, 40, 104, 136, 152, 156, 160, 240, 244
    def load_kv(t, force=False):
        buf = t % NB
        md = "sc1" if (force or (OPT.get("kl", "sc1") if t < 8 else OPT.get("kr", "")) == "sc1") else ""
        a(f"s_add_u32 s8, s12, {t%8}\ns_and_b32 s8, s8, 31\ns_lshl_b32 s8, s8, 11\ns_add_u32 s8, s8, s{15 if t < 8 else 68}\ns_add_u32 s9, s8, {WS_V}")
        for u in range(2):
            a(f"buffer_load_dwordx4 {vr(KV+16*buf+4*u,4)}, v3, {WSD}, s8 offen offset:{u*1024} {md}")
        for u in range(2):
            a(f"buffer_load_dwordx4 {vr(KV+16*buf+8+4*u,4)}, v3, {WSD}, s9 offen offset:{u*1024} {md}")
    WQ = 96
    def rdq(c):
        for t in range(4):
            for aa in range(2):
                a(f"ds_read_b64_tr_b16 {vr(WQ+16*(c%3)+4*t+2*aa,2)}, v26 offset:{c*4096+(16*t+4*aa)*64}")
    rdq(0); rdq(1)
    KVP = OPT.get("kvp", 4)
    for c in range(7):
        a(f"s_waitcnt lgkmcnt({8 if c < 6 else 0})")
        for t in range(4):
            mfma(a, QACC, WQ+16*(c%3)+4*t, XR+16*c+4*t, None if (c == 0 and t == 0) else QACC)
        if c + 2 < 7: rdq(c + 2)
        if c == KVP: load_kv(0)
        if c == min(KVP + 1, 6): load_kv(1)
    if OPT.get("qst"): stamp(a, 12)
    arrive(a, C_KV)
    a(f"v_mov_b32 v{SG}, v{SGP}")
    a.nop(9)
    QW = Q + 24
    for r in range(8): a(f"v_pk_mul_f32 {vr(QACC+2*r,2)}, {vr(QACC+2*r,2)}, s[10:11]")
    for r in range(8): a(f"v_cvt_pk_bf16_f32 v{QW+r}, v{QACC+2*r}, v{QACC+2*r+1}")
    a(f"s_mov_b32 exec_lo, 0\nv_mov_b32 v{QW+6}, 0\nv_mov_b32 v{QW+7}, 0\ns_mov_b64 exec, -1")
    for t in range(2): a(f"ds_write_b128 v31, {vr(QW+4*t,4)} offset:{t*1024}")
    a("s_waitcnt lgkmcnt(0)")
    arrive(a, C_Q)
    if OPT.get("qst"): stamp(a, 14)
    def rot(sl, dst, sh, base):
        a(f"s_add_u32 s{dst}, s{sW}, {1+sl}\ns_and_b32 s{dst}, s{dst}, 3\ns_lshl_b32 s{dst}, s{dst}, {sh}\ns_add_u32 s{dst}, s{dst}, {base}")
    def getq():
        l = lab("gq")
        a(f"s_cmp_lg_u32 s{sPASS}, 0\ns_cbranch_scc1 {l}")
        wait_cnt(a, C_Q, 4)
        stamp(a, 3)
        for q in range(3):
            rot(q, 8, 12, LQ)
            a(f"v_add_u32 v{TMP+q}, s8, v3")
            for t in range(2): a(f"ds_read_b128 {vr(Q+8*q+4*t,4)}, v{TMP+q} offset:{t*1024}")
        a("s_waitcnt lgkmcnt(0)")
        arrive(a, C_M2)
        a(f"{l}:")
    a("s_branch b_main2")
    a("b_main:")
    load_kv(0); load_kv(1)
    a("b_main2:")
    NQ = OPT.get("nq", 3)
    seq = [(0, 3), (1, 3), (0, 0), (0, 1), (0, 2), (1, 0), (1, 1), (1, 2)]
    seq += [(t, q) for t in range(2, 16 - NQ) for q in range(4)] + [(t, q) for q in range(4) for t in range(16 - NQ, 16)]
    firstq = {}
    for i, (t, q) in enumerate(seq): firstq.setdefault(q, i)
    retries = []
    issued = [1]
    BQ = [0] * 4 + [1] * 4
    gdone = [False]
    def chk(t):
        b = KV + 16 * (t % NB)
        a(f"s_waitcnt vmcnt({len(BQ) - 1 - max(i for i, x in enumerate(BQ) if x == t)})")
        if OPT.get("nochk"): return
        l = f"b_chk{t}"
        a(f"{l}:")
        a(f"v_bitop3_b32 v{CT}, v{b}, v{b+4}, v{SG} bitop3:0x7e")
        a(f"v_bitop3_b32 v{CT+1}, v{b+8}, v{b+12}, v{SG} bitop3:0x7e")
        a(f"v_bitop3_b32 v{CT}, v{CT}, s{sMSK}, v{CT+1} bitop3:0xc8")
        a(f"v_cmp_ne_u32 vcc, 0, v{CT}")
        a(f"s_cbranch_vccnz {l}_r")
        a(f"{l}_d:")
        retries.append((t, issued[0], l, gdone[0]))
    def step(i, extra=None):
        t, q = seq[i]
        par = i % 2
        Sc, Sn = S + 16 * par, S + 16 * (1 - par)
        Pc, Pv = Pp + 8 * par, Pp + 8 * (1 - par)
        ms = [None] * 4
        if i + 1 < len(seq):
            nt, nq = seq[i + 1]; nb = KV + 16 * (nt % NB)
            ms[0] = lambda: mfma(a, Sn, nb, Q+8*nq, None)
            ms[1] = lambda: mfma(a, Sn, nb+4, Q+8*nq+4, Sn)
        if i > 0:
            pt, pq = seq[i - 1]; pb = KV + 16 * (pt % NB)
            ms[2] = lambda: mfma(a, O+16*pq, pb+8, Pv, None if firstq[pq] == i - 1 else O+16*pq)
            ms[3] = lambda: mfma(a, O+16*pq, pb+12, Pv+4, O+16*pq)
        for g in range(4):
            if ms[g]: ms[g]()
            if extra and extra[g]: extra[g]()
            for e in range(4): a(f"v_exp_f32 v{Sc+4*g+e}, v{Sc+4*g+e}")
            a(f"v_cvt_pk_bf16_f32 v{Pc+2*g}, v{Sc+4*g}, v{Sc+4*g+1}")
            a(f"v_cvt_pk_bf16_f32 v{Pc+2*g+1}, v{Sc+4*g+2}, v{Sc+4*g+3}")
    chk(0)
    if OPT.get("qst"): stamp(a, 15)
    mfma(a, S, KV, QW, None)
    mfma(a, S, KV+4, QW+4, S)
    load_kv(2); issued[0] = 2; BQ.extend([2] * 4)
    a.nop(3)
    checked = {0}
    last_use = {}
    for i, (t, q) in enumerate(seq): last_use[t] = i
    fin = {}
    for i, (t, q) in enumerate(seq): fin[q] = i
    for i in range(len(seq)):
        if i + 1 < len(seq) and seq[i + 1][0] not in checked:
            chk(seq[i + 1][0]); checked.add(seq[i + 1][0])
        extra = [None] * 4
        if i == 1: getq()
        if OPT.get("lst") and i in (4, 24, 44):
            stamp(a, 13 + (4, 24, 44).index(i))
        if i == fin[0] and not OPT.get("noA") and not OPT.get("astop"):
            extra[0] = lambda: a(f"ds_read_b32 v6, v4 offset:{4*C_AX2}")
        for sl in range(3):
            if i == fin[sl] + 2:
                if sl == 0 and not OPT.get("noA") and not OPT.get("astop"):
                    l = lab("ad")
                    a(f"s_waitcnt lgkmcnt(0)\nv_readfirstlane_b32 s8, v6\ns_nop 3\ns_cmp_ge_u32 s8, 4\ns_cbranch_scc1 {l}")
                    wait_cnt(a, C_AX2, 4)
                    a(f"{l}:")
                    stamp(a, 5)
                a(f"s_add_u32 s8, s{sW}, {1+sl}\ns_and_b32 s8, s8, 3\ns_mul_i32 s8, s8, 12288\ns_add_u32 s8, s8, {LR+sl*4096}")
                a(f"v_add_u32 v{TMP}, s8, v3")
                wr = lambda g, sl=sl: a(f"ds_write_b128 v{TMP}, {vr(O+16*sl+4*g,4)} offset:{g*1024}")
                extra[1] = lambda wr=wr: (wr(0), wr(1))
                extra[2] = lambda wr=wr: wr(2)
                extra[3] = lambda wr=wr: wr(3)
        if i == fin[2] + 3:
            extra[2] = lambda: (a("s_waitcnt lgkmcnt(0)"), arrive(a, C_R1))
        GS = OPT.get("gst", (2, 6, 10, 14))
        if i in GS:
            u = GS.index(i)
            extra[0] = lambda u=u: g_rd(u)
            extra[3] = lambda u=u: g_st(u)
            BQ.append(-1)
        step(i, extra)
        if i == GS[-1]:
            gdone[0] = True
            arrive(a, C_G)
        if i == OPT.get("tlw"): arrive(a, C_YS)
        if i < 2:
            load_kv(3 + i); issued[0] = 3 + i; BQ.extend([3 + i] * 4)
        if i > 0:
            pt = seq[i - 1][0]
            if last_use[pt] == i - 1 and pt + NB < 16:
                load_kv(pt + NB); issued[0] = pt + NB; BQ.extend([pt + NB] * 4)
    assert fin[2] + 3 <= len(seq) - 1
    a.nop(2)
    lt = KV + 16 * (seq[-1][0] % NB)
    OW = O + 48
    mfma(a, OW, lt+8, Pp+8, OW)
    mfma(a, OW, lt+12, Pp+8+4, OW)
    stamp(a, 4)
    if OPT.get("cnt"): a("s_sub_u32 s81, 20001, s14")
    wait_cnt(a, C_R1, None, 66)
    stamp(a, 6)
    a(f"s_mul_i32 s8, s{sW}, 12288\ns_add_u32 s8, s8, {LR}\nv_add_u32 v{TMP}, s8, v3")
    for sl in range(3):
        for g in range(4): a(f"ds_read_b128 {vr(O+16*sl+4*g,4)}, v{TMP} offset:{sl*4096+g*1024}")
    a(f"s_mov_b32 s8, {f32_bits(2.0**-80):#x}\ns_mov_b32 s9, {f32_bits(2.0**100):#x}\ns_mov_b32 s10, {f32_bits(2.0**127):#x}")
    for sl in range(3):
        a(f"s_waitcnt lgkmcnt({4*(2-sl)})")
        for r in (6, 7, 0, 1, 2, 3, 4, 5): a(f"v_pk_add_f32 {vr(OW+2*r,2)}, {vr(OW+2*r,2)}, {vr(O+16*sl+2*r,2)}")
    a(f"v_mov_b32 v{TMP}, v{OW+12}\nv_mov_b32 v{TMP+1}, v{OW+12}")
    for r in range(4): a(f"v_pk_add_f32 {vr(O+2*r,2)}, {vr(OW+4*r,2)}, {vr(OW+4*r+2,2)}")
    a(f"v_permlane32_swap_b32 v{TMP}, v{TMP+1}")
    for r in range(2): a(f"v_pk_add_f32 {vr(O+2*r,2)}, {vr(O+2*r,2)}, {vr(O+2*r+4,2)}")
    a(f"v_cmp_le_f32 s[52:53], s8, v{TMP+1}")
    a(f"v_cmp_ge_f32 s[54:55], s9, v{TMP+1}")
    a(f"v_rcp_f32 v{TMP}, v{TMP+1}")
    a(f"v_pk_add_f32 {vr(O,2)}, {vr(O,2)}, {vr(O+2,2)}")
    a(f"v_add_f32 v{O}, v{O}, v{O+1}")
    a(f"v_cmp_ge_f32 s[56:57], s10, abs(v{O})")
    for r in range(8): a(f"v_pk_mul_f32 {vr(OW+2*r,2)}, {vr(OW+2*r,2)}, {vr(TMP,2)} op_sel_hi:[1,0]")
    a("s_and_b64 s[52:53], s[52:53], s[54:55]\ns_and_b64 s[52:53], s[52:53], s[56:57]")
    for r in range(8): a(f"v_cvt_pk_bf16_f32 v{Pp+r}, v{OW+2*r}, v{OW+2*r+1}")
    a(f"s_mov_b32 exec_lo, 0\nv_mov_b32 v{Pp+6}, 0\nv_mov_b32 v{Pp+7}, 0\ns_mov_b64 exec, -1")
    sign(a, Pp, 8, SG)
    a(f"""s_lshl_b32 s10, s{sQB}, 2
s_add_u32 s10, s10, s{sW}
s_lshl_b32 s10, s10, 4
s_add_u32 s10, s10, s{sH}
s_lshl_b32 s8, s10, 11
s_add_u32 s8, s8, {WS_O}""")
    a(f"s_cmp_lg_u32 s{sPASS}, 0\ns_cbranch_scc1 b_nofail")
    if not OPT.get("forcefail"): a("s_cmp_eq_u64 s[52:53], -1\ns_cbranch_scc1 b_nofail")
    arrive(a, C_FAIL)
    a("s_branch b_nost")
    a("b_nofail:")
    for t in range(2):
        a(f"buffer_store_dwordx4 {vr(Pp+4*t,4)}, v3, {WSD}, s8 offen offset:{t*1024} sc1")
    a("b_nost:")
    a("s_waitcnt lgkmcnt(0)")
    arrive(a, C_R2)
    wait_cnt(a, C_R2, None, 66)
    a(f"s_cmp_lg_u32 s{sPASS}, 0\ns_cbranch_scc1 b_pub")
    a(f"ds_read_b32 v6, v4 offset:{4*C_FAIL}\ns_waitcnt lgkmcnt(0)\nv_readfirstlane_b32 s8, v6\ns_nop 3")
    a("s_cmp_lg_u32 s8, 0\ns_cbranch_scc1 b_slow")
    a("b_pub:")
    stamp(a, 7)
    WF3, OF3, ACC3 = 8, 152, 216
    if not OPT.get("noA") and not OPT.get("astop"): wait_cnt(a, C_WO, 4)
    a(f"""v_lshrrev_b32 v6, 5, v1
v_lshlrev_b32 v6, 4, v6
v_bfe_u32 v7, v1, 2, 2
v_add_u32 v6, v6, v7
v_mul_u32_u24 v6, 224, v6
v_and_b32 v7, 1, v1
v_lshl_add_u32 v6, v7, 5, v6
v_bfe_u32 v7, v1, 4, 1
v_lshl_add_u32 v6, v7, 4, v6
v_bfe_u32 v7, v1, 1, 1
v_lshl_add_u32 v6, v7, 3, v6
s_lshl_b32 s8, s{sW}, 6
v_add_u32 v6, s8, v6""")
    VA = 244
    for g in range(4):
        a(f"s_add_u32 s8, s{sW}, {g}\ns_and_b32 s8, s8, 3\ns_mul_i32 s9, s8, {4*28*224}\nv_add_u32 v{VA+g}, s9, v6")
        if g: a(f"s_lshl_b32 s8, s8, 13\ns_add_u32 s8, s8, {LO}\nv_add_u32 v{VA+3+g}, s8, v3")
    def wo_rd(h0, h1):
        for h in range(h0, h1):
            for t in range(2):
                for aa in range(2):
                    a(f"ds_read_b64_tr_b16 {vr(WF3+8*h+4*t+2*aa,2)}, v{VA+h//4} offset:{LWO+(28*(h%4)+8*t+4*aa)*224}")
    OFS = OPT.get("ofs", 16)
    wo_rd(0, OFS)
    a(f"""s_and_b32 s12, s{sX}, 1
s_lshl_b32 s12, s12, 5
s_lshr_b32 s11, s{sX}, 1
s_lshl_b32 s11, s11, 3
s_add_u32 s12, s12, s11
s_lshr_b32 s11, s{sJ}, 2
s_add_u32 s12, s12, s11""")
    a(f"""s_lshl_b32 s11, s12, 4
s_lshl_b32 s8, s{sW}, 2
s_add_u32 s11, s11, s8""")
    a(f"s_lshl_b32 s11, s11, 11\ns_add_u32 s11, s11, {WS_O}\ns_lshl_b32 s8, s{sW}, 13\ns_add_u32 s8, s8, {LO}")
    a(f"s_mov_b32 s14, 20000\nv_add_u32 v7, s8, v3")
    FL = 52
    for i in range(4): a(f"s_mov_b64 s[{FL+2*i}:{FL+2*i+1}], -1")
    def o_dma(i):
        for u in range(2):
            a(f"s_add_u32 m0, s8, {(2*i+u)*1024}\ns_add_u32 s9, s11, {(2*i+u)*1024}")
            a(f"buffer_load_dwordx4 v3, {WSD}, s9 offen sc1 lds")
    if OFS < 16:
        for i in range(4): o_dma(i)
        wo_rd(OFS, 16)
        a("s_branch b_opoll1")
    a("b_opoll:")
    def each(tag, f):
        for i in range(4):
            a(f"s_cmp_eq_u64 s[{FL+2*i}:{FL+2*i+1}], 0\ns_cbranch_scc1 b_o{tag}{i}")
            f(i)
            a(f"b_o{tag}{i}:")
    each("d", o_dma)
    a("b_opoll1:")
    a("s_waitcnt vmcnt(0)")
    each("r", lambda i: [a(f"ds_read_b128 {vr(OF3+8*i+4*u,4)}, v7 offset:{(2*i+u)*1024}") for u in range(2)])
    a("s_waitcnt lgkmcnt(0)")
    for i in range(4):
        a(f"v_bitop3_b32 v{232+i}, v{OF3+8*i}, v{OF3+8*i+4}, v{SG} bitop3:0x7e")
    for i in range(4):
        a(f"v_and_b32 v{232+i}, s{sMSK}, v{232+i}")
    for i in range(4):
        a(f"v_cmp_ne_u32 s[{FL+2*i}:{FL+2*i+1}], 0, v{232+i}")
    a("s_nop 3")
    a(f"s_or_b64 vcc, s[{FL}:{FL+1}], s[{FL+2}:{FL+3}]\ns_or_b64 vcc, vcc, s[{FL+4}:{FL+5}]\ns_or_b64 vcc, vcc, s[{FL+6}:{FL+7}]")
    a("s_cbranch_scc0 b_opoll_d")
    if OPT.get('osleep', 2): a(f"s_sleep {OPT.get('osleep', 2)}")
    a("s_sub_u32 s14, s14, 1\ns_cmp_lg_u32 s14, 0\ns_cbranch_scc1 b_opoll")
    a("b_opoll_d:")
    if OPT.get("cnt"): a("s_sub_u32 s82, 20001, s14")
    stamp(a, 8)
    arrive(a, C_O)
    for i in range(8): mfma(a, ACC3, WF3+4*i, OF3+4*i, None if i == 0 else ACC3)
    wait_cnt(a, C_O, 4)
    stamp(a, 9)
    def rdo(g, dst):
        for i in range(8): a(f"ds_read_b128 {vr(dst+4*i,4)}, v{VA+3+g} offset:{i*1024}")
    rdo(1, OF3+32); rdo(2, OF3)
    for i in range(8):
        a(f"s_waitcnt lgkmcnt({15-i})")
        mfma(a, ACC3, WF3+32+4*i, OF3+32+4*i, ACC3)
    rdo(3, OF3+32)
    for i in range(8):
        a(f"s_waitcnt lgkmcnt({15-i})")
        mfma(a, ACC3, WF3+64+4*i, OF3+4*i, ACC3)
    for i in range(8):
        a(f"s_waitcnt lgkmcnt({7-i})")
        mfma(a, ACC3, WF3+96+4*i, OF3+32+4*i, ACC3)
    a(f"""v_and_b32 v6, 31, v1
v_mul_u32_u24 v6, 1792, v6
v_lshrrev_b32 v7, 5, v1
v_lshl_add_u32 v6, v7, 5, v6
s_mul_i32 s7, s12, 57344
{f"s_mov_b32 s8, s{sJ4}" if OPT.get("b3m") else f"s_lshr_b32 s8, s{sH}, 2"}
s_mul_i32 s8, s8, 224
s_add_u32 s7, s7, s8
s_lshl_b32 s8, s{sW}, 6
s_add_u32 s7, s7, s8
s_add_u32 s7, s7, 896""")
    a.nop(2)
    for r in range(8): a(f"v_cvt_pk_bf16_f32 v{OF3+r}, v{ACC3+2*r}, v{ACC3+2*r+1}")
    a(f"""s_cmp_lg_u32 s{sW}, 3
s_cbranch_scc1 b_st
s_mov_b32 exec_hi, 0
b_st:""")
    for t in range(2):
        a(f"buffer_store_dwordx4 {vr(OF3+4*t,4)}, v6, s[{SRD_OUT}:{SRD_OUT+3}], s7 offen offset:{t*16} {OPT.get('omod', '')}")
    a("s_mov_b64 exec, -1")
    a(f"s_or_b32 s8, s2, s{sW}\ns_cmp_lg_u32 s8, 0\ns_cbranch_scc1 b_noep")
    a(f"s_mov_b64 exec, 1\nv_mov_b32 v6, s67\nv_mov_b32 v7, 0\ns_mov_b32 s8, {WS_EP}")
    a(f"buffer_store_dword v6, v7, {WSD}, s8 offen sc1")
    a("s_mov_b64 exec, -1")
    a("b_noep:")
    stamp(a, 10)
    stamp_out(a, 16)
    a("s_endpgm")
    for (t, iss, l, gd) in retries:
        a(f"{l}_r:")
        a(f"s_sub_u32 s14, s14, 1\ns_cmp_le_i32 s14, 0\ns_cbranch_scc1 {l}_d")
        if OPT.get("rsleep", 1): a(f"s_sleep {OPT.get('rsleep', 1)}")
        if t < 8:
            a(f"s_cmp_gt_u32 s14, {20000 - OPT.get('nloc', 4)}\ns_cbranch_scc1 {l}_g")
            a(f"s_xor_b32 s15, s15, {WS_L}")
        if not gd:
            a(f"s_bitcmp1_b32 s14, 0\ns_cbranch_scc1 {l}_g")
            st_glob()
        if t < 8: a(f"{l}_g:")
        for u in range(t, iss + 1): load_kv(u, True)
        a(f"s_waitcnt vmcnt(0)")
        a(f"s_branch {l}")
    a("b_slow:")
    a(f"s_mov_b32 s{sPASS}, 1\ns_mov_b32 s66, 8\ns_lshr_b32 s87, s87, 1\ns_add_u32 s87, s87, {WS_JUNK}\ns_mov_b32 s88, s87")
    a("s_waitcnt vmcnt(0)")
    for q in range(4): a(f"v_mov_b32 v{MX+q}, 0xff800000")
    a("s_mov_b32 s14, 16\ns_mov_b32 s69, 20000")
    a("b_mloop:")
    a("s_and_b32 s13, s14, 7\ns_add_u32 s13, s13, s12\ns_and_b32 s13, s13, 31\ns_lshl_b32 s8, s13, 11\ns_bitcmp1_b32 s14, 3\ns_cselect_b32 s9, s15, s68\ns_add_u32 s8, s8, s9")
    for t in range(2):
        a(f"buffer_load_dwordx4 {vr(KV+4*t,4)}, v3, {WSD}, s8 offen offset:{t*1024} sc1")
    a("s_waitcnt vmcnt(0)")
    a(f"v_bitop3_b32 v{CT}, v{KV}, v{KV+4}, v{SG} bitop3:0x7e")
    a(f"v_and_b32 v{CT}, s{sMSK}, v{CT}")
    a(f"v_cmp_ne_u32 vcc, 0, v{CT}")
    a("s_cbranch_vccz b_mok")
    a(f"s_xor_b32 s15, s15, {WS_L}\ns_sub_u32 s69, s69, 1\ns_cmp_gt_i32 s69, 0\ns_cbranch_scc1 b_mloop")
    a("b_mok:")
    for q in range(4):
        mfma(a, S, KV, Q+8*q, None)
        mfma(a, S, KV+4, Q+8*q+4, S)
        a.nop(12)
        for r in range(8): a(f"v_max3_f32 v{MX+q}, v{MX+q}, v{S+2*r}, v{S+2*r+1}")
    a("s_sub_u32 s14, s14, 1\ns_cmp_lg_u32 s14, 0\ns_cbranch_scc1 b_mloop")
    a(f"v_lshlrev_b32 v{TMP}, 2, v1\ns_lshl_b32 s9, s{sW}, 10")
    for q in range(4):
        rot(q, 8, 8, LMX)
        a(f"s_add_u32 s8, s8, s9\nv_add_u32 v{TMP+1}, s8, v{TMP}")
        a(f"ds_write_b32 v{TMP+1}, v{MX+q}")
    a("s_waitcnt lgkmcnt(0)")
    arrive(a, C_M1)
    wait_cnt(a, C_M1, 4)
    a(f"v_and_b32 v{TMP}, 31, v1\nv_lshlrev_b32 v{TMP}, 2, v{TMP}")
    for q in range(4):
        rot(q, 8, 8, LMX)
        a(f"v_add_u32 v{TMP+1}, s8, v{TMP}")
        for w in range(4):
            for hh in range(2):
                a(f"ds_read_b32 v{S+2*w+hh}, v{TMP+1} offset:{w*1024+hh*128}")
        a("s_waitcnt lgkmcnt(0)")
        a(f"v_max3_f32 v{MX+q}, v{S}, v{S+1}, v{S+2}")
        a(f"v_max3_f32 v{MX+q}, v{MX+q}, v{S+3}, v{S+4}")
        a(f"v_max3_f32 v{MX+q}, v{MX+q}, v{S+5}, v{S+6}")
        a(f"v_max_f32 v{MX+q}, v{MX+q}, v{S+7}")
    a("s_mov_b32 s8, -1.0")
    a("s_mov_b32 exec_lo, 0")
    for q in range(4):
        a(f"""v_mul_f32 v{TMP}, s8, v{MX+q}
v_and_b32 v{TMP+1}, 0xffff0000, v{TMP}
v_sub_f32 v{TMP}, v{TMP}, v{TMP+1}
v_and_b32 v{TMP+3}, 0xffff0000, v{TMP}
v_sub_f32 v{TMP}, v{TMP}, v{TMP+3}
v_lshrrev_b32 v{TMP+1}, 16, v{TMP+1}
v_or_b32 v{Q+8*q+6}, v{TMP+1}, v{TMP+3}
v_lshrrev_b32 v{Q+8*q+7}, 16, v{TMP}""")
    a("s_mov_b64 exec, -1")
    a("s_mov_b32 s14, 20000")
    a("s_branch b_main")

    a("a_wave:")
    common()
    a(f"""s_lshr_b32 s{sDQ}, s2, 6
s_lshr_b32 s{sG}, s{sJ}, 2""")
    a(f"""s_lshl_b32 s67, s{sX}, 3
s_and_b32 s9, s{sJ}, 7
s_add_u32 s67, s67, s9
s_lshr_b32 s{sG1}, s{sJ}, 3
s_lshl_b32 s{sG1}, s{sG1}, 1
s_lshr_b32 s9, s{sWL}, 1
s_add_u32 s{sG1}, s{sG1}, s9
s_and_b32 s68, s{sWL}, 1""")
    F, E1C, E1S, E3C, E3X, CSN, CSC = 16, 128, 136, 144, 152, 160, 216
    A1ACC, A1XF, A1XP, A1Y = 168, 184, 200, 184
    VWO = 10
    sK1 = sN2
    a(f"""v_and_b32 v202, 3, v8
v_lshrrev_b32 v203, 3, v8
v_lshl_add_u32 v202, v203, 2, v202
v_bfe_u32 v203, v8, 2, 1
v_lshlrev_b32 v203, 4, v203
s_mul_i32 s9, s{sG1}, 28
v_add3_u32 v202, v202, v203, s9
s_mul_i32 s9, s68, 0x3e800000
v_mov_b32 v204, s9
v_cvt_f32_u32 v202, v202
v_mul_f32 v202, {f32_bits(1/448):#x}, v202
v_lshlrev_b32 v203, 3, v9
v_cvt_f32_u32 v203, v203
v_fma_f32 v204, v203, v202, v204""")
    def gen_F(hooks):
        T0, KK = 168, 200
        a(f"v_cos_f32 v{KK}, v202\ns_nop 0\nv_add_f32 v{KK}, v{KK}, v{KK}\nv_mov_b32 v{KK+1}, v{KK}")
        def seeds(tp):
            T = T0 + 16 * (tp % 2)
            L = []
            for j in range(2):
                for e in range(2):
                    L.append(f"v_fmamk_f32 v{T+2*j+e}, v202, {f32_bits(float(16*(2*tp+e)+j)):#x}, v204")
            for j in range(2):
                for e in range(2):
                    L.append(f"v_cos_f32 v{T+2*j+e}, v{T+2*j+e}")
            return L
        def rec(tp):
            T = T0 + 16 * (tp % 2)
            L = []
            for j in range(2, 8):
                L.append(f"v_pk_fma_f32 {vr(T+2*j,2)}, {vr(KK,2)}, {vr(T+2*j-2,2)}, {vr(T+2*j-4,2)} neg_lo:[0,0,1] neg_hi:[0,0,1]")
                if j % 2 == 0:
                    jp = j // 2 - 1
                    for e in range(2): L.append(f"v_cvt_pk_bf16_f32 v{F+4*(2*tp+e)+jp}, v{T+4*jp+e}, v{T+4*jp+2+e}")
            for e in range(2): L.append(f"v_cvt_pk_bf16_f32 v{F+4*(2*tp+e)+3}, v{T+12+e}, v{T+14+e}")
            return L
        for x in seeds(0): a(x)
        a("s_nop 0")
        for tp in range(14):
            if tp in hooks: hooks[tp]()
            R = rec(tp); S_ = seeds(tp + 1) if tp < 13 else []
            while R or S_:
                if R: a(R.pop(0))
                if S_: a(S_.pop(0))
    W2, WR = 240, 232
    hooks = {}
    if OPT.get("spf") and not OPT.get("noA"):
        st = OPT["spf"]
        L = [("s[6:7]", r * 57344 + c) for r in range(2) for c in range(0, 896, st)]
        if OPT.get("spw"): L += [("s[14:15]", c) for c in range(0, 1800 + st - 4, st - 8)]
        H0 = OPT.get("sph", 2)
        per = -(-len(L) // (14 - H0))
        def h0():
            a(f"""s_lshr_b32 s8, s{sJ}, 3
s_lshl_b32 s8, s8, 2
s_add_u32 s8, s8, s{sWL}
s_mul_i32 s8, s8, {2*57344}
s_mul_i32 s9, s67, 896
s_add_u32 s8, s8, s9
s_lshl_b32 s9, s{sJ}, 1
s_lshr_b32 s10, s{sWL}, 1
s_add_u32 s9, s9, s10
s_lshl_b32 s9, s9, 3
s_add_u32 s9, s9, s{sX}
s_mul_i32 s9, s9, 1800
s_waitcnt lgkmcnt(0)
s_add_u32 s6, s{S_AX}, s8
s_addc_u32 s7, s{S_AX+1}, 0
s_cmp_eq_u32 s68, 0
s_cselect_b32 s14, s{S_WR}, s{S_WI}
s_cselect_b32 s15, s{S_WR+1}, s{S_WI+1}
s_add_u32 s14, s14, s9
s_addc_u32 s15, s15, 0""")
        def mk(tp):
            def f():
                if tp == H0: h0()
                for (b, o) in L[(tp - H0) * per:(tp - H0 + 1) * per]:
                    a(f"s_load_dword s10, {b}, {min(o, 1796) if b == 's[14:15]' else o}")
            return f
        for tp in range(H0, 14): hooks[tp] = mk(tp)
    gen_F(hooks)
    a("s_lshl_b32 s13, s68, 31\ns_lshr_b32 s8, s13, 16\ns_or_b32 s13, s13, s8")
    gen_E(a, 8, 9, 67, 'a1', {'C': E1C, 'Sx': E1S}, 204)
    stamp(a, 8)
    a("s_waitcnt lgkmcnt(0)")
    if STAMPS: a("s_mov_b32 s70, s92")
    srd(a, SRD_WS, S_WS, WS_SIZE)
    t0, t1, t2 = 186, 187, 188
    def gen_CS():
        a(f"""s_lshl_b32 s8, s{sWL}, 4
v_and_b32 v{t0}, 15, v1
v_add_u32 v{t0}, s8, v{t0}
v_cvt_f32_u32 v{t0}, v{t0}
v_mul_f32 v{t0}, {f32_bits(1/64):#x}, v{t0}
v_lshrrev_b32 v{t1}, 4, v1
v_lshlrev_b32 v{t1}, 2, v{t1}
v_cvt_f32_u32 v{t1}, v{t1}
v_mul_f32 v{t1}, v{t1}, v{t0}""")
        for kap in range(2):
            for hf in range(2):
                for i in range(4):
                    a(f"v_fmamk_f32 v{t2+i}, v{t0}, {f32_bits(float(32*kap+16*hf+i)):#x}, v{t1}")
                for i in range(4): a(f"v_cos_f32 v{t2+4+i}, v{t2+i}")
                for i in range(4): a(f"v_sin_f32 v{t2+i}, v{t2+i}")
                o = 4 * kap + 2 * hf
                for i in range(2): a(f"v_cvt_pk_bf16_f32 v{CSC+o+i}, v{t2+4+2*i}, v{t2+4+2*i+1}")
                for i in range(2): a(f"v_cvt_pk_bf16_f32 v{CSC+8+o+i}, v{t2+2*i}, v{t2+2*i+1}")
                for i in range(2): a(f"v_xor_b32 v{CSN+o+i}, 0x80008000, v{CSC+8+o+i}")
    def gen_E3():
        a(f"s_mov_b32 s8, {f32_bits(2.0/(2048*448)):#x}\ns_lshl_b32 s9, s68, 31\ns_xor_b32 s9, s9, s8\ns_xor_b32 s9, s9, 0x80000000")
        a(f"""v_lshlrev_b32 v{t0}, 6, v8
v_add_u32 v{t0}, s67, v{t0}
v_cvt_f32_u32 v{t0}, v{t0}
v_mul_f32 v{t0}, {f32_bits(1/2048):#x}, v{t0}
v_lshlrev_b32 v{t1}, 3, v9
v_cvt_f32_u32 v{t1}, v{t1}
v_mul_f32 v{t1}, v{t1}, v{t0}""")
        for tau in range(2):
            for hf in range(2):
                for i in range(4):
                    a(f"v_fmamk_f32 v{t2+i}, v{t0}, {f32_bits(float(16*tau+4*hf+i)):#x}, v{t1}")
                for i in range(4): a(f"v_cos_f32 v{t2+4+i}, v{t2+i}")
                for i in range(4): a(f"v_sin_f32 v{t2+i}, v{t2+i}")
                for i in range(4): a(f"v_mul_f32 v{t2+4+i}, s8, v{t2+4+i}")
                for i in range(4): a(f"v_mul_f32 v{t2+i}, s9, v{t2+i}")
                o = 4 * tau + 2 * hf
                for i in range(2): a(f"v_cvt_pk_bf16_f32 v{E3C+o+i}, v{t2+4+2*i}, v{t2+4+2*i+1}")
                for i in range(2): a(f"v_cvt_pk_bf16_f32 v{E3X+o+i}, v{t2+2*i}, v{t2+2*i+1}")
    if OPT.get("cs", 1) == 0: gen_CS()
    if OPT.get("e3", 0) == 0: gen_E3()
    srd(a, SRD_B, S_WO, 448 * 896)
    srd(a, SRD_OUT, S_OUT, 2048 * 1792)
    a(f"""v_bfe_u32 v10, v8, 1, 3
v_lshlrev_b32 v6, 7, v8
v_add_u32 v6, {LXA}, v6""")
    for t in range(4):
        a(f"v_add_u32 v7, {2*t}, v9\nv_xor_b32 v7, v7, v10\nv_lshl_add_u32 v{12+t}, v7, 4, v6")
    XS = 7
    a(f"s_setprio {OPT.get('prio', 3)}")
    if OPT.get("noA"): a("s_branch a_fin")
    a("s_mov_b32 s69, 400000")
    a("a_xw:")
    a(f"ds_read_b128 v[200:203], v4 offset:{4*C_XF}")
    a("s_waitcnt lgkmcnt(0)")
    a("v_min3_u32 v200, v200, v201, v202\nv_min_u32 v200, v200, v203\ns_sub_u32 s69, s69, 1")
    a("v_readfirstlane_b32 s8, v200\ns_nop 1")
    a("s_cmp_lg_u32 s8, 0\ns_cbranch_scc1 a_xw_d\ns_sleep 1\ns_cmp_lg_u32 s69, 0\ns_cbranch_scc1 a_xw")
    a("a_xw_d:")
    a(f"ds_read_b32 v2, v4 offset:{4*C_EP}")
    stamp(a, 3)
    a(f"s_setprio {OPT.get('gprio', 3)}")
    for c in range(7):
        xf = A1XF + 16 * (c % 2)
        if c == XS:
            if not OPT.get("noA"): vwait("x6")
            arrive(a, C_AX2)
            wait_cnt(a, C_AX2, 4)
        if c == 0 or c == XS:
            for t in range(4): a(f"ds_read_b128 {vr(xf+4*t,4)}, v{12+t} offset:{c*4096}")
        nxt = c < 6 and c + 1 != XS
        if nxt:
            for t in range(4): a(f"ds_read_b128 {vr(A1XF+16*((c+1)%2)+4*t,4)}, v{12+t} offset:{(c+1)*4096}")
        a(f"s_waitcnt lgkmcnt({4 if nxt else 0})")
        for t in range(4):
            mfma(a, A1ACC, xf+4*t, F+4*(4*c+t), None if (c == 0 and t == 0) else A1ACC)
        if c == 1: arrive(a, C_AX)
    a(f"s_setprio {OPT.get('prio', 3)}")
    a(f"s_lshl_b32 s8, s{sWL}, 11\ns_add_u32 s8, s8, {LEX}\nv_add_u32 v6, s8, v3")
    a("v_mov_b32 v11, v6")
    set_tag(a)
    wait_cnt(a, C_AX, 4)
    a("v_mov_b32 v6, v11")
    a.nop(4)
    for r in range(8): a(f"v_cvt_pk_bf16_f32 v{A1XP+r}, v{A1ACC+2*r}, v{A1ACC+2*r+1}")
    for t in range(2): a(f"ds_write_b128 v6, {vr(A1XP+4*t,4)} offset:{t*1024}")
    for t in range(2): mfma(a, A1Y, A1XP+4*t, E1C+4*t, None if t == 0 else A1Y)
    a("s_waitcnt lgkmcnt(0)")
    stamp(a, 4)
    arrive(a, C_AEX)
    wait_cnt(a, C_AEX, 4)
    a(f"s_xor_b32 s8, s{sWL}, 1\ns_lshl_b32 s8, s8, 11\ns_add_u32 s8, s8, {LEX}\nv_add_u32 v6, s8, v3")
    for t in range(2): a(f"ds_read_b128 {vr(A1XP+8+4*t,4)}, v6 offset:{t*1024}")
    a("s_waitcnt lgkmcnt(0)")
    for t in range(2): mfma(a, A1Y, A1XP+8+4*t, E1S+4*t, A1Y)
    sig_regs(a, 128)
    a(f"""s_lshl_b32 s8, s{sG1}, 6
s_add_u32 s8, s8, s67
s_lshl_b32 s8, s8, 12
s_lshl_b32 s9, s68, 6
s_add_u32 s8, s8, s9
s_add_u32 s8, s8, {WS_Y}
s_add_u32 s9, s12, {LYT}
v_lshlrev_b32 v6, 6, v8
v_lshl_add_u32 v6, v9, 5, v6
v_add_u32 v6, s9, v6
v_add_u32 v7, s9, v3
v_lshrrev_b32 v11, 2, v1
v_lshlrev_b32 v11, 7, v11
v_and_b32 v12, 3, v1
v_lshl_add_u32 v11, v12, 4, v11""")
    for r in range(8): a(f"v_cvt_pk_bf16_f32 v{A1XP+r}, v{A1Y+2*r}, v{A1Y+2*r+1}")
    for t in range(2): a(f"ds_write_b128 v6, {vr(A1XP+4*t,4)} offset:{t*16}")
    for t in range(2): a(f"ds_read_b128 {vr(A1XP+8+4*t,4)}, v7 offset:{t*1024}")
    a("s_waitcnt lgkmcnt(0)")
    sign(a, A1XP+8, 8, 128)
    a("s_mov_b32 s10, s8")
    stamp(a, 1)
    if OPT.get("cs", 1) == 2: gen_CS()
    if OPT.get("e3", 0) == 2: gen_E3()
    a(f"""v_lshrrev_b32 v6, 2, v1
s_lshl_b32 s8, s{sWL}, 4
v_add_u32 v6, s8, v6
v_lshlrev_b32 v6, 5, v6
v_add_u32 v6, s{sK1}, v6
v_mul_u32_u24 v6, 450, v6
v_and_b32 v7, 3, v1
v_lshlrev_b32 v7, 4, v7
s_mul_i32 s9, s{sG}, 56
v_add3_u32 v10, v6, v7, s9""")
    srd(a, SRD_TAB, S_WR, 2048 * 450 + 2)
    srd(a, SRD_C, S_WI, 2048 * 450 + 2)
    def wdma():
        for k, sd in enumerate((SRD_TAB, SRD_C)):
            a(f"s_add_u32 m0, s12, {LWW + k*1024}\ns_nop 0")
            a(f"buffer_load_dwordx4 v10, s[{sd}:{sd+3}], 0 offen lds")
    wait_cnt(a, *OPT["ysw"])
    a(f"s_setprio {OPT.get('a2prio', 3)}")
    AS = OPT.get("astop", 0)
    if AS == 1: a("s_branch a_fin")
    for t in range(2):
        if AS != 3: a(f"buffer_store_dwordx4 {vr(A1XP+8+4*t,4)}, v11, {WSD}, s10 offen offset:{t*2048} sc1")
    def odum():
        a(f"""s_lshl_b32 s8, s{sQB}, 2
s_add_u32 s8, s8, s{sWL}
s_lshl_b32 s8, s8, 4
s_add_u32 s8, s8, s{sH}
s_lshl_b32 s8, s8, 11
s_add_u32 s8, s8, {WS_O}
v_not_b32 v168, v128""")
        for t in range(2): a(f"buffer_store_dwordx4 v[168:171], v3, {WSD}, s8 offen offset:{t*1024} sc1")
    if OPT.get("odum") == 1: odum()
    if AS == 2: a("s_branch a_fin")
    if OPT.get("wpos", 0) == 1: wdma()
    if OPT.get("yf", 0):
        a(f"s_lshl_b32 s8, s{sG}, 7\ns_lshl_b32 s9, s67, 1\ns_add_u32 s8, s8, s9\ns_add_u32 s8, s8, s68\ns_lshl_b32 s8, s8, 2\ns_add_u32 s8, s8, {WS_FY}")
        flag_store(a, 8)
    stamp(a, 5)
    THR = OPT.get("thr", 2)
    WOO = 140
    def wo_part(k0, k1, pad):
        n = k1 - k0
        a("s_mov_b32 s9, 0x12492493")
        a(f"s_mov_b32 s8, s{sJ4}" if OPT.get("b3m") else f"s_lshr_b32 s8, s{sH}, 2")
        a("s_mul_i32 s8, s8, 224")
        a(f"""v_mul_hi_u32 v7, v1, s9
v_mul_u32_u24 v6, 14, v7
v_sub_u32 v6, v1, v6
v_mul_u32_u24 v7, 896, v7
v_lshl_add_u32 v7, v6, 4, v7
v_add_u32 v{WOO}, s8, v7
s_lshr_b32 s10, s{sJ}, 2
s_mul_i32 s10, s10, {n}
s_lshr_b32 s10, s10, 3
s_add_u32 s10, s10, {k0}
s_lshl_b32 s10, s10, 2
s_add_u32 s10, s10, s{sWL}
s_mul_i32 s10, s10, 896""")
        for k in range(n):
            a(f"s_add_u32 m0, s10, {LWO}\ns_lshl_b32 s13, s10, 2")
            if k > THR: a(f"s_waitcnt vmcnt({THR})")
            a(f"buffer_load_dwordx4 v{WOO}, s[{SRD_B}:{SRD_B+3}], s13 offen lds")
            if k < n - 1: a(f"s_add_u32 s10, s10, {4*896}\ns_sub_u32 s11, s10, {4*n*896}\ns_cmp_ge_u32 s10, {4*k1*896}\ns_cselect_b32 s10, s11, s10")
        if pad:
            a(f"s_mov_b32 m0, {LWO+448*224}\ns_mov_b32 s13, {448*896}")
            a(f"buffer_load_dwordx4 v{WOO}, s[{SRD_B}:{SRD_B+3}], s13 offen lds")
    YF, Z = 168, 200
    VY, VP, VPW, VD = 76, 80, 81, 82
    a(f"""v_and_b32 v14, 15, v1
v_lshrrev_b32 v15, 4, v1
s_lshl_b32 s6, s{sG}, 18
s_lshl_b32 s7, s{sK1}, 7
s_add_u32 s6, s6, s7
s_lshl_b32 s7, s{sWL}, 16
s_add_u32 s6, s6, s7
s_add_u32 s6, s6, {WS_Y}
v_bfe_u32 v6, v1, 1, 2
v_bfe_u32 v7, v1, 4, 2
v_xor_b32 v6, v6, v7
v_and_b32 v7, 1, v1
v_lshl_add_u32 v6, v6, 1, v7
v_lshrrev_b32 v7, 3, v1
v_lshlrev_b32 v7, 12, v7
v_lshl_add_u32 v{VD}, v6, 4, v7
v_and_b32 v6, 3, v6
v_lshlrev_b32 v6, 2, v6
v_lshrrev_b32 v136, v6, s{sSIG}""")
    a(f"""v_lshrrev_b32 v6, 2, v1
v_and_b32 v7, 3, v1
v_lshlrev_b32 v7, 3, v7
v_lshl_add_u32 v{VP}, v6, 6, v7
v_add_u32 v{VP}, {LP}, v{VP}
v_lshl_add_u32 v7, v6, 7, v7
v_add_u32 v7, {LY}, v7
v_bfe_u32 v6, v1, 3, 2""")
    for P_ in range(4):
        a(f"v_xor_b32 v11, {P_}, v6\nv_lshl_add_u32 v{VY+P_}, v11, 5, v7")
    a(f"""s_lshl_b32 s8, s{sWL}, 10
s_add_u32 s8, s8, {LP}
v_lshlrev_b32 v6, 6, v14
v_lshl_add_u32 v6, v15, 3, v6
v_add_u32 v{VPW}, s8, v6
s_add_u32 s8, s12, {LWW}
v_add_u32 v6, s8, v6""")
    if OPT.get("cs", 1) == 1: gen_CS()
    a("v_mov_b32 v12, v6")
    def wproc():
        for k in range(4):
            a(f"ds_read_b64 {vr(WR+2*k,2)}, v12 offset:{(k//2)*1024+(k%2)*32}")
        a("s_waitcnt lgkmcnt(0)")
        for k in range(4):
            a(f"""v_lshlrev_b32 v{W2+4*k}, 16, v{WR+2*k}
v_and_b32 v{W2+4*k+1}, 0xffff0000, v{WR+2*k}
v_lshlrev_b32 v{W2+4*k+2}, 16, v{WR+2*k+1}
v_and_b32 v{W2+4*k+3}, 0xffff0000, v{WR+2*k+1}""")
        a(f"s_cmp_lg_u32 s{sG}, 0\ns_cbranch_scc1 a_w1")
        a(f"s_mov_b64 exec, 0xffff\nv_mul_f32 v{W2}, 0.5, v{W2}\nv_mul_f32 v{W2+8}, 0.5, v{W2+8}\ns_mov_b64 exec, -1")
        a("a_w1:")
        a(f"s_cmp_lg_u32 s{sG}, 7\ns_cbranch_scc1 a_w2")
        a(f"s_mov_b32 exec_lo, 0\ns_mov_b32 exec_hi, 0xffff0000\nv_mul_f32 v{W2+4}, 0.5, v{W2+4}\nv_mul_f32 v{W2+12}, 0.5, v{W2+12}\ns_mov_b64 exec, -1")
        a("a_w2:")
    if OPT.get("wpos", 0) == 1:
        a("s_waitcnt vmcnt(0)")
        wproc()
    stamp(a, 7)
    def chk8(r0, n, sg, acc):
        for i in range(n // 8): a(f"v_bitop3_b32 v{acc+i}, v{r0+8*i}, v{r0+8*i+4}, v{sg} bitop3:0x7e")
        if n == 8: a(f"v_and_b32 v{acc}, s{sMSK}, v{acc}")
        else:
            a(f"v_or3_b32 v{acc}, v{acc}, v{acc+1}, v{acc+2}")
            a(f"v_bitop3_b32 v{acc}, v{acc}, s{sMSK}, v{acc+3} bitop3:0xc8")
        a(f"v_cmp_ne_u32 vcc, 0, v{acc}")
    if OPT.get("yf", 0):
        a(f"s_lshl_b32 s8, s{sG}, 9\ns_lshl_b32 s9, s{sWL}, 7\ns_add_u32 s8, s8, s9\ns_add_u32 s8, s8, {WS_FY}\nv_lshlrev_b32 v13, 2, v8")
        poll(a, 13, "s8", -1, width=1, vt=132, sleep=OPT.get("fsleep", 2))
        if OPT.get("cnt"): a("s_sub_u32 s71, 20001, s9")
    if AS == 4: a("s_branch a_fin")
    if OPT.get("wop") == 2:
        wait_cnt(a, C_M2, 4)
        wo_part(10, 28, True)
    if OPT.get("ylw") is not None: wait_cnt(a, OPT["ylw"], 4, sleep=2)
    a(f"s_setprio {OPT.get('a2prio', 3)}")
    a(f"""s_add_u32 s8, s12, {LY}
v_add_u32 v13, s8, v3
s_add_u32 s9, s6, {8*4096}
s_mov_b32 s14, 20000""")
    if OPT.get("wpos", 0) == 0: wdma()
    a("a_ypoll:")
    a("s_mov_b32 m0, s8\ns_nop 0")
    a(f"buffer_load_dwordx4 v{VD}, {WSD}, s6 offen sc1 lds")
    a(f"s_add_u32 m0, s8, 1024\ns_nop 0")
    a(f"buffer_load_dwordx4 v{VD}, {WSD}, s9 offen sc1 lds")
    a("s_waitcnt vmcnt(0)")
    for i in range(2): a(f"ds_read_b32 v{YF+4*i}, v13 offset:{i*1024}")
    a("s_waitcnt lgkmcnt(0)")
    chk8(YF, 8, 136, 132)
    a("s_cbranch_vccz a_ypoll_d")
    a(f"s_sleep {OPT.get('psleep', 4)}")
    a("s_sub_u32 s14, s14, 1\ns_cmp_lg_u32 s14, 0\ns_cbranch_scc1 a_ypoll")
    a("a_ypoll_d:")
    if OPT.get("cnt"): a("s_sub_u32 s76, 20001, s14")
    stamp(a, 10)
    arrive(a, C_AY)
    if OPT.get("wpos", 0) == 0: wproc()
    if OPT.get("wpos", 0) == 2: wdma()
    if OPT.get("wpos", 0) == 3:
        wait_cnt(a, C_G, 4)
        wdma()
    wait_cnt(a, C_AY, 4)
    stamp(a, 11)
    yf = lambda ri, ch, kap: YF + 4 * ((ri * 2 + ch) * 2 + kap)
    for ri in range(2):
        for ch in range(2):
            for kap in range(2):
                for aa in range(2):
                    a(f"ds_read_b64_tr_b16 {vr(yf(ri,ch,kap)+2*aa,2)}, v{VY+2*ri+ch} offset:{(32*kap+16*aa)*128}")
    a("s_waitcnt lgkmcnt(0)")
    cs = lambda kap, k: (CSC, CSC + 8, CSN)[k] + 4 * kap
    z = lambda ri, ch: Z + 8 * ri + 4 * ch
    for kap in range(2):
        for ch in range(2):
            mfma16(a, z(0,ch), yf(0,ch,kap), cs(kap,0), None if kap == 0 else z(0,ch))
            mfma16(a, z(1,ch), yf(1,ch,kap), cs(kap,0), None if kap == 0 else z(1,ch))
    for kap in range(2):
        for ch in range(2):
            mfma16(a, z(0,ch), yf(1,ch,kap), cs(kap,1), z(0,ch))
            mfma16(a, z(1,ch), yf(0,ch,kap), cs(kap,2), z(1,ch))
    if OPT.get("wpos", 0) >= 2:
        a("s_waitcnt vmcnt(0)")
        stamp(a, 7)
        wproc()
    else: a.nop(9)
    for i in range(8):
        zr, zi, wr, wi = Z + i, Z + 8 + i, W2 + i, W2 + 8 + i
        a(f"""v_mul_f32 v6, v{zi}, v{wi}
v_mul_f32 v7, v{zr}, v{wi}
v_fma_f32 v{zr}, v{zr}, v{wr}, -v6
v_fma_f32 v{zi}, v{zi}, v{wr}, v7""")
    for i in range(8): a(f"v_cvt_pk_bf16_f32 v{W2+i}, v{Z+2*i}, v{Z+2*i+1}")
    for i in range(4): a(f"ds_write_b64 v{VPW}, {vr(W2+2*i,2)} offset:{(i//2)*4096+(i%2)*32}")
    a("s_waitcnt lgkmcnt(0)")
    arrive(a, C_AP)
    wait_cnt(a, C_AP, 4)
    for ri in range(2):
        for ch in range(2):
            for kap in range(2):
                for aa in range(2):
                    a(f"ds_read_b64_tr_b16 {vr(yf(ri,ch,kap)+2*aa,2)}, v{VP} offset:{ri*4096+(32*kap+16*aa)*64+ch*32}")
    a("s_waitcnt lgkmcnt(0)")
    for kap in range(2):
        for ch in range(2):
            mfma16(a, z(0,ch), yf(0,ch,kap), cs(kap,0), None if kap == 0 else z(0,ch))
            mfma16(a, z(1,ch), yf(1,ch,kap), cs(kap,0), None if kap == 0 else z(1,ch))
    for kap in range(2):
        for ch in range(2):
            mfma16(a, z(0,ch), yf(1,ch,kap), cs(kap,2), z(0,ch))
            mfma16(a, z(1,ch), yf(0,ch,kap), cs(kap,1), z(1,ch))
    a(f"""s_add_u32 s8, s12, {LTT}
v_lshlrev_b32 v6, 7, v14
v_lshl_add_u32 v6, v15, 3, v6
v_add_u32 v6, s8, v6
v_add_u32 v7, s8, v3
s_lshl_b32 s9, s{sK1}, 5
s_and_b32 s9, s9, 64
v_and_b32 v11, 7, v1
v_lshlrev_b32 v11, 4, v11
v_xor_b32 v11, s9, v11
v_lshrrev_b32 v12, 3, v1
v_lshl_add_u32 v11, v12, 15, v11
s_lshl_b32 s6, s{sG}, 12
s_lshl_b32 s7, s{sK1}, 7
s_add_u32 s6, s6, s7
s_lshl_b32 s7, s{sWL}, 19
s_add_u32 s6, s6, s7
s_add_u32 s6, s6, {WS_T}
s_add_u32 s7, s6, {8*32768}""")
    for i in range(8): a(f"v_cvt_pk_bf16_f32 v{W2+i}, v{Z+2*i}, v{Z+2*i+1}")
    for i in range(4): a(f"ds_write_b64 v6, {vr(W2+2*i,2)} offset:{(i//2)*64+(i%2)*32}")
    for u in range(2): a(f"ds_read_b128 {vr(W2+8+4*u,4)}, v7 offset:{u*1024}")
    a("s_waitcnt lgkmcnt(0)")
    sign(a, W2+8, 8, 128)
    for u in range(2):
        a(f"buffer_store_dwordx4 {vr(W2+8+4*u,4)}, v11, {WSD}, s{6+u} offen sc1")
    if OPT.get("odum") == 2: odum()
    stamp(a, 12)
    arrive(a, C_A2D)
    TFR = [76, 92, 108, 160, 176, 192, 208, 240]
    UU, UBB, ACCF, NQF = [224, 76], [132, 92], 240, 124
    VT = 12
    a(f"""v_bfe_u32 v6, v1, 2, 2
v_lshl_add_u32 v6, v9, 3, v6
v_lshlrev_b32 v6, 7, v6
v_add_u32 v6, {LT}, v6
v_bfe_u32 v7, v1, 3, 1
v_xor_b32 v7, s68, v7
v_lshl_add_u32 v14, v7, 6, v6
v_xor_b32 v15, 64, v14
v_bfe_u32 v6, v1, 4, 1
v_lshlrev_b32 v6, 2, v6
v_and_b32 v7, 1, v1
v_lshl_add_u32 v6, v7, 1, v6
v_bfe_u32 v7, v1, 1, 1
v_add_u32 v11, v6, v7
v_lshl_add_u32 v{VT}, v11, 3, v14
v_lshl_add_u32 v{VT+1}, v11, 3, v15""")
    def jump(jb):
        a(f"v_cmp_eq_u32 vcc, {jb}, v11\nv_cndmask_b32 v6, 0, v141, vcc\nv_add_u32 v{VT}, v{VT}, v6\nv_add_u32 v{VT+1}, v{VT+1}, v6")
    a(f"""v_mov_b32 v141, 4040
s_lshl_b32 s6, s67, 15
s_lshl_b32 s7, s{sWL}, 13
s_add_u32 s6, s6, s7
s_add_u32 s6, s6, {WS_T}
s_add_u32 s7, s7, {LT}
v_add_u32 v10, s7, v3
s_lshr_b32 s15, s{sJ}, 3
s_lshl_b32 s15, s15, 11""")
    a(f"s_setprio {OPT.get('mprio', 1)}")
    wait_cnt(a, C_A2D, 4)
    if OPT.get("e3", 0) == 1: gen_E3()
    wait_cnt(a, C_M2, 4)
    if AS == 5: a("s_branch a_fin")
    wait_cnt(a, C_G, 4)
    assert OPT.get("wop") == 1
    wo_part(10, 28, True)
    arrive(a, C_AX2)
    if AS == 6: a("s_branch a_fin")
    if OPT.get("tlw"): wait_cnt(a, C_YS, 4, sleep=4)
    stamp(a, 13)
    for i in range(8):
        a(f"s_add_u32 s8, s15, {i*1024}\ns_and_b32 s8, s8, 8191\ns_add_u32 m0, s7, s8\ns_add_u32 s8, s8, s6")
        a(f"buffer_load_dwordx4 v3, {WSD}, s8 offen {OPT.get('tm', '')} lds")
    a("s_mov_b32 s14, 20000")
    a("s_waitcnt vmcnt(0)")
    a(f"a_tchk0:")
    for i in range(8): a(f"ds_read_b32 v{160+4*i}, v10 offset:{i*1024}")
    a("s_waitcnt lgkmcnt(0)")
    chk8(160, 32, 128, 132)
    a(f"s_cbranch_vccnz a_tchk0_r")
    a(f"a_tchk0_d:")
    stamp(a, 14)
    if OPT.get("cnt"): a("s_sub_u32 s78, 20001, s14")
    arrive(a, C_AT)
    wait_cnt(a, C_AT, 4)
    def rdT(tau_, va, off):
        tf = TFR[tau_]
        for w_ in range(2):
            for tau in range(2):
                for aa in range(2):
                    a(f"ds_read_b64_tr_b16 {vr(tf+8*w_+4*tau+2*aa,2)}, v{va+w_} offset:{off+(16*tau+4*aa)*128}")
    def st1(tau_, u=None):
        tf = TFR[tau_]; u = UU[tau_ % 2] if u is None else u
        for tau in range(2): mfma(a, u, tf+4*tau, E3C+4*tau, None if tau == 0 else u)
        for tau in range(2): mfma(a, u, tf+8+4*tau, E3X+4*tau, u)
    def cvtU(tau_):
        u = UU[tau_ % 2]; ub = UBB[tau_ % 2]
        for r in range(8): a(f"v_cvt_pk_bf16_f32 v{ub+r}, v{u+2*r}, v{u+2*r+1}")
    def st2(tau_):
        ub = UBB[tau_ % 2]
        for s_ in range(2): mfma(a, ACCF, F+4*(2*tau_+s_), ub+4*s_, ACCF)
    rdT(7, 14, 7 * 4096 + 56)
    for t_ in range(7):
        jump(7 - t_)
        rdT(t_, VT, t_ * 4104)
        if t_ == 0:
            a("s_waitcnt lgkmcnt(8)")
            st1(7, UU[0])
    for r in range(4): a(f"v_mov_b32 v{NQF+r}, 0")
    a(f"s_mov_b32 exec_hi, 0\nv_cvt_pk_bf16_f32 v{NQF}, v{UU[0]}, 0\ns_mov_b64 exec, -1")
    a("s_waitcnt lgkmcnt(0)")
    arrive(a, C_ADONE)
    mfma(a, ACCF, F+4*14, NQF, None)
    stamp(a, 15)
    if AS == 7: a("s_branch a_fin")
    wait_cnt(a, C_ADONE, 4)
    wo_part(0, 10, False)
    a("s_waitcnt vmcnt(0)")
    arrive(a, C_WO)
    if not OPT.get("cnt"): stamp(a, 6)
    a(f"""s_mov_b32 s8, 114688
v_mul_lo_u32 v6, v8, s8
v_lshlrev_b32 v7, 5, v9
s_mul_i32 s7, s67, 1792
s_mul_i32 s8, s{sG1}, 56
s_lshl_b32 s9, s68, 4
s_add_u32 s8, s8, s9
s_add_u32 s6, s7, s8
s_sub_u32 s7, s7, s8
s_add_u32 s7, s7, 882
v_add_u32 v10, v6, v7
v_sub_u32 v11, v6, v7
v_add_u32 v11, 32, v11
s_sub_u32 s7, s7, 32""")
    if OPT.get("late", 1):
        wait_cnt(a, OPT.get("latec", C_R1), 4, sleep=OPT.get("lsl", 4))
    stamp(a, 9)
    a(f"s_setprio {OPT.get('tprio', 1)}")
    for t_ in range(8):
        if t_ < 7: st1(t_)
        else: a.nop(10)
        if t_ > 0:
            cvtU(t_ - 1)
            a.nop(1)
            st2(t_ - 1)
    a(f"s_add_u32 s8, s12, {LEX2}\nv_add_u32 v6, s8, v3\nv_xor_b32 v7, 2048, v6")
    XC, YP, YM = 168, 176, 184
    a.nop(14)
    a("s_cmp_lg_u32 s68, 0\ns_cbranch_scc1 a_x1")
    for ri in range(2):
        if ri: a("a_x1:")
        keep, send = ACCF + 8 * ri, ACCF + 8 * (1 - ri)
        for t in range(2): a(f"ds_write_b128 v6, {vr(send+4*t,4)} offset:{t*1024}")
        a("s_waitcnt lgkmcnt(0)")
        arrive(a, C_AU)
        a(f"v_mov_b32 v{XC+8}, v7")
        wait_cnt(a, C_AU, 4)
        for t in range(2): a(f"ds_read_b128 {vr(XC+4*t,4)}, v7 offset:{t*1024}")
        a("s_waitcnt lgkmcnt(0)")
        Cr, Sr = (keep, XC) if ri == 0 else (XC, keep)
        for r in range(8):
            a(f"v_add_f32 v{YP+r}, v{Cr+r}, v{Sr+r}")
            a(f"v_sub_f32 v{YM+r}, v{Cr+r}, v{Sr+r}")
        for i in range(4): a(f"v_cvt_pk_bf16_f32 v{XC+i}, v{YP+2*i}, v{YP+2*i+1}")
        for i in range(4): a(f"v_cvt_pk_bf16_f32 v{XC+4+i}, v{YM+7-2*i}, v{YM+6-2*i}")
        if OPT.get("osw") is not None: wait_cnt(a, OPT["osw"], 4)
        om = OPT.get('amod', OPT.get('omod', ''))
        OS = f"s[{SRD_OUT}:{SRD_OUT+3}]"
        if ri == 0:
            a(f"buffer_store_dwordx4 {vr(XC,4)}, v10, {OS}, s6 offen {om}")
            a(f"s_cmp_lg_u32 s{sG1}, 0\ns_cbranch_scc1 a_o1")
            a("s_mov_b32 exec_hi, 0")
            a(f"buffer_store_dwordx3 {vr(XC+4,3)}, v11, {OS}, s7 offen {om}")
            a(f"buffer_store_short v{XC+7}, v11, {OS}, s7 offen offset:12 {om}")
            a("s_mov_b32 exec_lo, 0\ns_mov_b32 exec_hi, -1")
            a("a_o1:")
            a(f"buffer_store_dwordx4 {vr(XC+4,4)}, v11, {OS}, s7 offen {om}")
            a("s_mov_b64 exec, -1")
            a("s_branch a_x2")
        else:
            a("s_mov_b32 exec_hi, 0")
            a(f"buffer_store_dwordx4 {vr(XC,4)}, v10, {OS}, s6 offen {om}")
            a(f"buffer_store_dwordx4 {vr(XC+4,4)}, v11, {OS}, s7 offen {om}")
            a("s_mov_b32 exec_lo, 0\ns_mov_b32 exec_hi, -1")
            a(f"buffer_store_dwordx2 {vr(XC,2)}, v10, {OS}, s6 offen {om}")
            a(f"buffer_store_dwordx2 {vr(XC+6,2)}, v11, {OS}, s7 offen offset:8 {om}")
            a(f"s_cmp_lg_u32 s{sG1}, 7\ns_cbranch_scc1 a_o2")
            a(f"buffer_store_short v{XC+2}, v10, {OS}, s6 offen offset:8 {om}")
            a("a_o2:")
            a("s_mov_b64 exec, -1")
    a("a_x2:")
    if not OPT.get("cnt"): stamp(a, 2)
    a("s_branch a_fin")
    a(f"a_tchk0_r:")
    a(f"s_sub_u32 s14, s14, 1\ns_cmp_le_i32 s14, 0\ns_cbranch_scc1 a_tchk0_d")
    a(f"s_sleep {OPT.get('psleep', 4)}")
    for i in range(8):
        a(f"s_add_u32 m0, s7, {i*1024}\ns_add_u32 s8, s6, {i*1024}")
        a(f"buffer_load_dwordx4 v3, {WSD}, s8 offen sc1 lds")
    a("s_waitcnt vmcnt(0)")
    a(f"s_branch a_tchk0")
    a("a_fin:")
    stamp_out(a, 16, "A")
    a("k_end:\ns_endpgm")
    return a.text()

def build(path, stamps=False, opt=None):
    global STAMPS, OPT
    STAMPS = stamps; OPT = opt or {}; G.uid = 0
    code = build_kernel()
    hdr = f"; @launch kernel={NAME} grid=(256,1,1) block=(512,1,1) lds={LDS_SIZE}\n"
    s = hdr + '.amdgcn_target "amdgcn-amd-amdhsa--gfx950"\n.text\n' + code + '.section .rodata,"a"\n' + kd(NAME, 256, 96)
    open(path, "w").write(s)

S2 = {-1: "x0 w0 e x1 w1", 0: "x2 w2 a a", 1: "x3 w3 a a", 2: "x4 w4 a a", 3: "x5 w5 a F", 4: "x6 w6", 5: "q"}
D = {"kvp": 2, "gst": (2, 4, 6, 8), "omod": "nt", "amod": "", "thr": 4, "e3": 0, "cs": 0, "b3m": 1, "om1": "sc1", "wop": 1, "mprio": 3, "sch": S2, "ysw": (C_W0, 4), "ylw": C_G, "tlw": 0,
     "b0prio": 3, "prio": 0, "gprio": 0, "wpos": 2, "latec": C_R2}
if __name__ == "__main__":
    build("f21.s", False, D)
    build("f21_ff.s", False, {"forcefail": 1, **D})
    build("f21_rt.s", "rt", D)
    build("f21_na_rt.s", "rt", {**D, "noA": 1})
    build("v1.s", False, {**D, "osleep": 0})
    build("v2.s", False, {**D, "osleep": 6})
```

```python
import fused21 as f
D = f.D
for j in (1, 3, 4, 10):
    f.build(f"amp{j}.s", "amp", {**D, "amp": ("B", j)})
f.build(f"amp0.s", "amp", {**D, "amp": ("B", 0)})
f.build(f"amp11.s", "amp", {**D, "amp": ("B", 11)})
```

```python
import numpy as np, sys
from common import Asm, vr, sr, bf16_bits, f32_bits, srd, srd_table, kd, mfma, MFMA
from common import S_AX, S_WR, S_WI, S_BX, S_WQKV, S_WO, S_OUT, S_DBG, S_WS

QSCALE = (28 ** -0.5) * np.log2(np.e)
NAME = "concat_heads__spectral_gfnet__mha_block__prompt_kernel"

WS_K, WS_V, WS_O, WS_Y, WS_T = 0x000000, 0x200000, 0x400000, 0x600000, 0x800000
WS_FG, WS_F2, WS_F3, WS_EP = 0xA00000, 0xA10000, 0xA20000, 0xA80000
FG_F1, FG_F2 = 512, 1024
WS_FY, WS_FT = 0xA10000, 0xA20000
C_XF = 28
C_EP, C_TF = 27, 26
C_WF = 32
sG1 = 91
WS_STAMP = 0xF00000
WS_L = 0x1000000
WS_SIZE = 0x2000000
LX, LW, LWQ, LQ = 0, 32768, 90112, 0
LXA, LEX = 118784, 118784
LE = 122880
LKV = 16384
WS_JUNK = 0x1800000
LWO = 0
LY, LP = 135168, 118784
LT = 0
LYT, LWW, LTT, LEX2 = 126976, 147456, 135168, 151552
LR = 101376
LO = 101376
LMX = 101376
LC = 163840 - 256
LDS_SIZE = 163840
C_AX, C_AEX, C_AT, C_AY, C_AP, C_A2D, C_Q, C_AU, C_ADONE, C_R1, C_R2, C_O, C_WO, C_FAIL, C_M1, C_M2, C_KV, C_AX2, C_G, C_W0, C_W1, C_W2, C_W3, C_YS, C_W4 = range(25)

M16 = "v_mfma_f32_16x16x32_bf16"
def mfma16(a, d, A, B, c=None):
    cs = "0" if c is None else vr(c, 4)
    a(f"{M16} {vr(d,4)}, {vr(A,4)}, {vr(B,4)}, {cs}")

sH, sQB, sW, sTAG, sWL = 3, 4, 5, 34, 35
SRD_A, SRD_B, SRD_WS, SRD_OUT, SRD_C, SRD_TAB = 36, 40, 44, 48, 52, 56
sX, sJ, sN2, sDQ = 60, 61, 62, 63
sPASS = 64
sFAST, sXCC, sFG, sG, sJ4 = 86, 87, 88, 89, 90
sHP = 86
sSIG, sMSK = 92, 93
sPM = 91
KSIG = 0x6A39E5C1
WSD = f"s[{SRD_WS}:{SRD_WS+3}]"
STAMPS = False
OPT = {}

class G:
    uid = 0
    plo = None
def lab(p):
    G.uid += 1
    return f"{p}_{G.uid}"

def arrive(a, c):
    a(f"s_mov_b64 exec, 1")
    a(f"ds_add_u32 v4, v5 offset:{4*c}")
    a(f"s_mov_b64 exec, -1")

def wait_cnt(a, c, target, starget=None, sleep=1):
    l = lab("wc")
    a("s_mov_b32 s69, 400000")
    if G.plo is not None: a("s_setprio 0")
    a(f"{l}:")
    a(f"ds_read_b32 v6, v4 offset:{4*c}")
    a("s_waitcnt lgkmcnt(0)")
    a("v_readfirstlane_b32 s8, v6")
    a("s_sub_u32 s69, s69, 1")
    a(f"s_cmp_ge_u32 s8, {target if starget is None else 's'+str(starget)}")
    a(f"s_cbranch_scc1 {l}_d")
    a(f"s_sleep {sleep}")
    a("s_cmp_lg_u32 s69, 0")
    a(f"s_cbranch_scc1 {l}")
    a(f"{l}_d:")
    if G.plo is not None: a(f"s_setprio {G.plo}")

def setprio(a, p):
    a(f"s_setprio {p}")
    if OPT.get("plo"): G.plo = p if p else None

def poll(a, vaddr, soff, mask, width=1, vt=8, sleep=4):
    l = lab("pl")
    a(f"s_mov_b32 s9, 20000")
    if mask != -1: a(f"s_mov_b32 exec_lo, {mask & 0xffffffff:#x}\ns_mov_b32 exec_hi, {mask >> 32:#x}")
    a(f"{l}:")
    sfx = {1: "", 2: "x2", 4: "x4"}[width]
    a(f"buffer_load_dword{sfx} {vr(vt,width)}, v{vaddr}, {WSD}, {soff} offen sc1")
    a("s_waitcnt vmcnt(0)")
    if width == 1:
        a(f"v_cmp_ne_u32 vcc, s{sTAG}, v{vt}")
    else:
        for i in range(width): a(f"v_xor_b32 v{vt+i}, s{sTAG}, v{vt+i}")
        if width == 2: a(f"v_or_b32 v{vt}, v{vt}, v{vt+1}")
        else: a(f"v_or3_b32 v{vt}, v{vt}, v{vt+1}, v{vt+2}\nv_or_b32 v{vt}, v{vt}, v{vt+3}")
        a(f"v_cmp_ne_u32 vcc, 0, v{vt}")
    a(f"s_cbranch_vccz {l}_d")
    a(f"s_sleep {sleep}")
    a("s_sub_u32 s9, s9, 1")
    a("s_cmp_lg_u32 s9, 0")
    a(f"s_cbranch_scc1 {l}")
    a(f"{l}_d:")
    if mask != -1: a("s_mov_b64 exec, -1")

def both(a, f):
    l = lab("bm")
    a(f"s_cmp_lg_u32 s{sFAST}, 0\ns_cbranch_scc1 {l}_f")
    f("sc1")
    a(f"s_branch {l}_d")
    a(f"{l}_f:")
    f("")
    a(f"{l}_d:")

def flag_store(a, soff, local=False):
    a("s_mov_b64 exec, 1")
    a(f"v_mov_b32 v6, s{sTAG}\nv_mov_b32 v7, 0")
    f = lambda m: a(f"buffer_store_dword v6, v7, {WSD}, s{soff} offen {m}")
    if local: both(a, f)
    else: f("sc1")
    a("s_mov_b64 exec, -1")

def gbar_wait(a, k, fbase, cnt, vt):
    l = lab("gb")
    a(f"s_cmp_lg_u32 s{sWL}, 0\ns_cbranch_scc1 {l}_w")
    a(f"s_add_u32 s10, s{sFG}, {FG_F2 + 128*k}")
    a(f"s_cmp_lg_u32 s{sJ}, 0\ns_cbranch_scc1 {l}_m")
    a(f"s_mov_b32 s12, {fbase}")
    poll(a, 3, "s12", -1, width=4, vt=vt, sleep=OPT.get("lsleep", 2))
    flag_store(a, 10, local=True)
    a(f"s_branch {l}_a")
    a(f"{l}_m:")
    a(f"s_cmp_lg_u32 s{sFAST}, 0\ns_cbranch_scc1 {l}_f")
    a("v_mov_b32 v7, 0")
    poll(a, 7, "s10", 1, width=1, vt=vt, sleep=8)
    a(f"s_branch {l}_a")
    a(f"{l}_f:")
    a("s_mov_b32 s9, 40000")
    a(f"{l}_fl:")
    a(f"s_buffer_load_dword s8, {WSD}, s10 glc")
    a("s_waitcnt lgkmcnt(0)")
    a(f"s_cmp_eq_u32 s8, s{sTAG}\ns_cbranch_scc1 {l}_a")
    a(f"s_sleep {OPT.get('psleep', 2)}")
    a(f"s_sub_u32 s9, s9, 1\ns_cmp_lg_u32 s9, 0\ns_cbranch_scc1 {l}_fl")
    a(f"{l}_a:")
    arrive(a, cnt)
    a(f"{l}_w:")
    wait_cnt(a, cnt, 1)

def set_tag(a, keep=None):
    a(f"v_readfirstlane_b32 s{sTAG}, v2")
    a(f"s_mov_b32 s{sMSK}, 0x00030003")
    a("s_nop 1")
    a(f"s_add_u32 s{sTAG}, s{sTAG}, 1")
    if keep is not None: a(f"s_mov_b32 s{keep}, s{sTAG}")
    a(f"s_bitcmp1_b32 s{sTAG}, 0\ns_cselect_b32 s{sSIG}, {KSIG:#x}, {KSIG ^ 0xffffffff:#x}") if False else None
    a(f"s_bfe_i32 s{sSIG}, s{sTAG}, 0x10000")
    a(f"s_xor_b32 s{sSIG}, s{sSIG}, {KSIG:#x}")
    a(f"s_mul_i32 s{sTAG}, s{sTAG}, 0x9E3779B1")

def sig_regs(a, d, hi=False):
    if hi: a(f"v_lshrrev_b32 v{d}, 4, v1")
    else: a(f"v_and_b32 v{d}, 3, v1")
    a(f"v_lshlrev_b32 v{d}, 2, v{d}")
    a(f"v_lshrrev_b32 v{d}, v{d}, s{sSIG}")

def sign(a, r0, n, sg):
    for r in range(0, n, 4): a(f"v_bfi_b32 v{r0+r}, s{sMSK}, v{sg}, v{r0+r}")

def check(a, r0, n, sg, acc, first=True):
    for r in range(0, n, 2):
        a(f"v_xor_b32 v{acc+1}, v{r0+r}, v{sg + r % 4}")
        a(f"v_xor_b32 v{acc+2}, v{r0+r+1}, v{sg + (r+1) % 4}")
        if first and r == 0: a(f"v_or_b32 v{acc}, v{acc+1}, v{acc+2}")
        else: a(f"v_or3_b32 v{acc}, v{acc}, v{acc+1}, v{acc+2}")

def fx_load(a, vd, va):
    a(f"v_and_b32 v{va}, 31, v1\nv_lshlrev_b32 v{va}, 2, v{va}")
    a(f"buffer_load_dword v{vd}, v{va}, {WSD}, s{sFG} offen sc1")

def fx_eval(a, vd, va):
    l = lab("fx")
    a("s_mov_b32 s9, 20000")
    a(f"{l}:")
    a(f"v_subrev_u32 v{vd}, s{sTAG}, v{vd}")
    a(f"v_cmp_lt_u32 vcc, 14, v{vd}")
    a(f"s_cbranch_vccz {l}_d")
    a("s_sleep 4")
    a(f"buffer_load_dword v{vd}, v{va}, {WSD}, s{sFG} offen sc1")
    a("s_waitcnt vmcnt(0)")
    a("s_sub_u32 s9, s9, 1")
    a("s_cmp_lg_u32 s9, 0")
    a(f"s_cbranch_scc1 {l}")
    a(f"{l}_d:")
    a(f"v_cmp_ne_u32 vcc, s{sXCC}, v{vd}")
    a("s_nop 0")
    a("s_cmp_eq_u64 vcc, 0")
    a(f"s_cselect_b32 s{sFAST}, {0 if OPT.get('slow') else 1}, 0")

def stamp(a, idx):
    if not STAMPS: return
    a(f"s_memrealtime s[94:95]" if STAMPS in ("rt", "dbg", "amp") else f"s_memtime s[94:95]")
    a("s_waitcnt lgkmcnt(0)")
    a(f"s_mov_b32 s{70+idx}, s94")

def stamp_out(a, n, who="B"):
    if not STAMPS: return
    a("s_waitcnt vmcnt(0) lgkmcnt(0)")
    if STAMPS == "amp":
        w, j = OPT["amp"]
        if who != w: return
        l = lab("amp")
        stamp(a, 6)
        a(f"s_cmp_lg_u32 s{sWL}, 0\ns_cbranch_scc1 {l}_d")
        a(f"s_sub_u32 s8, s{70+j}, s70\ns_min_u32 s8, s8, 10000\ns_mul_i32 s8, s8, 10\ns_add_u32 s8, s8, s76\ns_mov_b32 s9, 100000")
        a(f"{l}:")
        a("s_sleep 8\ns_memrealtime s[94:95]\ns_waitcnt lgkmcnt(0)")
        a(f"s_sub_u32 s10, s94, s8\ns_cmp_ge_i32 s10, 0\ns_cbranch_scc1 {l}_d")
        a(f"s_sub_u32 s9, s9, 1\ns_cmp_lg_u32 s9, 0\ns_cbranch_scc1 {l}")
        a(f"{l}_d:")
        return
    if STAMPS == "dbg":
        if who == "A": stamp(a, 6)
        srd(a, SRD_C, S_DBG, 256)
        a("v_mov_b32 v7, 0\ns_mov_b64 exec, 1")
        a("s_not_b32 s8, s70\nv_mov_b32 v6, s8")
        a(f"buffer_atomic_umax v6, v7, s[{SRD_C}:{SRD_C+3}], 0 offen sc1")
        M = {"B": {1: 0, 2: 11, 3: 1, 4: 3, 5: 4, 6: 8, 7: 10}, "A": {8: 8, 9: 3, 10: 10, 11: 14, 12: 15, 13: 9, 14: 6}}[who]
        for k, v in M.items():
            a(f"v_mov_b32 v{8+k}, s{70+v}")
            a(f"buffer_atomic_umax v{8+k}, v7, s[{SRD_C}:{SRD_C+3}], 0 offen offset:{4*k} sc1")
        a("s_mov_b64 exec, -1")
        return
    a(f"s_lshl_b32 s10, s2, 9\ns_lshl_b32 s11, s{sW}, 6\ns_add_u32 s10, s10, s11\ns_add_u32 s10, s10, {WS_STAMP}")
    a("v_mov_b32 v7, 0\ns_mov_b64 exec, 1")
    for i in range(n):
        a(f"v_mov_b32 v6, s{70+i}")
        a(f"buffer_store_dword v6, v7, {WSD}, s10 offen offset:{4*i}")
    a("s_mov_b64 exec, -1")

def gen_E(a, lanev, hhv, n2s, mode, outs, tmp):
    t0, t1, t2, t3, t4, t5 = range(tmp, tmp + 6)
    if mode == 'a1':
        a(f"v_cvt_f32_u32 v{t0}, v{lanev}")
        a(f"v_mul_f32 v{t0}, {f32_bits(1/2048):#x}, v{t0}")
        a(f"v_lshlrev_b32 v{t1}, 8, v{hhv}")
        a(f"v_add_u32 v{t1}, s{n2s}, v{t1}")
        a(f"v_cvt_f32_u32 v{t1}, v{t1}")
        offs = lambda t, j: 64 * (16 * t + 8 * (j // 4) + j % 4)
    else:
        a(f"v_lshlrev_b32 v{t0}, 6, v{lanev}")
        a(f"v_add_u32 v{t0}, s{n2s}, v{t0}")
        a(f"v_cvt_f32_u32 v{t0}, v{t0}")
        a(f"v_mul_f32 v{t0}, {f32_bits(1/2048):#x}, v{t0}")
        a(f"v_lshlrev_b32 v{t1}, 3, v{hhv}")
        a(f"v_cvt_f32_u32 v{t1}, v{t1}")
        offs = lambda t, j: 16 * t + j
    a(f"v_mul_f32 v{t1}, v{t1}, v{t0}")
    for t in range(2):
        for jp in range(4):
            for e in range(2):
                a(f"v_fmamk_f32 v{t2+e}, v{t0}, {f32_bits(float(offs(t, 2*jp+e))):#x}, v{t1}")
            a(f"v_cos_f32 v{t4}, v{t2}")
            a(f"v_cos_f32 v{t5}, v{t3}")
            a(f"v_sin_f32 v{t2}, v{t2}")
            a(f"v_sin_f32 v{t3}, v{t3}")
            a(f"v_cvt_pk_bf16_f32 v{outs['C']+4*t+jp}, v{t4}, v{t5}")
            if 'S' in outs:
                a(f"v_cvt_pk_bf16_f32 v{outs['S']+4*t+jp}, v{t2}, v{t3}")
                a(f"v_xor_b32 v{outs['NS']+4*t+jp}, 0x80008000, v{outs['S']+4*t+jp}")
            else:
                a(f"v_cvt_pk_bf16_f32 v{outs['Sx']+4*t+jp}, v{t2}, v{t3}")
                a(f"v_xor_b32 v{outs['Sx']+4*t+jp}, s13, v{outs['Sx']+4*t+jp}")


def sg_regs(a, d):
    sig_regs(a, d)
    a("s_mov_b32 exec_lo, 0x10000000\ns_mov_b32 exec_hi, 0x10000000")
    a(f"v_mov_b32 v{d}, 0")
    a("s_mov_b64 exec, -1")

def build_kernel():
    a = Asm()
    a(f""".globl {NAME}
.p2align 8
.type {NAME},@function
{NAME}:""")
    a("s_cmp_ge_u32 s2, 256\ns_cbranch_scc1 k_end")
    a("v_lshrrev_b32 v2, 6, v0")
    a("v_and_b32 v1, 63, v0")
    a(f"v_readfirstlane_b32 s{sW}, v2")
    a(f"v_mov_b32 v4, {LC}\nv_mov_b32 v5, 1")
    a(f"s_cmp_ge_u32 s{sW}, 4\ns_cbranch_scc1 a_pre")
    def kload():
        a("s_load_dwordx16 s[16:31], s[0:1], 0")
        a("s_load_dwordx2 s[32:33], s[0:1], 64")
    def common():
        if STAMPS:
            for i in range(16): a(f"s_mov_b32 s{70+i}, 0")
            a("s_memrealtime s[92:93]")
        a(f"""s_and_b32 s{sX}, s2, 7
s_lshr_b32 s{sJ}, s2, 3
s_and_b32 s15, s{sJ}, 1
s_and_b32 s{sJ4}, s{sJ}, 3
s_lshr_b32 s{sH}, s{sX}, 1
s_lshl_b32 s{sH}, s{sH}, 2
s_add_u32 s{sH}, s{sH}, s{sJ4}
s_lshr_b32 s{sHP}, s{sH}, 1
s_and_b32 s{sQB}, s{sX}, 1
s_lshl_b32 s{sQB}, s{sQB}, 3
s_lshr_b32 s6, s{sJ}, 2
s_add_u32 s{sQB}, s{sQB}, s6""")
        a("v_lshlrev_b32 v3, 4, v1")
        a(f"s_and_b32 s{sWL}, s{sW}, 3")
        a(f"""s_lshl_b32 s11, s{sWL}, 12
s_lshl_b32 s12, s{sWL}, 11
s_lshl_b32 s9, s{sX}, 2
s_add_u32 s{sN2}, s9, s{sJ4}
v_and_b32 v8, 31, v1
v_lshrrev_b32 v9, 5, v1""")
    kload()
    a("s_branch b_go")
    a("a_pre:")
    a(f"s_cmp_lg_u32 s{sW}, 4\ns_cbranch_scc1 k_nz")
    a(f"v_lshl_add_u32 v6, v1, 2, v4\nv_mov_b32 v7, 0")
    a(f"s_mov_b64 exec, {-1}\nds_write_b32 v6, v7\ns_mov_b64 exec, -1")
    a(f"s_lshr_b32 s{sJ}, s2, 3")
    if OPT.get("cpf", 1):
        srd_table(a, SRD_TAB, NAME, "k_end-" + NAME)
        a(f"s_and_b32 s8, s{sJ}, 7\ns_lshl_b32 s8, s8, 13\nv_lshlrev_b32 v6, 7, v1")
        a(f"buffer_load_dword v245, v6, s[{SRD_TAB}:{SRD_TAB+3}], s8 offen")
    a("s_waitcnt lgkmcnt(0)")
    a("k_nz:")
    a("s_barrier")
    kload()
    a("s_branch a_wave")
    a("b_go:")
    if OPT.get("b0prio"): a(f"s_setprio {OPT['b0prio']}")
    common()

    a(f"""s_lshl_b32 s6, s{sJ4}, 1
s_add_u32 s14, s{sQB}, s6
s_mul_i32 s6, s14, 37
s_lshr_b32 s6, s6, 8
s_mul_i32 s6, s6, 7
s_sub_u32 s14, s14, s6""")
    XO, WOF, VWQ, VXA = 10, 14, 15, 16
    a("""v_lshrrev_b32 v6, 3, v1
v_and_b32 v100, 7, v1
v_lshrrev_b32 v101, 1, v6
v_xor_b32 v101, v101, v100
v_mul_u32_u24 v102, 896, v6""")
    a(f"""v_lshl_add_u32 v{XO}, v101, 4, v102
v_mul_u32_u24 v103, 57344, v6
v_lshl_add_u32 v{VXA}, v101, 4, v103
s_and_b32 s8, s{sWL}, 1
s_lshl_b32 s8, s8, 6
v_xor_b32 v{VXA}, s8, v{VXA}
v_xor_b32 v101, 4, v101
v_lshl_add_u32 v{XO+1}, v101, 4, v102
v_add_u32 v{XO+1}, {8*896}, v{XO+1}
v_add_u32 v{XO+2}, {16*896}, v{XO}
v_add_u32 v{XO+3}, {16*896}, v{XO+1}""")
    a(f"""v_bfe_u32 v101, v1, 4, 1
v_lshlrev_b32 v101, 2, v101
v_xor_b32 v101, v101, v100
v_min_u32 v101, 6, v101
v_mul_u32_u24 v102, 2688, v6
v_lshl_add_u32 v{WOF}, v101, 4, v102
v_lshrrev_b32 v6, 2, v1
v_mul_u32_u24 v6, 2688, v6
v_and_b32 v101, 3, v1
v_lshl_add_u32 v{VWQ}, v101, 4, v6""")
    a(f"""s_lshl_b32 s6, s{sQB}, 7
s_lshl_b32 s7, s{sWL}, 5
s_add_u32 s6, s6, s7
s_mul_i32 s6, s6, 896
s_mul_i32 s7, s{sWL}, {16*2688}
s_mul_i32 s8, s15, 896
s_add_u32 s7, s7, s8
s_mul_i32 s8, s{sHP}, 112
s_add_u32 s7, s7, s8
s_add_u32 s7, s7, 896
s_mul_i32 s66, s{sWL}, {16*2688}
s_mul_i32 s8, s{sH}, 56
s_add_u32 s66, s66, s8
s_lshl_b32 s65, s{sWL}, 10
s_lshl_b32 s68, s{sX}, 3
s_and_b32 s8, s{sJ}, 7
s_add_u32 s68, s68, s8
s_mul_i32 s68, s68, 896
s_mul_i32 s8, s{sWL}, {8*57344}
s_add_u32 s68, s68, s8
v_mov_b32 v7, 0""")
    a(f"s_lshr_b32 s13, s{sJ}, 3\ns_lshl_b32 s13, s13, 1")
    srd_table(a, SRD_TAB, NAME, 64)
    VWA = 18
    a("v_mov_b32 v19, 0")
    a(f"""v_lshrrev_b32 v6, 2, v1
s_lshl_b32 s8, s{sWL}, 4
v_add_u32 v6, s8, v6
v_lshlrev_b32 v6, 5, v6
v_add_u32 v6, s{sN2}, v6
v_mul_u32_u24 v6, 450, v6
v_and_b32 v{VWA}, 3, v1
v_lshlrev_b32 v{VWA}, 4, v{VWA}
s_lshr_b32 s9, s{sJ}, 2
s_mul_i32 s9, s9, 56
v_add3_u32 v{VWA}, v6, v{VWA}, s9""")
    a("s_barrier")
    a("s_waitcnt lgkmcnt(0)")
    srd(a, SRD_C, S_AX, 2048 * 896)
    srd(a, SRD_WS, S_WS, WS_SIZE)
    if STAMPS: a("s_mov_b32 s70, s92")
    def xa():
        a(f"s_lshl_b32 s10, s89, 7\ns_add_u32 s10, s10, s68\ns_lshl_b32 s9, s89, 12\ns_add_u32 s9, s9, s65")
        a(f"s_add_u32 m0, s9, {LXA}\ns_add_u32 s89, s89, 1")
        a(f"buffer_load_dwordx4 v{VXA}, s[{SRD_C}:{SRD_C+3}], s10 offen lds")
        a("s_cmp_eq_u32 s89, 7\ns_cselect_b32 s89, 0, s89")
        Q1.append("xa")
    def wa():
        for k, ptr in enumerate((S_WR, S_WI)):
            srd(a, SRD_OUT, ptr, 2048 * 450 + 2)
            a(f"s_add_u32 m0, s12, {LWW + k*1024}\ns_nop 0")
            a(f"buffer_load_dwordx4 v{VWA}, s[{SRD_OUT}:{SRD_OUT+3}], 0 offen lds")
            Q1.append("wa")
    def tlbw():
        sh = OPT.get("tsh", 16)
        a(f"""s_cmp_eq_u32 s{sWL}, 0
s_cselect_b32 s{SRD_OUT}, s{S_WR}, s{S_WI}
s_cselect_b32 s{SRD_OUT+1}, s{S_WR+1}, s{S_WI+1}
s_mov_b32 s{SRD_OUT+2}, {2048*450}
s_mov_b32 s{SRD_OUT+3}, 0x20000
s_cmp_eq_u32 s{sWL}, 2
s_cselect_b32 s{SRD_OUT}, s{S_OUT}, s{SRD_OUT}
s_cselect_b32 s{SRD_OUT+1}, s{S_OUT+1}, s{SRD_OUT+1}
s_cselect_b32 s{SRD_OUT+2}, {2048*1792}, s{SRD_OUT+2}
s_cmp_eq_u32 s{sWL}, 3
s_cselect_b32 s{SRD_OUT}, s{S_WS}, s{SRD_OUT}
s_cselect_b32 s{SRD_OUT+1}, s{S_WS+1}, s{SRD_OUT+1}
s_cselect_b32 s{SRD_OUT+2}, {WS_SIZE}, s{SRD_OUT+2}
s_cselect_b32 s8, 19, {sh}
v_lshlrev_b32 v19, s8, v1""")
        a(f"buffer_load_dword v31, v19, s[{SRD_OUT}:{SRD_OUT+3}], 0 offen")
        Q1.append("tw")
    def wpf():
        a(f"""s_bitcmp1_b32 s{sWL}, 0
s_cselect_b32 s{SRD_OUT}, s{S_WI}, s{S_WR}
s_cselect_b32 s{SRD_OUT+1}, s{S_WI+1}, s{S_WR+1}
s_mov_b32 s{SRD_OUT+2}, {2048*450}
s_mov_b32 s{SRD_OUT+3}, 0x20000
s_lshl_b32 s9, s{sJ}, 1
s_lshr_b32 s10, s{sWL}, 1
s_add_u32 s9, s9, s10
s_lshl_b32 s9, s9, 3
s_add_u32 s9, s9, s{sX}
s_mul_i32 s9, s9, 1800
v_mul_u32_u24 v19, 120, v1
s_mov_b64 exec, 0xffff""")
        a(f"buffer_load_ushort v31, v19, s[{SRD_OUT}:{SRD_OUT+3}], s9 offen")
        a("s_mov_b64 exec, -1")
        srd(a, SRD_OUT, S_OUT, 2048 * 1792)
        Q1.append("vp")
    def xflag():
        a(f"s_mov_b32 m0, {LC + 4*C_EP}\ns_mov_b32 s9, {WS_EP}\ns_mov_b64 exec, 1")
        a(f"buffer_load_dword v7, {WSD}, s9 offen sc1 lds")
        Q1.append("ea")
        a(f"s_lshl_b32 s9, s{sWL}, 2\ns_add_u32 m0, s9, {LC + 4*C_XF}\ns_nop 0")
        a(f"buffer_load_dword v7, s[{SRD_TAB}:{SRD_TAB+3}], 0 offen lds")
        a("s_mov_b64 exec, -1")
        Q1.append("xf")
    def wopf():
        l = lab("wp")
        if OPT.get("b3m"):
            srd(a, SRD_OUT, S_WO, 448 * 896)
            a(f"v_lshlrev_b32 v19, 7, v1\ns_mul_i32 s9, s{sJ}, 12544\ns_mul_i32 s8, s{sWL}, 3200\ns_add_u32 s9, s9, s8\ns_mov_b64 exec, 0x1ffffff")
            a(f"buffer_load_dword v31, v19, s[{SRD_OUT}:{SRD_OUT+3}], s9 offen")
            a("s_mov_b64 exec, -1")
            Q1.append("wp")
            return
        a(f"s_cmp_lg_u32 s{sWL}, 3\ns_cbranch_scc1 {l}")
        srd(a, SRD_OUT, S_WO, 448 * 896)
        a(f"""v_lshrrev_b32 v19, 2, v1
v_mul_u32_u24 v19, 896, v19
v_and_b32 v31, 3, v1
v_mul_u32_u24 v31, 72, v31
v_add_u32 v19, v19, v31
s_mul_i32 s9, s{sJ}, {14*896}
s_lshr_b32 s8, s{sH}, 2
s_mul_i32 s8, s8, 224
s_add_u32 s9, s9, s8
s_mov_b32 exec_hi, 0xffffff""")
        a(f"buffer_load_dword v31, v19, s[{SRD_OUT}:{SRD_OUT+3}], s9 offen")
        a(f"s_mov_b64 exec, -1\ns_branch {l}_d")
        a(f"{l}:")
        a(f"s_mov_b64 exec, 1\nbuffer_load_dword v31, v7, s[{SRD_TAB}:{SRD_TAB+3}], 0 offen\ns_mov_b64 exec, -1")
        a(f"{l}_d:")
        Q1.append("wp")
    a("s_mov_b32 s89, s13")
    Q1 = []
    def vw1(tag):
        a(f"s_waitcnt vmcnt({len(Q1) - 1 - max(i for i, t in enumerate(Q1) if t == tag)})")
    srd(a, SRD_A, S_BX, 2048 * 896)
    srd(a, SRD_B, S_WQKV, 448 * 2688)
    XSL = [0, 1, 0, 1, 0, 1, 0]
    def sig_c(c):
        if c == 0: a("s_mov_b32 s13, s14")
        else: a(f"s_add_u32 s13, s14, {c}\ns_sub_u32 s10, s13, 7\ns_cmp_ge_u32 s13, 7\ns_cselect_b32 s13, s10, s13")
    def dx(c):
        sig_c(c)
        a("s_lshl_b32 s10, s13, 7\ns_add_u32 s10, s10, s6")
        for k in range(4):
            if XSL[c] == 2: a(f"s_add_u32 m0, s12, {LW + (4+k//2)*8192 + (k%2)*1024}\ns_nop 0")
            else: a(f"s_add_u32 m0, s11, {LX + XSL[c]*16384 + k*1024}\ns_nop 0")
            a(f"buffer_load_dwordx4 v{XO+k}, s[{SRD_A}:{SRD_A+3}], s10 offen lds")
        Q1.extend([f"x{c}"] * 4)
    def dw(c):
        sig_c(c)
        a(f"s_mul_i32 s13, s13, {64*2688}\ns_add_u32 s13, s13, s7")
        a(f"s_add_u32 m0, s12, {LW + c*8192}\ns_add_u32 s10, s13, {8*2688}")
        a(f"buffer_load_dwordx4 v{WOF}, s[{SRD_B}:{SRD_B+3}], s13 offen lds")
        a(f"s_add_u32 m0, s12, {LW + c*8192 + 1024}\ns_nop 0")
        a(f"buffer_load_dwordx4 v{WOF}, s[{SRD_B}:{SRD_B+3}], s10 offen lds")
        Q1.extend([f"w{c}"] * 2)
    def dq(c):
        sig_c(c)
        a(f"s_mul_i32 s13, s13, {64*2688}\ns_add_u32 s13, s13, s66\ns_add_u32 m0, s65, {LWQ + c*4096}\ns_nop 0")
        a(f"buffer_load_dwordx4 v{VWQ}, s[{SRD_B}:{SRD_B+3}], s13 offen lds")
        Q1.append("q")
    def epl():
        a(f"s_mov_b32 s9, {WS_EP}")
        a(f"buffer_load_dword v2, v7, {WSD}, s9 offen sc1")
        Q1.append("ep")
    SCH = OPT.get("sch", {-1: "a a a a a a a F x0 w0 e x1 w1", 0: "x2 w2", 1: "x3 w3", 2: "x4 w4", 3: "x5 w5", 4: "x6 w6", 5: "q W"})
    def issue(c):
        for t in SCH.get(c, "").split():
            if t[0] == "x": dx(int(t[1]))
            elif t[0] == "w": dw(int(t[1]))
            elif t == "e": epl()
            elif t == "q":
                for u in range(7): dq(u)
            elif t[0] == "q":
                for u in t[1:]: dq(int(u))
            elif t == "S": stamp(a, 5)
            elif t == "T": tlbw()
            elif OPT.get("noA"): pass
            elif t == "a": xa()
            elif t == "W": wa()
            elif t == "F": xflag()
            elif t == "P": wopf()
            elif t == "V": wpf()
    issue(-1)
    a(f"""v_and_b32 v6, 31, v1
v_lshrrev_b32 v113, 5, v1
v_bfe_u32 v116, v6, 1, 3
v_lshlrev_b32 v6, 7, v6
v_add_u32 v6, s11, v6""")
    for t in range(4):
        a(f"v_add_u32 v117, {2*t}, v113\nv_xor_b32 v117, v117, v116\nv_lshl_add_u32 v{20+t}, v117, 4, v6")
    a(f"""v_lshlrev_b32 v6, 3, v113
v_bfe_u32 v114, v1, 2, 2
v_add_u32 v6, v6, v114
v_and_b32 v114, 1, v1
v_lshlrev_b32 v114, 5, v114
v_bfe_u32 v117, v1, 4, 1
v_lshl_add_u32 v114, v117, 4, v114
v_bfe_u32 v117, v1, 1, 1
v_lshl_add_u32 v114, v117, 3, v114
v_lshl_add_u32 v26, v6, 6, v114
v_add_u32 v26, {LWQ}, v26
v_bfe_u32 v117, v1, 3, 1
v_lshlrev_b32 v117, 6, v117
v_lshlrev_b32 v6, 7, v6
v_add_u32 v6, {LW}, v6
v_xor_b32 v115, v114, v117
v_add_u32 v24, v6, v115
v_add_u32 v114, 56, v114
v_xor_b32 v115, v114, v117
v_add_u32 v25, v6, v115""")
    srd(a, SRD_OUT, S_OUT, 2048 * 1792)
    ACC, QACC, WF, XR = 32, 40, 80, 144
    SGP = 27
    a("s_cmp_lg_u32 s15, 0\ns_cbranch_scc1 b_v")
    P = 64
    Q1base = list(Q1)
    WQC = OPT.get("wqc", 4)
    for ty in range(2):
        if ty: a("b_v:")
        Q1[:] = Q1base
        def rdx(c):
            for t in range(4): a(f"ds_read_b128 {vr(XR+16*c+4*t,4)}, v{20+t} offset:{XSL[c]*16384}")
        def rdw(c):
            wf = WF + 32 * (c % 2)
            for t in range(4):
                for seg in range(2):
                    for aa in range(2):
                        a(f"ds_read_b64_tr_b16 {vr(wf+8*t+4*seg+2*aa,2)}, v{24+seg} offset:{c*8192+(16*t+4*aa)*128}")
        def mm(c, t):
            wf = WF + 32 * (c % 2)
            first = (c == 0 and t == 0)
            for seg in range(2):
                if ty == 0: mfma(a, ACC+16*seg, wf+8*t+4*seg, XR+16*c+4*t, None if first else ACC+16*seg)
                else: mfma(a, ACC+16*seg, XR+16*c+4*t, wf+8*t+4*seg, None if first else ACC+16*seg)
        def vwx(c):
            i = max(i for i, t in enumerate(Q1) if t in (f"x{c}", f"w{c}"))
            a(f"s_waitcnt vmcnt({len(Q1) - 1 - i})")
        def nxt(c):
            a(f"ds_read_b32 v6, v4 offset:{4*C_W0}")
            issue(c)
            l = lab("cw")
            a(f"s_waitcnt lgkmcnt(0)\nv_readfirstlane_b32 s8, v6\ns_nop 1\ns_cmp_ge_u32 s8, {4*(c+1)}\ns_cbranch_scc1 {l}")
            wait_cnt(a, C_W0, 4 * (c + 1))
            a(f"{l}:")
            if c in (0, 1, 3, 5, 6) and not OPT.get("lst") and not OPT.get("qst"): stamp(a, 11 + (0, 1, 3, 5, 6).index(c))
            rdw(c)
        vwx(0)
        rdx(0)
        arrive(a, C_W0)
        a("s_waitcnt lgkmcnt(1)")
        nxt(0)
        for c in range(7):
            a("s_waitcnt lgkmcnt(12)")
            mm(c, 0)
            ex = 0
            if c < 6:
                vwx(c + 1)
                rdx(c + 1)
                arrive(a, C_W0)
                ex = 5
            a(f"s_waitcnt lgkmcnt({8+ex})")
            mm(c, 1)
            if c == 1:
                set_tag(a, 67)
                sg_regs(a, SGP)
            a(f"s_waitcnt lgkmcnt({4+ex})")
            mm(c, 2)
            a(f"s_waitcnt lgkmcnt({1 if c < 6 else 0})")
            mm(c, 3)
            if c < 6: nxt(c + 1)
        stamp(a, 1)
        a(f"""s_lshl_b32 s10, s{sHP}, 7
s_lshl_b32 s11, s{sQB}, 2
s_add_u32 s10, s10, s11
s_add_u32 s10, s10, s{sW}
s_lshl_b32 s10, s10, 11
s_add_u32 s87, s10, {WS_V if ty else WS_K}
s_add_u32 s88, s87, {64*2048}""")
        a.nop(5)
        for seg in range(2):
            for r in range(8):
                a(f"v_cvt_pk_bf16_f32 v{P+8*seg+r}, v{ACC+16*seg+2*r}, v{ACC+16*seg+2*r+1}")
        if ty == 0:
            a("s_mov_b32 exec_lo, 0")
            for seg in range(2): a(f"v_mov_b32 v{P+8*seg+6}, 0x3f803f80\nv_mov_b32 v{P+8*seg+7}, 0x3f80")
        else:
            a("s_mov_b32 exec_lo, 0xf0000000\ns_mov_b32 exec_hi, 0xf0000000")
            a("v_and_b32 v6, 3, v1\nv_cmp_eq_u32 vcc, 0, v6\nv_mov_b32 v6, 0x3f803f80\nv_cndmask_b32 v6, 0, v6, vcc")
            for r in range(16): a(f"v_mov_b32 v{P+r}, v6")
        a("s_mov_b64 exec, -1")
        if ty == 0: a("s_branch b_st1")
    a("b_st1:")
    a(f"s_setprio {OPT.get('bprio', 2)}")
    sign(a, P, 16, SGP)
    vw1("q")
    arrive(a, C_W3)
    a(f"s_add_u32 s10, s87, {WS_L}\ns_add_u32 s11, s88, {WS_L}")
    for seg in range(2):
        for t in range(2):
            a(f"buffer_store_dwordx4 {vr(P+8*seg+4*t,4)}, v3, {WSD}, s{10+seg} offen offset:{t*1024} {OPT.get('lm', '')}")
    a(f"s_lshl_b32 s13, s{sW}, 12\ns_add_u32 s13, s13, {LKV}\nv_add_u32 v7, s13, v3")
    for u in range(4): a(f"ds_write_b128 v7, {vr(P+4*u,4)} offset:{u*1024}")
    G4 = 248
    GG = lambda u: G4 + 4 * (u % 2) * OPT.get("g2", 0)
    def g_rd(u): a(f"ds_read_b128 {vr(GG(u),4)}, v7 offset:{u*1024}")
    def g_st(u):
        a("s_waitcnt lgkmcnt(0)")
        a(f"buffer_store_dwordx4 {vr(GG(u),4)}, v3, {WSD}, s{87+u//2} offen offset:{(u%2)*1024} sc1")
    def st_glob():
        for u in range(4):
            a("s_waitcnt vmcnt(0)")
            g_rd(u); g_st(u)
    stamp(a, 2)
    a(f"s_mov_b32 s10, {f32_bits(QSCALE):#x}\ns_mov_b32 s11, s10")
    a(f"s_lshl_b32 s13, s{sW}, 12\ns_add_u32 s13, s13, {LQ}\nv_add_u32 v31, s13, v3")
    a(f"""s_lshl_b32 s12, s{sQB}, 2
s_lshl_b32 s13, s{sW}, 3
s_add_u32 s12, s12, s13
s_lshl_b32 s15, s{sH}, 17
s_and_b32 s13, s{sX}, 1
s_lshl_b32 s13, s13, 16
s_add_u32 s15, s15, s13
s_xor_b32 s68, s15, 0x10000
s_add_u32 s15, s15, {WS_L}
s_mov_b32 s{sPASS}, 0
s_mov_b32 s66, 4
s_mov_b32 s14, 20000""")
    if OPT.get("ns"): a(f"s_lshl_b32 s65, s12, 11\nv_add_u32 v2, {WS_V}, v3")
    wait_cnt(a, C_W3, 4)
    if OPT.get("agc") == C_W4: arrive(a, C_W4)
    if OPT.get("qst"): stamp(a, 11)
    NB = 5
    Q, O, S, Pp, MX, TMP, KV, SG, CT = 8, 40, 104, 136, 152, 156, 160, 240, 244
    def load_kv(t, force=False):
        buf = t % NB
        md = "sc1" if (force or (OPT.get("kl", "sc1") if t < 8 else OPT.get("kr", "")) == "sc1") else ""
        a(f"s_add_u32 s8, s12, {t%8}\ns_and_b32 s8, s8, 31\ns_lshl_b32 s8, s8, 11\ns_add_u32 s8, s8, s{15 if t < 8 else 68}\ns_add_u32 s9, s8, {WS_V}")
        for u in range(2):
            a(f"buffer_load_dwordx4 {vr(KV+16*buf+4*u,4)}, v3, {WSD}, s8 offen offset:{u*1024} {md}")
        for u in range(2):
            a(f"buffer_load_dwordx4 {vr(KV+16*buf+8+4*u,4)}, v3, {WSD}, s9 offen offset:{u*1024} {md}")
    def kvg(t):
        buf = t % NB
        md = "sc1" if (OPT.get("kl", "sc1") if t < 8 else OPT.get("kr", "")) == "sc1" else ""
        sal = [f"s_add_u32 s13, s65, {(t%8)*2048}", "s_and_b32 s13, s13, 0xffff", f"s_add_u32 s13, s13, s{15 if t < 8 else 68}",
               f"s_add_u32 s6, s{S_WS}, s13", f"s_addc_u32 s7, s{S_WS+1}, 0"]
        vm = [f"global_load_dwordx4 {vr(KV+16*buf+4*u,4)}, v{3 if u < 2 else 2}, s[6:7] offset:{(u%2)*1024} {md}" for u in range(4)]
        return sal, vm
    NS = OPT.get("ns", 0)
    if NS:
        load_kv_b = load_kv
        def load_kv(t, force=False):
            if force: return load_kv_b(t, True)
            sal, vm = kvg(t)
            for x in sal + vm: a(x)
    WQ = 96
    def rdq(c):
        for t in range(4):
            for aa in range(2):
                a(f"ds_read_b64_tr_b16 {vr(WQ+16*(c%3)+4*t+2*aa,2)}, v26 offset:{c*4096+(16*t+4*aa)*64}")
    rdq(0); rdq(1)
    K5 = OPT.get("kv5", 2)
    KVP = OPT.get("kvp", 4)
    for c in range(7):
        if OPT.get("qi"):
            n0 = len(a.L)
            if c + 2 < 7: rdq(c + 2)
            for t_ in range(K5):
                if c == min(max(KVP + t_, t_ + 2), 6): load_kv(t_)
            fill = a.L[n0:]; del a.L[n0:]
            per = -(-len(fill) // 4)
            for t in range(4):
                nd = sum(1 for x in fill[:per * t] if "ds_read" in x)
                a(f"s_waitcnt lgkmcnt({min(15, (8 if c < 6 else 0) + nd + 2 * (3 - t))})")
                mfma(a, QACC, WQ+16*(c%3)+4*t, XR+16*c+4*t, None if (c == 0 and t == 0) else QACC)
                a.L.extend(fill[per * t:per * (t + 1)])
            continue
        a(f"s_waitcnt lgkmcnt({8 if c < 6 else 0})")
        for t in range(4):
            mfma(a, QACC, WQ+16*(c%3)+4*t, XR+16*c+4*t, None if (c == 0 and t == 0) else QACC)
        if c + 2 < 7: rdq(c + 2)
        if c == KVP: load_kv(0)
        if c == min(KVP + 1, 6): load_kv(1)
        for t_ in range(2, K5):
            if c == min(max(KVP + t_, t_ + 1), 6): load_kv(t_)
    if OPT.get("qst"): stamp(a, 12)
    arrive(a, C_KV)
    a(f"v_mov_b32 v{SG}, v{SGP}")
    a.nop(9)
    QW = Q + 24
    for r in range(8): a(f"v_pk_mul_f32 {vr(QACC+2*r,2)}, {vr(QACC+2*r,2)}, s[10:11]")
    for r in range(8): a(f"v_cvt_pk_bf16_f32 v{QW+r}, v{QACC+2*r}, v{QACC+2*r+1}")
    a(f"s_mov_b32 exec_lo, 0\nv_mov_b32 v{QW+6}, 0\nv_mov_b32 v{QW+7}, 0\ns_mov_b64 exec, -1")
    for t in range(2): a(f"ds_write_b128 v31, {vr(QW+4*t,4)} offset:{t*1024}")
    a("s_waitcnt lgkmcnt(0)")
    arrive(a, C_Q)
    if OPT.get("qst"): stamp(a, 14)
    def rot(sl, dst, sh, base):
        a(f"s_add_u32 s{dst}, s{sW}, {1+sl}\ns_and_b32 s{dst}, s{dst}, 3\ns_lshl_b32 s{dst}, s{dst}, {sh}\ns_add_u32 s{dst}, s{dst}, {base}")
    def getq():
        l = lab("gq")
        a(f"s_cmp_lg_u32 s{sPASS}, 0\ns_cbranch_scc1 {l}")
        wait_cnt(a, C_Q, 4)
        stamp(a, 3)
        for q in range(3):
            rot(q, 8, 12, LQ)
            a(f"v_add_u32 v{TMP+q}, s8, v3")
            for t in range(2): a(f"ds_read_b128 {vr(Q+8*q+4*t,4)}, v{TMP+q} offset:{t*1024}")
        a("s_waitcnt lgkmcnt(0)")
        arrive(a, C_M2)
        a(f"{l}:")
    a("s_branch b_main2")
    a("b_main:")
    for t_ in range(K5): load_kv(t_)
    a("b_main2:")
    NQ = OPT.get("nq", 3)
    seq = [(0, 3), (1, 3), (0, 0), (0, 1), (0, 2), (1, 0), (1, 1), (1, 2)]
    seq += [(t, q) for t in range(2, 16 - NQ) for q in range(4)] + [(t, q) for q in range(4) for t in range(16 - NQ, 16)]
    firstq = {}
    for i, (t, q) in enumerate(seq): firstq.setdefault(q, i)
    retries = []
    issued = [K5 - 1]
    BQ = [t_ for t_ in range(K5) for _ in range(4)]
    gdone = [bool(OPT.get("ag"))]
    def chk(t):
        b = KV + 16 * (t % NB)
        a(f"s_waitcnt vmcnt({len(BQ) - 1 - max(i for i, x in enumerate(BQ) if x == t)})")
        if OPT.get("nochk"): return
        l = f"b_chk{t}"
        a(f"{l}:")
        a(f"v_bitop3_b32 v{CT}, v{b}, v{b+4}, v{SG} bitop3:0x7e")
        a(f"v_bitop3_b32 v{CT+1}, v{b+8}, v{b+12}, v{SG} bitop3:0x7e")
        a(f"v_bitop3_b32 v{CT}, v{CT}, s{sMSK}, v{CT+1} bitop3:0xc8")
        a(f"v_cmp_ne_u32 vcc, 0, v{CT}")
        a(f"s_cbranch_vccnz {l}_r")
        a(f"{l}_d:")
        retries.append((t, issued[0], l, gdone[0], False))
    def chk_v(b):
        a(f"v_bitop3_b32 v{CT}, v{b}, v{b+4}, v{SG} bitop3:0x7e")
        a(f"v_bitop3_b32 v{CT+1}, v{b+8}, v{b+12}, v{SG} bitop3:0x7e")
        a(f"v_bitop3_b32 v{CT}, v{CT}, s{sMSK}, v{CT+1} bitop3:0xc8")
        a(f"v_cmp_ne_u32 vcc, 0, v{CT}")
    def chk_a(t):
        a(f"s_waitcnt vmcnt({len(BQ) - 1 - max(i for i, x in enumerate(BQ) if x == t)})")
        chk_v(KV + 16 * (t % NB))
    def chk_b(t):
        l = f"b_chk{t}"
        a(f"s_cbranch_vccnz {l}_r")
        a(f"{l}_d:")
        retries.append((t, issued[0], l, gdone[0], 1 if gpend[0] is None else 2 + gpend[0]))
    SL = {}
    gpend = [None]
    def step(i, extra=None):
        t, q = seq[i]
        par = i % 2
        Sc, Sn = S + 16 * par, S + 16 * (1 - par)
        Pc, Pv = Pp + 8 * par, Pp + 8 * (1 - par)
        ms = [None] * 4
        if i + 1 < len(seq):
            nt, nq = seq[i + 1]; nb = KV + 16 * (nt % NB)
            ms[0] = lambda: mfma(a, Sn, nb, Q+8*nq, None)
            ms[1] = lambda: mfma(a, Sn, nb+4, Q+8*nq+4, Sn)
        if i > 0:
            pt, pq = seq[i - 1]; pb = KV + 16 * (pt % NB)
            ms[2] = lambda: mfma(a, O+16*pq, pb+8, Pv, None if firstq[pq] == i - 1 else O+16*pq)
            ms[3] = lambda: mfma(a, O+16*pq, pb+12, Pv+4, O+16*pq)
        for g in range(4):
            if ms[g]: ms[g]()
            if extra and extra[g]: extra[g]()
            for f in SL.get((i, g), []): f()
            for e in range(4): a(f"v_exp_f32 v{Sc+4*g+e}, v{Sc+4*g+e}")
            a(f"v_cvt_pk_bf16_f32 v{Pc+2*g}, v{Sc+4*g}, v{Sc+4*g+1}")
            a(f"v_cvt_pk_bf16_f32 v{Pc+2*g+1}, v{Sc+4*g+2}, v{Sc+4*g+3}")
    chk(0)
    if OPT.get("qst"): stamp(a, 15)
    mfma(a, S, KV, QW, None)
    mfma(a, S, KV+4, QW+4, S)
    if K5 <= 2:
        load_kv(2); issued[0] = 2; BQ.extend([2] * 4)
        a.nop(3)
    else: a.nop(10)
    checked = {0}
    last_use = {}
    for i, (t, q) in enumerate(seq): last_use[t] = i
    fin = {}
    for i, (t, q) in enumerate(seq): fin[q] = i
    if NS:
        GS_ = OPT.get("gst", (2, 6, 10, 14))
        busy = set()
        if not OPT.get("ag"):
            for i in GS_: busy |= {(i, 0), (i, 3)}
        firstu = {}
        for i, (t, q) in enumerate(seq): firstu.setdefault(t, i)
        for t in range(2, 16):
            i = firstu[t] - 2
            g = 2 if (i, 3) not in busy else 1
            SL.setdefault((i, g), []).append(lambda t=t: chk_a(t))
            SL.setdefault((i, g + 1), []).append(lambda t=t: chk_b(t))
            busy |= {(i, g), (i, g + 1)}
            checked.add(t)
        def blk(t, vm):
            for x in vm: a(x)
            issued[0] = t; BQ.extend([t] * 4)
        prevb = -1
        for t in range(max(3, K5), 16):
            i = t - 3 if t < 5 else last_use[t - NB] + 1
            if t >= 8 and OPT.get("lead"): i = max(i, min(OPT["lead"] + (t - 8) * OPT.get("leadi", 2), firstu[t] - 8))
            if t in OPT.get("tat", {}): i = max(i, OPT["tat"][t])
            sal, vm = kvg(t)
            SL.setdefault((i, 3), []).append(lambda t=t, vm=vm: blk(t, vm))
            busy.add((i, 3))
            k = 4 * i + 2
            sl_ = [sal[3:5]] + [[x] for x in sal[2::-1]] if NS == 1 else [[x] for x in sal[::-1]]
            lo = prevb
            assert 4 * i + 3 > prevb
            prevb = 4 * i + 3
            for n, grp in enumerate(sl_):
                while k > lo and ((k // 4, k % 4) in busy or (k // 4 == 0 and k % 4 >= 2)):
                    assert not (NS == 2 and n == 1), (t, k)
                    k -= 1
                if k <= lo: k = lo + 1
                SL.setdefault((k // 4, k % 4), []).insert(0, lambda grp=grp: [a(x) for x in grp])
                busy.add((k // 4, k % 4))
    for i in range(len(seq)):
        if i + 1 < len(seq) and seq[i + 1][0] not in checked:
            chk(seq[i + 1][0]); checked.add(seq[i + 1][0])
        extra = [None] * 4
        if i == 1: getq()
        if OPT.get("lst") and i in (4, 24, 44):
            stamp(a, 13 + (4, 24, 44).index(i))
        if i == fin[0] and not OPT.get("noA") and not OPT.get("astop"):
            extra[0] = lambda: a(f"ds_read_b32 v6, v4 offset:{4*C_AX2}")
        for sl in range(3):
            if i == fin[sl] + 2:
                if sl == 0 and not OPT.get("noA") and not OPT.get("astop"):
                    l = lab("ad")
                    a(f"s_waitcnt lgkmcnt(0)\nv_readfirstlane_b32 s8, v6\ns_nop 3\ns_cmp_ge_u32 s8, 4\ns_cbranch_scc1 {l}")
                    wait_cnt(a, C_AX2, 4)
                    a(f"{l}:")
                    stamp(a, 5)
                a(f"s_add_u32 s8, s{sW}, {1+sl}\ns_and_b32 s8, s8, 3\ns_mul_i32 s8, s8, 12288\ns_add_u32 s8, s8, {LR+sl*4096}")
                a(f"v_add_u32 v{TMP}, s8, v3")
                wr = lambda g, sl=sl: a(f"ds_write_b128 v{TMP}, {vr(O+16*sl+4*g,4)} offset:{g*1024}")
                extra[1] = lambda wr=wr: (wr(0), wr(1))
                extra[2] = lambda wr=wr: wr(2)
                extra[3] = lambda wr=wr: wr(3)
        if i == fin[2] + 3:
            extra[2] = lambda: (a("s_waitcnt lgkmcnt(0)"), arrive(a, C_R1))
        GS = OPT.get("gst", (2, 6, 10, 14))
        if i in GS and not OPT.get("ag"):
            u = GS.index(i)
            extra[0] = lambda u=u: (g_rd(u), gpend.__setitem__(0, u))
            extra[3] = lambda u=u: (g_st(u), BQ.append(-1), gpend.__setitem__(0, None))
        step(i, extra)
        if i == GS[-1]:
            gdone[0] = True
            arrive(a, C_G)
        if i == OPT.get("tlw"): arrive(a, C_YS)
        if NS: continue
        if i < 2:
            load_kv(3 + i); issued[0] = 3 + i; BQ.extend([3 + i] * 4)
        if i > 0:
            pt = seq[i - 1][0]
            if last_use[pt] == i - 1 and pt + NB < 16:
                load_kv(pt + NB); issued[0] = pt + NB; BQ.extend([pt + NB] * 4)
    assert fin[2] + 3 <= len(seq) - 1
    a.nop(2)
    lt = KV + 16 * (seq[-1][0] % NB)
    OW = O + 48
    mfma(a, OW, lt+8, Pp+8, OW)
    mfma(a, OW, lt+12, Pp+8+4, OW)
    stamp(a, 4)
    if OPT.get("cnt"): a("s_sub_u32 s81, 20001, s14")
    wait_cnt(a, C_R1, None, 66)
    stamp(a, 6)
    a(f"s_mul_i32 s8, s{sW}, 12288\ns_add_u32 s8, s8, {LR}\nv_add_u32 v{TMP}, s8, v3")
    for sl in range(3):
        for g in range(4): a(f"ds_read_b128 {vr(O+16*sl+4*g,4)}, v{TMP} offset:{sl*4096+g*1024}")
    a(f"s_mov_b32 s8, {f32_bits(2.0**-80):#x}\ns_mov_b32 s9, {f32_bits(2.0**100):#x}\ns_mov_b32 s10, {f32_bits(2.0**127):#x}")
    for sl in range(3):
        a(f"s_waitcnt lgkmcnt({4*(2-sl)})")
        for r in (6, 7, 0, 1, 2, 3, 4, 5): a(f"v_pk_add_f32 {vr(OW+2*r,2)}, {vr(OW+2*r,2)}, {vr(O+16*sl+2*r,2)}")
    a(f"v_mov_b32 v{TMP}, v{OW+12}\nv_mov_b32 v{TMP+1}, v{OW+12}")
    for r in range(4): a(f"v_pk_add_f32 {vr(O+2*r,2)}, {vr(OW+4*r,2)}, {vr(OW+4*r+2,2)}")
    a(f"v_permlane32_swap_b32 v{TMP}, v{TMP+1}")
    for r in range(2): a(f"v_pk_add_f32 {vr(O+2*r,2)}, {vr(O+2*r,2)}, {vr(O+2*r+4,2)}")
    a(f"v_cmp_le_f32 s[52:53], s8, v{TMP+1}")
    a(f"v_cmp_ge_f32 s[54:55], s9, v{TMP+1}")
    a(f"v_rcp_f32 v{TMP}, v{TMP+1}")
    a(f"v_pk_add_f32 {vr(O,2)}, {vr(O,2)}, {vr(O+2,2)}")
    a(f"v_add_f32 v{O}, v{O}, v{O+1}")
    a(f"v_cmp_ge_f32 s[56:57], s10, abs(v{O})")
    for r in range(8): a(f"v_pk_mul_f32 {vr(OW+2*r,2)}, {vr(OW+2*r,2)}, {vr(TMP,2)} op_sel_hi:[1,0]")
    a("s_and_b64 s[52:53], s[52:53], s[54:55]\ns_and_b64 s[52:53], s[52:53], s[56:57]")
    for r in range(8): a(f"v_cvt_pk_bf16_f32 v{Pp+r}, v{OW+2*r}, v{OW+2*r+1}")
    a(f"s_mov_b32 exec_lo, 0\nv_mov_b32 v{Pp+6}, 0\nv_mov_b32 v{Pp+7}, 0\ns_mov_b64 exec, -1")
    sign(a, Pp, 8, SG)
    a(f"""s_lshl_b32 s10, s{sQB}, 2
s_add_u32 s10, s10, s{sW}
s_lshl_b32 s10, s10, 4
s_add_u32 s10, s10, s{sH}
s_lshl_b32 s8, s10, 11
s_add_u32 s8, s8, {WS_O}""")
    a(f"s_cmp_lg_u32 s{sPASS}, 0\ns_cbranch_scc1 b_nofail")
    if not OPT.get("forcefail"): a("s_cmp_eq_u64 s[52:53], -1\ns_cbranch_scc1 b_nofail")
    arrive(a, C_FAIL)
    a("s_branch b_nost")
    a("b_nofail:")
    for t in range(2):
        a(f"buffer_store_dwordx4 {vr(Pp+4*t,4)}, v3, {WSD}, s8 offen offset:{t*1024} sc1")
    a("b_nost:")
    a("s_waitcnt lgkmcnt(0)")
    arrive(a, C_R2)
    wait_cnt(a, C_R2, None, 66)
    a(f"s_cmp_lg_u32 s{sPASS}, 0\ns_cbranch_scc1 b_pub")
    a(f"ds_read_b32 v6, v4 offset:{4*C_FAIL}\ns_waitcnt lgkmcnt(0)\nv_readfirstlane_b32 s8, v6\ns_nop 3")
    a("s_cmp_lg_u32 s8, 0\ns_cbranch_scc1 b_slow")
    a("b_pub:")
    stamp(a, 7)
    WF3, OF3, ACC3 = 8, 152, 216
    if not OPT.get("noA") and not OPT.get("astop"): wait_cnt(a, C_WO, 4)
    a(f"""v_lshrrev_b32 v6, 5, v1
v_lshlrev_b32 v6, 4, v6
v_bfe_u32 v7, v1, 2, 2
v_add_u32 v6, v6, v7
v_mul_u32_u24 v6, 224, v6
v_and_b32 v7, 1, v1
v_lshl_add_u32 v6, v7, 5, v6
v_bfe_u32 v7, v1, 4, 1
v_lshl_add_u32 v6, v7, 4, v6
v_bfe_u32 v7, v1, 1, 1
v_lshl_add_u32 v6, v7, 3, v6
s_lshl_b32 s8, s{sW}, 6
v_add_u32 v6, s8, v6""")
    VA = 244
    for g in range(4):
        a(f"s_add_u32 s8, s{sW}, {g}\ns_and_b32 s8, s8, 3\ns_mul_i32 s9, s8, {4*28*224}\nv_add_u32 v{VA+g}, s9, v6")
        if g: a(f"s_lshl_b32 s8, s8, 13\ns_add_u32 s8, s8, {LO}\nv_add_u32 v{VA+3+g}, s8, v3")
    def wo_rd(h0, h1):
        for h in range(h0, h1):
            for t in range(2):
                for aa in range(2):
                    a(f"ds_read_b64_tr_b16 {vr(WF3+8*h+4*t+2*aa,2)}, v{VA+h//4} offset:{LWO+(28*(h%4)+8*t+4*aa)*224}")
    OFS = OPT.get("ofs", 16)
    wo_rd(0, OFS)
    a(f"""s_and_b32 s12, s{sX}, 1
s_lshl_b32 s12, s12, 5
s_lshr_b32 s11, s{sX}, 1
s_lshl_b32 s11, s11, 3
s_add_u32 s12, s12, s11
s_lshr_b32 s11, s{sJ}, 2
s_add_u32 s12, s12, s11""")
    a(f"""s_lshl_b32 s11, s12, 4
s_lshl_b32 s8, s{sW}, 2
s_add_u32 s11, s11, s8""")
    a(f"s_lshl_b32 s11, s11, 11\ns_add_u32 s11, s11, {WS_O}\ns_lshl_b32 s8, s{sW}, 13\ns_add_u32 s8, s8, {LO}")
    a(f"s_mov_b32 s14, 20000\nv_add_u32 v7, s8, v3")
    FL = 52
    for i in range(4): a(f"s_mov_b64 s[{FL+2*i}:{FL+2*i+1}], -1")
    def o_dma(i):
        for u in range(2):
            a(f"s_add_u32 m0, s8, {(2*i+u)*1024}\ns_add_u32 s9, s11, {(2*i+u)*1024}")
            a(f"buffer_load_dwordx4 v3, {WSD}, s9 offen sc1 lds")
    if OFS < 16:
        for i in range(4): o_dma(i)
        wo_rd(OFS, 16)
        a("s_branch b_opoll1")
    a("b_opoll:")
    def each(tag, f):
        for i in range(4):
            a(f"s_cmp_eq_u64 s[{FL+2*i}:{FL+2*i+1}], 0\ns_cbranch_scc1 b_o{tag}{i}")
            f(i)
            a(f"b_o{tag}{i}:")
    each("d", o_dma)
    a("b_opoll1:")
    a("s_waitcnt vmcnt(0)")
    each("r", lambda i: [a(f"ds_read_b128 {vr(OF3+8*i+4*u,4)}, v7 offset:{(2*i+u)*1024}") for u in range(2)])
    a("s_waitcnt lgkmcnt(0)")
    for i in range(4):
        a(f"v_bitop3_b32 v{232+i}, v{OF3+8*i}, v{OF3+8*i+4}, v{SG} bitop3:0x7e")
    for i in range(4):
        a(f"v_and_b32 v{232+i}, s{sMSK}, v{232+i}")
    for i in range(4):
        a(f"v_cmp_ne_u32 s[{FL+2*i}:{FL+2*i+1}], 0, v{232+i}")
    a("s_nop 3")
    a(f"s_or_b64 vcc, s[{FL}:{FL+1}], s[{FL+2}:{FL+3}]\ns_or_b64 vcc, vcc, s[{FL+4}:{FL+5}]\ns_or_b64 vcc, vcc, s[{FL+6}:{FL+7}]")
    a("s_cbranch_scc0 b_opoll_d")
    if OPT.get('osleep', 2): a(f"s_sleep {OPT.get('osleep', 2)}")
    a("s_sub_u32 s14, s14, 1\ns_cmp_lg_u32 s14, 0\ns_cbranch_scc1 b_opoll")
    a("b_opoll_d:")
    if OPT.get("cnt"): a("s_sub_u32 s82, 20001, s14")
    stamp(a, 8)
    arrive(a, C_O)
    for i in range(8): mfma(a, ACC3, WF3+4*i, OF3+4*i, None if i == 0 else ACC3)
    wait_cnt(a, C_O, 4)
    stamp(a, 9)
    def rdo(g, dst):
        for i in range(8): a(f"ds_read_b128 {vr(dst+4*i,4)}, v{VA+3+g} offset:{i*1024}")
    rdo(1, OF3+32); rdo(2, OF3)
    for i in range(8):
        a(f"s_waitcnt lgkmcnt({15-i})")
        mfma(a, ACC3, WF3+32+4*i, OF3+32+4*i, ACC3)
    rdo(3, OF3+32)
    for i in range(8):
        a(f"s_waitcnt lgkmcnt({15-i})")
        mfma(a, ACC3, WF3+64+4*i, OF3+4*i, ACC3)
    for i in range(8):
        a(f"s_waitcnt lgkmcnt({7-i})")
        mfma(a, ACC3, WF3+96+4*i, OF3+32+4*i, ACC3)
    a(f"""v_and_b32 v6, 31, v1
v_mul_u32_u24 v6, 1792, v6
v_lshrrev_b32 v7, 5, v1
v_lshl_add_u32 v6, v7, 5, v6
s_mul_i32 s7, s12, 57344
{f"s_mov_b32 s8, s{sJ4}" if OPT.get("b3m") else f"s_lshr_b32 s8, s{sH}, 2"}
s_mul_i32 s8, s8, 224
s_add_u32 s7, s7, s8
s_lshl_b32 s8, s{sW}, 6
s_add_u32 s7, s7, s8
s_add_u32 s7, s7, 896""")
    a.nop(2)
    for r in range(8): a(f"v_cvt_pk_bf16_f32 v{OF3+r}, v{ACC3+2*r}, v{ACC3+2*r+1}")
    a(f"""s_cmp_lg_u32 s{sW}, 3
s_cbranch_scc1 b_st
s_mov_b32 exec_hi, 0
b_st:""")
    for t in range(2):
        a(f"buffer_store_dwordx4 {vr(OF3+4*t,4)}, v6, s[{SRD_OUT}:{SRD_OUT+3}], s7 offen offset:{t*16} {OPT.get('omod', '')}")
    a("s_mov_b64 exec, -1")
    a(f"s_or_b32 s8, s2, s{sW}\ns_cmp_lg_u32 s8, 0\ns_cbranch_scc1 b_noep")
    a(f"s_mov_b64 exec, 1\nv_mov_b32 v6, s67\nv_mov_b32 v7, 0\ns_mov_b32 s8, {WS_EP}")
    a(f"buffer_store_dword v6, v7, {WSD}, s8 offen sc1")
    a("s_mov_b64 exec, -1")
    a("b_noep:")
    stamp(a, 10)
    stamp_out(a, 16)
    a("s_endpgm")
    for (t, iss, l, gd, inl) in retries:
        a(f"{l}_r:")
        a(f"s_sub_u32 s14, s14, 1\ns_cmp_le_i32 s14, 0\ns_cbranch_scc1 {l}_d")
        if OPT.get("rsleep", 1): a(f"s_sleep {OPT.get('rsleep', 1)}")
        if t < 8:
            a(f"s_cmp_gt_u32 s14, {20000 - OPT.get('nloc', 4)}\ns_cbranch_scc1 {l}_g")
            a(f"s_xor_b32 s15, s15, {WS_L}")
        if not gd:
            a(f"s_bitcmp1_b32 s14, 0\ns_cbranch_scc1 {l}_g")
            st_glob()
        if t < 8: a(f"{l}_g:")
        for u in range(t, iss + 1): load_kv(u, True)
        a(f"s_waitcnt vmcnt(0)")
        if inl:
            if inl >= 2: g_rd(inl - 2)
            chk_v(KV + 16 * (t % NB))
            a(f"s_cbranch_vccnz {l}_r\ns_branch {l}_d")
        else: a(f"s_branch {l}")
    a("b_slow:")
    a(f"s_mov_b32 s{sPASS}, 1\ns_mov_b32 s66, 8\ns_lshr_b32 s87, s87, 1\ns_add_u32 s87, s87, {WS_JUNK}\ns_mov_b32 s88, s87")
    a("s_waitcnt vmcnt(0)")
    for q in range(4): a(f"v_mov_b32 v{MX+q}, 0xff800000")
    a("s_mov_b32 s14, 16\ns_mov_b32 s69, 20000")
    a("b_mloop:")
    a("s_and_b32 s13, s14, 7\ns_add_u32 s13, s13, s12\ns_and_b32 s13, s13, 31\ns_lshl_b32 s8, s13, 11\ns_bitcmp1_b32 s14, 3\ns_cselect_b32 s9, s15, s68\ns_add_u32 s8, s8, s9")
    for t in range(2):
        a(f"buffer_load_dwordx4 {vr(KV+4*t,4)}, v3, {WSD}, s8 offen offset:{t*1024} sc1")
    a("s_waitcnt vmcnt(0)")
    a(f"v_bitop3_b32 v{CT}, v{KV}, v{KV+4}, v{SG} bitop3:0x7e")
    a(f"v_and_b32 v{CT}, s{sMSK}, v{CT}")
    a(f"v_cmp_ne_u32 vcc, 0, v{CT}")
    a("s_cbranch_vccz b_mok")
    a(f"s_xor_b32 s15, s15, {WS_L}\ns_sub_u32 s69, s69, 1\ns_cmp_gt_i32 s69, 0\ns_cbranch_scc1 b_mloop")
    a("b_mok:")
    for q in range(4):
        mfma(a, S, KV, Q+8*q, None)
        mfma(a, S, KV+4, Q+8*q+4, S)
        a.nop(12)
        for r in range(8): a(f"v_max3_f32 v{MX+q}, v{MX+q}, v{S+2*r}, v{S+2*r+1}")
    a("s_sub_u32 s14, s14, 1\ns_cmp_lg_u32 s14, 0\ns_cbranch_scc1 b_mloop")
    a(f"v_lshlrev_b32 v{TMP}, 2, v1\ns_lshl_b32 s9, s{sW}, 10")
    for q in range(4):
        rot(q, 8, 8, LMX)
        a(f"s_add_u32 s8, s8, s9\nv_add_u32 v{TMP+1}, s8, v{TMP}")
        a(f"ds_write_b32 v{TMP+1}, v{MX+q}")
    a("s_waitcnt lgkmcnt(0)")
    arrive(a, C_M1)
    wait_cnt(a, C_M1, 4)
    a(f"v_and_b32 v{TMP}, 31, v1\nv_lshlrev_b32 v{TMP}, 2, v{TMP}")
    for q in range(4):
        rot(q, 8, 8, LMX)
        a(f"v_add_u32 v{TMP+1}, s8, v{TMP}")
        for w in range(4):
            for hh in range(2):
                a(f"ds_read_b32 v{S+2*w+hh}, v{TMP+1} offset:{w*1024+hh*128}")
        a("s_waitcnt lgkmcnt(0)")
        a(f"v_max3_f32 v{MX+q}, v{S}, v{S+1}, v{S+2}")
        a(f"v_max3_f32 v{MX+q}, v{MX+q}, v{S+3}, v{S+4}")
        a(f"v_max3_f32 v{MX+q}, v{MX+q}, v{S+5}, v{S+6}")
        a(f"v_max_f32 v{MX+q}, v{MX+q}, v{S+7}")
    a("s_mov_b32 s8, -1.0")
    a("s_mov_b32 exec_lo, 0")
    for q in range(4):
        a(f"""v_mul_f32 v{TMP}, s8, v{MX+q}
v_and_b32 v{TMP+1}, 0xffff0000, v{TMP}
v_sub_f32 v{TMP}, v{TMP}, v{TMP+1}
v_and_b32 v{TMP+3}, 0xffff0000, v{TMP}
v_sub_f32 v{TMP}, v{TMP}, v{TMP+3}
v_lshrrev_b32 v{TMP+1}, 16, v{TMP+1}
v_or_b32 v{Q+8*q+6}, v{TMP+1}, v{TMP+3}
v_lshrrev_b32 v{Q+8*q+7}, 16, v{TMP}""")
    a("s_mov_b64 exec, -1")
    a("s_mov_b32 s14, 20000")
    a("s_branch b_main")

    a("a_wave:")
    common()
    a(f"""s_lshr_b32 s{sDQ}, s2, 6
s_lshr_b32 s{sG}, s{sJ}, 2""")
    a(f"""s_lshl_b32 s67, s{sX}, 3
s_and_b32 s9, s{sJ}, 7
s_add_u32 s67, s67, s9
s_lshr_b32 s{sG1}, s{sJ}, 3
s_lshl_b32 s{sG1}, s{sG1}, 1
s_lshr_b32 s9, s{sWL}, 1
s_add_u32 s{sG1}, s{sG1}, s9
s_and_b32 s68, s{sWL}, 1""")
    F, E1C, E1S, E3C, E3X, CSN, CSC = 16, 128, 136, 144, 152, 160, 216
    A1ACC, A1XF, A1XP, A1Y = 168, 184, 200, 184
    VWO = 10
    sK1 = sN2
    a(f"""v_and_b32 v202, 3, v8
v_lshrrev_b32 v203, 3, v8
v_lshl_add_u32 v202, v203, 2, v202
v_bfe_u32 v203, v8, 2, 1
v_lshlrev_b32 v203, 4, v203
s_mul_i32 s9, s{sG1}, 28
v_add3_u32 v202, v202, v203, s9
s_mul_i32 s9, s68, 0x3e800000
v_mov_b32 v204, s9
v_cvt_f32_u32 v202, v202
v_mul_f32 v202, {f32_bits(1/448):#x}, v202
v_lshlrev_b32 v203, 3, v9
v_cvt_f32_u32 v203, v203
v_fma_f32 v204, v203, v202, v204""")
    def gen_F(hooks):
        T0, KK = 168, 200
        a(f"v_cos_f32 v{KK}, v202\ns_nop 0\nv_add_f32 v{KK}, v{KK}, v{KK}\nv_mov_b32 v{KK+1}, v{KK}")
        def seeds(tp):
            T = T0 + 16 * (tp % 2)
            L = []
            for j in range(2):
                for e in range(2):
                    L.append(f"v_fmamk_f32 v{T+2*j+e}, v202, {f32_bits(float(16*(2*tp+e)+j)):#x}, v204")
            for j in range(2):
                for e in range(2):
                    L.append(f"v_cos_f32 v{T+2*j+e}, v{T+2*j+e}")
            return L
        def rec(tp):
            T = T0 + 16 * (tp % 2)
            L = []
            for j in range(2, 8):
                L.append(f"v_pk_fma_f32 {vr(T+2*j,2)}, {vr(KK,2)}, {vr(T+2*j-2,2)}, {vr(T+2*j-4,2)} neg_lo:[0,0,1] neg_hi:[0,0,1]")
                if j % 2 == 0:
                    jp = j // 2 - 1
                    for e in range(2): L.append(f"v_cvt_pk_bf16_f32 v{F+4*(2*tp+e)+jp}, v{T+4*jp+e}, v{T+4*jp+2+e}")
            for e in range(2): L.append(f"v_cvt_pk_bf16_f32 v{F+4*(2*tp+e)+3}, v{T+12+e}, v{T+14+e}")
            return L
        for x in seeds(0): a(x)
        a("s_nop 0")
        for tp in range(14):
            if tp in hooks: hooks[tp]()
            R = rec(tp); S_ = seeds(tp + 1) if tp < 13 else []
            while R or S_:
                if R: a(R.pop(0))
                if S_: a(S_.pop(0))
    W2, WR = 240, 232
    hooks = {}
    if OPT.get("spf") and not OPT.get("noA"):
        st = OPT["spf"]
        L = [("s[6:7]", r * 57344 + c) for r in range(2) for c in range(0, 896, st)]
        if OPT.get("spw"): L += [("s[14:15]", c) for c in range(0, 1800 + st - 4, st - 8)]
        H0 = OPT.get("sph", 2)
        per = -(-len(L) // (14 - H0))
        def h0():
            a(f"""s_lshr_b32 s8, s{sJ}, 3
s_lshl_b32 s8, s8, 2
s_add_u32 s8, s8, s{sWL}
s_mul_i32 s8, s8, {2*57344}
s_mul_i32 s9, s67, 896
s_add_u32 s8, s8, s9
s_lshl_b32 s9, s{sJ}, 1
s_lshr_b32 s10, s{sWL}, 1
s_add_u32 s9, s9, s10
s_lshl_b32 s9, s9, 3
s_add_u32 s9, s9, s{sX}
s_mul_i32 s9, s9, 1800
s_waitcnt lgkmcnt(0)
s_add_u32 s6, s{S_AX}, s8
s_addc_u32 s7, s{S_AX+1}, 0
s_cmp_eq_u32 s68, 0
s_cselect_b32 s14, s{S_WR}, s{S_WI}
s_cselect_b32 s15, s{S_WR+1}, s{S_WI+1}
s_add_u32 s14, s14, s9
s_addc_u32 s15, s15, 0""")
        def mk(tp):
            def f():
                if tp == H0: h0()
                for (b, o) in L[(tp - H0) * per:(tp - H0 + 1) * per]:
                    a(f"s_load_dword s10, {b}, {min(o, 1796) if b == 's[14:15]' else o}")
            return f
        for tp in range(H0, 14): hooks[tp] = mk(tp)
    gen_F(hooks)
    a("s_lshl_b32 s13, s68, 31\ns_lshr_b32 s8, s13, 16\ns_or_b32 s13, s13, s8")
    gen_E(a, 8, 9, 67, 'a1', {'C': E1C, 'Sx': E1S}, 204)
    stamp(a, 8)
    a("s_waitcnt lgkmcnt(0)")
    if STAMPS: a("s_mov_b32 s70, s92")
    srd(a, SRD_WS, S_WS, WS_SIZE)
    t0, t1, t2 = 186, 187, 188
    def gen_CS():
        a(f"""s_lshl_b32 s8, s{sWL}, 4
v_and_b32 v{t0}, 15, v1
v_add_u32 v{t0}, s8, v{t0}
v_cvt_f32_u32 v{t0}, v{t0}
v_mul_f32 v{t0}, {f32_bits(1/64):#x}, v{t0}
v_lshrrev_b32 v{t1}, 4, v1
v_lshlrev_b32 v{t1}, 2, v{t1}
v_cvt_f32_u32 v{t1}, v{t1}
v_mul_f32 v{t1}, v{t1}, v{t0}""")
        for kap in range(2):
            for hf in range(2):
                for i in range(4):
                    a(f"v_fmamk_f32 v{t2+i}, v{t0}, {f32_bits(float(32*kap+16*hf+i)):#x}, v{t1}")
                for i in range(4): a(f"v_cos_f32 v{t2+4+i}, v{t2+i}")
                for i in range(4): a(f"v_sin_f32 v{t2+i}, v{t2+i}")
                o = 4 * kap + 2 * hf
                for i in range(2): a(f"v_cvt_pk_bf16_f32 v{CSC+o+i}, v{t2+4+2*i}, v{t2+4+2*i+1}")
                for i in range(2): a(f"v_cvt_pk_bf16_f32 v{CSC+8+o+i}, v{t2+2*i}, v{t2+2*i+1}")
                for i in range(2): a(f"v_xor_b32 v{CSN+o+i}, 0x80008000, v{CSC+8+o+i}")
    def gen_E3():
        a(f"s_mov_b32 s8, {f32_bits(2.0/(2048*448)):#x}\ns_lshl_b32 s9, s68, 31\ns_xor_b32 s9, s9, s8\ns_xor_b32 s9, s9, 0x80000000")
        a(f"""v_lshlrev_b32 v{t0}, 6, v8
v_add_u32 v{t0}, s67, v{t0}
v_cvt_f32_u32 v{t0}, v{t0}
v_mul_f32 v{t0}, {f32_bits(1/2048):#x}, v{t0}
v_lshlrev_b32 v{t1}, 3, v9
v_cvt_f32_u32 v{t1}, v{t1}
v_mul_f32 v{t1}, v{t1}, v{t0}""")
        for tau in range(2):
            for hf in range(2):
                for i in range(4):
                    a(f"v_fmamk_f32 v{t2+i}, v{t0}, {f32_bits(float(16*tau+4*hf+i)):#x}, v{t1}")
                for i in range(4): a(f"v_cos_f32 v{t2+4+i}, v{t2+i}")
                for i in range(4): a(f"v_sin_f32 v{t2+i}, v{t2+i}")
                for i in range(4): a(f"v_mul_f32 v{t2+4+i}, s8, v{t2+4+i}")
                for i in range(4): a(f"v_mul_f32 v{t2+i}, s9, v{t2+i}")
                o = 4 * tau + 2 * hf
                for i in range(2): a(f"v_cvt_pk_bf16_f32 v{E3C+o+i}, v{t2+4+2*i}, v{t2+4+2*i+1}")
                for i in range(2): a(f"v_cvt_pk_bf16_f32 v{E3X+o+i}, v{t2+2*i}, v{t2+2*i+1}")
    if OPT.get("cs", 1) == 0: gen_CS()
    if OPT.get("e3", 0) == 0: gen_E3()
    srd(a, SRD_B, S_WO, 448 * 896)
    srd(a, SRD_OUT, S_OUT, 2048 * 1792)
    a(f"""v_bfe_u32 v10, v8, 1, 3
v_lshlrev_b32 v6, 7, v8
v_add_u32 v6, {LXA}, v6""")
    for t in range(4):
        a(f"v_add_u32 v7, {2*t}, v9\nv_xor_b32 v7, v7, v10\nv_lshl_add_u32 v{12+t}, v7, 4, v6")
    XS = 7
    a(f"s_setprio {OPT.get('prio', 3)}")
    if OPT.get("noA"): a("s_branch a_fin")
    a("s_mov_b32 s69, 400000")
    a("a_xw:")
    a(f"ds_read_b128 v[200:203], v4 offset:{4*C_XF}")
    a("s_waitcnt lgkmcnt(0)")
    a("v_min3_u32 v200, v200, v201, v202\nv_min_u32 v200, v200, v203\ns_sub_u32 s69, s69, 1")
    a("v_readfirstlane_b32 s8, v200\ns_nop 1")
    a("s_cmp_lg_u32 s8, 0\ns_cbranch_scc1 a_xw_d\ns_sleep 1\ns_cmp_lg_u32 s69, 0\ns_cbranch_scc1 a_xw")
    a("a_xw_d:")
    a(f"ds_read_b32 v2, v4 offset:{4*C_EP}")
    stamp(a, 3)
    a(f"s_setprio {OPT.get('gprio', 3)}")
    for c in range(7):
        xf = A1XF + 16 * (c % 2)
        if c == XS:
            if not OPT.get("noA"): vwait("x6")
            arrive(a, C_AX2)
            wait_cnt(a, C_AX2, 4)
        if c == 0 or c == XS:
            for t in range(4): a(f"ds_read_b128 {vr(xf+4*t,4)}, v{12+t} offset:{c*4096}")
        nxt = c < 6 and c + 1 != XS
        if nxt:
            for t in range(4): a(f"ds_read_b128 {vr(A1XF+16*((c+1)%2)+4*t,4)}, v{12+t} offset:{(c+1)*4096}")
        a(f"s_waitcnt lgkmcnt({4 if nxt else 0})")
        for t in range(4):
            mfma(a, A1ACC, xf+4*t, F+4*(4*c+t), None if (c == 0 and t == 0) else A1ACC)
        if c == 1: arrive(a, C_AX)
    a(f"s_setprio {OPT.get('prio', 3)}")
    a(f"s_lshl_b32 s8, s{sWL}, 11\ns_add_u32 s8, s8, {LEX}\nv_add_u32 v6, s8, v3")
    a("v_mov_b32 v11, v6")
    set_tag(a)
    wait_cnt(a, C_AX, 4)
    a("v_mov_b32 v6, v11")
    a.nop(4)
    for r in range(8): a(f"v_cvt_pk_bf16_f32 v{A1XP+r}, v{A1ACC+2*r}, v{A1ACC+2*r+1}")
    for t in range(2): a(f"ds_write_b128 v6, {vr(A1XP+4*t,4)} offset:{t*1024}")
    for t in range(2): mfma(a, A1Y, A1XP+4*t, E1C+4*t, None if t == 0 else A1Y)
    a("s_waitcnt lgkmcnt(0)")
    stamp(a, 4)
    arrive(a, C_AEX)
    wait_cnt(a, C_AEX, 4)
    a(f"s_xor_b32 s8, s{sWL}, 1\ns_lshl_b32 s8, s8, 11\ns_add_u32 s8, s8, {LEX}\nv_add_u32 v6, s8, v3")
    for t in range(2): a(f"ds_read_b128 {vr(A1XP+8+4*t,4)}, v6 offset:{t*1024}")
    a("s_waitcnt lgkmcnt(0)")
    for t in range(2): mfma(a, A1Y, A1XP+8+4*t, E1S+4*t, A1Y)
    sig_regs(a, 128)
    a(f"""s_lshl_b32 s8, s{sG1}, 6
s_add_u32 s8, s8, s67
s_lshl_b32 s8, s8, 12
s_lshl_b32 s9, s68, 6
s_add_u32 s8, s8, s9
s_add_u32 s8, s8, {WS_Y}
s_add_u32 s9, s12, {LYT}
v_lshlrev_b32 v6, 6, v8
v_lshl_add_u32 v6, v9, 5, v6
v_add_u32 v6, s9, v6
v_add_u32 v7, s9, v3
v_lshrrev_b32 v11, 2, v1
v_lshlrev_b32 v11, 7, v11
v_and_b32 v12, 3, v1
v_lshl_add_u32 v11, v12, 4, v11""")
    for r in range(8): a(f"v_cvt_pk_bf16_f32 v{A1XP+r}, v{A1Y+2*r}, v{A1Y+2*r+1}")
    for t in range(2): a(f"ds_write_b128 v6, {vr(A1XP+4*t,4)} offset:{t*16}")
    for t in range(2): a(f"ds_read_b128 {vr(A1XP+8+4*t,4)}, v7 offset:{t*1024}")
    a("s_waitcnt lgkmcnt(0)")
    sign(a, A1XP+8, 8, 128)
    a("s_mov_b32 s10, s8")
    stamp(a, 1)
    if OPT.get("cs", 1) == 2: gen_CS()
    if OPT.get("e3", 0) == 2: gen_E3()
    a(f"""v_lshrrev_b32 v6, 2, v1
s_lshl_b32 s8, s{sWL}, 4
v_add_u32 v6, s8, v6
v_lshlrev_b32 v6, 5, v6
v_add_u32 v6, s{sK1}, v6
v_mul_u32_u24 v6, 450, v6
v_and_b32 v7, 3, v1
v_lshlrev_b32 v7, 4, v7
s_mul_i32 s9, s{sG}, 56
v_add3_u32 v10, v6, v7, s9""")
    srd(a, SRD_TAB, S_WR, 2048 * 450 + 2)
    srd(a, SRD_C, S_WI, 2048 * 450 + 2)
    def wdma():
        for k, sd in enumerate((SRD_TAB, SRD_C)):
            a(f"s_add_u32 m0, s12, {LWW + k*1024}\ns_nop 0")
            a(f"buffer_load_dwordx4 v10, s[{sd}:{sd+3}], 0 offen lds")
    wait_cnt(a, *OPT["ysw"])
    setprio(a, OPT.get('p1', 3))
    AS = OPT.get("astop", 0)
    if AS == 1: a("s_branch a_fin")
    for t in range(2):
        if AS != 3: a(f"buffer_store_dwordx4 {vr(A1XP+8+4*t,4)}, v11, {WSD}, s10 offen offset:{t*2048} {OPT.get('ym', 'sc1')}")
    def odum():
        a(f"""s_lshl_b32 s8, s{sQB}, 2
s_add_u32 s8, s8, s{sWL}
s_lshl_b32 s8, s8, 4
s_add_u32 s8, s8, s{sH}
s_lshl_b32 s8, s8, 11
s_add_u32 s8, s8, {WS_O}
v_not_b32 v168, v128""")
        for t in range(2): a(f"buffer_store_dwordx4 v[168:171], v3, {WSD}, s8 offen offset:{t*1024} sc1")
    if OPT.get("odum") == 1: odum()
    if AS == 2: a("s_branch a_fin")
    if OPT.get("wpos", 0) == 1: wdma()
    if OPT.get("yf", 0):
        a(f"s_lshl_b32 s8, s{sG}, 7\ns_lshl_b32 s9, s67, 1\ns_add_u32 s8, s8, s9\ns_add_u32 s8, s8, s68\ns_lshl_b32 s8, s8, 2\ns_add_u32 s8, s8, {WS_FY}")
        flag_store(a, 8)
    stamp(a, 5)
    if OPT.get("p2") is not None: setprio(a, OPT["p2"])
    THR = OPT.get("thr", 2)
    WOO = 140
    def wo_part(k0, k1, pad):
        n = k1 - k0
        a("s_mov_b32 s9, 0x12492493")
        a(f"s_mov_b32 s8, s{sJ4}" if OPT.get("b3m") else f"s_lshr_b32 s8, s{sH}, 2")
        a("s_mul_i32 s8, s8, 224")
        a(f"""v_mul_hi_u32 v7, v1, s9
v_mul_u32_u24 v6, 14, v7
v_sub_u32 v6, v1, v6
v_mul_u32_u24 v7, 896, v7
v_lshl_add_u32 v7, v6, 4, v7
v_add_u32 v{WOO}, s8, v7
s_lshr_b32 s10, s{sJ}, 2
s_mul_i32 s10, s10, {n}
s_lshr_b32 s10, s10, 3
s_add_u32 s10, s10, {k0}
s_lshl_b32 s10, s10, 2
s_add_u32 s10, s10, s{sWL}
s_mul_i32 s10, s10, 896""")
        for k in range(n):
            a(f"s_add_u32 m0, s10, {LWO}\ns_lshl_b32 s13, s10, 2")
            if k > THR: a(f"s_waitcnt vmcnt({THR})")
            a(f"buffer_load_dwordx4 v{WOO}, s[{SRD_B}:{SRD_B+3}], s13 offen lds")
            if k < n - 1: a(f"s_add_u32 s10, s10, {4*896}\ns_sub_u32 s11, s10, {4*n*896}\ns_cmp_ge_u32 s10, {4*k1*896}\ns_cselect_b32 s10, s11, s10")
        if pad:
            a(f"s_mov_b32 m0, {LWO+448*224}\ns_mov_b32 s13, {448*896}")
            a(f"buffer_load_dwordx4 v{WOO}, s[{SRD_B}:{SRD_B+3}], s13 offen lds")
    YF, Z = 168, 200
    VY, VP, VPW, VD = 76, 80, 81, 82
    a(f"""v_and_b32 v14, 15, v1
v_lshrrev_b32 v15, 4, v1
s_lshl_b32 s6, s{sG}, 18
s_lshl_b32 s7, s{sK1}, 7
s_add_u32 s6, s6, s7
s_lshl_b32 s7, s{sWL}, 16
s_add_u32 s6, s6, s7
s_add_u32 s6, s6, {WS_Y}
v_bfe_u32 v6, v1, 1, 2
v_bfe_u32 v7, v1, 4, 2
v_xor_b32 v6, v6, v7
v_and_b32 v7, 1, v1
v_lshl_add_u32 v6, v6, 1, v7
v_lshrrev_b32 v7, 3, v1
v_lshlrev_b32 v7, 12, v7
v_lshl_add_u32 v{VD}, v6, 4, v7
v_and_b32 v6, 3, v6
v_lshlrev_b32 v6, 2, v6
v_lshrrev_b32 v136, v6, s{sSIG}""")
    a(f"""v_lshrrev_b32 v6, 2, v1
v_and_b32 v7, 3, v1
v_lshlrev_b32 v7, 3, v7
v_lshl_add_u32 v{VP}, v6, 6, v7
v_add_u32 v{VP}, {LP}, v{VP}
v_lshl_add_u32 v7, v6, 7, v7
v_add_u32 v7, {LY}, v7
v_bfe_u32 v6, v1, 3, 2""")
    for P_ in range(4):
        a(f"v_xor_b32 v11, {P_}, v6\nv_lshl_add_u32 v{VY+P_}, v11, 5, v7")
    a(f"""s_lshl_b32 s8, s{sWL}, 10
s_add_u32 s8, s8, {LP}
v_lshlrev_b32 v6, 6, v14
v_lshl_add_u32 v6, v15, 3, v6
v_add_u32 v{VPW}, s8, v6
s_add_u32 s8, s12, {LWW}
v_add_u32 v6, s8, v6""")
    if OPT.get("cs", 1) == 1: gen_CS()
    a("v_mov_b32 v12, v6")
    def wproc():
        for k in range(4):
            a(f"ds_read_b64 {vr(WR+2*k,2)}, v12 offset:{(k//2)*1024+(k%2)*32}")
        a("s_waitcnt lgkmcnt(0)")
        for k in range(4):
            a(f"""v_lshlrev_b32 v{W2+4*k}, 16, v{WR+2*k}
v_and_b32 v{W2+4*k+1}, 0xffff0000, v{WR+2*k}
v_lshlrev_b32 v{W2+4*k+2}, 16, v{WR+2*k+1}
v_and_b32 v{W2+4*k+3}, 0xffff0000, v{WR+2*k+1}""")
        a(f"s_cmp_lg_u32 s{sG}, 0\ns_cbranch_scc1 a_w1")
        a(f"s_mov_b64 exec, 0xffff\nv_mul_f32 v{W2}, 0.5, v{W2}\nv_mul_f32 v{W2+8}, 0.5, v{W2+8}\ns_mov_b64 exec, -1")
        a("a_w1:")
        a(f"s_cmp_lg_u32 s{sG}, 7\ns_cbranch_scc1 a_w2")
        a(f"s_mov_b32 exec_lo, 0\ns_mov_b32 exec_hi, 0xffff0000\nv_mul_f32 v{W2+4}, 0.5, v{W2+4}\nv_mul_f32 v{W2+12}, 0.5, v{W2+12}\ns_mov_b64 exec, -1")
        a("a_w2:")
    if OPT.get("wpos", 0) == 1:
        a("s_waitcnt vmcnt(0)")
        wproc()
    stamp(a, 7)
    def chk8(r0, n, sg, acc):
        for i in range(n // 8): a(f"v_bitop3_b32 v{acc+i}, v{r0+8*i}, v{r0+8*i+4}, v{sg} bitop3:0x7e")
        if n == 8: a(f"v_and_b32 v{acc}, s{sMSK}, v{acc}")
        else:
            a(f"v_or3_b32 v{acc}, v{acc}, v{acc+1}, v{acc+2}")
            a(f"v_bitop3_b32 v{acc}, v{acc}, s{sMSK}, v{acc+3} bitop3:0xc8")
        a(f"v_cmp_ne_u32 vcc, 0, v{acc}")
    if OPT.get("yf", 0):
        a(f"s_lshl_b32 s8, s{sG}, 9\ns_lshl_b32 s9, s{sWL}, 7\ns_add_u32 s8, s8, s9\ns_add_u32 s8, s8, {WS_FY}\nv_lshlrev_b32 v13, 2, v8")
        poll(a, 13, "s8", -1, width=1, vt=132, sleep=OPT.get("fsleep", 2))
        if OPT.get("cnt"): a("s_sub_u32 s71, 20001, s9")
    if AS == 4: a("s_branch a_fin")
    if OPT.get("wop") == 2:
        wait_cnt(a, C_M2, 4)
        wo_part(10, 28, True)
    def wbk(pos, wc=None):
        if OPT.get("wb") is None or OPT.get("wbp", 0) != pos: return
        l = lab("wb")
        a(f"s_and_b32 s8, s{sJ}, {OPT['wb']}\ns_xor_b32 s8, s8, {OPT.get('wbj', 0)}\ns_or_b32 s8, s8, s{sWL}\ns_cmp_lg_u32 s8, 0\ns_cbranch_scc1 {l}")
        if wc is not None: wait_cnt(a, wc, 4, sleep=2)
        a(f"buffer_wbl2 {OPT.get('wbm', 'sc1')}")
        if OPT.get("wbw", 1):
            a("s_waitcnt vmcnt(0)")
            stamp(a, 5)
        a(f"{l}:")
    if OPT.get("ag"):
        a(f"""s_lshl_b32 s10, s{sHP}, 7
s_lshl_b32 s11, s{sQB}, 2
s_add_u32 s10, s10, s11
s_add_u32 s10, s10, s{sWL}
s_lshl_b32 s10, s10, 11
s_and_b32 s11, s{sJ}, 1
s_mul_i32 s11, s11, {WS_V - WS_K}
s_add_u32 s10, s10, s11
s_add_u32 s11, s10, {64*2048}
s_lshl_b32 s13, s{sWL}, 12
s_add_u32 s13, s13, {LKV}
v_add_u32 v13, s13, v3""")
        wait_cnt(a, OPT.get("agc", C_KV), 4, sleep=1)
        for u in range(4): a(f"ds_read_b128 {vr(YF+4*u,4)}, v13 offset:{u*1024}")
        for u in range(4):
            a(f"s_waitcnt lgkmcnt({3-u})")
            if OPT.get("agw") is not None and u > 0: a(f"s_waitcnt vmcnt({OPT['agw']})")
            a(f"buffer_store_dwordx4 {vr(YF+4*u,4)}, v3, {WSD}, s{10+u//2} offen offset:{(u%2)*1024} {OPT.get('gm', 'sc1')}")
    wbk(1, C_Q)
    wbk(4, C_M2)
    if OPT.get("ylw") is not None: wait_cnt(a, OPT["ylw"], 4, sleep=2)
    setprio(a, OPT.get('a2prio', 3))
    a(f"""s_add_u32 s8, s12, {LY}
v_add_u32 v13, s8, v3
s_add_u32 s9, s6, {8*4096}
s_mov_b32 s14, 20000""")
    if OPT.get("wpos", 0) == 0: wdma()
    a("a_ypoll:")
    a("s_mov_b32 m0, s8\ns_nop 0")
    a(f"buffer_load_dwordx4 v{VD}, {WSD}, s6 offen sc1 lds")
    a(f"s_add_u32 m0, s8, 1024\ns_nop 0")
    a(f"buffer_load_dwordx4 v{VD}, {WSD}, s9 offen sc1 lds")
    a("s_waitcnt vmcnt(0)")
    for i in range(2): a(f"ds_read_b32 v{YF+4*i}, v13 offset:{i*1024}")
    a("s_waitcnt lgkmcnt(0)")
    chk8(YF, 8, 136, 132)
    a("s_cbranch_vccz a_ypoll_d")
    a(f"s_sleep {OPT.get('psleep', 4)}")
    a("s_sub_u32 s14, s14, 1\ns_cmp_lg_u32 s14, 0\ns_cbranch_scc1 a_ypoll")
    a("a_ypoll_d:")
    if OPT.get("cnt"): a("s_sub_u32 s76, 20001, s14")
    stamp(a, 10)
    arrive(a, C_AY)
    if OPT.get("wpos", 0) == 0: wproc()
    if OPT.get("wpos", 0) == 2: wdma()
    if OPT.get("wpos", 0) == 3:
        wait_cnt(a, C_G, 4)
        wdma()
    wait_cnt(a, C_AY, 4)
    stamp(a, 11)
    yf = lambda ri, ch, kap: YF + 4 * ((ri * 2 + ch) * 2 + kap)
    for ri in range(2):
        for ch in range(2):
            for kap in range(2):
                for aa in range(2):
                    a(f"ds_read_b64_tr_b16 {vr(yf(ri,ch,kap)+2*aa,2)}, v{VY+2*ri+ch} offset:{(32*kap+16*aa)*128}")
    a("s_waitcnt lgkmcnt(0)")
    cs = lambda kap, k: (CSC, CSC + 8, CSN)[k] + 4 * kap
    z = lambda ri, ch: Z + 8 * ri + 4 * ch
    for kap in range(2):
        for ch in range(2):
            mfma16(a, z(0,ch), yf(0,ch,kap), cs(kap,0), None if kap == 0 else z(0,ch))
            mfma16(a, z(1,ch), yf(1,ch,kap), cs(kap,0), None if kap == 0 else z(1,ch))
    for kap in range(2):
        for ch in range(2):
            mfma16(a, z(0,ch), yf(1,ch,kap), cs(kap,1), z(0,ch))
            mfma16(a, z(1,ch), yf(0,ch,kap), cs(kap,2), z(1,ch))
    if OPT.get("wpos", 0) >= 2:
        a("s_waitcnt vmcnt(0)")
        stamp(a, 7)
        wproc()
    else: a.nop(9)
    for i in range(8):
        zr, zi, wr, wi = Z + i, Z + 8 + i, W2 + i, W2 + 8 + i
        a(f"""v_mul_f32 v6, v{zi}, v{wi}
v_mul_f32 v7, v{zr}, v{wi}
v_fma_f32 v{zr}, v{zr}, v{wr}, -v6
v_fma_f32 v{zi}, v{zi}, v{wr}, v7""")
    for i in range(8): a(f"v_cvt_pk_bf16_f32 v{W2+i}, v{Z+2*i}, v{Z+2*i+1}")
    for i in range(4): a(f"ds_write_b64 v{VPW}, {vr(W2+2*i,2)} offset:{(i//2)*4096+(i%2)*32}")
    a("s_waitcnt lgkmcnt(0)")
    arrive(a, C_AP)
    wait_cnt(a, C_AP, 4)
    for ri in range(2):
        for ch in range(2):
            for kap in range(2):
                for aa in range(2):
                    a(f"ds_read_b64_tr_b16 {vr(yf(ri,ch,kap)+2*aa,2)}, v{VP} offset:{ri*4096+(32*kap+16*aa)*64+ch*32}")
    a("s_waitcnt lgkmcnt(0)")
    for kap in range(2):
        for ch in range(2):
            mfma16(a, z(0,ch), yf(0,ch,kap), cs(kap,0), None if kap == 0 else z(0,ch))
            mfma16(a, z(1,ch), yf(1,ch,kap), cs(kap,0), None if kap == 0 else z(1,ch))
    for kap in range(2):
        for ch in range(2):
            mfma16(a, z(0,ch), yf(1,ch,kap), cs(kap,2), z(0,ch))
            mfma16(a, z(1,ch), yf(0,ch,kap), cs(kap,1), z(1,ch))
    a(f"""s_add_u32 s8, s12, {LTT}
v_lshlrev_b32 v6, 7, v14
v_lshl_add_u32 v6, v15, 3, v6
v_add_u32 v6, s8, v6
v_add_u32 v7, s8, v3
s_lshl_b32 s9, s{sK1}, 5
s_and_b32 s9, s9, 64
v_and_b32 v11, 7, v1
v_lshlrev_b32 v11, 4, v11
v_xor_b32 v11, s9, v11
v_lshrrev_b32 v12, 3, v1
v_lshl_add_u32 v11, v12, 15, v11
s_lshl_b32 s6, s{sG}, 12
s_lshl_b32 s7, s{sK1}, 7
s_add_u32 s6, s6, s7
s_lshl_b32 s7, s{sWL}, 19
s_add_u32 s6, s6, s7
s_add_u32 s6, s6, {WS_T}
s_add_u32 s7, s6, {8*32768}""")
    for i in range(8): a(f"v_cvt_pk_bf16_f32 v{W2+i}, v{Z+2*i}, v{Z+2*i+1}")
    for i in range(4): a(f"ds_write_b64 v6, {vr(W2+2*i,2)} offset:{(i//2)*64+(i%2)*32}")
    for u in range(2): a(f"ds_read_b128 {vr(W2+8+4*u,4)}, v7 offset:{u*1024}")
    a("s_waitcnt lgkmcnt(0)")
    sign(a, W2+8, 8, 128)
    for u in range(2):
        a(f"buffer_store_dwordx4 {vr(W2+8+4*u,4)}, v11, {WSD}, s{6+u} offen sc1")
    if OPT.get("odum") == 2: odum()
    stamp(a, 12)
    arrive(a, C_A2D)
    if OPT.get("p3") is not None: setprio(a, OPT["p3"])
    wbk(2)
    TFR = [76, 92, 108, 160, 176, 192, 208, 240]
    UU, UBB, ACCF, NQF = [224, 76], [132, 92], 240, 124
    VT = 12
    a(f"""v_bfe_u32 v6, v1, 2, 2
v_lshl_add_u32 v6, v9, 3, v6
v_lshlrev_b32 v6, 7, v6
v_add_u32 v6, {LT}, v6
v_bfe_u32 v7, v1, 3, 1
v_xor_b32 v7, s68, v7
v_lshl_add_u32 v14, v7, 6, v6
v_xor_b32 v15, 64, v14
v_bfe_u32 v6, v1, 4, 1
v_lshlrev_b32 v6, 2, v6
v_and_b32 v7, 1, v1
v_lshl_add_u32 v6, v7, 1, v6
v_bfe_u32 v7, v1, 1, 1
v_add_u32 v11, v6, v7
v_lshl_add_u32 v{VT}, v11, 3, v14
v_lshl_add_u32 v{VT+1}, v11, 3, v15""")
    def jump(jb):
        a(f"v_cmp_eq_u32 vcc, {jb}, v11\nv_cndmask_b32 v6, 0, v141, vcc\nv_add_u32 v{VT}, v{VT}, v6\nv_add_u32 v{VT+1}, v{VT+1}, v6")
    a(f"""v_mov_b32 v141, 4040
s_lshl_b32 s6, s67, 15
s_lshl_b32 s7, s{sWL}, 13
s_add_u32 s6, s6, s7
s_add_u32 s6, s6, {WS_T}
s_add_u32 s7, s7, {LT}
v_add_u32 v10, s7, v3
s_lshr_b32 s15, s{sJ}, 3
s_lshl_b32 s15, s15, 11""")
    setprio(a, OPT.get('mprio', 1))
    wait_cnt(a, C_A2D, 4)
    if OPT.get("e3", 0) == 1: gen_E3()
    wait_cnt(a, C_M2, 4)
    if AS == 5: a("s_branch a_fin")
    wait_cnt(a, C_G, 4)
    assert OPT.get("wop") == 1
    wo_part(10, 28, True)
    arrive(a, C_AX2)
    if AS == 6: a("s_branch a_fin")
    if OPT.get("tlw"): wait_cnt(a, C_YS, 4, sleep=4)
    stamp(a, 13)
    for i in range(8):
        a(f"s_add_u32 s8, s15, {i*1024}\ns_and_b32 s8, s8, 8191\ns_add_u32 m0, s7, s8\ns_add_u32 s8, s8, s6")
        a(f"buffer_load_dwordx4 v3, {WSD}, s8 offen {OPT.get('tm', '')} lds")
    a("s_mov_b32 s14, 20000")
    a("s_waitcnt vmcnt(0)")
    a(f"a_tchk0:")
    for i in range(8): a(f"ds_read_b32 v{160+4*i}, v10 offset:{i*1024}")
    a("s_waitcnt lgkmcnt(0)")
    chk8(160, 32, 128, 132)
    a(f"s_cbranch_vccnz a_tchk0_r")
    a(f"a_tchk0_d:")
    stamp(a, 14)
    if OPT.get("cnt"): a("s_sub_u32 s78, 20001, s14")
    arrive(a, C_AT)
    wait_cnt(a, C_AT, 4)
    def rdT(tau_, va, off):
        tf = TFR[tau_]
        for w_ in range(2):
            for tau in range(2):
                for aa in range(2):
                    a(f"ds_read_b64_tr_b16 {vr(tf+8*w_+4*tau+2*aa,2)}, v{va+w_} offset:{off+(16*tau+4*aa)*128}")
    def st1(tau_, u=None):
        tf = TFR[tau_]; u = UU[tau_ % 2] if u is None else u
        for tau in range(2): mfma(a, u, tf+4*tau, E3C+4*tau, None if tau == 0 else u)
        for tau in range(2): mfma(a, u, tf+8+4*tau, E3X+4*tau, u)
    def cvtU(tau_):
        u = UU[tau_ % 2]; ub = UBB[tau_ % 2]
        for r in range(8): a(f"v_cvt_pk_bf16_f32 v{ub+r}, v{u+2*r}, v{u+2*r+1}")
    def st2(tau_):
        ub = UBB[tau_ % 2]
        for s_ in range(2): mfma(a, ACCF, F+4*(2*tau_+s_), ub+4*s_, ACCF)
    rdT(7, 14, 7 * 4096 + 56)
    for t_ in range(7):
        jump(7 - t_)
        rdT(t_, VT, t_ * 4104)
        if t_ == 0:
            a("s_waitcnt lgkmcnt(8)")
            st1(7, UU[0])
    for r in range(4): a(f"v_mov_b32 v{NQF+r}, 0")
    a(f"s_mov_b32 exec_hi, 0\nv_cvt_pk_bf16_f32 v{NQF}, v{UU[0]}, 0\ns_mov_b64 exec, -1")
    a("s_waitcnt lgkmcnt(0)")
    arrive(a, C_ADONE)
    mfma(a, ACCF, F+4*14, NQF, None)
    stamp(a, 15)
    if AS == 7: a("s_branch a_fin")
    wbk(3)
    wait_cnt(a, C_ADONE, 4)
    wo_part(0, 10, False)
    a("s_waitcnt vmcnt(0)")
    arrive(a, C_WO)
    if not OPT.get("cnt"): stamp(a, 6)
    a(f"""s_mov_b32 s8, 114688
v_mul_lo_u32 v6, v8, s8
v_lshlrev_b32 v7, 5, v9
s_mul_i32 s7, s67, 1792
s_mul_i32 s8, s{sG1}, 56
s_lshl_b32 s9, s68, 4
s_add_u32 s8, s8, s9
s_add_u32 s6, s7, s8
s_sub_u32 s7, s7, s8
s_add_u32 s7, s7, 882
v_add_u32 v10, v6, v7
v_sub_u32 v11, v6, v7
v_add_u32 v11, 32, v11
s_sub_u32 s7, s7, 32""")
    wbk(0)
    if OPT.get("late", 1):
        wait_cnt(a, OPT.get("latec", C_R1), 4, sleep=OPT.get("lsl", 4))
    stamp(a, 9)
    setprio(a, OPT.get('tprio', 1))
    for t_ in range(8):
        if t_ < 7: st1(t_)
        else: a.nop(10)
        if t_ > 0:
            cvtU(t_ - 1)
            a.nop(1)
            st2(t_ - 1)
    a(f"s_add_u32 s8, s12, {LEX2}\nv_add_u32 v6, s8, v3\nv_xor_b32 v7, 2048, v6")
    XC, YP, YM = 168, 176, 184
    a.nop(14)
    a("s_cmp_lg_u32 s68, 0\ns_cbranch_scc1 a_x1")
    for ri in range(2):
        if ri: a("a_x1:")
        keep, send = ACCF + 8 * ri, ACCF + 8 * (1 - ri)
        for t in range(2): a(f"ds_write_b128 v6, {vr(send+4*t,4)} offset:{t*1024}")
        a("s_waitcnt lgkmcnt(0)")
        arrive(a, C_AU)
        a(f"v_mov_b32 v{XC+8}, v7")
        wait_cnt(a, C_AU, 4)
        for t in range(2): a(f"ds_read_b128 {vr(XC+4*t,4)}, v7 offset:{t*1024}")
        a("s_waitcnt lgkmcnt(0)")
        Cr, Sr = (keep, XC) if ri == 0 else (XC, keep)
        for r in range(8):
            a(f"v_add_f32 v{YP+r}, v{Cr+r}, v{Sr+r}")
            a(f"v_sub_f32 v{YM+r}, v{Cr+r}, v{Sr+r}")
        for i in range(4): a(f"v_cvt_pk_bf16_f32 v{XC+i}, v{YP+2*i}, v{YP+2*i+1}")
        for i in range(4): a(f"v_cvt_pk_bf16_f32 v{XC+4+i}, v{YM+7-2*i}, v{YM+6-2*i}")
        if OPT.get("osw") is not None: wait_cnt(a, OPT["osw"], 4)
        om = OPT.get('amod', OPT.get('omod', ''))
        OS = f"s[{SRD_OUT}:{SRD_OUT+3}]"
        if ri == 0:
            a(f"buffer_store_dwordx4 {vr(XC,4)}, v10, {OS}, s6 offen {om}")
            a(f"s_cmp_lg_u32 s{sG1}, 0\ns_cbranch_scc1 a_o1")
            a("s_mov_b32 exec_hi, 0")
            a(f"buffer_store_dwordx3 {vr(XC+4,3)}, v11, {OS}, s7 offen {om}")
            a(f"buffer_store_short v{XC+7}, v11, {OS}, s7 offen offset:12 {om}")
            a("s_mov_b32 exec_lo, 0\ns_mov_b32 exec_hi, -1")
            a("a_o1:")
            a(f"buffer_store_dwordx4 {vr(XC+4,4)}, v11, {OS}, s7 offen {om}")
            a("s_mov_b64 exec, -1")
            a("s_branch a_x2")
        else:
            a("s_mov_b32 exec_hi, 0")
            a(f"buffer_store_dwordx4 {vr(XC,4)}, v10, {OS}, s6 offen {om}")
            a(f"buffer_store_dwordx4 {vr(XC+4,4)}, v11, {OS}, s7 offen {om}")
            a("s_mov_b32 exec_lo, 0\ns_mov_b32 exec_hi, -1")
            a(f"buffer_store_dwordx2 {vr(XC,2)}, v10, {OS}, s6 offen {om}")
            a(f"buffer_store_dwordx2 {vr(XC+6,2)}, v11, {OS}, s7 offen offset:8 {om}")
            a(f"s_cmp_lg_u32 s{sG1}, 7\ns_cbranch_scc1 a_o2")
            a(f"buffer_store_short v{XC+2}, v10, {OS}, s6 offen offset:8 {om}")
            a("a_o2:")
            a("s_mov_b64 exec, -1")
    a("a_x2:")
    if not OPT.get("cnt"): stamp(a, 2)
    a("s_branch a_fin")
    a(f"a_tchk0_r:")
    a(f"s_sub_u32 s14, s14, 1\ns_cmp_le_i32 s14, 0\ns_cbranch_scc1 a_tchk0_d")
    a(f"s_sleep {OPT.get('psleep', 4)}")
    for i in range(8):
        a(f"s_add_u32 m0, s7, {i*1024}\ns_add_u32 s8, s6, {i*1024}")
        a(f"buffer_load_dwordx4 v3, {WSD}, s8 offen sc1 lds")
    a("s_waitcnt vmcnt(0)")
    a(f"s_branch a_tchk0")
    a("a_fin:")
    stamp_out(a, 16, "A")
    a("k_end:\ns_endpgm")
    return a.text()

def build(path, stamps=False, opt=None):
    global STAMPS, OPT
    STAMPS = stamps; OPT = opt or {}; G.uid = 0; G.plo = None
    code = build_kernel()
    hdr = f"; @launch kernel={NAME} grid=(256,1,1) block=(512,1,1) lds={LDS_SIZE}\n"
    s = hdr + '.amdgcn_target "amdgcn-amd-amdhsa--gfx950"\n.text\n' + code + '.section .rodata,"a"\n' + kd(NAME, 256, 96)
    open(path, "w").write(s)

S2 = {-1: "x0 w0 e x1 w1", 0: "x2 w2 a a", 1: "x3 w3 a a", 2: "x4 w4 a a", 3: "x5 w5 a F", 4: "x6 w6", 5: "q"}
D = {"kvp": 2, "gst": (2, 4, 6, 8), "omod": "nt", "amod": "", "thr": 4, "e3": 0, "cs": 0, "b3m": 1, "om1": "sc1", "wop": 1, "mprio": 3, "sch": S2, "ysw": (C_W0, 4), "ylw": C_G, "tlw": 0,
     "b0prio": 3, "prio": 0, "gprio": 0, "wpos": 2, "latec": C_R2}
if __name__ == "__main__":
    build("f21.s", False, D)
    build("f21_ff.s", False, {"forcefail": 1, **D})
    build("f21_rt.s", "rt", D)
    build("f21_na_rt.s", "rt", {**D, "noA": 1})
    build("v1.s", False, {**D, "osleep": 0})
    build("v2.s", False, {**D, "osleep": 6})
```

```python
import fused22 as f
D = {**f.D, "ns": 1, "ag": 1}
S3 = {-1: "x0 w0 e x1 w1", 0: "x2 w2", 1: "x3 w3", 2: "x4 w4 a a a a", 3: "x5 w5 a a a F", 4: "x6 w6", 5: "q"}
f.build("f22a.s", False, D)
f.build("f22a_ff.s", False, {**D, "forcefail": 1})
f.build("f22b.s", False, {**D, "spf": 64, "sch": S3, "odum": 2})
```

```python
import numpy as np, sys
from common import Asm, vr, sr, bf16_bits, f32_bits, srd, srd_table, kd, mfma, MFMA
from common import S_AX, S_WR, S_WI, S_BX, S_WQKV, S_WO, S_OUT, S_DBG, S_WS

QSCALE = (28 ** -0.5) * np.log2(np.e)
NAME = "concat_heads__spectral_gfnet__mha_block__prompt_kernel"

WS_K, WS_V, WS_O, WS_Y, WS_T = 0x000000, 0x200000, 0x400000, 0x600000, 0x800000
WS_FG, WS_F2, WS_F3, WS_EP = 0xA00000, 0xA10000, 0xA20000, 0xA80000
FG_F1, FG_F2 = 512, 1024
WS_FY, WS_FT = 0xA10000, 0xA20000
C_XF = 28
C_EP, C_TF = 27, 26
C_WF = 32
sG1 = 91
WS_STAMP = 0xF00000
WS_L = 0x1000000
WS_SIZE = 0x2000000
LX, LW, LWQ, LQ = 0, 32768, 90112, 0
LXA, LEX = 118784, 118784
LE = 122880
LKV = 16384
WS_JUNK = 0x1800000
LWO = 0
LY, LP = 135168, 118784
LT = 0
LYT, LWW, LTT, LEX2 = 126976, 147456, 135168, 151552
LR = 101376
LO = 101376
LMX = 101376
LC = 163840 - 256
LDS_SIZE = 163840
C_AX, C_AEX, C_AT, C_AY, C_AP, C_A2D, C_Q, C_AU, C_ADONE, C_R1, C_R2, C_O, C_WO, C_FAIL, C_M1, C_M2, C_KV, C_AX2, C_G, C_W0, C_W1, C_W2, C_W3, C_YS, C_W4 = range(25)

M16 = "v_mfma_f32_16x16x32_bf16"
def mfma16(a, d, A, B, c=None):
    cs = "0" if c is None else vr(c, 4)
    a(f"{M16} {vr(d,4)}, {vr(A,4)}, {vr(B,4)}, {cs}")

sH, sQB, sW, sTAG, sWL = 3, 4, 5, 34, 35
SRD_A, SRD_B, SRD_WS, SRD_OUT, SRD_C, SRD_TAB = 36, 40, 44, 48, 52, 56
sX, sJ, sN2, sDQ = 60, 61, 62, 63
sPASS = 64
sFAST, sXCC, sFG, sG, sJ4 = 86, 87, 88, 89, 90
sHP = 86
sSIG, sMSK = 92, 93
sPM = 91
KSIG = 0x6A39E5C1
WSD = f"s[{SRD_WS}:{SRD_WS+3}]"
STAMPS = False
OPT = {}

class G:
    uid = 0
    plo = None
def lab(p):
    G.uid += 1
    return f"{p}_{G.uid}"

def arrive(a, c):
    a(f"s_mov_b64 exec, 1")
    a(f"ds_add_u32 v4, v5 offset:{4*c}")
    a(f"s_mov_b64 exec, -1")

def wait_cnt(a, c, target, starget=None, sleep=1):
    l = lab("wc")
    a("s_mov_b32 s69, 400000")
    if G.plo is not None: a("s_setprio 0")
    a(f"{l}:")
    a(f"ds_read_b32 v6, v4 offset:{4*c}")
    a("s_waitcnt lgkmcnt(0)")
    a("v_readfirstlane_b32 s8, v6")
    a("s_sub_u32 s69, s69, 1")
    a(f"s_cmp_ge_u32 s8, {target if starget is None else 's'+str(starget)}")
    a(f"s_cbranch_scc1 {l}_d")
    a(f"s_sleep {sleep}")
    a("s_cmp_lg_u32 s69, 0")
    a(f"s_cbranch_scc1 {l}")
    a(f"{l}_d:")
    if G.plo is not None: a(f"s_setprio {G.plo}")

def setprio(a, p):
    a(f"s_setprio {p}")
    if OPT.get("plo"): G.plo = p if p else None

def poll(a, vaddr, soff, mask, width=1, vt=8, sleep=4):
    l = lab("pl")
    a(f"s_mov_b32 s9, 20000")
    if mask != -1: a(f"s_mov_b32 exec_lo, {mask & 0xffffffff:#x}\ns_mov_b32 exec_hi, {mask >> 32:#x}")
    a(f"{l}:")
    sfx = {1: "", 2: "x2", 4: "x4"}[width]
    a(f"buffer_load_dword{sfx} {vr(vt,width)}, v{vaddr}, {WSD}, {soff} offen sc1")
    a("s_waitcnt vmcnt(0)")
    if width == 1:
        a(f"v_cmp_ne_u32 vcc, s{sTAG}, v{vt}")
    else:
        for i in range(width): a(f"v_xor_b32 v{vt+i}, s{sTAG}, v{vt+i}")
        if width == 2: a(f"v_or_b32 v{vt}, v{vt}, v{vt+1}")
        else: a(f"v_or3_b32 v{vt}, v{vt}, v{vt+1}, v{vt+2}\nv_or_b32 v{vt}, v{vt}, v{vt+3}")
        a(f"v_cmp_ne_u32 vcc, 0, v{vt}")
    a(f"s_cbranch_vccz {l}_d")
    a(f"s_sleep {sleep}")
    a("s_sub_u32 s9, s9, 1")
    a("s_cmp_lg_u32 s9, 0")
    a(f"s_cbranch_scc1 {l}")
    a(f"{l}_d:")
    if mask != -1: a("s_mov_b64 exec, -1")

def both(a, f):
    l = lab("bm")
    a(f"s_cmp_lg_u32 s{sFAST}, 0\ns_cbranch_scc1 {l}_f")
    f("sc1")
    a(f"s_branch {l}_d")
    a(f"{l}_f:")
    f("")
    a(f"{l}_d:")

def flag_store(a, soff, local=False):
    a("s_mov_b64 exec, 1")
    a(f"v_mov_b32 v6, s{sTAG}\nv_mov_b32 v7, 0")
    f = lambda m: a(f"buffer_store_dword v6, v7, {WSD}, s{soff} offen {m}")
    if local: both(a, f)
    else: f("sc1")
    a("s_mov_b64 exec, -1")

def gbar_wait(a, k, fbase, cnt, vt):
    l = lab("gb")
    a(f"s_cmp_lg_u32 s{sWL}, 0\ns_cbranch_scc1 {l}_w")
    a(f"s_add_u32 s10, s{sFG}, {FG_F2 + 128*k}")
    a(f"s_cmp_lg_u32 s{sJ}, 0\ns_cbranch_scc1 {l}_m")
    a(f"s_mov_b32 s12, {fbase}")
    poll(a, 3, "s12", -1, width=4, vt=vt, sleep=OPT.get("lsleep", 2))
    flag_store(a, 10, local=True)
    a(f"s_branch {l}_a")
    a(f"{l}_m:")
    a(f"s_cmp_lg_u32 s{sFAST}, 0\ns_cbranch_scc1 {l}_f")
    a("v_mov_b32 v7, 0")
    poll(a, 7, "s10", 1, width=1, vt=vt, sleep=8)
    a(f"s_branch {l}_a")
    a(f"{l}_f:")
    a("s_mov_b32 s9, 40000")
    a(f"{l}_fl:")
    a(f"s_buffer_load_dword s8, {WSD}, s10 glc")
    a("s_waitcnt lgkmcnt(0)")
    a(f"s_cmp_eq_u32 s8, s{sTAG}\ns_cbranch_scc1 {l}_a")
    a(f"s_sleep {OPT.get('psleep', 2)}")
    a(f"s_sub_u32 s9, s9, 1\ns_cmp_lg_u32 s9, 0\ns_cbranch_scc1 {l}_fl")
    a(f"{l}_a:")
    arrive(a, cnt)
    a(f"{l}_w:")
    wait_cnt(a, cnt, 1)

def set_tag(a, keep=None):
    a(f"v_readfirstlane_b32 s{sTAG}, v2")
    a(f"s_mov_b32 s{sMSK}, 0x00030003")
    a("s_nop 1")
    a(f"s_add_u32 s{sTAG}, s{sTAG}, 1")
    if keep is not None: a(f"s_mov_b32 s{keep}, s{sTAG}")
    a(f"s_bitcmp1_b32 s{sTAG}, 0\ns_cselect_b32 s{sSIG}, {KSIG:#x}, {KSIG ^ 0xffffffff:#x}") if False else None
    a(f"s_bfe_i32 s{sSIG}, s{sTAG}, 0x10000")
    a(f"s_xor_b32 s{sSIG}, s{sSIG}, {KSIG:#x}")
    a(f"s_mul_i32 s{sTAG}, s{sTAG}, 0x9E3779B1")

def sig_regs(a, d, hi=False):
    if hi: a(f"v_lshrrev_b32 v{d}, 4, v1")
    else: a(f"v_and_b32 v{d}, 3, v1")
    a(f"v_lshlrev_b32 v{d}, 2, v{d}")
    a(f"v_lshrrev_b32 v{d}, v{d}, s{sSIG}")

def sign(a, r0, n, sg):
    for r in range(0, n, 4): a(f"v_bfi_b32 v{r0+r}, s{sMSK}, v{sg}, v{r0+r}")

def check(a, r0, n, sg, acc, first=True):
    for r in range(0, n, 2):
        a(f"v_xor_b32 v{acc+1}, v{r0+r}, v{sg + r % 4}")
        a(f"v_xor_b32 v{acc+2}, v{r0+r+1}, v{sg + (r+1) % 4}")
        if first and r == 0: a(f"v_or_b32 v{acc}, v{acc+1}, v{acc+2}")
        else: a(f"v_or3_b32 v{acc}, v{acc}, v{acc+1}, v{acc+2}")

def fx_load(a, vd, va):
    a(f"v_and_b32 v{va}, 31, v1\nv_lshlrev_b32 v{va}, 2, v{va}")
    a(f"buffer_load_dword v{vd}, v{va}, {WSD}, s{sFG} offen sc1")

def fx_eval(a, vd, va):
    l = lab("fx")
    a("s_mov_b32 s9, 20000")
    a(f"{l}:")
    a(f"v_subrev_u32 v{vd}, s{sTAG}, v{vd}")
    a(f"v_cmp_lt_u32 vcc, 14, v{vd}")
    a(f"s_cbranch_vccz {l}_d")
    a("s_sleep 4")
    a(f"buffer_load_dword v{vd}, v{va}, {WSD}, s{sFG} offen sc1")
    a("s_waitcnt vmcnt(0)")
    a("s_sub_u32 s9, s9, 1")
    a("s_cmp_lg_u32 s9, 0")
    a(f"s_cbranch_scc1 {l}")
    a(f"{l}_d:")
    a(f"v_cmp_ne_u32 vcc, s{sXCC}, v{vd}")
    a("s_nop 0")
    a("s_cmp_eq_u64 vcc, 0")
    a(f"s_cselect_b32 s{sFAST}, {0 if OPT.get('slow') else 1}, 0")

def stamp(a, idx):
    if not STAMPS: return
    a(f"s_memrealtime s[94:95]" if STAMPS in ("rt", "dbg", "amp") else f"s_memtime s[94:95]")
    a("s_waitcnt lgkmcnt(0)")
    a(f"s_mov_b32 s{70+idx}, s94")

def stamp_out(a, n, who="B"):
    if not STAMPS: return
    a("s_waitcnt vmcnt(0) lgkmcnt(0)")
    if STAMPS == "amp":
        w, j = OPT["amp"]
        if who != w: return
        l = lab("amp")
        stamp(a, 6)
        a(f"s_cmp_lg_u32 s{sWL}, 0\ns_cbranch_scc1 {l}_d")
        a(f"s_sub_u32 s8, s{70+j}, s70\ns_min_u32 s8, s8, 10000\ns_mul_i32 s8, s8, 10\ns_add_u32 s8, s8, s76\ns_mov_b32 s9, 100000")
        a(f"{l}:")
        a("s_sleep 8\ns_memrealtime s[94:95]\ns_waitcnt lgkmcnt(0)")
        a(f"s_sub_u32 s10, s94, s8\ns_cmp_ge_i32 s10, 0\ns_cbranch_scc1 {l}_d")
        a(f"s_sub_u32 s9, s9, 1\ns_cmp_lg_u32 s9, 0\ns_cbranch_scc1 {l}")
        a(f"{l}_d:")
        return
    if STAMPS == "dbg":
        if who == "A": stamp(a, 6)
        srd(a, SRD_C, S_DBG, 256)
        a("v_mov_b32 v7, 0\ns_mov_b64 exec, 1")
        a("s_not_b32 s8, s70\nv_mov_b32 v6, s8")
        a(f"buffer_atomic_umax v6, v7, s[{SRD_C}:{SRD_C+3}], 0 offen sc1")
        M = {"B": {1: 0, 2: 11, 3: 1, 4: 3, 5: 4, 6: 8, 7: 10}, "A": {8: 8, 9: 3, 10: 10, 11: 14, 12: 15, 13: 9, 14: 6}}[who]
        for k, v in M.items():
            a(f"v_mov_b32 v{8+k}, s{70+v}")
            a(f"buffer_atomic_umax v{8+k}, v7, s[{SRD_C}:{SRD_C+3}], 0 offen offset:{4*k} sc1")
        a("s_mov_b64 exec, -1")
        return
    a(f"s_lshl_b32 s10, s2, 9\ns_lshl_b32 s11, s{sW}, 6\ns_add_u32 s10, s10, s11\ns_add_u32 s10, s10, {WS_STAMP}")
    a("v_mov_b32 v7, 0\ns_mov_b64 exec, 1")
    for i in range(n):
        a(f"v_mov_b32 v6, s{70+i}")
        a(f"buffer_store_dword v6, v7, {WSD}, s10 offen offset:{4*i}")
    a("s_mov_b64 exec, -1")

def gen_E(a, lanev, hhv, n2s, mode, outs, tmp):
    t0, t1, t2, t3, t4, t5 = range(tmp, tmp + 6)
    if mode == 'a1':
        a(f"v_cvt_f32_u32 v{t0}, v{lanev}")
        a(f"v_mul_f32 v{t0}, {f32_bits(1/2048):#x}, v{t0}")
        a(f"v_lshlrev_b32 v{t1}, 8, v{hhv}")
        a(f"v_add_u32 v{t1}, s{n2s}, v{t1}")
        a(f"v_cvt_f32_u32 v{t1}, v{t1}")
        offs = lambda t, j: 64 * (16 * t + 8 * (j // 4) + j % 4)
    else:
        a(f"v_lshlrev_b32 v{t0}, 6, v{lanev}")
        a(f"v_add_u32 v{t0}, s{n2s}, v{t0}")
        a(f"v_cvt_f32_u32 v{t0}, v{t0}")
        a(f"v_mul_f32 v{t0}, {f32_bits(1/2048):#x}, v{t0}")
        a(f"v_lshlrev_b32 v{t1}, 3, v{hhv}")
        a(f"v_cvt_f32_u32 v{t1}, v{t1}")
        offs = lambda t, j: 16 * t + j
    a(f"v_mul_f32 v{t1}, v{t1}, v{t0}")
    for t in range(2):
        for jp in range(4):
            for e in range(2):
                a(f"v_fmamk_f32 v{t2+e}, v{t0}, {f32_bits(float(offs(t, 2*jp+e))):#x}, v{t1}")
            a(f"v_cos_f32 v{t4}, v{t2}")
            a(f"v_cos_f32 v{t5}, v{t3}")
            a(f"v_sin_f32 v{t2}, v{t2}")
            a(f"v_sin_f32 v{t3}, v{t3}")
            a(f"v_cvt_pk_bf16_f32 v{outs['C']+4*t+jp}, v{t4}, v{t5}")
            if 'S' in outs:
                a(f"v_cvt_pk_bf16_f32 v{outs['S']+4*t+jp}, v{t2}, v{t3}")
                a(f"v_xor_b32 v{outs['NS']+4*t+jp}, 0x80008000, v{outs['S']+4*t+jp}")
            else:
                a(f"v_cvt_pk_bf16_f32 v{outs['Sx']+4*t+jp}, v{t2}, v{t3}")
                a(f"v_xor_b32 v{outs['Sx']+4*t+jp}, s13, v{outs['Sx']+4*t+jp}")


def sg_regs(a, d):
    sig_regs(a, d)
    a("s_mov_b32 exec_lo, 0x10000000\ns_mov_b32 exec_hi, 0x10000000")
    a(f"v_mov_b32 v{d}, 0")
    a("s_mov_b64 exec, -1")

def build_kernel():
    a = Asm()
    a(f""".globl {NAME}
.p2align 8
.type {NAME},@function
{NAME}:""")
    a("s_cmp_ge_u32 s2, 256\ns_cbranch_scc1 k_end")
    a("v_lshrrev_b32 v2, 6, v0")
    a("v_and_b32 v1, 63, v0")
    a(f"v_readfirstlane_b32 s{sW}, v2")
    a(f"v_mov_b32 v4, {LC}\nv_mov_b32 v5, 1")
    a(f"s_cmp_ge_u32 s{sW}, 4\ns_cbranch_scc1 a_pre")
    def kload():
        a("s_load_dwordx16 s[16:31], s[0:1], 0")
        a("s_load_dwordx2 s[32:33], s[0:1], 64")
    def common():
        if STAMPS:
            for i in range(16): a(f"s_mov_b32 s{70+i}, 0")
            a("s_memrealtime s[92:93]")
        a(f"""s_and_b32 s{sX}, s2, 7
s_lshr_b32 s{sJ}, s2, 3
s_and_b32 s15, s{sJ}, 1
s_and_b32 s{sJ4}, s{sJ}, 3
s_lshr_b32 s{sH}, s{sX}, 1
s_lshl_b32 s{sH}, s{sH}, 2
s_add_u32 s{sH}, s{sH}, s{sJ4}
s_lshr_b32 s{sHP}, s{sH}, 1
s_and_b32 s{sQB}, s{sX}, 1
s_lshl_b32 s{sQB}, s{sQB}, 3
s_lshr_b32 s6, s{sJ}, 2
s_add_u32 s{sQB}, s{sQB}, s6""")
        a("v_lshlrev_b32 v3, 4, v1")
        a(f"s_and_b32 s{sWL}, s{sW}, 3")
        a(f"""s_lshl_b32 s11, s{sWL}, 12
s_lshl_b32 s12, s{sWL}, 11
s_lshl_b32 s9, s{sX}, 2
s_add_u32 s{sN2}, s9, s{sJ4}
v_and_b32 v8, 31, v1
v_lshrrev_b32 v9, 5, v1""")
    kload()
    a("s_branch b_go")
    a("a_pre:")
    a(f"s_cmp_lg_u32 s{sW}, 4\ns_cbranch_scc1 k_nz")
    a(f"v_lshl_add_u32 v6, v1, 2, v4\nv_mov_b32 v7, 0")
    a(f"s_mov_b64 exec, {-1}\nds_write_b32 v6, v7\ns_mov_b64 exec, -1")
    a(f"s_lshr_b32 s{sJ}, s2, 3")
    if OPT.get("cpf", 1):
        srd_table(a, SRD_TAB, NAME, "k_end-" + NAME)
        a(f"s_and_b32 s8, s{sJ}, 7\ns_lshl_b32 s8, s8, 13\nv_lshlrev_b32 v6, 7, v1")
        a(f"buffer_load_dword v245, v6, s[{SRD_TAB}:{SRD_TAB+3}], s8 offen")
    a("s_waitcnt lgkmcnt(0)")
    a("k_nz:")
    a("s_barrier")
    kload()
    a("s_branch a_wave")
    a("b_go:")
    if OPT.get("b0prio"): a(f"s_setprio {OPT['b0prio']}")
    common()

    a(f"""s_lshl_b32 s6, s{sJ4}, 1
s_add_u32 s14, s{sQB}, s6
s_mul_i32 s6, s14, 37
s_lshr_b32 s6, s6, 8
s_mul_i32 s6, s6, 7
s_sub_u32 s14, s14, s6""")
    XO, WOF, VWQ, VXA = 10, 14, 15, 16
    a("""v_lshrrev_b32 v6, 3, v1
v_and_b32 v100, 7, v1
v_lshrrev_b32 v101, 1, v6
v_xor_b32 v101, v101, v100
v_mul_u32_u24 v102, 896, v6""")
    a(f"""v_lshl_add_u32 v{XO}, v101, 4, v102
v_mul_u32_u24 v103, 57344, v6
v_lshl_add_u32 v{VXA}, v101, 4, v103
s_and_b32 s8, s{sWL}, 1
s_lshl_b32 s8, s8, 6
v_xor_b32 v{VXA}, s8, v{VXA}
v_xor_b32 v101, 4, v101
v_lshl_add_u32 v{XO+1}, v101, 4, v102
v_add_u32 v{XO+1}, {8*896}, v{XO+1}
v_add_u32 v{XO+2}, {16*896}, v{XO}
v_add_u32 v{XO+3}, {16*896}, v{XO+1}""")
    a(f"""v_bfe_u32 v101, v1, 4, 1
v_lshlrev_b32 v101, 2, v101
v_xor_b32 v101, v101, v100
v_min_u32 v101, 6, v101
v_mul_u32_u24 v102, 2688, v6
v_lshl_add_u32 v{WOF}, v101, 4, v102
v_lshrrev_b32 v6, 2, v1
v_mul_u32_u24 v6, 2688, v6
v_and_b32 v101, 3, v1
v_lshl_add_u32 v{VWQ}, v101, 4, v6""")
    a(f"""s_lshl_b32 s6, s{sQB}, 7
s_lshl_b32 s7, s{sWL}, 5
s_add_u32 s6, s6, s7
s_mul_i32 s6, s6, 896
s_mul_i32 s7, s{sWL}, {16*2688}
s_mul_i32 s8, s15, 896
s_add_u32 s7, s7, s8
s_mul_i32 s8, s{sHP}, 112
s_add_u32 s7, s7, s8
s_add_u32 s7, s7, 896
s_mul_i32 s66, s{sWL}, {16*2688}
s_mul_i32 s8, s{sH}, 56
s_add_u32 s66, s66, s8
s_lshl_b32 s65, s{sWL}, 10
s_lshl_b32 s68, s{sX}, 3
s_and_b32 s8, s{sJ}, 7
s_add_u32 s68, s68, s8
s_mul_i32 s68, s68, 896
s_mul_i32 s8, s{sWL}, {8*57344}
s_add_u32 s68, s68, s8
v_mov_b32 v7, 0""")
    a(f"s_lshr_b32 s13, s{sJ}, 3\ns_lshl_b32 s13, s13, 1")
    srd_table(a, SRD_TAB, NAME, 64)
    VWA = 18
    a("v_mov_b32 v19, 0")
    a(f"""v_lshrrev_b32 v6, 2, v1
s_lshl_b32 s8, s{sWL}, 4
v_add_u32 v6, s8, v6
v_lshlrev_b32 v6, 5, v6
v_add_u32 v6, s{sN2}, v6
v_mul_u32_u24 v6, 450, v6
v_and_b32 v{VWA}, 3, v1
v_lshlrev_b32 v{VWA}, 4, v{VWA}
s_lshr_b32 s9, s{sJ}, 2
s_mul_i32 s9, s9, 56
v_add3_u32 v{VWA}, v6, v{VWA}, s9""")
    a("s_barrier")
    a("s_waitcnt lgkmcnt(0)")
    srd(a, SRD_C, S_AX, 2048 * 896)
    srd(a, SRD_WS, S_WS, WS_SIZE)
    if STAMPS: a("s_mov_b32 s70, s92")
    def xa():
        a(f"s_lshl_b32 s10, s89, 7\ns_add_u32 s10, s10, s68\ns_lshl_b32 s9, s89, 12\ns_add_u32 s9, s9, s65")
        a(f"s_add_u32 m0, s9, {LXA}\ns_add_u32 s89, s89, 1")
        a(f"buffer_load_dwordx4 v{VXA}, s[{SRD_C}:{SRD_C+3}], s10 offen lds")
        a("s_cmp_eq_u32 s89, 7\ns_cselect_b32 s89, 0, s89")
        Q1.append("xa")
    def wa():
        for k, ptr in enumerate((S_WR, S_WI)):
            srd(a, SRD_OUT, ptr, 2048 * 450 + 2)
            a(f"s_add_u32 m0, s12, {LWW + k*1024}\ns_nop 0")
            a(f"buffer_load_dwordx4 v{VWA}, s[{SRD_OUT}:{SRD_OUT+3}], 0 offen lds")
            Q1.append("wa")
    def tlbw():
        sh = OPT.get("tsh", 16)
        a(f"""s_cmp_eq_u32 s{sWL}, 0
s_cselect_b32 s{SRD_OUT}, s{S_WR}, s{S_WI}
s_cselect_b32 s{SRD_OUT+1}, s{S_WR+1}, s{S_WI+1}
s_mov_b32 s{SRD_OUT+2}, {2048*450}
s_mov_b32 s{SRD_OUT+3}, 0x20000
s_cmp_eq_u32 s{sWL}, 2
s_cselect_b32 s{SRD_OUT}, s{S_OUT}, s{SRD_OUT}
s_cselect_b32 s{SRD_OUT+1}, s{S_OUT+1}, s{SRD_OUT+1}
s_cselect_b32 s{SRD_OUT+2}, {2048*1792}, s{SRD_OUT+2}
s_cmp_eq_u32 s{sWL}, 3
s_cselect_b32 s{SRD_OUT}, s{S_WS}, s{SRD_OUT}
s_cselect_b32 s{SRD_OUT+1}, s{S_WS+1}, s{SRD_OUT+1}
s_cselect_b32 s{SRD_OUT+2}, {WS_SIZE}, s{SRD_OUT+2}
s_cselect_b32 s8, 19, {sh}
v_lshlrev_b32 v19, s8, v1""")
        a(f"buffer_load_dword v31, v19, s[{SRD_OUT}:{SRD_OUT+3}], 0 offen")
        Q1.append("tw")
    def wpf():
        a(f"""s_bitcmp1_b32 s{sWL}, 0
s_cselect_b32 s{SRD_OUT}, s{S_WI}, s{S_WR}
s_cselect_b32 s{SRD_OUT+1}, s{S_WI+1}, s{S_WR+1}
s_mov_b32 s{SRD_OUT+2}, {2048*450}
s_mov_b32 s{SRD_OUT+3}, 0x20000
s_lshl_b32 s9, s{sJ}, 1
s_lshr_b32 s10, s{sWL}, 1
s_add_u32 s9, s9, s10
s_lshl_b32 s9, s9, 3
s_add_u32 s9, s9, s{sX}
s_mul_i32 s9, s9, 1800
v_mul_u32_u24 v19, 120, v1
s_mov_b64 exec, 0xffff""")
        a(f"buffer_load_ushort v31, v19, s[{SRD_OUT}:{SRD_OUT+3}], s9 offen")
        a("s_mov_b64 exec, -1")
        srd(a, SRD_OUT, S_OUT, 2048 * 1792)
        Q1.append("vp")
    def xflag():
        a(f"s_mov_b32 m0, {LC + 4*C_EP}\ns_mov_b32 s9, {WS_EP}\ns_mov_b64 exec, 1")
        a(f"buffer_load_dword v7, {WSD}, s9 offen sc1 lds")
        Q1.append("ea")
        a(f"s_lshl_b32 s9, s{sWL}, 2\ns_add_u32 m0, s9, {LC + 4*C_XF}\ns_nop 0")
        a(f"buffer_load_dword v7, s[{SRD_TAB}:{SRD_TAB+3}], 0 offen lds")
        a("s_mov_b64 exec, -1")
        Q1.append("xf")
    def wopf():
        l = lab("wp")
        if OPT.get("b3m"):
            srd(a, SRD_OUT, S_WO, 448 * 896)
            a(f"v_lshlrev_b32 v19, 7, v1\ns_mul_i32 s9, s{sJ}, 12544\ns_mul_i32 s8, s{sWL}, 3200\ns_add_u32 s9, s9, s8\ns_mov_b64 exec, 0x1ffffff")
            a(f"buffer_load_dword v31, v19, s[{SRD_OUT}:{SRD_OUT+3}], s9 offen")
            a("s_mov_b64 exec, -1")
            Q1.append("wp")
            return
        a(f"s_cmp_lg_u32 s{sWL}, 3\ns_cbranch_scc1 {l}")
        srd(a, SRD_OUT, S_WO, 448 * 896)
        a(f"""v_lshrrev_b32 v19, 2, v1
v_mul_u32_u24 v19, 896, v19
v_and_b32 v31, 3, v1
v_mul_u32_u24 v31, 72, v31
v_add_u32 v19, v19, v31
s_mul_i32 s9, s{sJ}, {14*896}
s_lshr_b32 s8, s{sH}, 2
s_mul_i32 s8, s8, 224
s_add_u32 s9, s9, s8
s_mov_b32 exec_hi, 0xffffff""")
        a(f"buffer_load_dword v31, v19, s[{SRD_OUT}:{SRD_OUT+3}], s9 offen")
        a(f"s_mov_b64 exec, -1\ns_branch {l}_d")
        a(f"{l}:")
        a(f"s_mov_b64 exec, 1\nbuffer_load_dword v31, v7, s[{SRD_TAB}:{SRD_TAB+3}], 0 offen\ns_mov_b64 exec, -1")
        a(f"{l}_d:")
        Q1.append("wp")
    a("s_mov_b32 s89, s13")
    Q1 = []
    def vw1(tag):
        a(f"s_waitcnt vmcnt({len(Q1) - 1 - max(i for i, t in enumerate(Q1) if t == tag)})")
    srd(a, SRD_A, S_BX, 2048 * 896)
    srd(a, SRD_B, S_WQKV, 448 * 2688)
    XSL = [0, 1, 0, 1, 0, 1, 0]
    def sig_c(c):
        if c == 0: a("s_mov_b32 s13, s14")
        else: a(f"s_add_u32 s13, s14, {c}\ns_sub_u32 s10, s13, 7\ns_cmp_ge_u32 s13, 7\ns_cselect_b32 s13, s10, s13")
    def dx(c):
        sig_c(c)
        a("s_lshl_b32 s10, s13, 7\ns_add_u32 s10, s10, s6")
        for k in range(4):
            if XSL[c] == 2: a(f"s_add_u32 m0, s12, {LW + (4+k//2)*8192 + (k%2)*1024}\ns_nop 0")
            else: a(f"s_add_u32 m0, s11, {LX + XSL[c]*16384 + k*1024}\ns_nop 0")
            a(f"buffer_load_dwordx4 v{XO+k}, s[{SRD_A}:{SRD_A+3}], s10 offen lds")
        Q1.extend([f"x{c}"] * 4)
    def dw(c):
        sig_c(c)
        a(f"s_mul_i32 s13, s13, {64*2688}\ns_add_u32 s13, s13, s7")
        a(f"s_add_u32 m0, s12, {LW + c*8192}\ns_add_u32 s10, s13, {8*2688}")
        a(f"buffer_load_dwordx4 v{WOF}, s[{SRD_B}:{SRD_B+3}], s13 offen lds")
        a(f"s_add_u32 m0, s12, {LW + c*8192 + 1024}\ns_nop 0")
        a(f"buffer_load_dwordx4 v{WOF}, s[{SRD_B}:{SRD_B+3}], s10 offen lds")
        Q1.extend([f"w{c}"] * 2)
    def dq(c):
        sig_c(c)
        a(f"s_mul_i32 s13, s13, {64*2688}\ns_add_u32 s13, s13, s66\ns_add_u32 m0, s65, {LWQ + c*4096}\ns_nop 0")
        a(f"buffer_load_dwordx4 v{VWQ}, s[{SRD_B}:{SRD_B+3}], s13 offen lds")
        Q1.append("q")
    def epl():
        a(f"s_mov_b32 s9, {WS_EP}")
        a(f"buffer_load_dword v2, v7, {WSD}, s9 offen sc1")
        Q1.append("ep")
    SCH = OPT.get("sch", {-1: "a a a a a a a F x0 w0 e x1 w1", 0: "x2 w2", 1: "x3 w3", 2: "x4 w4", 3: "x5 w5", 4: "x6 w6", 5: "q W"})
    def issue(c):
        for t in SCH.get(c, "").split():
            if t[0] == "x": dx(int(t[1]))
            elif t[0] == "w": dw(int(t[1]))
            elif t == "e": epl()
            elif t == "q":
                for u in range(7): dq(u)
            elif t[0] == "q":
                for u in t[1:]: dq(int(u))
            elif t == "S": stamp(a, 5)
            elif t == "T": tlbw()
            elif OPT.get("noA"): pass
            elif t == "a": xa()
            elif t == "W": wa()
            elif t == "F": xflag()
            elif t == "P": wopf()
            elif t == "V": wpf()
    issue(-1)
    a(f"""v_and_b32 v6, 31, v1
v_lshrrev_b32 v113, 5, v1
v_bfe_u32 v116, v6, 1, 3
v_lshlrev_b32 v6, 7, v6
v_add_u32 v6, s11, v6""")
    for t in range(4):
        a(f"v_add_u32 v117, {2*t}, v113\nv_xor_b32 v117, v117, v116\nv_lshl_add_u32 v{20+t}, v117, 4, v6")
    a(f"""v_lshlrev_b32 v6, 3, v113
v_bfe_u32 v114, v1, 2, 2
v_add_u32 v6, v6, v114
v_and_b32 v114, 1, v1
v_lshlrev_b32 v114, 5, v114
v_bfe_u32 v117, v1, 4, 1
v_lshl_add_u32 v114, v117, 4, v114
v_bfe_u32 v117, v1, 1, 1
v_lshl_add_u32 v114, v117, 3, v114
v_lshl_add_u32 v26, v6, 6, v114
v_add_u32 v26, {LWQ}, v26
v_bfe_u32 v117, v1, 3, 1
v_lshlrev_b32 v117, 6, v117
v_lshlrev_b32 v6, 7, v6
v_add_u32 v6, {LW}, v6
v_xor_b32 v115, v114, v117
v_add_u32 v24, v6, v115
v_add_u32 v114, 56, v114
v_xor_b32 v115, v114, v117
v_add_u32 v25, v6, v115""")
    srd(a, SRD_OUT, S_OUT, 2048 * 1792)
    ACC, QACC, WF, XR = 32, 40, 80, 144
    SGP = 27
    a("s_cmp_lg_u32 s15, 0\ns_cbranch_scc1 b_v")
    P = 64
    Q1base = list(Q1)
    WQC = OPT.get("wqc", 4)
    for ty in range(2):
        if ty: a("b_v:")
        Q1[:] = Q1base
        def rdx(c):
            for t in range(4): a(f"ds_read_b128 {vr(XR+16*c+4*t,4)}, v{20+t} offset:{XSL[c]*16384}")
        def rdw(c):
            wf = WF + 32 * (c % 2)
            for t in range(4):
                for seg in range(2):
                    for aa in range(2):
                        a(f"ds_read_b64_tr_b16 {vr(wf+8*t+4*seg+2*aa,2)}, v{24+seg} offset:{c*8192+(16*t+4*aa)*128}")
        def mm(c, t):
            wf = WF + 32 * (c % 2)
            first = (c == 0 and t == 0)
            for seg in range(2):
                if ty == 0: mfma(a, ACC+16*seg, wf+8*t+4*seg, XR+16*c+4*t, None if first else ACC+16*seg)
                else: mfma(a, ACC+16*seg, XR+16*c+4*t, wf+8*t+4*seg, None if first else ACC+16*seg)
        def vwx(c):
            i = max(i for i, t in enumerate(Q1) if t in (f"x{c}", f"w{c}"))
            a(f"s_waitcnt vmcnt({len(Q1) - 1 - i})")
        def nxt(c):
            a(f"ds_read_b32 v6, v4 offset:{4*C_W0}")
            issue(c)
            l = lab("cw")
            a(f"s_waitcnt lgkmcnt(0)\nv_readfirstlane_b32 s8, v6\ns_nop 1\ns_cmp_ge_u32 s8, {4*(c+1)}\ns_cbranch_scc1 {l}")
            wait_cnt(a, C_W0, 4 * (c + 1))
            a(f"{l}:")
            if c in (0, 1, 3, 5, 6) and not OPT.get("lst") and not OPT.get("qst"): stamp(a, 11 + (0, 1, 3, 5, 6).index(c))
            rdw(c)
        vwx(0)
        rdx(0)
        arrive(a, C_W0)
        a("s_waitcnt lgkmcnt(1)")
        nxt(0)
        for c in range(7):
            a("s_waitcnt lgkmcnt(12)")
            mm(c, 0)
            ex = 0
            if c < 6:
                vwx(c + 1)
                rdx(c + 1)
                arrive(a, C_W0)
                ex = 5
            a(f"s_waitcnt lgkmcnt({8+ex})")
            mm(c, 1)
            if c == 1:
                set_tag(a, 67)
                sg_regs(a, SGP)
            a(f"s_waitcnt lgkmcnt({4+ex})")
            mm(c, 2)
            a(f"s_waitcnt lgkmcnt({1 if c < 6 else 0})")
            mm(c, 3)
            if c < 6: nxt(c + 1)
        stamp(a, 1)
        a(f"""s_lshl_b32 s10, s{sHP}, 7
s_lshl_b32 s11, s{sQB}, 2
s_add_u32 s10, s10, s11
s_add_u32 s10, s10, s{sW}
s_lshl_b32 s10, s10, 11
s_add_u32 s87, s10, {WS_V if ty else WS_K}
s_add_u32 s88, s87, {64*2048}""")
        a.nop(5)
        for seg in range(2):
            for r in range(8):
                a(f"v_cvt_pk_bf16_f32 v{P+8*seg+r}, v{ACC+16*seg+2*r}, v{ACC+16*seg+2*r+1}")
        if ty == 0:
            a("s_mov_b32 exec_lo, 0")
            for seg in range(2): a(f"v_mov_b32 v{P+8*seg+6}, 0x3f803f80\nv_mov_b32 v{P+8*seg+7}, 0x3f80")
        else:
            a("s_mov_b32 exec_lo, 0xf0000000\ns_mov_b32 exec_hi, 0xf0000000")
            a("v_and_b32 v6, 3, v1\nv_cmp_eq_u32 vcc, 0, v6\nv_mov_b32 v6, 0x3f803f80\nv_cndmask_b32 v6, 0, v6, vcc")
            for r in range(16): a(f"v_mov_b32 v{P+r}, v6")
        a("s_mov_b64 exec, -1")
        if ty == 0: a("s_branch b_st1")
    a("b_st1:")
    a(f"s_setprio {OPT.get('bprio', 2)}")
    sign(a, P, 16, SGP)
    vw1("q")
    arrive(a, C_W3)
    a(f"s_add_u32 s10, s87, {WS_L}\ns_add_u32 s11, s88, {WS_L}")
    for seg in range(2):
        for t in range(2):
            a(f"buffer_store_dwordx4 {vr(P+8*seg+4*t,4)}, v3, {WSD}, s{10+seg} offen offset:{t*1024} {OPT.get('lm', '')}")
    a(f"s_lshl_b32 s13, s{sW}, 12\ns_add_u32 s13, s13, {LKV}\nv_add_u32 v7, s13, v3")
    for u in range(4): a(f"ds_write_b128 v7, {vr(P+4*u,4)} offset:{u*1024}")
    G4 = 248
    GG = lambda u: G4 + 4 * (u % 2) * OPT.get("g2", 0)
    def g_rd(u): a(f"ds_read_b128 {vr(GG(u),4)}, v7 offset:{u*1024}")
    def g_st(u):
        a("s_waitcnt lgkmcnt(0)")
        a(f"buffer_store_dwordx4 {vr(GG(u),4)}, v3, {WSD}, s{87+u//2} offen offset:{(u%2)*1024} sc1")
    def st_glob():
        for u in range(4):
            a("s_waitcnt vmcnt(0)")
            g_rd(u); g_st(u)
    stamp(a, 2)
    a(f"s_mov_b32 s10, {f32_bits(QSCALE):#x}\ns_mov_b32 s11, s10")
    a(f"s_lshl_b32 s13, s{sW}, 12\ns_add_u32 s13, s13, {LQ}\nv_add_u32 v31, s13, v3")
    a(f"""s_lshl_b32 s12, s{sQB}, 2
s_lshl_b32 s13, s{sW}, 3
s_add_u32 s12, s12, s13
s_lshl_b32 s15, s{sH}, 17
s_and_b32 s13, s{sX}, 1
s_lshl_b32 s13, s13, 16
s_add_u32 s15, s15, s13
s_xor_b32 s68, s15, 0x10000
s_add_u32 s15, s15, {WS_L}
s_mov_b32 s{sPASS}, 0
s_mov_b32 s66, 4
s_mov_b32 s14, 20000""")
    if OPT.get("ns"): a(f"s_lshl_b32 s65, s12, 11\nv_add_u32 v2, {WS_V}, v3")
    wait_cnt(a, C_W3, 4)
    if OPT.get("agc") == C_W4 and not OPT.get("agp"): arrive(a, C_W4)
    if OPT.get("qst"): stamp(a, 11)
    NB = 5
    Q, O, S, Pp, MX, TMP, KV, SG, CT = 8, 40, 104, 136, 152, 156, 160, 240, 244
    def load_kv(t, force=False):
        buf = t % NB
        md = "sc1" if (force or (OPT.get("kl", "sc1") if t < 8 else OPT.get("kr", "")) == "sc1") else ""
        a(f"s_add_u32 s8, s12, {t%8}\ns_and_b32 s8, s8, 31\ns_lshl_b32 s8, s8, 11\ns_add_u32 s8, s8, s{15 if t < 8 else 68}\ns_add_u32 s9, s8, {WS_V}")
        for u in range(2):
            a(f"buffer_load_dwordx4 {vr(KV+16*buf+4*u,4)}, v3, {WSD}, s8 offen offset:{u*1024} {md}")
        for u in range(2):
            a(f"buffer_load_dwordx4 {vr(KV+16*buf+8+4*u,4)}, v3, {WSD}, s9 offen offset:{u*1024} {md}")
    def kvg(t):
        buf = t % NB
        md = "sc1" if (OPT.get("kl", "sc1") if t < 8 else OPT.get("kr", "")) == "sc1" else ""
        sal = [f"s_add_u32 s13, s65, {(t%8)*2048}", "s_and_b32 s13, s13, 0xffff", f"s_add_u32 s13, s13, s{15 if t < 8 else 68}",
               f"s_add_u32 s6, s{S_WS}, s13", f"s_addc_u32 s7, s{S_WS+1}, 0"]
        vm = [f"global_load_dwordx4 {vr(KV+16*buf+4*u,4)}, v{3 if u < 2 else 2}, s[6:7] offset:{(u%2)*1024} {md}" for u in range(4)]
        return sal, vm
    NS = OPT.get("ns", 0)
    if NS:
        load_kv_b = load_kv
        def load_kv(t, force=False):
            if force: return load_kv_b(t, True)
            sal, vm = kvg(t)
            for x in sal + vm: a(x)
    WQ = 96
    def rdq(c):
        for t in range(4):
            for aa in range(2):
                a(f"ds_read_b64_tr_b16 {vr(WQ+16*(c%3)+4*t+2*aa,2)}, v26 offset:{c*4096+(16*t+4*aa)*64}")
    rdq(0); rdq(1)
    K5 = OPT.get("kv5", 2)
    KVP = OPT.get("kvp", 4)
    for c in range(7):
        if OPT.get("qi"):
            n0 = len(a.L)
            if c + 2 < 7: rdq(c + 2)
            for t_ in range(K5):
                if c == min(max(KVP + t_, t_ + 2), 6): load_kv(t_)
            fill = a.L[n0:]; del a.L[n0:]
            per = -(-len(fill) // 4)
            for t in range(4):
                nd = sum(1 for x in fill[:per * t] if "ds_read" in x)
                a(f"s_waitcnt lgkmcnt({min(15, (8 if c < 6 else 0) + nd + 2 * (3 - t))})")
                mfma(a, QACC, WQ+16*(c%3)+4*t, XR+16*c+4*t, None if (c == 0 and t == 0) else QACC)
                a.L.extend(fill[per * t:per * (t + 1)])
            continue
        a(f"s_waitcnt lgkmcnt({8 if c < 6 else 0})")
        for t in range(4):
            mfma(a, QACC, WQ+16*(c%3)+4*t, XR+16*c+4*t, None if (c == 0 and t == 0) else QACC)
        if c + 2 < 7: rdq(c + 2)
        if c == KVP: load_kv(0)
        if c == min(KVP + 1, 6): load_kv(1)
        for t_ in range(2, K5):
            if c == min(max(KVP + t_, t_ + 1), 6): load_kv(t_)
    if OPT.get("qst"): stamp(a, 12)
    arrive(a, C_KV)
    a(f"v_mov_b32 v{SG}, v{SGP}")
    a.nop(9)
    QW = Q + 24
    for r in range(8): a(f"v_pk_mul_f32 {vr(QACC+2*r,2)}, {vr(QACC+2*r,2)}, s[10:11]")
    for r in range(8): a(f"v_cvt_pk_bf16_f32 v{QW+r}, v{QACC+2*r}, v{QACC+2*r+1}")
    a(f"s_mov_b32 exec_lo, 0\nv_mov_b32 v{QW+6}, 0\nv_mov_b32 v{QW+7}, 0\ns_mov_b64 exec, -1")
    for t in range(2): a(f"ds_write_b128 v31, {vr(QW+4*t,4)} offset:{t*1024}")
    a("s_waitcnt lgkmcnt(0)")
    arrive(a, C_Q)
    if OPT.get("qst"): stamp(a, 14)
    def rot(sl, dst, sh, base):
        a(f"s_add_u32 s{dst}, s{sW}, {1+sl}\ns_and_b32 s{dst}, s{dst}, 3\ns_lshl_b32 s{dst}, s{dst}, {sh}\ns_add_u32 s{dst}, s{dst}, {base}")
    def getq():
        l = lab("gq")
        a(f"s_cmp_lg_u32 s{sPASS}, 0\ns_cbranch_scc1 {l}")
        wait_cnt(a, C_Q, 4)
        stamp(a, 3)
        for q in range(3):
            rot(q, 8, 12, LQ)
            a(f"v_add_u32 v{TMP+q}, s8, v3")
            for t in range(2): a(f"ds_read_b128 {vr(Q+8*q+4*t,4)}, v{TMP+q} offset:{t*1024}")
        a("s_waitcnt lgkmcnt(0)")
        arrive(a, C_M2)
        a(f"{l}:")
    a("s_branch b_main2")
    a("b_main:")
    for t_ in range(K5): load_kv(t_)
    a("b_main2:")
    NQ = OPT.get("nq", 3)
    seq = [(0, 3), (1, 3), (0, 0), (0, 1), (0, 2), (1, 0), (1, 1), (1, 2)]
    seq += [(t, q) for t in range(2, 16 - NQ) for q in range(4)] + [(t, q) for q in range(4) for t in range(16 - NQ, 16)]
    firstq = {}
    for i, (t, q) in enumerate(seq): firstq.setdefault(q, i)
    retries = []
    issued = [K5 - 1]
    BQ = [t_ for t_ in range(K5) for _ in range(4)]
    gdone = [bool(OPT.get("ag")) and not OPT.get("ags")]
    def chk(t):
        b = KV + 16 * (t % NB)
        a(f"s_waitcnt vmcnt({len(BQ) - 1 - max(i for i, x in enumerate(BQ) if x == t)})")
        if OPT.get("nochk"): return
        l = f"b_chk{t}"
        a(f"{l}:")
        a(f"v_bitop3_b32 v{CT}, v{b}, v{b+4}, v{SG} bitop3:0x7e")
        a(f"v_bitop3_b32 v{CT+1}, v{b+8}, v{b+12}, v{SG} bitop3:0x7e")
        a(f"v_bitop3_b32 v{CT}, v{CT}, s{sMSK}, v{CT+1} bitop3:0xc8")
        a(f"v_cmp_ne_u32 vcc, 0, v{CT}")
        a(f"s_cbranch_vccnz {l}_r")
        a(f"{l}_d:")
        retries.append((t, issued[0], l, gdone[0], False))
    def chk_v(b):
        a(f"v_bitop3_b32 v{CT}, v{b}, v{b+4}, v{SG} bitop3:0x7e")
        a(f"v_bitop3_b32 v{CT+1}, v{b+8}, v{b+12}, v{SG} bitop3:0x7e")
        a(f"v_bitop3_b32 v{CT}, v{CT}, s{sMSK}, v{CT+1} bitop3:0xc8")
        a(f"v_cmp_ne_u32 vcc, 0, v{CT}")
    def chk_a(t):
        a(f"s_waitcnt vmcnt({len(BQ) - 1 - max(i for i, x in enumerate(BQ) if x == t)})")
        chk_v(KV + 16 * (t % NB))
    def chk_b(t):
        l = f"b_chk{t}"
        a(f"s_cbranch_vccnz {l}_r")
        a(f"{l}_d:")
        retries.append((t, issued[0], l, gdone[0], 1 if gpend[0] is None else 2 + gpend[0]))
    SL = {}
    gpend = [None]
    def step(i, extra=None):
        t, q = seq[i]
        par = i % 2
        Sc, Sn = S + 16 * par, S + 16 * (1 - par)
        Pc, Pv = Pp + 8 * par, Pp + 8 * (1 - par)
        ms = [None] * 4
        if i + 1 < len(seq):
            nt, nq = seq[i + 1]; nb = KV + 16 * (nt % NB)
            ms[0] = lambda: mfma(a, Sn, nb, Q+8*nq, None)
            ms[1] = lambda: mfma(a, Sn, nb+4, Q+8*nq+4, Sn)
        if i > 0:
            pt, pq = seq[i - 1]; pb = KV + 16 * (pt % NB)
            ms[2] = lambda: mfma(a, O+16*pq, pb+8, Pv, None if firstq[pq] == i - 1 else O+16*pq)
            ms[3] = lambda: mfma(a, O+16*pq, pb+12, Pv+4, O+16*pq)
        for g in range(4):
            if ms[g]: ms[g]()
            if extra and extra[g]: extra[g]()
            for f in SL.get((i, g), []): f()
            for e in range(4): a(f"v_exp_f32 v{Sc+4*g+e}, v{Sc+4*g+e}")
            a(f"v_cvt_pk_bf16_f32 v{Pc+2*g}, v{Sc+4*g}, v{Sc+4*g+1}")
            a(f"v_cvt_pk_bf16_f32 v{Pc+2*g+1}, v{Sc+4*g+2}, v{Sc+4*g+3}")
    chk(0)
    if OPT.get("qst"): stamp(a, 15)
    mfma(a, S, KV, QW, None)
    mfma(a, S, KV+4, QW+4, S)
    if K5 <= 2:
        if 2 in OPT.get("tat", {}): a.nop(10)
        else:
            load_kv(2); issued[0] = 2; BQ.extend([2] * 4)
            if OPT.get("agp") == 1: arrive(a, C_W4)
            else: a.nop(3)
    else: a.nop(10)
    checked = {0}
    last_use = {}
    for i, (t, q) in enumerate(seq): last_use[t] = i
    fin = {}
    for i, (t, q) in enumerate(seq): fin[q] = i
    if NS:
        GS_ = OPT.get("gst", (2, 6, 10, 14))
        busy = set()
        if not OPT.get("ag"):
            for i in GS_: busy |= {(i, 0), (i, 3)}
        firstu = {}
        for i, (t, q) in enumerate(seq): firstu.setdefault(t, i)
        for t in range(2, 16):
            i = firstu[t] - 2
            g = 2 if (i, 3) not in busy else 1
            SL.setdefault((i, g), []).append(lambda t=t: chk_a(t))
            SL.setdefault((i, g + 1), []).append(lambda t=t: chk_b(t))
            busy |= {(i, g), (i, g + 1)}
            checked.add(t)
        def blk(t, vm):
            for x in vm: a(x)
            issued[0] = t; BQ.extend([t] * 4)
        prevb = -1
        for t in range(2 if 2 in OPT.get("tat", {}) else max(3, K5), 16):
            i = t - 3 if t < 5 else last_use[t - NB] + 1
            if t >= 8 and OPT.get("lead"): i = max(i, min(OPT["lead"] + (t - 8) * OPT.get("leadi", 2), firstu[t] - 8))
            if t in OPT.get("tat", {}): i = max(i, OPT["tat"][t])
            sal, vm = kvg(t)
            SL.setdefault((i, 3), []).append(lambda t=t, vm=vm: blk(t, vm))
            busy.add((i, 3))
            k = 4 * i + 2
            sl_ = [sal[3:5]] + [[x] for x in sal[2::-1]] if NS == 1 else [[x] for x in sal[::-1]]
            lo = prevb
            assert 4 * i + 3 > prevb
            prevb = 4 * i + 3
            for n, grp in enumerate(sl_):
                while k > lo and ((k // 4, k % 4) in busy or (k // 4 == 0 and k % 4 >= 2)):
                    assert not (NS == 2 and n == 1), (t, k)
                    k -= 1
                if k <= lo: k = lo + 1
                SL.setdefault((k // 4, k % 4), []).insert(0, lambda grp=grp: [a(x) for x in grp])
                busy.add((k // 4, k % 4))
    for i in range(len(seq)):
        if i + 1 < len(seq) and seq[i + 1][0] not in checked:
            chk(seq[i + 1][0]); checked.add(seq[i + 1][0])
        extra = [None] * 4
        if i == 1: getq()
        if OPT.get("lst") and i in (4, 24, 44):
            stamp(a, 13 + (4, 24, 44).index(i))
        if i == fin[0] and not OPT.get("noA") and not OPT.get("astop"):
            extra[0] = lambda: a(f"ds_read_b32 v6, v4 offset:{4*C_AX2}")
        for sl in range(3):
            if i == fin[sl] + 2:
                if sl == 0 and not OPT.get("noA") and not OPT.get("astop"):
                    l = lab("ad")
                    a(f"s_waitcnt lgkmcnt(0)\nv_readfirstlane_b32 s8, v6\ns_nop 3\ns_cmp_ge_u32 s8, 4\ns_cbranch_scc1 {l}")
                    wait_cnt(a, C_AX2, 4)
                    a(f"{l}:")
                    stamp(a, 5)
                a(f"s_add_u32 s8, s{sW}, {1+sl}\ns_and_b32 s8, s8, 3\ns_mul_i32 s8, s8, 12288\ns_add_u32 s8, s8, {LR+sl*4096}")
                a(f"v_add_u32 v{TMP}, s8, v3")
                wr = lambda g, sl=sl: a(f"ds_write_b128 v{TMP}, {vr(O+16*sl+4*g,4)} offset:{g*1024}")
                extra[1] = lambda wr=wr: (wr(0), wr(1))
                extra[2] = lambda wr=wr: wr(2)
                extra[3] = lambda wr=wr: wr(3)
        if i == fin[2] + 3:
            extra[2] = lambda: (a("s_waitcnt lgkmcnt(0)"), arrive(a, C_R1))
        GS = OPT.get("gst", (2, 6, 10, 14))
        if i in GS and not OPT.get("ag"):
            u = GS.index(i)
            extra[0] = lambda u=u: (g_rd(u), gpend.__setitem__(0, u))
            extra[3] = lambda u=u: (g_st(u), BQ.append(-1), gpend.__setitem__(0, None))
        step(i, extra)
        if i == GS[-1]:
            gdone[0] = True
            arrive(a, C_G)
        if i == OPT.get("tlw"): arrive(a, C_YS)
        if i in OPT.get("ags", ()): arrive(a, C_W4)
        if NS: continue
        if i < 2:
            load_kv(3 + i); issued[0] = 3 + i; BQ.extend([3 + i] * 4)
        if i > 0:
            pt = seq[i - 1][0]
            if last_use[pt] == i - 1 and pt + NB < 16:
                load_kv(pt + NB); issued[0] = pt + NB; BQ.extend([pt + NB] * 4)
    assert fin[2] + 3 <= len(seq) - 1
    a.nop(2)
    lt = KV + 16 * (seq[-1][0] % NB)
    OW = O + 48
    mfma(a, OW, lt+8, Pp+8, OW)
    mfma(a, OW, lt+12, Pp+8+4, OW)
    stamp(a, 4)
    if OPT.get("cnt"): a("s_sub_u32 s81, 20001, s14")
    wait_cnt(a, C_R1, None, 66)
    stamp(a, 6)
    a(f"s_mul_i32 s8, s{sW}, 12288\ns_add_u32 s8, s8, {LR}\nv_add_u32 v{TMP}, s8, v3")
    for sl in range(3):
        for g in range(4): a(f"ds_read_b128 {vr(O+16*sl+4*g,4)}, v{TMP} offset:{sl*4096+g*1024}")
    a(f"s_mov_b32 s8, {f32_bits(2.0**-80):#x}\ns_mov_b32 s9, {f32_bits(2.0**100):#x}\ns_mov_b32 s10, {f32_bits(2.0**127):#x}")
    for sl in range(3):
        a(f"s_waitcnt lgkmcnt({4*(2-sl)})")
        for r in (6, 7, 0, 1, 2, 3, 4, 5): a(f"v_pk_add_f32 {vr(OW+2*r,2)}, {vr(OW+2*r,2)}, {vr(O+16*sl+2*r,2)}")
    a(f"v_mov_b32 v{TMP}, v{OW+12}\nv_mov_b32 v{TMP+1}, v{OW+12}")
    for r in range(4): a(f"v_pk_add_f32 {vr(O+2*r,2)}, {vr(OW+4*r,2)}, {vr(OW+4*r+2,2)}")
    a(f"v_permlane32_swap_b32 v{TMP}, v{TMP+1}")
    for r in range(2): a(f"v_pk_add_f32 {vr(O+2*r,2)}, {vr(O+2*r,2)}, {vr(O+2*r+4,2)}")
    a(f"v_cmp_le_f32 s[52:53], s8, v{TMP+1}")
    a(f"v_cmp_ge_f32 s[54:55], s9, v{TMP+1}")
    a(f"v_rcp_f32 v{TMP}, v{TMP+1}")
    a(f"v_pk_add_f32 {vr(O,2)}, {vr(O,2)}, {vr(O+2,2)}")
    a(f"v_add_f32 v{O}, v{O}, v{O+1}")
    a(f"v_cmp_ge_f32 s[56:57], s10, abs(v{O})")
    for r in range(8): a(f"v_pk_mul_f32 {vr(OW+2*r,2)}, {vr(OW+2*r,2)}, {vr(TMP,2)} op_sel_hi:[1,0]")
    a("s_and_b64 s[52:53], s[52:53], s[54:55]\ns_and_b64 s[52:53], s[52:53], s[56:57]")
    for r in range(8): a(f"v_cvt_pk_bf16_f32 v{Pp+r}, v{OW+2*r}, v{OW+2*r+1}")
    a(f"s_mov_b32 exec_lo, 0\nv_mov_b32 v{Pp+6}, 0\nv_mov_b32 v{Pp+7}, 0\ns_mov_b64 exec, -1")
    sign(a, Pp, 8, SG)
    a(f"""s_lshl_b32 s10, s{sQB}, 2
s_add_u32 s10, s10, s{sW}
s_lshl_b32 s10, s10, 4
s_add_u32 s10, s10, s{sH}
s_lshl_b32 s8, s10, 11
s_add_u32 s8, s8, {WS_O}""")
    a(f"s_cmp_lg_u32 s{sPASS}, 0\ns_cbranch_scc1 b_nofail")
    if not OPT.get("forcefail"): a("s_cmp_eq_u64 s[52:53], -1\ns_cbranch_scc1 b_nofail")
    arrive(a, C_FAIL)
    a("s_branch b_nost")
    a("b_nofail:")
    for t in range(2):
        a(f"buffer_store_dwordx4 {vr(Pp+4*t,4)}, v3, {WSD}, s8 offen offset:{t*1024} sc1")
    a("b_nost:")
    a("s_waitcnt lgkmcnt(0)")
    arrive(a, C_R2)
    wait_cnt(a, C_R2, None, 66)
    a(f"s_cmp_lg_u32 s{sPASS}, 0\ns_cbranch_scc1 b_pub")
    a(f"ds_read_b32 v6, v4 offset:{4*C_FAIL}\ns_waitcnt lgkmcnt(0)\nv_readfirstlane_b32 s8, v6\ns_nop 3")
    a("s_cmp_lg_u32 s8, 0\ns_cbranch_scc1 b_slow")
    a("b_pub:")
    stamp(a, 7)
    WF3, OF3, ACC3 = 8, 152, 216
    if not OPT.get("noA") and not OPT.get("astop"): wait_cnt(a, C_WO, 4)
    a(f"""v_lshrrev_b32 v6, 5, v1
v_lshlrev_b32 v6, 4, v6
v_bfe_u32 v7, v1, 2, 2
v_add_u32 v6, v6, v7
v_mul_u32_u24 v6, 224, v6
v_and_b32 v7, 1, v1
v_lshl_add_u32 v6, v7, 5, v6
v_bfe_u32 v7, v1, 4, 1
v_lshl_add_u32 v6, v7, 4, v6
v_bfe_u32 v7, v1, 1, 1
v_lshl_add_u32 v6, v7, 3, v6
s_lshl_b32 s8, s{sW}, 6
v_add_u32 v6, s8, v6""")
    VA = 244
    for g in range(4):
        a(f"s_add_u32 s8, s{sW}, {g}\ns_and_b32 s8, s8, 3\ns_mul_i32 s9, s8, {4*28*224}\nv_add_u32 v{VA+g}, s9, v6")
        if g: a(f"s_lshl_b32 s8, s8, 13\ns_add_u32 s8, s8, {LO}\nv_add_u32 v{VA+3+g}, s8, v3")
    def wo_rd(h0, h1):
        for h in range(h0, h1):
            for t in range(2):
                for aa in range(2):
                    a(f"ds_read_b64_tr_b16 {vr(WF3+8*h+4*t+2*aa,2)}, v{VA+h//4} offset:{LWO+(28*(h%4)+8*t+4*aa)*224}")
    OFS = OPT.get("ofs", 16)
    wo_rd(0, OFS)
    a(f"""s_and_b32 s12, s{sX}, 1
s_lshl_b32 s12, s12, 5
s_lshr_b32 s11, s{sX}, 1
s_lshl_b32 s11, s11, 3
s_add_u32 s12, s12, s11
s_lshr_b32 s11, s{sJ}, 2
s_add_u32 s12, s12, s11""")
    a(f"""s_lshl_b32 s11, s12, 4
s_lshl_b32 s8, s{sW}, 2
s_add_u32 s11, s11, s8""")
    a(f"s_lshl_b32 s11, s11, 11\ns_add_u32 s11, s11, {WS_O}\ns_lshl_b32 s8, s{sW}, 13\ns_add_u32 s8, s8, {LO}")
    a(f"s_mov_b32 s14, 20000\nv_add_u32 v7, s8, v3")
    FL = 52
    for i in range(4): a(f"s_mov_b64 s[{FL+2*i}:{FL+2*i+1}], -1")
    def o_dma(i):
        for u in range(2):
            a(f"s_add_u32 m0, s8, {(2*i+u)*1024}\ns_add_u32 s9, s11, {(2*i+u)*1024}")
            a(f"buffer_load_dwordx4 v3, {WSD}, s9 offen sc1 lds")
    if OFS < 16:
        for i in range(4): o_dma(i)
        wo_rd(OFS, 16)
        a("s_branch b_opoll1")
    a("b_opoll:")
    def each(tag, f):
        for i in range(4):
            a(f"s_cmp_eq_u64 s[{FL+2*i}:{FL+2*i+1}], 0\ns_cbranch_scc1 b_o{tag}{i}")
            f(i)
            a(f"b_o{tag}{i}:")
    each("d", o_dma)
    a("b_opoll1:")
    a("s_waitcnt vmcnt(0)")
    each("r", lambda i: [a(f"ds_read_b128 {vr(OF3+8*i+4*u,4)}, v7 offset:{(2*i+u)*1024}") for u in range(2)])
    a("s_waitcnt lgkmcnt(0)")
    for i in range(4):
        a(f"v_bitop3_b32 v{232+i}, v{OF3+8*i}, v{OF3+8*i+4}, v{SG} bitop3:0x7e")
    for i in range(4):
        a(f"v_and_b32 v{232+i}, s{sMSK}, v{232+i}")
    for i in range(4):
        a(f"v_cmp_ne_u32 s[{FL+2*i}:{FL+2*i+1}], 0, v{232+i}")
    a("s_nop 3")
    a(f"s_or_b64 vcc, s[{FL}:{FL+1}], s[{FL+2}:{FL+3}]\ns_or_b64 vcc, vcc, s[{FL+4}:{FL+5}]\ns_or_b64 vcc, vcc, s[{FL+6}:{FL+7}]")
    a("s_cbranch_scc0 b_opoll_d")
    if OPT.get('osleep', 2): a(f"s_sleep {OPT.get('osleep', 2)}")
    a("s_sub_u32 s14, s14, 1\ns_cmp_lg_u32 s14, 0\ns_cbranch_scc1 b_opoll")
    a("b_opoll_d:")
    if OPT.get("cnt"): a("s_sub_u32 s82, 20001, s14")
    stamp(a, 8)
    arrive(a, C_O)
    for i in range(8): mfma(a, ACC3, WF3+4*i, OF3+4*i, None if i == 0 else ACC3)
    wait_cnt(a, C_O, 4)
    stamp(a, 9)
    def rdo(g, dst):
        for i in range(8): a(f"ds_read_b128 {vr(dst+4*i,4)}, v{VA+3+g} offset:{i*1024}")
    rdo(1, OF3+32); rdo(2, OF3)
    for i in range(8):
        a(f"s_waitcnt lgkmcnt({15-i})")
        mfma(a, ACC3, WF3+32+4*i, OF3+32+4*i, ACC3)
    rdo(3, OF3+32)
    for i in range(8):
        a(f"s_waitcnt lgkmcnt({15-i})")
        mfma(a, ACC3, WF3+64+4*i, OF3+4*i, ACC3)
    for i in range(8):
        a(f"s_waitcnt lgkmcnt({7-i})")
        mfma(a, ACC3, WF3+96+4*i, OF3+32+4*i, ACC3)
    a(f"""v_and_b32 v6, 31, v1
v_mul_u32_u24 v6, 1792, v6
v_lshrrev_b32 v7, 5, v1
v_lshl_add_u32 v6, v7, 5, v6
s_mul_i32 s7, s12, 57344
{f"s_mov_b32 s8, s{sJ4}" if OPT.get("b3m") else f"s_lshr_b32 s8, s{sH}, 2"}
s_mul_i32 s8, s8, 224
s_add_u32 s7, s7, s8
s_lshl_b32 s8, s{sW}, 6
s_add_u32 s7, s7, s8
s_add_u32 s7, s7, 896""")
    a.nop(2)
    for r in range(8): a(f"v_cvt_pk_bf16_f32 v{OF3+r}, v{ACC3+2*r}, v{ACC3+2*r+1}")
    a(f"""s_cmp_lg_u32 s{sW}, 3
s_cbranch_scc1 b_st
s_mov_b32 exec_hi, 0
b_st:""")
    for t in range(2):
        a(f"buffer_store_dwordx4 {vr(OF3+4*t,4)}, v6, s[{SRD_OUT}:{SRD_OUT+3}], s7 offen offset:{t*16} {OPT.get('omod', '')}")
    a("s_mov_b64 exec, -1")
    a(f"s_or_b32 s8, s2, s{sW}\ns_cmp_lg_u32 s8, 0\ns_cbranch_scc1 b_noep")
    a(f"s_mov_b64 exec, 1\nv_mov_b32 v6, s67\nv_mov_b32 v7, 0\ns_mov_b32 s8, {WS_EP}")
    a(f"buffer_store_dword v6, v7, {WSD}, s8 offen sc1")
    a("s_mov_b64 exec, -1")
    a("b_noep:")
    stamp(a, 10)
    stamp_out(a, 16)
    a("s_endpgm")
    for (t, iss, l, gd, inl) in retries:
        a(f"{l}_r:")
        a(f"s_sub_u32 s14, s14, 1\ns_cmp_le_i32 s14, 0\ns_cbranch_scc1 {l}_d")
        if OPT.get("rsleep", 1): a(f"s_sleep {OPT.get('rsleep', 1)}")
        if t < 8:
            a(f"s_cmp_gt_u32 s14, {20000 - OPT.get('nloc', 4)}\ns_cbranch_scc1 {l}_g")
            a(f"s_xor_b32 s15, s15, {WS_L}")
        if not gd and OPT.get("ag"): arrive(a, C_W4)
        elif not gd:
            a(f"s_bitcmp1_b32 s14, 0\ns_cbranch_scc1 {l}_g")
            st_glob()
        if t < 8: a(f"{l}_g:")
        for u in range(t, iss + 1): load_kv(u, True)
        a(f"s_waitcnt vmcnt(0)")
        if inl:
            if inl >= 2: g_rd(inl - 2)
            chk_v(KV + 16 * (t % NB))
            a(f"s_cbranch_vccnz {l}_r\ns_branch {l}_d")
        else: a(f"s_branch {l}")
    a("b_slow:")
    a(f"s_mov_b32 s{sPASS}, 1\ns_mov_b32 s66, 8\ns_lshr_b32 s87, s87, 1\ns_add_u32 s87, s87, {WS_JUNK}\ns_mov_b32 s88, s87")
    a("s_waitcnt vmcnt(0)")
    for q in range(4): a(f"v_mov_b32 v{MX+q}, 0xff800000")
    a("s_mov_b32 s14, 16\ns_mov_b32 s69, 20000")
    a("b_mloop:")
    a("s_and_b32 s13, s14, 7\ns_add_u32 s13, s13, s12\ns_and_b32 s13, s13, 31\ns_lshl_b32 s8, s13, 11\ns_bitcmp1_b32 s14, 3\ns_cselect_b32 s9, s15, s68\ns_add_u32 s8, s8, s9")
    for t in range(2):
        a(f"buffer_load_dwordx4 {vr(KV+4*t,4)}, v3, {WSD}, s8 offen offset:{t*1024} sc1")
    a("s_waitcnt vmcnt(0)")
    a(f"v_bitop3_b32 v{CT}, v{KV}, v{KV+4}, v{SG} bitop3:0x7e")
    a(f"v_and_b32 v{CT}, s{sMSK}, v{CT}")
    a(f"v_cmp_ne_u32 vcc, 0, v{CT}")
    a("s_cbranch_vccz b_mok")
    a(f"s_xor_b32 s15, s15, {WS_L}\ns_sub_u32 s69, s69, 1\ns_cmp_gt_i32 s69, 0\ns_cbranch_scc1 b_mloop")
    a("b_mok:")
    for q in range(4):
        mfma(a, S, KV, Q+8*q, None)
        mfma(a, S, KV+4, Q+8*q+4, S)
        a.nop(12)
        for r in range(8): a(f"v_max3_f32 v{MX+q}, v{MX+q}, v{S+2*r}, v{S+2*r+1}")
    a("s_sub_u32 s14, s14, 1\ns_cmp_lg_u32 s14, 0\ns_cbranch_scc1 b_mloop")
    a(f"v_lshlrev_b32 v{TMP}, 2, v1\ns_lshl_b32 s9, s{sW}, 10")
    for q in range(4):
        rot(q, 8, 8, LMX)
        a(f"s_add_u32 s8, s8, s9\nv_add_u32 v{TMP+1}, s8, v{TMP}")
        a(f"ds_write_b32 v{TMP+1}, v{MX+q}")
    a("s_waitcnt lgkmcnt(0)")
    arrive(a, C_M1)
    wait_cnt(a, C_M1, 4)
    a(f"v_and_b32 v{TMP}, 31, v1\nv_lshlrev_b32 v{TMP}, 2, v{TMP}")
    for q in range(4):
        rot(q, 8, 8, LMX)
        a(f"v_add_u32 v{TMP+1}, s8, v{TMP}")
        for w in range(4):
            for hh in range(2):
                a(f"ds_read_b32 v{S+2*w+hh}, v{TMP+1} offset:{w*1024+hh*128}")
        a("s_waitcnt lgkmcnt(0)")
        a(f"v_max3_f32 v{MX+q}, v{S}, v{S+1}, v{S+2}")
        a(f"v_max3_f32 v{MX+q}, v{MX+q}, v{S+3}, v{S+4}")
        a(f"v_max3_f32 v{MX+q}, v{MX+q}, v{S+5}, v{S+6}")
        a(f"v_max_f32 v{MX+q}, v{MX+q}, v{S+7}")
    a("s_mov_b32 s8, -1.0")
    a("s_mov_b32 exec_lo, 0")
    for q in range(4):
        a(f"""v_mul_f32 v{TMP}, s8, v{MX+q}
v_and_b32 v{TMP+1}, 0xffff0000, v{TMP}
v_sub_f32 v{TMP}, v{TMP}, v{TMP+1}
v_and_b32 v{TMP+3}, 0xffff0000, v{TMP}
v_sub_f32 v{TMP}, v{TMP}, v{TMP+3}
v_lshrrev_b32 v{TMP+1}, 16, v{TMP+1}
v_or_b32 v{Q+8*q+6}, v{TMP+1}, v{TMP+3}
v_lshrrev_b32 v{Q+8*q+7}, 16, v{TMP}""")
    a("s_mov_b64 exec, -1")
    a("s_mov_b32 s14, 20000")
    a("s_branch b_main")

    a("a_wave:")
    common()
    a(f"""s_lshr_b32 s{sDQ}, s2, 6
s_lshr_b32 s{sG}, s{sJ}, 2""")
    a(f"""s_lshl_b32 s67, s{sX}, 3
s_and_b32 s9, s{sJ}, 7
s_add_u32 s67, s67, s9
s_lshr_b32 s{sG1}, s{sJ}, 3
s_lshl_b32 s{sG1}, s{sG1}, 1
s_lshr_b32 s9, s{sWL}, 1
s_add_u32 s{sG1}, s{sG1}, s9
s_and_b32 s68, s{sWL}, 1""")
    F, E1C, E1S, E3C, E3X, CSN, CSC = 16, 128, 136, 144, 152, 160, 216
    A1ACC, A1XF, A1XP, A1Y = 168, 184, 200, 184
    VWO = 10
    sK1 = sN2
    a(f"""v_and_b32 v202, 3, v8
v_lshrrev_b32 v203, 3, v8
v_lshl_add_u32 v202, v203, 2, v202
v_bfe_u32 v203, v8, 2, 1
v_lshlrev_b32 v203, 4, v203
s_mul_i32 s9, s{sG1}, 28
v_add3_u32 v202, v202, v203, s9
s_mul_i32 s9, s68, 0x3e800000
v_mov_b32 v204, s9
v_cvt_f32_u32 v202, v202
v_mul_f32 v202, {f32_bits(1/448):#x}, v202
v_lshlrev_b32 v203, 3, v9
v_cvt_f32_u32 v203, v203
v_fma_f32 v204, v203, v202, v204""")
    def gen_F(hooks):
        T0, KK = 168, 200
        a(f"v_cos_f32 v{KK}, v202\ns_nop 0\nv_add_f32 v{KK}, v{KK}, v{KK}\nv_mov_b32 v{KK+1}, v{KK}")
        def seeds(tp):
            T = T0 + 16 * (tp % 2)
            L = []
            for j in range(2):
                for e in range(2):
                    L.append(f"v_fmamk_f32 v{T+2*j+e}, v202, {f32_bits(float(16*(2*tp+e)+j)):#x}, v204")
            for j in range(2):
                for e in range(2):
                    L.append(f"v_cos_f32 v{T+2*j+e}, v{T+2*j+e}")
            return L
        def rec(tp):
            T = T0 + 16 * (tp % 2)
            L = []
            for j in range(2, 8):
                L.append(f"v_pk_fma_f32 {vr(T+2*j,2)}, {vr(KK,2)}, {vr(T+2*j-2,2)}, {vr(T+2*j-4,2)} neg_lo:[0,0,1] neg_hi:[0,0,1]")
                if j % 2 == 0:
                    jp = j // 2 - 1
                    for e in range(2): L.append(f"v_cvt_pk_bf16_f32 v{F+4*(2*tp+e)+jp}, v{T+4*jp+e}, v{T+4*jp+2+e}")
            for e in range(2): L.append(f"v_cvt_pk_bf16_f32 v{F+4*(2*tp+e)+3}, v{T+12+e}, v{T+14+e}")
            return L
        for x in seeds(0): a(x)
        a("s_nop 0")
        for tp in range(14):
            if tp in hooks: hooks[tp]()
            R = rec(tp); S_ = seeds(tp + 1) if tp < 13 else []
            while R or S_:
                if R: a(R.pop(0))
                if S_: a(S_.pop(0))
    W2, WR = 240, 232
    hooks = {}
    if OPT.get("spf") and not OPT.get("noA"):
        st = OPT["spf"]
        L = [("s[6:7]", r * 57344 + c) for r in range(2) for c in range(0, 896, st)]
        if OPT.get("spw"): L += [("s[14:15]", c) for c in range(0, 1800 + st - 4, st - 8)]
        H0 = OPT.get("sph", 2)
        per = -(-len(L) // (14 - H0))
        def h0():
            a(f"""s_lshr_b32 s8, s{sJ}, 3
s_lshl_b32 s8, s8, 2
s_add_u32 s8, s8, s{sWL}
s_mul_i32 s8, s8, {2*57344}
s_mul_i32 s9, s67, 896
s_add_u32 s8, s8, s9
s_lshl_b32 s9, s{sJ}, 1
s_lshr_b32 s10, s{sWL}, 1
s_add_u32 s9, s9, s10
s_lshl_b32 s9, s9, 3
s_add_u32 s9, s9, s{sX}
s_mul_i32 s9, s9, 1800
s_waitcnt lgkmcnt(0)
s_add_u32 s6, s{S_AX}, s8
s_addc_u32 s7, s{S_AX+1}, 0
s_cmp_eq_u32 s68, 0
s_cselect_b32 s14, s{S_WR}, s{S_WI}
s_cselect_b32 s15, s{S_WR+1}, s{S_WI+1}
s_add_u32 s14, s14, s9
s_addc_u32 s15, s15, 0""")
        def mk(tp):
            def f():
                if tp == H0: h0()
                for (b, o) in L[(tp - H0) * per:(tp - H0 + 1) * per]:
                    a(f"s_load_dword s10, {b}, {min(o, 1796) if b == 's[14:15]' else o}")
            return f
        for tp in range(H0, 14): hooks[tp] = mk(tp)
    gen_F(hooks)
    a("s_lshl_b32 s13, s68, 31\ns_lshr_b32 s8, s13, 16\ns_or_b32 s13, s13, s8")
    gen_E(a, 8, 9, 67, 'a1', {'C': E1C, 'Sx': E1S}, 204)
    stamp(a, 8)
    a("s_waitcnt lgkmcnt(0)")
    if STAMPS: a("s_mov_b32 s70, s92")
    srd(a, SRD_WS, S_WS, WS_SIZE)
    t0, t1, t2 = 186, 187, 188
    def gen_CS():
        a(f"""s_lshl_b32 s8, s{sWL}, 4
v_and_b32 v{t0}, 15, v1
v_add_u32 v{t0}, s8, v{t0}
v_cvt_f32_u32 v{t0}, v{t0}
v_mul_f32 v{t0}, {f32_bits(1/64):#x}, v{t0}
v_lshrrev_b32 v{t1}, 4, v1
v_lshlrev_b32 v{t1}, 2, v{t1}
v_cvt_f32_u32 v{t1}, v{t1}
v_mul_f32 v{t1}, v{t1}, v{t0}""")
        for kap in range(2):
            for hf in range(2):
                for i in range(4):
                    a(f"v_fmamk_f32 v{t2+i}, v{t0}, {f32_bits(float(32*kap+16*hf+i)):#x}, v{t1}")
                for i in range(4): a(f"v_cos_f32 v{t2+4+i}, v{t2+i}")
                for i in range(4): a(f"v_sin_f32 v{t2+i}, v{t2+i}")
                o = 4 * kap + 2 * hf
                for i in range(2): a(f"v_cvt_pk_bf16_f32 v{CSC+o+i}, v{t2+4+2*i}, v{t2+4+2*i+1}")
                for i in range(2): a(f"v_cvt_pk_bf16_f32 v{CSC+8+o+i}, v{t2+2*i}, v{t2+2*i+1}")
                for i in range(2): a(f"v_xor_b32 v{CSN+o+i}, 0x80008000, v{CSC+8+o+i}")
    def gen_E3():
        a(f"s_mov_b32 s8, {f32_bits(2.0/(2048*448)):#x}\ns_lshl_b32 s9, s68, 31\ns_xor_b32 s9, s9, s8\ns_xor_b32 s9, s9, 0x80000000")
        a(f"""v_lshlrev_b32 v{t0}, 6, v8
v_add_u32 v{t0}, s67, v{t0}
v_cvt_f32_u32 v{t0}, v{t0}
v_mul_f32 v{t0}, {f32_bits(1/2048):#x}, v{t0}
v_lshlrev_b32 v{t1}, 3, v9
v_cvt_f32_u32 v{t1}, v{t1}
v_mul_f32 v{t1}, v{t1}, v{t0}""")
        for tau in range(2):
            for hf in range(2):
                for i in range(4):
                    a(f"v_fmamk_f32 v{t2+i}, v{t0}, {f32_bits(float(16*tau+4*hf+i)):#x}, v{t1}")
                for i in range(4): a(f"v_cos_f32 v{t2+4+i}, v{t2+i}")
                for i in range(4): a(f"v_sin_f32 v{t2+i}, v{t2+i}")
                for i in range(4): a(f"v_mul_f32 v{t2+4+i}, s8, v{t2+4+i}")
                for i in range(4): a(f"v_mul_f32 v{t2+i}, s9, v{t2+i}")
                o = 4 * tau + 2 * hf
                for i in range(2): a(f"v_cvt_pk_bf16_f32 v{E3C+o+i}, v{t2+4+2*i}, v{t2+4+2*i+1}")
                for i in range(2): a(f"v_cvt_pk_bf16_f32 v{E3X+o+i}, v{t2+2*i}, v{t2+2*i+1}")
    if OPT.get("cs", 1) == 0: gen_CS()
    if OPT.get("e3", 0) == 0: gen_E3()
    srd(a, SRD_B, S_WO, 448 * 896)
    srd(a, SRD_OUT, S_OUT, 2048 * 1792)
    a(f"""v_bfe_u32 v10, v8, 1, 3
v_lshlrev_b32 v6, 7, v8
v_add_u32 v6, {LXA}, v6""")
    for t in range(4):
        a(f"v_add_u32 v7, {2*t}, v9\nv_xor_b32 v7, v7, v10\nv_lshl_add_u32 v{12+t}, v7, 4, v6")
    XS = 7
    a(f"s_setprio {OPT.get('prio', 3)}")
    if OPT.get("noA"): a("s_branch a_fin")
    a("s_mov_b32 s69, 400000")
    a("a_xw:")
    a(f"ds_read_b128 v[200:203], v4 offset:{4*C_XF}")
    a("s_waitcnt lgkmcnt(0)")
    a("v_min3_u32 v200, v200, v201, v202\nv_min_u32 v200, v200, v203\ns_sub_u32 s69, s69, 1")
    a("v_readfirstlane_b32 s8, v200\ns_nop 1")
    a("s_cmp_lg_u32 s8, 0\ns_cbranch_scc1 a_xw_d\ns_sleep 1\ns_cmp_lg_u32 s69, 0\ns_cbranch_scc1 a_xw")
    a("a_xw_d:")
    a(f"ds_read_b32 v2, v4 offset:{4*C_EP}")
    stamp(a, 3)
    a(f"s_setprio {OPT.get('gprio', 3)}")
    for c in range(7):
        xf = A1XF + 16 * (c % 2)
        if c == XS:
            if not OPT.get("noA"): vwait("x6")
            arrive(a, C_AX2)
            wait_cnt(a, C_AX2, 4)
        if c == 0 or c == XS:
            for t in range(4): a(f"ds_read_b128 {vr(xf+4*t,4)}, v{12+t} offset:{c*4096}")
        nxt = c < 6 and c + 1 != XS
        if nxt:
            for t in range(4): a(f"ds_read_b128 {vr(A1XF+16*((c+1)%2)+4*t,4)}, v{12+t} offset:{(c+1)*4096}")
        a(f"s_waitcnt lgkmcnt({4 if nxt else 0})")
        for t in range(4):
            mfma(a, A1ACC, xf+4*t, F+4*(4*c+t), None if (c == 0 and t == 0) else A1ACC)
        if c == 1: arrive(a, C_AX)
    a(f"s_setprio {OPT.get('prio', 3)}")
    a(f"s_lshl_b32 s8, s{sWL}, 11\ns_add_u32 s8, s8, {LEX}\nv_add_u32 v6, s8, v3")
    a("v_mov_b32 v11, v6")
    set_tag(a)
    wait_cnt(a, C_AX, 4)
    a("v_mov_b32 v6, v11")
    a.nop(4)
    for r in range(8): a(f"v_cvt_pk_bf16_f32 v{A1XP+r}, v{A1ACC+2*r}, v{A1ACC+2*r+1}")
    for t in range(2): a(f"ds_write_b128 v6, {vr(A1XP+4*t,4)} offset:{t*1024}")
    for t in range(2): mfma(a, A1Y, A1XP+4*t, E1C+4*t, None if t == 0 else A1Y)
    a("s_waitcnt lgkmcnt(0)")
    stamp(a, 4)
    arrive(a, C_AEX)
    wait_cnt(a, C_AEX, 4)
    a(f"s_xor_b32 s8, s{sWL}, 1\ns_lshl_b32 s8, s8, 11\ns_add_u32 s8, s8, {LEX}\nv_add_u32 v6, s8, v3")
    for t in range(2): a(f"ds_read_b128 {vr(A1XP+8+4*t,4)}, v6 offset:{t*1024}")
    a("s_waitcnt lgkmcnt(0)")
    for t in range(2): mfma(a, A1Y, A1XP+8+4*t, E1S+4*t, A1Y)
    sig_regs(a, 128)
    a(f"""s_lshl_b32 s8, s{sG1}, 6
s_add_u32 s8, s8, s67
s_lshl_b32 s8, s8, 12
s_lshl_b32 s9, s68, 6
s_add_u32 s8, s8, s9
s_add_u32 s8, s8, {WS_Y}
s_add_u32 s9, s12, {LYT}
v_lshlrev_b32 v6, 6, v8
v_lshl_add_u32 v6, v9, 5, v6
v_add_u32 v6, s9, v6
v_add_u32 v7, s9, v3
v_lshrrev_b32 v11, 2, v1
v_lshlrev_b32 v11, 7, v11
v_and_b32 v12, 3, v1
v_lshl_add_u32 v11, v12, 4, v11""")
    for r in range(8): a(f"v_cvt_pk_bf16_f32 v{A1XP+r}, v{A1Y+2*r}, v{A1Y+2*r+1}")
    for t in range(2): a(f"ds_write_b128 v6, {vr(A1XP+4*t,4)} offset:{t*16}")
    for t in range(2): a(f"ds_read_b128 {vr(A1XP+8+4*t,4)}, v7 offset:{t*1024}")
    a("s_waitcnt lgkmcnt(0)")
    sign(a, A1XP+8, 8, 128)
    a("s_mov_b32 s10, s8")
    stamp(a, 1)
    if OPT.get("cs", 1) == 2: gen_CS()
    if OPT.get("e3", 0) == 2: gen_E3()
    a(f"""v_lshrrev_b32 v6, 2, v1
s_lshl_b32 s8, s{sWL}, 4
v_add_u32 v6, s8, v6
v_lshlrev_b32 v6, 5, v6
v_add_u32 v6, s{sK1}, v6
v_mul_u32_u24 v6, 450, v6
v_and_b32 v7, 3, v1
v_lshlrev_b32 v7, 4, v7
s_mul_i32 s9, s{sG}, 56
v_add3_u32 v10, v6, v7, s9""")
    srd(a, SRD_TAB, S_WR, 2048 * 450 + 2)
    srd(a, SRD_C, S_WI, 2048 * 450 + 2)
    def wdma():
        for k, sd in enumerate((SRD_TAB, SRD_C)):
            a(f"s_add_u32 m0, s12, {LWW + k*1024}\ns_nop 0")
            a(f"buffer_load_dwordx4 v10, s[{sd}:{sd+3}], 0 offen lds")
    wait_cnt(a, *OPT["ysw"])
    setprio(a, OPT.get('p1', 3))
    AS = OPT.get("astop", 0)
    if AS == 1: a("s_branch a_fin")
    for t in range(2):
        if AS != 3: a(f"buffer_store_dwordx4 {vr(A1XP+8+4*t,4)}, v11, {WSD}, s10 offen offset:{t*2048} {OPT.get('ym', 'sc1')}")
    def odum():
        a(f"""s_lshl_b32 s8, s{sQB}, 2
s_add_u32 s8, s8, s{sWL}
s_lshl_b32 s8, s8, 4
s_add_u32 s8, s8, s{sH}
s_lshl_b32 s8, s8, 11
s_add_u32 s8, s8, {WS_O}
v_not_b32 v168, v128""")
        for t in range(2): a(f"buffer_store_dwordx4 v[168:171], v3, {WSD}, s8 offen offset:{t*1024} sc1")
    if OPT.get("odum") == 1: odum()
    if AS == 2: a("s_branch a_fin")
    if OPT.get("wpos", 0) == 1: wdma()
    if OPT.get("yf", 0):
        a(f"s_lshl_b32 s8, s{sG}, 7\ns_lshl_b32 s9, s67, 1\ns_add_u32 s8, s8, s9\ns_add_u32 s8, s8, s68\ns_lshl_b32 s8, s8, 2\ns_add_u32 s8, s8, {WS_FY}")
        flag_store(a, 8)
    stamp(a, 5)
    if OPT.get("p2") is not None: setprio(a, OPT["p2"])
    THR = OPT.get("thr", 2)
    WOO = 140
    def wo_addr():
        a("s_mov_b32 s9, 0x12492493")
        a(f"s_mov_b32 s8, s{sJ4}" if OPT.get("b3m") else f"s_lshr_b32 s8, s{sH}, 2")
        a("s_mul_i32 s8, s8, 224")
        a(f"""v_mul_hi_u32 v7, v1, s9
v_mul_u32_u24 v6, 14, v7
v_sub_u32 v6, v1, v6
v_mul_u32_u24 v7, 896, v7
v_lshl_add_u32 v7, v6, 4, v7
v_add_u32 v{WOO}, s8, v7""")
    def wo_part(k0, k1, pad):
        n = k1 - k0
        if not OPT.get("ho"): wo_addr()
        a(f"""s_lshr_b32 s10, s{sJ}, 2
s_mul_i32 s10, s10, {n}
s_lshr_b32 s10, s10, 3
s_add_u32 s10, s10, {k0}
s_lshl_b32 s10, s10, 2
s_add_u32 s10, s10, s{sWL}
s_mul_i32 s10, s10, 896""")
        for k in range(n):
            a(f"s_add_u32 m0, s10, {LWO}\ns_lshl_b32 s13, s10, 2")
            if k > THR: a(f"s_waitcnt vmcnt({THR})")
            a(f"buffer_load_dwordx4 v{WOO}, s[{SRD_B}:{SRD_B+3}], s13 offen lds")
            if k < n - 1: a(f"s_add_u32 s10, s10, {4*896}\ns_sub_u32 s11, s10, {4*n*896}\ns_cmp_ge_u32 s10, {4*k1*896}\ns_cselect_b32 s10, s11, s10")
        if pad:
            a(f"s_mov_b32 m0, {LWO+448*224}\ns_mov_b32 s13, {448*896}")
            a(f"buffer_load_dwordx4 v{WOO}, s[{SRD_B}:{SRD_B+3}], s13 offen lds")
    YF, Z = 168, 200
    VY, VP, VPW, VD = 76, 80, 81, 82
    a(f"""v_and_b32 v14, 15, v1
v_lshrrev_b32 v15, 4, v1
s_lshl_b32 s6, s{sG}, 18
s_lshl_b32 s7, s{sK1}, 7
s_add_u32 s6, s6, s7
s_lshl_b32 s7, s{sWL}, 16
s_add_u32 s6, s6, s7
s_add_u32 s6, s6, {WS_Y}
v_bfe_u32 v6, v1, 1, 2
v_bfe_u32 v7, v1, 4, 2
v_xor_b32 v6, v6, v7
v_and_b32 v7, 1, v1
v_lshl_add_u32 v6, v6, 1, v7
v_lshrrev_b32 v7, 3, v1
v_lshlrev_b32 v7, 12, v7
v_lshl_add_u32 v{VD}, v6, 4, v7
v_and_b32 v6, 3, v6
v_lshlrev_b32 v6, 2, v6
v_lshrrev_b32 v136, v6, s{sSIG}""")
    a(f"""v_lshrrev_b32 v6, 2, v1
v_and_b32 v7, 3, v1
v_lshlrev_b32 v7, 3, v7
v_lshl_add_u32 v{VP}, v6, 6, v7
v_add_u32 v{VP}, {LP}, v{VP}
v_lshl_add_u32 v7, v6, 7, v7
v_add_u32 v7, {LY}, v7
v_bfe_u32 v6, v1, 3, 2""")
    for P_ in range(4):
        a(f"v_xor_b32 v11, {P_}, v6\nv_lshl_add_u32 v{VY+P_}, v11, 5, v7")
    a(f"""s_lshl_b32 s8, s{sWL}, 10
s_add_u32 s8, s8, {LP}
v_lshlrev_b32 v6, 6, v14
v_lshl_add_u32 v6, v15, 3, v6
v_add_u32 v{VPW}, s8, v6
s_add_u32 s8, s12, {LWW}
v_add_u32 v6, s8, v6""")
    if OPT.get("cs", 1) == 1: gen_CS()
    a("v_mov_b32 v12, v6")
    def wproc():
        for k in range(4):
            a(f"ds_read_b64 {vr(WR+2*k,2)}, v12 offset:{(k//2)*1024+(k%2)*32}")
        a("s_waitcnt lgkmcnt(0)")
        for k in range(4):
            a(f"""v_lshlrev_b32 v{W2+4*k}, 16, v{WR+2*k}
v_and_b32 v{W2+4*k+1}, 0xffff0000, v{WR+2*k}
v_lshlrev_b32 v{W2+4*k+2}, 16, v{WR+2*k+1}
v_and_b32 v{W2+4*k+3}, 0xffff0000, v{WR+2*k+1}""")
        a(f"s_cmp_lg_u32 s{sG}, 0\ns_cbranch_scc1 a_w1")
        a(f"s_mov_b64 exec, 0xffff\nv_mul_f32 v{W2}, 0.5, v{W2}\nv_mul_f32 v{W2+8}, 0.5, v{W2+8}\ns_mov_b64 exec, -1")
        a("a_w1:")
        a(f"s_cmp_lg_u32 s{sG}, 7\ns_cbranch_scc1 a_w2")
        a(f"s_mov_b32 exec_lo, 0\ns_mov_b32 exec_hi, 0xffff0000\nv_mul_f32 v{W2+4}, 0.5, v{W2+4}\nv_mul_f32 v{W2+12}, 0.5, v{W2+12}\ns_mov_b64 exec, -1")
        a("a_w2:")
    if OPT.get("wpos", 0) == 1:
        a("s_waitcnt vmcnt(0)")
        wproc()
    stamp(a, 7)
    def chk8(r0, n, sg, acc):
        for i in range(n // 8): a(f"v_bitop3_b32 v{acc+i}, v{r0+8*i}, v{r0+8*i+4}, v{sg} bitop3:0x7e")
        if n == 8: a(f"v_and_b32 v{acc}, s{sMSK}, v{acc}")
        else:
            a(f"v_or3_b32 v{acc}, v{acc}, v{acc+1}, v{acc+2}")
            a(f"v_bitop3_b32 v{acc}, v{acc}, s{sMSK}, v{acc+3} bitop3:0xc8")
        a(f"v_cmp_ne_u32 vcc, 0, v{acc}")
    if OPT.get("yf", 0):
        a(f"s_lshl_b32 s8, s{sG}, 9\ns_lshl_b32 s9, s{sWL}, 7\ns_add_u32 s8, s8, s9\ns_add_u32 s8, s8, {WS_FY}\nv_lshlrev_b32 v13, 2, v8")
        poll(a, 13, "s8", -1, width=1, vt=132, sleep=OPT.get("fsleep", 2))
        if OPT.get("cnt"): a("s_sub_u32 s71, 20001, s9")
    if AS == 4: a("s_branch a_fin")
    if OPT.get("wop") == 2:
        wait_cnt(a, C_M2, 4)
        wo_part(10, 28, True)
    def wbk(pos, wc=None):
        if OPT.get("wb") is None or OPT.get("wbp", 0) != pos: return
        l = lab("wb")
        a(f"s_and_b32 s8, s{sJ}, {OPT['wb']}\ns_xor_b32 s8, s8, {OPT.get('wbj', 0)}\ns_or_b32 s8, s8, s{sWL}\ns_cmp_lg_u32 s8, 0\ns_cbranch_scc1 {l}")
        if wc is not None: wait_cnt(a, wc, 4, sleep=2)
        a(f"buffer_wbl2 {OPT.get('wbm', 'sc1')}")
        if OPT.get("wbw", 1):
            a("s_waitcnt vmcnt(0)")
            stamp(a, 5)
        a(f"{l}:")
    if OPT.get("ag"):
        a(f"""s_lshl_b32 s10, s{sHP}, 7
s_lshl_b32 s11, s{sQB}, 2
s_add_u32 s10, s10, s11
s_add_u32 s10, s10, s{sWL}
s_lshl_b32 s10, s10, 11
s_and_b32 s11, s{sJ}, 1
s_mul_i32 s11, s11, {WS_V - WS_K}
s_add_u32 s10, s10, s11
s_add_u32 s11, s10, {64*2048}
s_lshl_b32 s13, s{sWL}, 12
s_add_u32 s13, s13, {LKV}
v_add_u32 v13, s13, v3""")
        if OPT.get("ho"):
            if OPT.get("hop") is not None: a(f"s_setprio {OPT['hop']}")
            wo_addr()
            a(f"""s_add_u32 s8, s12, {LTT}
v_lshlrev_b32 v6, 7, v14
v_lshl_add_u32 v6, v15, 3, v6
v_add_u32 v83, s8, v6
v_add_u32 v84, s8, v3
s_lshl_b32 s9, s{sK1}, 5
s_and_b32 s9, s9, 64
v_and_b32 v11, 7, v1
v_lshlrev_b32 v11, 4, v11
v_xor_b32 v11, s9, v11
v_lshrrev_b32 v6, 3, v1
v_lshl_add_u32 v85, v6, 15, v11
v_bfe_u32 v6, v1, 2, 2
v_lshl_add_u32 v6, v9, 3, v6
v_lshlrev_b32 v6, 7, v6
v_bfe_u32 v7, v1, 3, 1
v_xor_b32 v7, s68, v7
v_lshl_add_u32 v14, v7, 6, v6
v_xor_b32 v15, 64, v14
v_bfe_u32 v6, v1, 4, 1
v_lshlrev_b32 v6, 2, v6
v_and_b32 v7, 1, v1
v_lshl_add_u32 v6, v7, 1, v6
v_bfe_u32 v7, v1, 1, 1
v_add_u32 v11, v6, v7
v_lshl_add_u32 v142, v11, 3, v14
v_lshl_add_u32 v143, v11, 3, v15
s_lshl_b32 s8, s{sWL}, 13
v_add_u32 v137, s8, v3
s_mov_b32 s8, 114688
v_mul_lo_u32 v6, v8, s8
v_lshlrev_b32 v7, 5, v9
v_add_u32 v129, v6, v7
v_sub_u32 v130, v6, v7
v_add_u32 v130, 32, v130
s_add_u32 s8, s12, {LEX2}
v_add_u32 v131, s8, v3
v_xor_b32 v141, 2048, v131
s_add_u32 s8, s12, {LY}
v_add_u32 v86, s8, v3""")
            assert LT == 0
            for r in range(4): a(f"v_mov_b32 v{124+r}, 0")
            if OPT.get("hop") is not None: a(f"s_setprio {OPT.get('p1', 3)}")
        wait_cnt(a, OPT.get("agc", C_KV), 4, sleep=1)
        for u in range(4): a(f"ds_read_b128 {vr(Z+4*u,4)}, v13 offset:{u*1024}")
        a("s_mov_b32 s87, s10\ns_mov_b32 s88, s11")
        def ag_st(u):
            a(f"buffer_store_dwordx4 {vr(Z+4*u,4)}, v3, {WSD}, s{87+u//2} offen offset:{(u%2)*1024} {OPT.get('gm', 'sc1')}")
        for u in range(4 - OPT.get("agl", 0)):
            a(f"s_waitcnt lgkmcnt({3-u})")
            if OPT.get("ags") and OPT["ags"][u] is not None: wait_cnt(a, C_W4, 4 * (1 + sum(1 for x in OPT["ags"][:u] if x is not None)), sleep=2)
            ag_st(u)
        a("s_waitcnt lgkmcnt(0)")
    wbk(1, C_Q)
    wbk(4, C_M2)
    if AS == 8: a("s_branch a_fin")
    if OPT.get("ylw") is not None: wait_cnt(a, OPT["ylw"], 4, sleep=2)
    setprio(a, OPT.get('a2prio', 3))
    YCA = 86 if OPT.get("ho") else 13
    a(f"""s_add_u32 s8, s12, {LY}
{"" if OPT.get("ho") else "v_add_u32 v13, s8, v3"}
s_add_u32 s9, s6, {8*4096}
s_mov_b32 s14, 20000""")
    if OPT.get("wpos", 0) == 0: wdma()
    a("a_ypoll:")
    a("s_mov_b32 m0, s8\ns_nop 0")
    a(f"buffer_load_dwordx4 v{VD}, {WSD}, s6 offen sc1 lds")
    a(f"s_add_u32 m0, s8, 1024\ns_nop 0")
    a(f"buffer_load_dwordx4 v{VD}, {WSD}, s9 offen sc1 lds")
    a("s_waitcnt vmcnt(0)")
    for i in range(2): a(f"ds_read_b32 v{YF+4*i}, v{YCA} offset:{i*1024}")
    a("s_waitcnt lgkmcnt(0)")
    chk8(YF, 8, 136, 132)
    a("s_cbranch_vccz a_ypoll_d")
    a(f"s_sleep {OPT.get('psleep', 4)}")
    a("s_sub_u32 s14, s14, 1\ns_cmp_lg_u32 s14, 0\ns_cbranch_scc1 a_ypoll")
    a("a_ypoll_d:")
    if OPT.get("cnt"): a("s_sub_u32 s76, 20001, s14")
    stamp(a, 10)
    arrive(a, C_AY)
    if OPT.get("wpos", 0) == 0: wproc()
    if OPT.get("agl") and OPT.get("aglb"):
        for u in range(4 - OPT["agl"], 4): ag_st(u)
    if OPT.get("wpos", 0) == 2: wdma()
    if OPT.get("agl") and not OPT.get("aglb"):
        for u in range(4 - OPT["agl"], 4): ag_st(u)
    if OPT.get("wpos", 0) == 3:
        wait_cnt(a, C_G, 4)
        wdma()
    wait_cnt(a, C_AY, 4)
    stamp(a, 11)
    yf = lambda ri, ch, kap: YF + 4 * ((ri * 2 + ch) * 2 + kap)
    for ri in range(2):
        for ch in range(2):
            for kap in range(2):
                for aa in range(2):
                    a(f"ds_read_b64_tr_b16 {vr(yf(ri,ch,kap)+2*aa,2)}, v{VY+2*ri+ch} offset:{(32*kap+16*aa)*128}")
    a("s_waitcnt lgkmcnt(0)")
    cs = lambda kap, k: (CSC, CSC + 8, CSN)[k] + 4 * kap
    z = lambda ri, ch: Z + 8 * ri + 4 * ch
    for kap in range(2):
        for ch in range(2):
            mfma16(a, z(0,ch), yf(0,ch,kap), cs(kap,0), None if kap == 0 else z(0,ch))
            mfma16(a, z(1,ch), yf(1,ch,kap), cs(kap,0), None if kap == 0 else z(1,ch))
    for kap in range(2):
        for ch in range(2):
            mfma16(a, z(0,ch), yf(1,ch,kap), cs(kap,1), z(0,ch))
            mfma16(a, z(1,ch), yf(0,ch,kap), cs(kap,2), z(1,ch))
    if OPT.get("wpos", 0) >= 2:
        a(f"s_waitcnt vmcnt({0 if OPT.get('aglb') else OPT.get('agl', 0)})")
        stamp(a, 7)
        wproc()
    else: a.nop(9)
    for i in range(8):
        zr, zi, wr, wi = Z + i, Z + 8 + i, W2 + i, W2 + 8 + i
        a(f"""v_mul_f32 v6, v{zi}, v{wi}
v_mul_f32 v7, v{zr}, v{wi}
v_fma_f32 v{zr}, v{zr}, v{wr}, -v6
v_fma_f32 v{zi}, v{zi}, v{wr}, v7""")
    for i in range(8): a(f"v_cvt_pk_bf16_f32 v{W2+i}, v{Z+2*i}, v{Z+2*i+1}")
    for i in range(4): a(f"ds_write_b64 v{VPW}, {vr(W2+2*i,2)} offset:{(i//2)*4096+(i%2)*32}")
    a("s_waitcnt lgkmcnt(0)")
    arrive(a, C_AP)
    wait_cnt(a, C_AP, 4)
    for ri in range(2):
        for ch in range(2):
            for kap in range(2):
                for aa in range(2):
                    a(f"ds_read_b64_tr_b16 {vr(yf(ri,ch,kap)+2*aa,2)}, v{VP} offset:{ri*4096+(32*kap+16*aa)*64+ch*32}")
    a("s_waitcnt lgkmcnt(0)")
    for kap in range(2):
        for ch in range(2):
            mfma16(a, z(0,ch), yf(0,ch,kap), cs(kap,0), None if kap == 0 else z(0,ch))
            mfma16(a, z(1,ch), yf(1,ch,kap), cs(kap,0), None if kap == 0 else z(1,ch))
    for kap in range(2):
        for ch in range(2):
            mfma16(a, z(0,ch), yf(1,ch,kap), cs(kap,2), z(0,ch))
            mfma16(a, z(1,ch), yf(0,ch,kap), cs(kap,1), z(1,ch))
    T6, T7, T11 = (83, 84, 85) if OPT.get("ho") else (6, 7, 11)
    if OPT.get("ho"): a.nop(4)
    else: a(f"""s_add_u32 s8, s12, {LTT}
v_lshlrev_b32 v6, 7, v14
v_lshl_add_u32 v6, v15, 3, v6
v_add_u32 v6, s8, v6
v_add_u32 v7, s8, v3
s_lshl_b32 s9, s{sK1}, 5
s_and_b32 s9, s9, 64
v_and_b32 v11, 7, v1
v_lshlrev_b32 v11, 4, v11
v_xor_b32 v11, s9, v11
v_lshrrev_b32 v12, 3, v1
v_lshl_add_u32 v11, v12, 15, v11""")
    a(f"""s_lshl_b32 s6, s{sG}, 12
s_lshl_b32 s7, s{sK1}, 7
s_add_u32 s6, s6, s7
s_lshl_b32 s7, s{sWL}, 19
s_add_u32 s6, s6, s7
s_add_u32 s6, s6, {WS_T}
s_add_u32 s7, s6, {8*32768}""")
    for i in range(8): a(f"v_cvt_pk_bf16_f32 v{W2+i}, v{Z+2*i}, v{Z+2*i+1}")
    for i in range(4): a(f"ds_write_b64 v{T6}, {vr(W2+2*i,2)} offset:{(i//2)*64+(i%2)*32}")
    for u in range(2): a(f"ds_read_b128 {vr(W2+8+4*u,4)}, v{T7} offset:{u*1024}")
    a("s_waitcnt lgkmcnt(0)")
    sign(a, W2+8, 8, 128)
    for u in range(2):
        a(f"buffer_store_dwordx4 {vr(W2+8+4*u,4)}, v{T11}, {WSD}, s{6+u} offen sc1")
    if OPT.get("odum") == 2: odum()
    stamp(a, 12)
    arrive(a, C_A2D)
    if OPT.get("p3") is not None: setprio(a, OPT["p3"])
    wbk(2)
    TFR = [76, 92, 108, 160, 176, 192, 208, 240]
    UU, UBB, ACCF, NQF = [224, 76], [132, 92], 240, 124
    VT = 142 if OPT.get("ho") else 12
    TCA = 137 if OPT.get("ho") else 10
    if not OPT.get("ho"): a(f"""v_bfe_u32 v6, v1, 2, 2
v_lshl_add_u32 v6, v9, 3, v6
v_lshlrev_b32 v6, 7, v6
v_add_u32 v6, {LT}, v6
v_bfe_u32 v7, v1, 3, 1
v_xor_b32 v7, s68, v7
v_lshl_add_u32 v14, v7, 6, v6
v_xor_b32 v15, 64, v14
v_bfe_u32 v6, v1, 4, 1
v_lshlrev_b32 v6, 2, v6
v_and_b32 v7, 1, v1
v_lshl_add_u32 v6, v7, 1, v6
v_bfe_u32 v7, v1, 1, 1
v_add_u32 v11, v6, v7
v_lshl_add_u32 v{VT}, v11, 3, v14
v_lshl_add_u32 v{VT+1}, v11, 3, v15""")
    def jump(jb):
        if OPT.get("ho"):
            m = sum(1 << l for l in range(32) if 4 * ((l >> 4) & 1) + 2 * (l & 1) + ((l >> 1) & 1) == jb)
            a(f"s_mov_b32 exec_lo, {m:#x}\ns_mov_b32 exec_hi, {m:#x}")
            if OPT["ho"] == 2: a(f"v_lshl_add_u64 {vr(VT,2)}, {vr(VT,2)}, 0, s[10:11]")
            else: a(f"v_add_u32 v{VT}, 4040, v{VT}\nv_add_u32 v{VT+1}, 4040, v{VT+1}")
            a("s_mov_b64 exec, -1")
            return
        a(f"v_cmp_eq_u32 vcc, {jb}, v11\nv_cndmask_b32 v6, 0, v141, vcc\nv_add_u32 v{VT}, v{VT}, v6\nv_add_u32 v{VT+1}, v{VT+1}, v6")
    a(f"""{"" if OPT.get("ho") else "v_mov_b32 v141, 4040"}
s_lshl_b32 s6, s67, 15
s_lshl_b32 s7, s{sWL}, 13
s_add_u32 s6, s6, s7
s_add_u32 s6, s6, {WS_T}
s_add_u32 s7, s7, {LT}
{"" if OPT.get("ho") else "v_add_u32 v10, s7, v3"}
s_lshr_b32 s15, s{sJ}, 3
s_lshl_b32 s15, s15, 11""")
    setprio(a, OPT.get('mprio', 1))
    wait_cnt(a, C_A2D, 4)
    if OPT.get("e3", 0) == 1: gen_E3()
    wait_cnt(a, C_M2, 4)
    if AS == 5: a("s_branch a_fin")
    wait_cnt(a, C_G, 4)
    assert OPT.get("wop") == 1
    wo_part(10, 28, True)
    arrive(a, C_AX2)
    if AS == 6: a("s_branch a_fin")
    if OPT.get("tlw"): wait_cnt(a, C_YS, 4, sleep=4)
    stamp(a, 13)
    if AS == 12: a("s_waitcnt vmcnt(0)\ns_branch a_fin")
    for i in range(8):
        a(f"s_add_u32 s8, s15, {i*1024}\ns_and_b32 s8, s8, 8191\ns_add_u32 m0, s7, s8\ns_add_u32 s8, s8, s6")
        a(f"buffer_load_dwordx4 v3, {WSD}, s8 offen {OPT.get('tm', '')} lds")
    a("s_mov_b32 s14, 20000")
    a("s_waitcnt vmcnt(0)")
    a(f"a_tchk0:")
    for i in range(8): a(f"ds_read_b32 v{160+4*i}, v{TCA} offset:{i*1024}")
    a("s_waitcnt lgkmcnt(0)")
    chk8(160, 32, 128, 132)
    a(f"s_cbranch_vccnz a_tchk0_r")
    a(f"a_tchk0_d:")
    stamp(a, 14)
    if OPT.get("cnt"): a("s_sub_u32 s78, 20001, s14")
    if AS == 9: a("s_branch a_fin")
    arrive(a, C_AT)
    wait_cnt(a, C_AT, 4)
    if AS == 10: a("s_branch a_fin")
    def rdT(tau_, va, off):
        tf = TFR[tau_]
        if OPT.get("rdp") is not None: a(f"s_setprio {OPT['rdp']}")
        rdT_(tf, va, off)
        if OPT.get("rdp") is not None: a(f"s_setprio {OPT.get('mprio', 1)}")
        if OPT.get("rdw") is not None: a(f"s_waitcnt lgkmcnt({OPT['rdw']})")
    def rdT_(tf, va, off):
        for w_ in range(2):
            for tau in range(2):
                for aa in range(2):
                    a(f"ds_read_b64_tr_b16 {vr(tf+8*w_+4*tau+2*aa,2)}, v{va+w_} offset:{off+(16*tau+4*aa)*128}")
    def st1(tau_, u=None):
        tf = TFR[tau_]; u = UU[tau_ % 2] if u is None else u
        for tau in range(2): mfma(a, u, tf+4*tau, E3C+4*tau, None if tau == 0 else u)
        for tau in range(2): mfma(a, u, tf+8+4*tau, E3X+4*tau, u)
    def cvtU(tau_):
        u = UU[tau_ % 2]; ub = UBB[tau_ % 2]
        for r in range(8): a(f"v_cvt_pk_bf16_f32 v{ub+r}, v{u+2*r}, v{u+2*r+1}")
    def st2(tau_):
        ub = UBB[tau_ % 2]
        for s_ in range(2): mfma(a, ACCF, F+4*(2*tau_+s_), ub+4*s_, ACCF)
    if OPT.get("ho") == 2: a("s_mov_b32 s10, 4040\ns_mov_b32 s11, 4040")
    rdT(7, 14, 7 * 4096 + 56)
    for t_ in range(7):
        jump(7 - t_)
        rdT(t_, VT, t_ * 4104)
        if t_ == 0 and AS != 11:
            a("s_waitcnt lgkmcnt(8)")
            st1(7, UU[0])
    if AS == 11: a("s_branch a_fin")
    if not OPT.get("ho"):
        for r in range(4): a(f"v_mov_b32 v{NQF+r}, 0")
    a(f"s_mov_b32 exec_hi, 0\nv_cvt_pk_bf16_f32 v{NQF}, v{UU[0]}, 0\ns_mov_b64 exec, -1")
    a("s_waitcnt lgkmcnt(0)")
    arrive(a, C_ADONE)
    mfma(a, ACCF, F+4*14, NQF, None)
    stamp(a, 15)
    if AS == 7: a("s_branch a_fin")
    wbk(3)
    wait_cnt(a, C_ADONE, 4)
    wo_part(0, 10, False)
    a("s_waitcnt vmcnt(0)")
    arrive(a, C_WO)
    if not OPT.get("cnt"): stamp(a, 6)
    OA, OD = (129, 130) if OPT.get("ho") else (10, 11)
    if not OPT.get("ho"): a(f"""s_mov_b32 s8, 114688
v_mul_lo_u32 v6, v8, s8
v_lshlrev_b32 v7, 5, v9
v_add_u32 v10, v6, v7
v_sub_u32 v11, v6, v7
v_add_u32 v11, 32, v11""")
    a(f"""s_mul_i32 s7, s67, 1792
s_mul_i32 s8, s{sG1}, 56
s_lshl_b32 s9, s68, 4
s_add_u32 s8, s8, s9
s_add_u32 s6, s7, s8
s_sub_u32 s7, s7, s8
s_add_u32 s7, s7, 882
s_sub_u32 s7, s7, 32""")
    wbk(0)
    if OPT.get("late", 1):
        wait_cnt(a, OPT.get("latec", C_R1), 4, sleep=OPT.get("lsl", 4))
    stamp(a, 9)
    setprio(a, OPT.get('tprio', 1))
    for t_ in range(8):
        if t_ < 7: st1(t_)
        else: a.nop(10)
        if t_ > 0:
            cvtU(t_ - 1)
            a.nop(1)
            st2(t_ - 1)
    X6, X7 = (131, 141) if OPT.get("ho") else (6, 7)
    if not OPT.get("ho"): a(f"s_add_u32 s8, s12, {LEX2}\nv_add_u32 v6, s8, v3\nv_xor_b32 v7, 2048, v6")
    else: a.nop(3)
    XC, YP, YM = 168, 176, 184
    a.nop(14)
    a("s_cmp_lg_u32 s68, 0\ns_cbranch_scc1 a_x1")
    for ri in range(2):
        if ri: a("a_x1:")
        keep, send = ACCF + 8 * ri, ACCF + 8 * (1 - ri)
        for t in range(2): a(f"ds_write_b128 v{X6}, {vr(send+4*t,4)} offset:{t*1024}")
        a("s_waitcnt lgkmcnt(0)")
        arrive(a, C_AU)
        a(f"v_mov_b32 v{XC+8}, v7")
        wait_cnt(a, C_AU, 4)
        for t in range(2): a(f"ds_read_b128 {vr(XC+4*t,4)}, v{X7} offset:{t*1024}")
        a("s_waitcnt lgkmcnt(0)")
        Cr, Sr = (keep, XC) if ri == 0 else (XC, keep)
        for r in range(8):
            a(f"v_add_f32 v{YP+r}, v{Cr+r}, v{Sr+r}")
            a(f"v_sub_f32 v{YM+r}, v{Cr+r}, v{Sr+r}")
        for i in range(4): a(f"v_cvt_pk_bf16_f32 v{XC+i}, v{YP+2*i}, v{YP+2*i+1}")
        for i in range(4): a(f"v_cvt_pk_bf16_f32 v{XC+4+i}, v{YM+7-2*i}, v{YM+6-2*i}")
        if OPT.get("osw") is not None: wait_cnt(a, OPT["osw"], 4)
        om = OPT.get('amod', OPT.get('omod', ''))
        OS = f"s[{SRD_OUT}:{SRD_OUT+3}]"
        if ri == 0:
            a(f"buffer_store_dwordx4 {vr(XC,4)}, v{OA}, {OS}, s6 offen {om}")
            a(f"s_cmp_lg_u32 s{sG1}, 0\ns_cbranch_scc1 a_o1")
            a("s_mov_b32 exec_hi, 0")
            a(f"buffer_store_dwordx3 {vr(XC+4,3)}, v{OD}, {OS}, s7 offen {om}")
            a(f"buffer_store_short v{XC+7}, v{OD}, {OS}, s7 offen offset:12 {om}")
            a("s_mov_b32 exec_lo, 0\ns_mov_b32 exec_hi, -1")
            a("a_o1:")
            a(f"buffer_store_dwordx4 {vr(XC+4,4)}, v{OD}, {OS}, s7 offen {om}")
            a("s_mov_b64 exec, -1")
            a("s_branch a_x2")
        else:
            a("s_mov_b32 exec_hi, 0")
            a(f"buffer_store_dwordx4 {vr(XC,4)}, v{OA}, {OS}, s6 offen {om}")
            a(f"buffer_store_dwordx4 {vr(XC+4,4)}, v{OD}, {OS}, s7 offen {om}")
            a("s_mov_b32 exec_lo, 0\ns_mov_b32 exec_hi, -1")
            a(f"buffer_store_dwordx2 {vr(XC,2)}, v{OA}, {OS}, s6 offen {om}")
            a(f"buffer_store_dwordx2 {vr(XC+6,2)}, v{OD}, {OS}, s7 offen offset:8 {om}")
            a(f"s_cmp_lg_u32 s{sG1}, 7\ns_cbranch_scc1 a_o2")
            a(f"buffer_store_short v{XC+2}, v{OA}, {OS}, s6 offen offset:8 {om}")
            a("a_o2:")
            a("s_mov_b64 exec, -1")
    a("a_x2:")
    if not OPT.get("cnt"): stamp(a, 2)
    a("s_branch a_fin")
    a(f"a_tchk0_r:")
    a(f"s_sub_u32 s14, s14, 1\ns_cmp_le_i32 s14, 0\ns_cbranch_scc1 a_tchk0_d")
    a(f"s_sleep {OPT.get('psleep', 4)}")
    for i in range(8):
        a(f"s_add_u32 m0, s7, {i*1024}\ns_add_u32 s8, s6, {i*1024}")
        a(f"buffer_load_dwordx4 v3, {WSD}, s8 offen sc1 lds")
    a("s_waitcnt vmcnt(0)")
    a(f"s_branch a_tchk0")
    a("a_fin:")
    stamp_out(a, 16, "A")
    a("k_end:\ns_endpgm")
    return a.text()

def build(path, stamps=False, opt=None):
    global STAMPS, OPT
    STAMPS = stamps; OPT = opt or {}; G.uid = 0; G.plo = None
    code = build_kernel()
    hdr = f"; @launch kernel={NAME} grid=(256,1,1) block=(512,1,1) lds={LDS_SIZE}\n"
    s = hdr + '.amdgcn_target "amdgcn-amd-amdhsa--gfx950"\n.text\n' + code + '.section .rodata,"a"\n' + kd(NAME, 256, 96)
    open(path, "w").write(s)

S2 = {-1: "x0 w0 e x1 w1", 0: "x2 w2 a a", 1: "x3 w3 a a", 2: "x4 w4 a a", 3: "x5 w5 a F", 4: "x6 w6", 5: "q"}
D = {"kvp": 2, "gst": (2, 4, 6, 8), "omod": "nt", "amod": "", "thr": 4, "e3": 0, "cs": 0, "b3m": 1, "om1": "sc1", "wop": 1, "mprio": 3, "sch": S2, "ysw": (C_W0, 4), "ylw": C_G, "tlw": 0,
     "b0prio": 3, "prio": 0, "gprio": 0, "wpos": 2, "latec": C_R2}
if __name__ == "__main__":
    build("f21.s", False, D)
    build("f21_ff.s", False, {"forcefail": 1, **D})
    build("f21_rt.s", "rt", D)
    build("f21_na_rt.s", "rt", {**D, "noA": 1})
    build("v1.s", False, {**D, "osleep": 0})
    build("v2.s", False, {**D, "osleep": 6})
```

```python
import numpy as np, sys
from common import Asm, vr, sr, bf16_bits, f32_bits, srd, srd_table, kd, mfma, MFMA
from common import S_AX, S_WR, S_WI, S_BX, S_WQKV, S_WO, S_OUT, S_DBG, S_WS

QSCALE = (28 ** -0.5) * np.log2(np.e)
NAME = "concat_heads__spectral_gfnet__mha_block__prompt_kernel"

WS_K, WS_V, WS_O, WS_Y, WS_T = 0x000000, 0x200000, 0x400000, 0x600000, 0x800000
WS_FG, WS_F2, WS_F3, WS_EP = 0xA00000, 0xA10000, 0xA20000, 0xA80000
FG_F1, FG_F2 = 512, 1024
WS_FY, WS_FT = 0xA10000, 0xA20000
C_XF = 28
C_EP, C_TF = 27, 26
C_WF = 32
sG1 = 91
WS_STAMP = 0xF00000
WS_L = 0x1000000
WS_SIZE = 0x2000000
LX, LW, LWQ, LQ = 0, 32768, 90112, 0
LXA, LEX = 118784, 118784
LE = 122880
LKV = 16384
WS_JUNK = 0x1800000
LWO = 0
LY, LP = 135168, 118784
LT = 0
LYT, LWW, LTT, LEX2 = 126976, 147456, 135168, 151552
LR = 101376
LO = 101376
LMX = 101376
LC = 163840 - 256
LDS_SIZE = 163840
C_AX, C_AEX, C_AT, C_AY, C_AP, C_A2D, C_Q, C_AU, C_ADONE, C_R1, C_R2, C_O, C_WO, C_FAIL, C_M1, C_M2, C_KV, C_AX2, C_G, C_W0, C_W1, C_W2, C_W3, C_YS, C_W4 = range(25)

M16 = "v_mfma_f32_16x16x32_bf16"
def mfma16(a, d, A, B, c=None):
    cs = "0" if c is None else vr(c, 4)
    a(f"{M16} {vr(d,4)}, {vr(A,4)}, {vr(B,4)}, {cs}")

sH, sQB, sW, sTAG, sWL = 3, 4, 5, 34, 35
SRD_A, SRD_B, SRD_WS, SRD_OUT, SRD_C, SRD_TAB = 36, 40, 44, 48, 52, 56
sX, sJ, sN2, sDQ = 60, 61, 62, 63
sPASS = 64
sFAST, sXCC, sFG, sG, sJ4 = 86, 87, 88, 89, 90
sHP = 86
sSIG, sMSK = 92, 93
sPM = 91
KSIG = 0x6A39E5C1
WSD = f"s[{SRD_WS}:{SRD_WS+3}]"
STAMPS = False
OPT = {}

class G:
    uid = 0
    plo = None
def lab(p):
    G.uid += 1
    return f"{p}_{G.uid}"

def arrive(a, c):
    a(f"s_mov_b64 exec, 1")
    a(f"ds_add_u32 v4, v5 offset:{4*c}")
    a(f"s_mov_b64 exec, -1")

def wait_cnt(a, c, target, starget=None, sleep=1):
    l = lab("wc")
    a("s_mov_b32 s69, 400000")
    if G.plo is not None: a("s_setprio 0")
    a(f"{l}:")
    a(f"ds_read_b32 v6, v4 offset:{4*c}")
    a("s_waitcnt lgkmcnt(0)")
    a("v_readfirstlane_b32 s8, v6")
    a("s_sub_u32 s69, s69, 1")
    a(f"s_cmp_ge_u32 s8, {target if starget is None else 's'+str(starget)}")
    a(f"s_cbranch_scc1 {l}_d")
    a(f"s_sleep {sleep}")
    a("s_cmp_lg_u32 s69, 0")
    a(f"s_cbranch_scc1 {l}")
    a(f"{l}_d:")
    if G.plo is not None: a(f"s_setprio {G.plo}")

def setprio(a, p):
    a(f"s_setprio {p}")
    if OPT.get("plo"): G.plo = p if p else None

def poll(a, vaddr, soff, mask, width=1, vt=8, sleep=4):
    l = lab("pl")
    a(f"s_mov_b32 s9, 20000")
    if mask != -1: a(f"s_mov_b32 exec_lo, {mask & 0xffffffff:#x}\ns_mov_b32 exec_hi, {mask >> 32:#x}")
    a(f"{l}:")
    sfx = {1: "", 2: "x2", 4: "x4"}[width]
    a(f"buffer_load_dword{sfx} {vr(vt,width)}, v{vaddr}, {WSD}, {soff} offen sc1")
    a("s_waitcnt vmcnt(0)")
    if width == 1:
        a(f"v_cmp_ne_u32 vcc, s{sTAG}, v{vt}")
    else:
        for i in range(width): a(f"v_xor_b32 v{vt+i}, s{sTAG}, v{vt+i}")
        if width == 2: a(f"v_or_b32 v{vt}, v{vt}, v{vt+1}")
        else: a(f"v_or3_b32 v{vt}, v{vt}, v{vt+1}, v{vt+2}\nv_or_b32 v{vt}, v{vt}, v{vt+3}")
        a(f"v_cmp_ne_u32 vcc, 0, v{vt}")
    a(f"s_cbranch_vccz {l}_d")
    a(f"s_sleep {sleep}")
    a("s_sub_u32 s9, s9, 1")
    a("s_cmp_lg_u32 s9, 0")
    a(f"s_cbranch_scc1 {l}")
    a(f"{l}_d:")
    if mask != -1: a("s_mov_b64 exec, -1")

def both(a, f):
    l = lab("bm")
    a(f"s_cmp_lg_u32 s{sFAST}, 0\ns_cbranch_scc1 {l}_f")
    f("sc1")
    a(f"s_branch {l}_d")
    a(f"{l}_f:")
    f("")
    a(f"{l}_d:")

def flag_store(a, soff, local=False):
    a("s_mov_b64 exec, 1")
    a(f"v_mov_b32 v6, s{sTAG}\nv_mov_b32 v7, 0")
    f = lambda m: a(f"buffer_store_dword v6, v7, {WSD}, s{soff} offen {m}")
    if local: both(a, f)
    else: f("sc1")
    a("s_mov_b64 exec, -1")

def gbar_wait(a, k, fbase, cnt, vt):
    l = lab("gb")
    a(f"s_cmp_lg_u32 s{sWL}, 0\ns_cbranch_scc1 {l}_w")
    a(f"s_add_u32 s10, s{sFG}, {FG_F2 + 128*k}")
    a(f"s_cmp_lg_u32 s{sJ}, 0\ns_cbranch_scc1 {l}_m")
    a(f"s_mov_b32 s12, {fbase}")
    poll(a, 3, "s12", -1, width=4, vt=vt, sleep=OPT.get("lsleep", 2))
    flag_store(a, 10, local=True)
    a(f"s_branch {l}_a")
    a(f"{l}_m:")
    a(f"s_cmp_lg_u32 s{sFAST}, 0\ns_cbranch_scc1 {l}_f")
    a("v_mov_b32 v7, 0")
    poll(a, 7, "s10", 1, width=1, vt=vt, sleep=8)
    a(f"s_branch {l}_a")
    a(f"{l}_f:")
    a("s_mov_b32 s9, 40000")
    a(f"{l}_fl:")
    a(f"s_buffer_load_dword s8, {WSD}, s10 glc")
    a("s_waitcnt lgkmcnt(0)")
    a(f"s_cmp_eq_u32 s8, s{sTAG}\ns_cbranch_scc1 {l}_a")
    a(f"s_sleep {OPT.get('psleep', 2)}")
    a(f"s_sub_u32 s9, s9, 1\ns_cmp_lg_u32 s9, 0\ns_cbranch_scc1 {l}_fl")
    a(f"{l}_a:")
    arrive(a, cnt)
    a(f"{l}_w:")
    wait_cnt(a, cnt, 1)

def set_tag(a, keep=None):
    a(f"v_readfirstlane_b32 s{sTAG}, v2")
    a(f"s_mov_b32 s{sMSK}, 0x00030003")
    a("s_nop 1")
    a(f"s_add_u32 s{sTAG}, s{sTAG}, 1")
    if keep is not None: a(f"s_mov_b32 s{keep}, s{sTAG}")
    a(f"s_bitcmp1_b32 s{sTAG}, 0\ns_cselect_b32 s{sSIG}, {KSIG:#x}, {KSIG ^ 0xffffffff:#x}") if False else None
    a(f"s_bfe_i32 s{sSIG}, s{sTAG}, 0x10000")
    a(f"s_xor_b32 s{sSIG}, s{sSIG}, {KSIG:#x}")
    a(f"s_mul_i32 s{sTAG}, s{sTAG}, 0x9E3779B1")

def sig_regs(a, d, hi=False):
    if hi: a(f"v_lshrrev_b32 v{d}, 4, v1")
    else: a(f"v_and_b32 v{d}, 3, v1")
    a(f"v_lshlrev_b32 v{d}, 2, v{d}")
    a(f"v_lshrrev_b32 v{d}, v{d}, s{sSIG}")

def sign(a, r0, n, sg):
    for r in range(0, n, 4): a(f"v_bfi_b32 v{r0+r}, s{sMSK}, v{sg}, v{r0+r}")

def check(a, r0, n, sg, acc, first=True):
    for r in range(0, n, 2):
        a(f"v_xor_b32 v{acc+1}, v{r0+r}, v{sg + r % 4}")
        a(f"v_xor_b32 v{acc+2}, v{r0+r+1}, v{sg + (r+1) % 4}")
        if first and r == 0: a(f"v_or_b32 v{acc}, v{acc+1}, v{acc+2}")
        else: a(f"v_or3_b32 v{acc}, v{acc}, v{acc+1}, v{acc+2}")

def fx_load(a, vd, va):
    a(f"v_and_b32 v{va}, 31, v1\nv_lshlrev_b32 v{va}, 2, v{va}")
    a(f"buffer_load_dword v{vd}, v{va}, {WSD}, s{sFG} offen sc1")

def fx_eval(a, vd, va):
    l = lab("fx")
    a("s_mov_b32 s9, 20000")
    a(f"{l}:")
    a(f"v_subrev_u32 v{vd}, s{sTAG}, v{vd}")
    a(f"v_cmp_lt_u32 vcc, 14, v{vd}")
    a(f"s_cbranch_vccz {l}_d")
    a("s_sleep 4")
    a(f"buffer_load_dword v{vd}, v{va}, {WSD}, s{sFG} offen sc1")
    a("s_waitcnt vmcnt(0)")
    a("s_sub_u32 s9, s9, 1")
    a("s_cmp_lg_u32 s9, 0")
    a(f"s_cbranch_scc1 {l}")
    a(f"{l}_d:")
    a(f"v_cmp_ne_u32 vcc, s{sXCC}, v{vd}")
    a("s_nop 0")
    a("s_cmp_eq_u64 vcc, 0")
    a(f"s_cselect_b32 s{sFAST}, {0 if OPT.get('slow') else 1}, 0")

def stamp(a, idx):
    if not STAMPS: return
    a(f"s_memrealtime s[94:95]" if STAMPS in ("rt", "dbg", "amp") else f"s_memtime s[94:95]")
    a("s_waitcnt lgkmcnt(0)")
    a(f"s_mov_b32 s{70+idx}, s94")

def stamp_out(a, n, who="B"):
    if not STAMPS: return
    a("s_waitcnt vmcnt(0) lgkmcnt(0)")
    if STAMPS == "amp":
        w, j = OPT["amp"]
        if who != w: return
        l = lab("amp")
        stamp(a, 6)
        a(f"s_cmp_lg_u32 s{sWL}, 0\ns_cbranch_scc1 {l}_d")
        a(f"s_sub_u32 s8, s{70+j}, s70\ns_min_u32 s8, s8, 10000\ns_mul_i32 s8, s8, 10\ns_add_u32 s8, s8, s76\ns_mov_b32 s9, 100000")
        a(f"{l}:")
        a("s_sleep 8\ns_memrealtime s[94:95]\ns_waitcnt lgkmcnt(0)")
        a(f"s_sub_u32 s10, s94, s8\ns_cmp_ge_i32 s10, 0\ns_cbranch_scc1 {l}_d")
        a(f"s_sub_u32 s9, s9, 1\ns_cmp_lg_u32 s9, 0\ns_cbranch_scc1 {l}")
        a(f"{l}_d:")
        return
    if STAMPS == "dbg":
        if who == "A": stamp(a, 6)
        srd(a, SRD_C, S_DBG, 256)
        a("v_mov_b32 v7, 0\ns_mov_b64 exec, 1")
        a("s_not_b32 s8, s70\nv_mov_b32 v6, s8")
        a(f"buffer_atomic_umax v6, v7, s[{SRD_C}:{SRD_C+3}], 0 offen sc1")
        M = {"B": {1: 0, 2: 11, 3: 1, 4: 3, 5: 4, 6: 8, 7: 10}, "A": {8: 8, 9: 3, 10: 10, 11: 14, 12: 15, 13: 9, 14: 6}}[who]
        for k, v in M.items():
            a(f"v_mov_b32 v{8+k}, s{70+v}")
            a(f"buffer_atomic_umax v{8+k}, v7, s[{SRD_C}:{SRD_C+3}], 0 offen offset:{4*k} sc1")
        a("s_mov_b64 exec, -1")
        return
    a(f"s_lshl_b32 s10, s2, 9\ns_lshl_b32 s11, s{sW}, 6\ns_add_u32 s10, s10, s11\ns_add_u32 s10, s10, {WS_STAMP}")
    a("v_mov_b32 v7, 0\ns_mov_b64 exec, 1")
    for i in range(n):
        a(f"v_mov_b32 v6, s{70+i}")
        a(f"buffer_store_dword v6, v7, {WSD}, s10 offen offset:{4*i}")
    a("s_mov_b64 exec, -1")

def gen_E(a, lanev, hhv, n2s, mode, outs, tmp):
    t0, t1, t2, t3, t4, t5 = range(tmp, tmp + 6)
    if mode == 'a1':
        a(f"v_cvt_f32_u32 v{t0}, v{lanev}")
        a(f"v_mul_f32 v{t0}, {f32_bits(1/2048):#x}, v{t0}")
        a(f"v_lshlrev_b32 v{t1}, 8, v{hhv}")
        a(f"v_add_u32 v{t1}, s{n2s}, v{t1}")
        a(f"v_cvt_f32_u32 v{t1}, v{t1}")
        offs = lambda t, j: 64 * (16 * t + 8 * (j // 4) + j % 4)
    else:
        a(f"v_lshlrev_b32 v{t0}, 6, v{lanev}")
        a(f"v_add_u32 v{t0}, s{n2s}, v{t0}")
        a(f"v_cvt_f32_u32 v{t0}, v{t0}")
        a(f"v_mul_f32 v{t0}, {f32_bits(1/2048):#x}, v{t0}")
        a(f"v_lshlrev_b32 v{t1}, 3, v{hhv}")
        a(f"v_cvt_f32_u32 v{t1}, v{t1}")
        offs = lambda t, j: 16 * t + j
    a(f"v_mul_f32 v{t1}, v{t1}, v{t0}")
    for t in range(2):
        for jp in range(4):
            for e in range(2):
                a(f"v_fmamk_f32 v{t2+e}, v{t0}, {f32_bits(float(offs(t, 2*jp+e))):#x}, v{t1}")
            a(f"v_cos_f32 v{t4}, v{t2}")
            a(f"v_cos_f32 v{t5}, v{t3}")
            a(f"v_sin_f32 v{t2}, v{t2}")
            a(f"v_sin_f32 v{t3}, v{t3}")
            a(f"v_cvt_pk_bf16_f32 v{outs['C']+4*t+jp}, v{t4}, v{t5}")
            if 'S' in outs:
                a(f"v_cvt_pk_bf16_f32 v{outs['S']+4*t+jp}, v{t2}, v{t3}")
                a(f"v_xor_b32 v{outs['NS']+4*t+jp}, 0x80008000, v{outs['S']+4*t+jp}")
            else:
                a(f"v_cvt_pk_bf16_f32 v{outs['Sx']+4*t+jp}, v{t2}, v{t3}")
                a(f"v_xor_b32 v{outs['Sx']+4*t+jp}, s13, v{outs['Sx']+4*t+jp}")


def sg_regs(a, d):
    sig_regs(a, d)
    a("s_mov_b32 exec_lo, 0x10000000\ns_mov_b32 exec_hi, 0x10000000")
    a(f"v_mov_b32 v{d}, 0")
    a("s_mov_b64 exec, -1")

def build_kernel():
    a = Asm()
    a(f""".globl {NAME}
.p2align 8
.type {NAME},@function
{NAME}:""")
    a("s_cmp_ge_u32 s2, 256\ns_cbranch_scc1 k_end")
    a("v_lshrrev_b32 v2, 6, v0")
    a("v_and_b32 v1, 63, v0")
    a(f"v_readfirstlane_b32 s{sW}, v2")
    a(f"v_mov_b32 v4, {LC}\nv_mov_b32 v5, 1")
    a(f"s_cmp_ge_u32 s{sW}, 4\ns_cbranch_scc1 a_pre")
    def kload():
        a("s_load_dwordx16 s[16:31], s[0:1], 0")
        a("s_load_dwordx2 s[32:33], s[0:1], 64")
    def common():
        if STAMPS:
            for i in range(16): a(f"s_mov_b32 s{70+i}, 0")
            a("s_memrealtime s[92:93]")
        a(f"""s_and_b32 s{sX}, s2, 7
s_lshr_b32 s{sJ}, s2, 3
s_and_b32 s15, s{sJ}, 1
s_and_b32 s{sJ4}, s{sJ}, 3
s_lshr_b32 s{sH}, s{sX}, 1
s_lshl_b32 s{sH}, s{sH}, 2
s_add_u32 s{sH}, s{sH}, s{sJ4}
s_lshr_b32 s{sHP}, s{sH}, 1
s_and_b32 s{sQB}, s{sX}, 1
s_lshl_b32 s{sQB}, s{sQB}, 3
s_lshr_b32 s6, s{sJ}, 2
s_add_u32 s{sQB}, s{sQB}, s6""")
        a("v_lshlrev_b32 v3, 4, v1")
        a(f"s_and_b32 s{sWL}, s{sW}, 3")
        a(f"""s_lshl_b32 s11, s{sWL}, 12
s_lshl_b32 s12, s{sWL}, 11
s_lshl_b32 s9, s{sX}, 2
s_add_u32 s{sN2}, s9, s{sJ4}
v_and_b32 v8, 31, v1
v_lshrrev_b32 v9, 5, v1""")
    kload()
    a("s_branch b_go")
    a("a_pre:")
    a(f"s_cmp_lg_u32 s{sW}, 4\ns_cbranch_scc1 k_nz")
    a(f"v_lshl_add_u32 v6, v1, 2, v4\nv_mov_b32 v7, 0")
    a(f"s_mov_b64 exec, {-1}\nds_write_b32 v6, v7\ns_mov_b64 exec, -1")
    a(f"s_lshr_b32 s{sJ}, s2, 3")
    if OPT.get("cpf", 1):
        srd_table(a, SRD_TAB, NAME, "k_end-" + NAME)
        a(f"s_and_b32 s8, s{sJ}, 7\ns_lshl_b32 s8, s8, 13\nv_lshlrev_b32 v6, 7, v1")
        a(f"buffer_load_dword v245, v6, s[{SRD_TAB}:{SRD_TAB+3}], s8 offen")
    a("s_waitcnt lgkmcnt(0)")
    a("k_nz:")
    a("s_barrier")
    kload()
    a("s_branch a_wave")
    a("b_go:")
    if OPT.get("b0prio"): a(f"s_setprio {OPT['b0prio']}")
    common()

    a(f"""s_lshl_b32 s6, s{sJ4}, 1
s_add_u32 s14, s{sQB}, s6
s_mul_i32 s6, s14, 37
s_lshr_b32 s6, s6, 8
s_mul_i32 s6, s6, 7
s_sub_u32 s14, s14, s6""")
    XO, WOF, VWQ, VXA = 10, 14, 15, 16
    a("""v_lshrrev_b32 v6, 3, v1
v_and_b32 v100, 7, v1
v_lshrrev_b32 v101, 1, v6
v_xor_b32 v101, v101, v100
v_mul_u32_u24 v102, 896, v6""")
    a(f"""v_lshl_add_u32 v{XO}, v101, 4, v102
v_mul_u32_u24 v103, 57344, v6
v_lshl_add_u32 v{VXA}, v101, 4, v103
s_and_b32 s8, s{sWL}, 1
s_lshl_b32 s8, s8, 6
v_xor_b32 v{VXA}, s8, v{VXA}
v_xor_b32 v101, 4, v101
v_lshl_add_u32 v{XO+1}, v101, 4, v102
v_add_u32 v{XO+1}, {8*896}, v{XO+1}
v_add_u32 v{XO+2}, {16*896}, v{XO}
v_add_u32 v{XO+3}, {16*896}, v{XO+1}""")
    a(f"""v_bfe_u32 v101, v1, 4, 1
v_lshlrev_b32 v101, 2, v101
v_xor_b32 v101, v101, v100
v_min_u32 v101, 6, v101
v_mul_u32_u24 v102, 2688, v6
v_lshl_add_u32 v{WOF}, v101, 4, v102
v_lshrrev_b32 v6, 2, v1
v_mul_u32_u24 v6, 2688, v6
v_and_b32 v101, 3, v1
v_lshl_add_u32 v{VWQ}, v101, 4, v6""")
    a(f"""s_lshl_b32 s6, s{sQB}, 7
s_lshl_b32 s7, s{sWL}, 5
s_add_u32 s6, s6, s7
s_mul_i32 s6, s6, 896
s_mul_i32 s7, s{sWL}, {16*2688}
s_mul_i32 s8, s15, 896
s_add_u32 s7, s7, s8
s_mul_i32 s8, s{sHP}, 112
s_add_u32 s7, s7, s8
s_add_u32 s7, s7, 896
s_mul_i32 s66, s{sWL}, {16*2688}
s_mul_i32 s8, s{sH}, 56
s_add_u32 s66, s66, s8
s_lshl_b32 s65, s{sWL}, 10
s_lshl_b32 s68, s{sX}, 3
s_and_b32 s8, s{sJ}, 7
s_add_u32 s68, s68, s8
s_mul_i32 s68, s68, 896
s_mul_i32 s8, s{sWL}, {8*57344}
s_add_u32 s68, s68, s8
v_mov_b32 v7, 0""")
    a(f"s_lshr_b32 s13, s{sJ}, 3\ns_lshl_b32 s13, s13, 1")
    srd_table(a, SRD_TAB, NAME, 64)
    VWA = 18
    a("v_mov_b32 v19, 0")
    a(f"""v_lshrrev_b32 v6, 2, v1
s_lshl_b32 s8, s{sWL}, 4
v_add_u32 v6, s8, v6
v_lshlrev_b32 v6, 5, v6
v_add_u32 v6, s{sN2}, v6
v_mul_u32_u24 v6, 450, v6
v_and_b32 v{VWA}, 3, v1
v_lshlrev_b32 v{VWA}, 4, v{VWA}
s_lshr_b32 s9, s{sJ}, 2
s_mul_i32 s9, s9, 56
v_add3_u32 v{VWA}, v6, v{VWA}, s9""")
    a("s_barrier")
    a("s_waitcnt lgkmcnt(0)")
    srd(a, SRD_C, S_AX, 2048 * 896)
    srd(a, SRD_WS, S_WS, WS_SIZE)
    if STAMPS: a("s_mov_b32 s70, s92")
    def xa():
        a(f"s_lshl_b32 s10, s89, 7\ns_add_u32 s10, s10, s68\ns_lshl_b32 s9, s89, 12\ns_add_u32 s9, s9, s65")
        a(f"s_add_u32 m0, s9, {LXA}\ns_add_u32 s89, s89, 1")
        a(f"buffer_load_dwordx4 v{VXA}, s[{SRD_C}:{SRD_C+3}], s10 offen lds")
        a("s_cmp_eq_u32 s89, 7\ns_cselect_b32 s89, 0, s89")
        Q1.append("xa")
    def wa():
        for k, ptr in enumerate((S_WR, S_WI)):
            srd(a, SRD_OUT, ptr, 2048 * 450 + 2)
            a(f"s_add_u32 m0, s12, {LWW + k*1024}\ns_nop 0")
            a(f"buffer_load_dwordx4 v{VWA}, s[{SRD_OUT}:{SRD_OUT+3}], 0 offen lds")
            Q1.append("wa")
    def tlbw():
        sh = OPT.get("tsh", 16)
        a(f"""s_cmp_eq_u32 s{sWL}, 0
s_cselect_b32 s{SRD_OUT}, s{S_WR}, s{S_WI}
s_cselect_b32 s{SRD_OUT+1}, s{S_WR+1}, s{S_WI+1}
s_mov_b32 s{SRD_OUT+2}, {2048*450}
s_mov_b32 s{SRD_OUT+3}, 0x20000
s_cmp_eq_u32 s{sWL}, 2
s_cselect_b32 s{SRD_OUT}, s{S_OUT}, s{SRD_OUT}
s_cselect_b32 s{SRD_OUT+1}, s{S_OUT+1}, s{SRD_OUT+1}
s_cselect_b32 s{SRD_OUT+2}, {2048*1792}, s{SRD_OUT+2}
s_cmp_eq_u32 s{sWL}, 3
s_cselect_b32 s{SRD_OUT}, s{S_WS}, s{SRD_OUT}
s_cselect_b32 s{SRD_OUT+1}, s{S_WS+1}, s{SRD_OUT+1}
s_cselect_b32 s{SRD_OUT+2}, {WS_SIZE}, s{SRD_OUT+2}
s_cselect_b32 s8, 19, {sh}
v_lshlrev_b32 v19, s8, v1""")
        a(f"buffer_load_dword v31, v19, s[{SRD_OUT}:{SRD_OUT+3}], 0 offen")
        Q1.append("tw")
    def wpf():
        a(f"""s_bitcmp1_b32 s{sWL}, 0
s_cselect_b32 s{SRD_OUT}, s{S_WI}, s{S_WR}
s_cselect_b32 s{SRD_OUT+1}, s{S_WI+1}, s{S_WR+1}
s_mov_b32 s{SRD_OUT+2}, {2048*450}
s_mov_b32 s{SRD_OUT+3}, 0x20000
s_lshl_b32 s9, s{sJ}, 1
s_lshr_b32 s10, s{sWL}, 1
s_add_u32 s9, s9, s10
s_lshl_b32 s9, s9, 3
s_add_u32 s9, s9, s{sX}
s_mul_i32 s9, s9, 1800
v_mul_u32_u24 v19, 120, v1
s_mov_b64 exec, 0xffff""")
        a(f"buffer_load_ushort v31, v19, s[{SRD_OUT}:{SRD_OUT+3}], s9 offen")
        a("s_mov_b64 exec, -1")
        srd(a, SRD_OUT, S_OUT, 2048 * 1792)
        Q1.append("vp")
    def xflag():
        a(f"s_mov_b32 m0, {LC + 4*C_EP}\ns_mov_b32 s9, {WS_EP}\ns_mov_b64 exec, 1")
        a(f"buffer_load_dword v7, {WSD}, s9 offen sc1 lds")
        Q1.append("ea")
        a(f"s_lshl_b32 s9, s{sWL}, 2\ns_add_u32 m0, s9, {LC + 4*C_XF}\ns_nop 0")
        a(f"buffer_load_dword v7, s[{SRD_TAB}:{SRD_TAB+3}], 0 offen lds")
        a("s_mov_b64 exec, -1")
        Q1.append("xf")
    def wopf():
        l = lab("wp")
        if OPT.get("b3m"):
            srd(a, SRD_OUT, S_WO, 448 * 896)
            a(f"v_lshlrev_b32 v19, 7, v1\ns_mul_i32 s9, s{sJ}, 12544\ns_mul_i32 s8, s{sWL}, 3200\ns_add_u32 s9, s9, s8\ns_mov_b64 exec, 0x1ffffff")
            a(f"buffer_load_dword v31, v19, s[{SRD_OUT}:{SRD_OUT+3}], s9 offen")
            a("s_mov_b64 exec, -1")
            Q1.append("wp")
            return
        a(f"s_cmp_lg_u32 s{sWL}, 3\ns_cbranch_scc1 {l}")
        srd(a, SRD_OUT, S_WO, 448 * 896)
        a(f"""v_lshrrev_b32 v19, 2, v1
v_mul_u32_u24 v19, 896, v19
v_and_b32 v31, 3, v1
v_mul_u32_u24 v31, 72, v31
v_add_u32 v19, v19, v31
s_mul_i32 s9, s{sJ}, {14*896}
s_lshr_b32 s8, s{sH}, 2
s_mul_i32 s8, s8, 224
s_add_u32 s9, s9, s8
s_mov_b32 exec_hi, 0xffffff""")
        a(f"buffer_load_dword v31, v19, s[{SRD_OUT}:{SRD_OUT+3}], s9 offen")
        a(f"s_mov_b64 exec, -1\ns_branch {l}_d")
        a(f"{l}:")
        a(f"s_mov_b64 exec, 1\nbuffer_load_dword v31, v7, s[{SRD_TAB}:{SRD_TAB+3}], 0 offen\ns_mov_b64 exec, -1")
        a(f"{l}_d:")
        Q1.append("wp")
    a("s_mov_b32 s89, s13")
    Q1 = []
    def vw1(tag):
        a(f"s_waitcnt vmcnt({len(Q1) - 1 - max(i for i, t in enumerate(Q1) if t == tag)})")
    srd(a, SRD_A, S_BX, 2048 * 896)
    srd(a, SRD_B, S_WQKV, 448 * 2688)
    XSL = [0, 1, 0, 1, 0, 1, 0]
    def sig_c(c):
        if c == 0: a("s_mov_b32 s13, s14")
        else: a(f"s_add_u32 s13, s14, {c}\ns_sub_u32 s10, s13, 7\ns_cmp_ge_u32 s13, 7\ns_cselect_b32 s13, s10, s13")
    def dx(c):
        sig_c(c)
        a("s_lshl_b32 s10, s13, 7\ns_add_u32 s10, s10, s6")
        for k in range(4):
            if XSL[c] == 2: a(f"s_add_u32 m0, s12, {LW + (4+k//2)*8192 + (k%2)*1024}\ns_nop 0")
            else: a(f"s_add_u32 m0, s11, {LX + XSL[c]*16384 + k*1024}\ns_nop 0")
            a(f"buffer_load_dwordx4 v{XO+k}, s[{SRD_A}:{SRD_A+3}], s10 offen lds")
        Q1.extend([f"x{c}"] * 4)
    def dw(c):
        sig_c(c)
        a(f"s_mul_i32 s13, s13, {64*2688}\ns_add_u32 s13, s13, s7")
        a(f"s_add_u32 m0, s12, {LW + c*8192}\ns_add_u32 s10, s13, {8*2688}")
        a(f"buffer_load_dwordx4 v{WOF}, s[{SRD_B}:{SRD_B+3}], s13 offen lds")
        a(f"s_add_u32 m0, s12, {LW + c*8192 + 1024}\ns_nop 0")
        a(f"buffer_load_dwordx4 v{WOF}, s[{SRD_B}:{SRD_B+3}], s10 offen lds")
        Q1.extend([f"w{c}"] * 2)
    def dq(c):
        sig_c(c)
        a(f"s_mul_i32 s13, s13, {64*2688}\ns_add_u32 s13, s13, s66\ns_add_u32 m0, s65, {LWQ + c*4096}\ns_nop 0")
        a(f"buffer_load_dwordx4 v{VWQ}, s[{SRD_B}:{SRD_B+3}], s13 offen lds")
        Q1.append("q")
    def epl():
        a(f"s_mov_b32 s9, {WS_EP}")
        a(f"buffer_load_dword v2, v7, {WSD}, s9 offen sc1")
        Q1.append("ep")
    SCH = OPT.get("sch", {-1: "a a a a a a a F x0 w0 e x1 w1", 0: "x2 w2", 1: "x3 w3", 2: "x4 w4", 3: "x5 w5", 4: "x6 w6", 5: "q W"})
    def issue(c):
        for t in SCH.get(c, "").split():
            if t[0] == "x": dx(int(t[1]))
            elif t[0] == "w": dw(int(t[1]))
            elif t == "e": epl()
            elif t == "q":
                for u in range(7): dq(u)
            elif t[0] == "q":
                for u in t[1:]: dq(int(u))
            elif t == "S": stamp(a, 5)
            elif t[0] == "Z":
                if "w" in t:
                    a(f"s_mul_i32 s13, s14, {64*2688}\ns_add_u32 s13, s13, s7\ns_and_b32 s13, s13, -4")
                    a(f"s_load_dword s87, s[{S_WQKV}:{S_WQKV+1}], s13")
                if "e" in t: a(f"s_mov_b32 s13, {WS_EP}\ns_load_dword s88, s[{S_WS}:{S_WS+1}], s13")
                if "a" in t: a(f"s_load_dword s91, s[{S_AX}:{S_AX+1}], s68")
                if "x" in t: a(f"s_load_dword s64, s[{S_BX}:{S_BX+1}], s6")
            elif t == "T": tlbw()
            elif OPT.get("noA"): pass
            elif t == "a": xa()
            elif t == "W": wa()
            elif t == "F": xflag()
            elif t == "P": wopf()
            elif t == "V": wpf()
    issue(-1)
    a(f"""v_and_b32 v6, 31, v1
v_lshrrev_b32 v113, 5, v1
v_bfe_u32 v116, v6, 1, 3
v_lshlrev_b32 v6, 7, v6
v_add_u32 v6, s11, v6""")
    for t in range(4):
        a(f"v_add_u32 v117, {2*t}, v113\nv_xor_b32 v117, v117, v116\nv_lshl_add_u32 v{20+t}, v117, 4, v6")
    a(f"""v_lshlrev_b32 v6, 3, v113
v_bfe_u32 v114, v1, 2, 2
v_add_u32 v6, v6, v114
v_and_b32 v114, 1, v1
v_lshlrev_b32 v114, 5, v114
v_bfe_u32 v117, v1, 4, 1
v_lshl_add_u32 v114, v117, 4, v114
v_bfe_u32 v117, v1, 1, 1
v_lshl_add_u32 v114, v117, 3, v114
v_lshl_add_u32 v26, v6, 6, v114
v_add_u32 v26, {LWQ}, v26
v_bfe_u32 v117, v1, 3, 1
v_lshlrev_b32 v117, 6, v117
v_lshlrev_b32 v6, 7, v6
v_add_u32 v6, {LW}, v6
v_xor_b32 v115, v114, v117
v_add_u32 v24, v6, v115
v_add_u32 v114, 56, v114
v_xor_b32 v115, v114, v117
v_add_u32 v25, v6, v115""")
    srd(a, SRD_OUT, S_OUT, 2048 * 1792)
    ACC, QACC, WF, XR = 32, 40, 80, 144
    SGP = 27
    a("s_cmp_lg_u32 s15, 0\ns_cbranch_scc1 b_v")
    P = 64
    Q1base = list(Q1)
    WQC = OPT.get("wqc", 4)
    EP = OPT.get("ep")
    for ty in range(2):
        if ty: a("b_v:")
        Q1[:] = Q1base
        def rdx(c):
            for t in range(4): a(f"ds_read_b128 {vr(XR+16*c+4*t,4)}, v{20+t} offset:{XSL[c]*16384}")
        def rdw(c):
            wf = WF + 32 * (c % 2)
            for t in range(4):
                for seg in range(2):
                    for aa in range(2):
                        a(f"ds_read_b64_tr_b16 {vr(wf+8*t+4*seg+2*aa,2)}, v{24+seg} offset:{c*8192+(16*t+4*aa)*128}")
        def mm(c, t):
            wf = WF + 32 * (c % 2)
            first = (c == 0 and t == 0)
            for seg in range(2):
                if ty == 0: mfma(a, ACC+16*seg, wf+8*t+4*seg, XR+16*c+4*t, None if first else ACC+16*seg)
                else: mfma(a, ACC+16*seg, XR+16*c+4*t, wf+8*t+4*seg, None if first else ACC+16*seg)
        def vwx(c):
            i = max(i for i, t in enumerate(Q1) if t in (f"x{c}", f"w{c}"))
            a(f"s_waitcnt vmcnt({len(Q1) - 1 - i})")
        def nxt(c):
            a(f"ds_read_b32 v6, v4 offset:{4*C_W0}")
            issue(c)
            l = lab("cw")
            a(f"s_waitcnt lgkmcnt(0)\nv_readfirstlane_b32 s8, v6\ns_nop 1\ns_cmp_ge_u32 s8, {4*(c+1)}\ns_cbranch_scc1 {l}")
            wait_cnt(a, C_W0, 4 * (c + 1))
            a(f"{l}:")
            if c in (0, 1, 3, 5, 6) and not OPT.get("lst") and not OPT.get("qst"): stamp(a, 11 + (0, 1, 3, 5, 6).index(c))
            rdw(c)
        vwx(0)
        if "Z" in SCH[-1]: a("s_waitcnt lgkmcnt(0)")
        rdx(0)
        arrive(a, C_W0)
        a("s_waitcnt lgkmcnt(1)")
        nxt(0)
        for c in range(7):
            a("s_waitcnt lgkmcnt(12)")
            mm(c, 0)
            ex = 0
            if c < 6:
                vwx(c + 1)
                rdx(c + 1)
                arrive(a, C_W0)
                ex = 5
            a(f"s_waitcnt lgkmcnt({8+ex})")
            mm(c, 1)
            if c == 1:
                set_tag(a, 67)
                sg_regs(a, SGP)
            if c == 2 and EP:
                if ty == 0:
                    for seg in range(2): a(f"v_mov_b32 v{P+8*seg+6}, 0x3f803f80\nv_mov_b32 v{P+8*seg+7}, 0x3f80")
                else:
                    a(f"v_and_b32 v{P}, 3, v1\nv_cmp_eq_u32 vcc, 0, v{P}\nv_mov_b32 v{P}, 0x3f803f80\nv_cndmask_b32 v{P}, 0, v{P}, vcc")
                    for r in range(1, 16): a(f"v_mov_b32 v{P+r}, v{P}")
                a(f"s_lshl_b32 s8, s{sW}, 12\nv_add_u32 v31, s8, v3\nv_add_u32 v2, {WS_V}, v3")
                assert LQ == 0
            if c == 6 and EP:
                a(f"""s_lshl_b32 s10, s{sHP}, 7
s_lshl_b32 s11, s{sQB}, 2
s_add_u32 s10, s10, s11
s_add_u32 s10, s10, s{sW}
s_lshl_b32 s10, s10, 11
s_add_u32 s87, s10, {WS_V if ty else WS_K}
s_add_u32 s88, s87, {64*2048}
s_add_u32 s10, s87, {WS_L}
s_add_u32 s11, s88, {WS_L}
v_add_u32 v7, {LKV}, v31""")
            a(f"s_waitcnt lgkmcnt({4+ex})")
            mm(c, 2)
            if c == 6 and EP:
                a(f"""s_lshl_b32 s12, s{sQB}, 2
s_lshl_b32 s13, s{sW}, 3
s_add_u32 s12, s12, s13
s_lshl_b32 s15, s{sH}, 17
s_and_b32 s13, s{sX}, 1
s_lshl_b32 s13, s13, 16
s_add_u32 s15, s15, s13
s_xor_b32 s68, s15, 0x10000
s_add_u32 s15, s15, {WS_L}
s_mov_b32 s{sPASS}, 0
s_mov_b32 s66, 4
s_mov_b32 s14, 20000
s_lshl_b32 s65, s12, 11""")
            a(f"s_waitcnt lgkmcnt({1 if c < 6 else 0})")
            mm(c, 3)
            if c < 6: nxt(c + 1)
        stamp(a, 1)
        if EP:
            vw1("q")
            arrive(a, C_W3)
            if ty: a("s_mov_b32 exec_lo, 0x0fffffff\ns_mov_b32 exec_hi, 0x0fffffff")
            a.nop(8 - 2 * ty)
            for seg in range(2):
                for r in range(8):
                    if ty == 0 and r == 6: a("s_mov_b32 exec_hi, 0")
                    a(f"v_cvt_pk_bf16_f32 v{P+8*seg+r}, v{ACC+16*seg+2*r}, v{ACC+16*seg+2*r+1}")
                a("s_mov_b64 exec, -1")
                sign(a, P + 8 * seg, 8, SGP)
                for t in range(2):
                    a(f"buffer_store_dwordx4 {vr(P+8*seg+4*t,4)}, v3, {WSD}, s{10+seg} offen offset:{t*1024}")
                if ty and seg == 0: a("s_mov_b32 exec_lo, 0x0fffffff\ns_mov_b32 exec_hi, 0x0fffffff")
            if ty == 0: a("s_branch b_st1")
            continue
        a(f"""s_lshl_b32 s10, s{sHP}, 7
s_lshl_b32 s11, s{sQB}, 2
s_add_u32 s10, s10, s11
s_add_u32 s10, s10, s{sW}
s_lshl_b32 s10, s10, 11
s_add_u32 s87, s10, {WS_V if ty else WS_K}
s_add_u32 s88, s87, {64*2048}""")
        a.nop(5)
        for seg in range(2):
            for r in range(8):
                a(f"v_cvt_pk_bf16_f32 v{P+8*seg+r}, v{ACC+16*seg+2*r}, v{ACC+16*seg+2*r+1}")
        if ty == 0:
            a("s_mov_b32 exec_lo, 0")
            for seg in range(2): a(f"v_mov_b32 v{P+8*seg+6}, 0x3f803f80\nv_mov_b32 v{P+8*seg+7}, 0x3f80")
        else:
            a("s_mov_b32 exec_lo, 0xf0000000\ns_mov_b32 exec_hi, 0xf0000000")
            a("v_and_b32 v6, 3, v1\nv_cmp_eq_u32 vcc, 0, v6\nv_mov_b32 v6, 0x3f803f80\nv_cndmask_b32 v6, 0, v6, vcc")
            for r in range(16): a(f"v_mov_b32 v{P+r}, v6")
        a("s_mov_b64 exec, -1")
        if ty == 0: a("s_branch b_st1")
    a("b_st1:")
    a(f"s_setprio {OPT.get('bprio', 2)}")
    if not EP:
        sign(a, P, 16, SGP)
        vw1("q")
        arrive(a, C_W3)
        a(f"s_add_u32 s10, s87, {WS_L}\ns_add_u32 s11, s88, {WS_L}")
        for seg in range(2):
            for t in range(2):
                a(f"buffer_store_dwordx4 {vr(P+8*seg+4*t,4)}, v3, {WSD}, s{10+seg} offen offset:{t*1024} {OPT.get('lm', '')}")
        a(f"s_lshl_b32 s13, s{sW}, 12\ns_add_u32 s13, s13, {LKV}\nv_add_u32 v7, s13, v3")
        for u in range(4): a(f"ds_write_b128 v7, {vr(P+4*u,4)} offset:{u*1024}")
    G4 = 248
    GG = lambda u: G4 + 4 * (u % 2) * OPT.get("g2", 0)
    def g_rd(u): a(f"ds_read_b128 {vr(GG(u),4)}, v7 offset:{u*1024}")
    def g_st(u):
        a("s_waitcnt lgkmcnt(0)")
        a(f"buffer_store_dwordx4 {vr(GG(u),4)}, v3, {WSD}, s{87+u//2} offen offset:{(u%2)*1024} sc1")
    def st_glob():
        for u in range(4):
            a("s_waitcnt vmcnt(0)")
            g_rd(u); g_st(u)
    stamp(a, 2)
    if not EP:
        a(f"s_mov_b32 s10, {f32_bits(QSCALE):#x}\ns_mov_b32 s11, s10")
        a(f"s_lshl_b32 s13, s{sW}, 12\ns_add_u32 s13, s13, {LQ}\nv_add_u32 v31, s13, v3")
    if not EP: a(f"""s_lshl_b32 s12, s{sQB}, 2
s_lshl_b32 s13, s{sW}, 3
s_add_u32 s12, s12, s13
s_lshl_b32 s15, s{sH}, 17
s_and_b32 s13, s{sX}, 1
s_lshl_b32 s13, s13, 16
s_add_u32 s15, s15, s13
s_xor_b32 s68, s15, 0x10000
s_add_u32 s15, s15, {WS_L}
s_mov_b32 s{sPASS}, 0
s_mov_b32 s66, 4
s_mov_b32 s14, 20000""")
    if OPT.get("ns") and not EP: a(f"s_lshl_b32 s65, s12, 11\nv_add_u32 v2, {WS_V}, v3")
    wait_cnt(a, C_W3, 4)
    if OPT.get("agc") == C_W4 and not OPT.get("agp"): arrive(a, C_W4)
    if OPT.get("qst"): stamp(a, 11)
    NB = 5
    Q, O, S, Pp, MX, TMP, KV, SG, CT = 8, 40, 104, 136, 152, 156, 160, 240, 244
    def load_kv(t, force=False):
        buf = t % NB
        md = "sc1" if (force or (OPT.get("kl", "sc1") if t < 8 else OPT.get("kr", "")) == "sc1") else ""
        a(f"s_add_u32 s8, s12, {t%8}\ns_and_b32 s8, s8, 31\ns_lshl_b32 s8, s8, 11\ns_add_u32 s8, s8, s{15 if t < 8 else 68}\ns_add_u32 s9, s8, {WS_V}")
        for u in range(2):
            a(f"buffer_load_dwordx4 {vr(KV+16*buf+4*u,4)}, v3, {WSD}, s8 offen offset:{u*1024} {md}")
        for u in range(2):
            a(f"buffer_load_dwordx4 {vr(KV+16*buf+8+4*u,4)}, v3, {WSD}, s9 offen offset:{u*1024} {md}")
    def kvg(t):
        buf = t % NB
        md = OPT.get("kl", "sc1") if t < 8 else OPT.get("kr", "")
        sal = [f"s_add_u32 s13, s65, {(t%8)*2048}", "s_and_b32 s13, s13, 0xffff", f"s_add_u32 s13, s13, s{15 if t < 8 else 68}",
               f"s_add_u32 s6, s{S_WS}, s13", f"s_addc_u32 s7, s{S_WS+1}, 0"]
        vm = [f"global_load_dwordx4 {vr(KV+16*buf+4*u,4)}, v{3 if u < 2 else 2}, s[6:7] offset:{(u%2)*1024} {md}" for u in range(4)]
        return sal, vm
    NS = OPT.get("ns", 0)
    if NS:
        load_kv_b = load_kv
        def load_kv(t, force=False):
            if force: return load_kv_b(t, True)
            sal, vm = kvg(t)
            for x in sal + vm: a(x)
    WQ = 96
    def rdq(c):
        for t in range(4):
            for aa in range(2):
                a(f"ds_read_b64_tr_b16 {vr(WQ+16*(c%3)+4*t+2*aa,2)}, v26 offset:{c*4096+(16*t+4*aa)*64}")
    rdq(0); rdq(1)
    if EP:
        a(f"s_mov_b32 s10, {f32_bits(QSCALE):#x}\ns_mov_b32 s11, s10")
        assert not OPT.get("qi")
    K5 = OPT.get("kv5", 2)
    KVP = OPT.get("kvp", 4)
    for c in range(7):
        if OPT.get("qi"):
            n0 = len(a.L)
            if c + 2 < 7: rdq(c + 2)
            for t_ in range(K5):
                if c == min(max(KVP + t_, t_ + 2), 6): load_kv(t_)
            fill = a.L[n0:]; del a.L[n0:]
            per = -(-len(fill) // 4)
            for t in range(4):
                nd = sum(1 for x in fill[:per * t] if "ds_read" in x)
                a(f"s_waitcnt lgkmcnt({min(15, (8 if c < 6 else 0) + nd + 2 * (3 - t))})")
                mfma(a, QACC, WQ+16*(c%3)+4*t, XR+16*c+4*t, None if (c == 0 and t == 0) else QACC)
                a.L.extend(fill[per * t:per * (t + 1)])
            continue
        a(f"s_waitcnt lgkmcnt({12 if (EP and c == 1) else 8 if c < 6 else 0})")
        for t in range(4):
            mfma(a, QACC, WQ+16*(c%3)+4*t, XR+16*c+4*t, None if (c == 0 and t == 0) else QACC)
            if EP and c == 0: a(f"ds_write_b128 v7, {vr(P+4*t,4)} offset:{t*1024}")
        if c + 2 < 7: rdq(c + 2)
        if c == KVP: load_kv(0)
        if c == min(KVP + 1, 6): load_kv(1)
        for t_ in range(2, K5):
            if c == min(max(KVP + t_, t_ + 1), 6): load_kv(t_)
    if OPT.get("qst"): stamp(a, 12)
    arrive(a, C_KV)
    a(f"v_mov_b32 v{SG}, v{SGP}")
    a.nop(9)
    QW = Q + 24
    for r in range(8): a(f"v_pk_mul_f32 {vr(QACC+2*r,2)}, {vr(QACC+2*r,2)}, s[10:11]")
    for r in range(8): a(f"v_cvt_pk_bf16_f32 v{QW+r}, v{QACC+2*r}, v{QACC+2*r+1}")
    a(f"s_mov_b32 exec_lo, 0\nv_mov_b32 v{QW+6}, 0\nv_mov_b32 v{QW+7}, 0\ns_mov_b64 exec, -1")
    for t in range(2): a(f"ds_write_b128 v31, {vr(QW+4*t,4)} offset:{t*1024}")
    a("s_waitcnt lgkmcnt(0)")
    arrive(a, C_Q)
    if OPT.get("qst"): stamp(a, 14)
    def rot(sl, dst, sh, base):
        a(f"s_add_u32 s{dst}, s{sW}, {1+sl}\ns_and_b32 s{dst}, s{dst}, 3\ns_lshl_b32 s{dst}, s{dst}, {sh}\ns_add_u32 s{dst}, s{dst}, {base}")
    def getq():
        l = lab("gq")
        a(f"s_cmp_lg_u32 s{sPASS}, 0\ns_cbranch_scc1 {l}")
        wait_cnt(a, C_Q, 4)
        stamp(a, 3)
        for q in range(3):
            rot(q, 8, 12, LQ)
            a(f"v_add_u32 v{TMP+q}, s8, v3")
            for t in range(2): a(f"ds_read_b128 {vr(Q+8*q+4*t,4)}, v{TMP+q} offset:{t*1024}")
        a("s_waitcnt lgkmcnt(0)")
        arrive(a, C_M2)
        a(f"{l}:")
    a("s_branch b_main2")
    a("b_main:")
    for t_ in range(K5): load_kv(t_)
    a("b_main2:")
    NQ = OPT.get("nq", 3)
    seq = [(0, 3), (1, 3), (0, 0), (0, 1), (0, 2), (1, 0), (1, 1), (1, 2)]
    seq += [(t, q) for t in range(2, 16 - NQ) for q in range(4)] + [(t, q) for q in range(4) for t in range(16 - NQ, 16)]
    firstq = {}
    for i, (t, q) in enumerate(seq): firstq.setdefault(q, i)
    retries = []
    issued = [K5 - 1]
    BQ = [t_ for t_ in range(K5) for _ in range(4)]
    gdone = [bool(OPT.get("ag")) and not OPT.get("ags")]
    def chk(t):
        b = KV + 16 * (t % NB)
        a(f"s_waitcnt vmcnt({len(BQ) - 1 - max(i for i, x in enumerate(BQ) if x == t)})")
        if OPT.get("nochk"): return
        l = f"b_chk{t}"
        a(f"{l}:")
        a(f"v_bitop3_b32 v{CT}, v{b}, v{b+4}, v{SG} bitop3:0x7e")
        a(f"v_bitop3_b32 v{CT+1}, v{b+8}, v{b+12}, v{SG} bitop3:0x7e")
        a(f"v_bitop3_b32 v{CT}, v{CT}, s{sMSK}, v{CT+1} bitop3:0xc8")
        a(f"v_cmp_ne_u32 vcc, 0, v{CT}")
        a(f"s_cbranch_vccnz {l}_r")
        a(f"{l}_d:")
        retries.append((t, issued[0], l, gdone[0], False))
    def chk_v(b):
        a(f"v_bitop3_b32 v{CT}, v{b}, v{b+4}, v{SG} bitop3:0x7e")
        a(f"v_bitop3_b32 v{CT+1}, v{b+8}, v{b+12}, v{SG} bitop3:0x7e")
        a(f"v_bitop3_b32 v{CT}, v{CT}, s{sMSK}, v{CT+1} bitop3:0xc8")
        a(f"v_cmp_ne_u32 vcc, 0, v{CT}")
    def chk_a(t):
        a(f"s_waitcnt vmcnt({len(BQ) - 1 - max(i for i, x in enumerate(BQ) if x == t)})")
        chk_v(KV + 16 * (t % NB))
    def chk_b(t):
        l = f"b_chk{t}"
        a(f"s_cbranch_vccnz {l}_r")
        a(f"{l}_d:")
        retries.append((t, issued[0], l, gdone[0], 1 if gpend[0] is None else 2 + gpend[0]))
    SL = {}
    gpend = [None]
    def step(i, extra=None):
        t, q = seq[i]
        par = i % 2
        Sc, Sn = S + 16 * par, S + 16 * (1 - par)
        Pc, Pv = Pp + 8 * par, Pp + 8 * (1 - par)
        ms = [None] * 4
        if i + 1 < len(seq):
            nt, nq = seq[i + 1]; nb = KV + 16 * (nt % NB)
            ms[0] = lambda: mfma(a, Sn, nb, Q+8*nq, None)
            ms[1] = lambda: mfma(a, Sn, nb+4, Q+8*nq+4, Sn)
        if i > 0:
            pt, pq = seq[i - 1]; pb = KV + 16 * (pt % NB)
            ms[2] = lambda: mfma(a, O+16*pq, pb+8, Pv, None if firstq[pq] == i - 1 else O+16*pq)
            ms[3] = lambda: mfma(a, O+16*pq, pb+12, Pv+4, O+16*pq)
        for g in range(4):
            if ms[g]: ms[g]()
            if extra and extra[g]: extra[g]()
            for f in SL.get((i, g), []): f()
            for e in range(4): a(f"v_exp_f32 v{Sc+4*g+e}, v{Sc+4*g+e}")
            a(f"v_cvt_pk_bf16_f32 v{Pc+2*g}, v{Sc+4*g}, v{Sc+4*g+1}")
            a(f"v_cvt_pk_bf16_f32 v{Pc+2*g+1}, v{Sc+4*g+2}, v{Sc+4*g+3}")
    chk(0)
    if OPT.get("qst"): stamp(a, 15)
    mfma(a, S, KV, QW, None)
    mfma(a, S, KV+4, QW+4, S)
    if K5 <= 2:
        if 2 in OPT.get("tat", {}): a.nop(10)
        else:
            load_kv(2); issued[0] = 2; BQ.extend([2] * 4)
            if OPT.get("agp") == 1: arrive(a, C_W4)
            else: a.nop(3)
    else: a.nop(10)
    checked = {0}
    CAX = C_A2D if OPT.get("cax") else C_AX2
    assert not (OPT.get("cax") and OPT.get("odum"))
    last_use = {}
    for i, (t, q) in enumerate(seq): last_use[t] = i
    fin = {}
    for i, (t, q) in enumerate(seq): fin[q] = i
    if NS:
        GS_ = OPT.get("gst", (2, 6, 10, 14))
        busy = set()
        if not OPT.get("ag"):
            for i in GS_: busy |= {(i, 0), (i, 3)}
        firstu = {}
        for i, (t, q) in enumerate(seq): firstu.setdefault(t, i)
        for t in range(2, 16):
            i = firstu[t] - 2
            g = 2 if (i, 3) not in busy else 1
            SL.setdefault((i, g), []).append(lambda t=t: chk_a(t))
            SL.setdefault((i, g + 1), []).append(lambda t=t: chk_b(t))
            busy |= {(i, g), (i, g + 1)}
            checked.add(t)
        def blk(t, vm):
            for x in vm: a(x)
            issued[0] = t; BQ.extend([t] * 4)
        prevb = -1
        for t in range(2 if 2 in OPT.get("tat", {}) else max(3, K5), 16):
            i = t - 3 if t < 5 else last_use[t - NB] + 1
            if t >= 8 and OPT.get("lead"): i = max(i, min(OPT["lead"] + (t - 8) * OPT.get("leadi", 2), firstu[t] - 8))
            if t in OPT.get("tat", {}): i = max(i, OPT["tat"][t])
            sal, vm = kvg(t)
            SL.setdefault((i, 3), []).append(lambda t=t, vm=vm: blk(t, vm))
            busy.add((i, 3))
            k = 4 * i + 2
            sl_ = [sal[3:5]] + [[x] for x in sal[2::-1]] if NS == 1 else [[x] for x in sal[::-1]]
            lo = prevb
            assert 4 * i + 3 > prevb
            prevb = 4 * i + 3
            for n, grp in enumerate(sl_):
                while k > lo and ((k // 4, k % 4) in busy or (k // 4 == 0 and k % 4 >= 2)):
                    assert not (NS == 2 and n == 1), (t, k)
                    k -= 1
                if k <= lo: k = lo + 1
                SL.setdefault((k // 4, k % 4), []).insert(0, lambda grp=grp: [a(x) for x in grp])
                busy.add((k // 4, k % 4))
    for i in range(len(seq)):
        if i + 1 < len(seq) and seq[i + 1][0] not in checked:
            chk(seq[i + 1][0]); checked.add(seq[i + 1][0])
        extra = [None] * 4
        if i == 1: getq()
        LSS = OPT.get("lss", (None, None, 4, 24, 44))
        if OPT.get("lst") and i in LSS:
            stamp(a, 11 + LSS.index(i))
        if i == fin[0] and not OPT.get("noA") and not OPT.get("astop"):
            extra[0] = lambda: a(f"ds_read_b32 v6, v4 offset:{4*CAX}")
        for sl in range(3):
            if i == fin[sl] + 2:
                if sl == 0 and not OPT.get("noA") and not OPT.get("astop"):
                    l = lab("ad")
                    a(f"s_waitcnt lgkmcnt(0)\nv_readfirstlane_b32 s8, v6\ns_nop 3\ns_cmp_ge_u32 s8, 4\ns_cbranch_scc1 {l}")
                    wait_cnt(a, CAX, 4)
                    a(f"{l}:")
                    stamp(a, 5)
                a(f"s_add_u32 s8, s{sW}, {1+sl}\ns_and_b32 s8, s8, 3\ns_mul_i32 s8, s8, 12288\ns_add_u32 s8, s8, {LR+sl*4096}")
                a(f"v_add_u32 v{TMP}, s8, v3")
                wr = lambda g, sl=sl: a(f"ds_write_b128 v{TMP}, {vr(O+16*sl+4*g,4)} offset:{g*1024}")
                extra[1] = lambda wr=wr: (wr(0), wr(1))
                extra[2] = lambda wr=wr: wr(2)
                extra[3] = lambda wr=wr: wr(3)
        if i == fin[2] + 3:
            extra[2] = lambda: (a("s_waitcnt lgkmcnt(0)"), arrive(a, C_R1))
        GS = OPT.get("gst", (2, 6, 10, 14))
        if i in GS and not OPT.get("ag"):
            u = GS.index(i)
            extra[0] = lambda u=u: (g_rd(u), gpend.__setitem__(0, u))
            extra[3] = lambda u=u: (g_st(u), BQ.append(-1), gpend.__setitem__(0, None))
        step(i, extra)
        if i == GS[-1]:
            gdone[0] = True
            arrive(a, C_G)
        if i == OPT.get("tlw"): arrive(a, C_YS)
        if i in OPT.get("ags", ()): arrive(a, C_W4)
        if NS: continue
        if i < 2:
            load_kv(3 + i); issued[0] = 3 + i; BQ.extend([3 + i] * 4)
        if i > 0:
            pt = seq[i - 1][0]
            if last_use[pt] == i - 1 and pt + NB < 16:
                load_kv(pt + NB); issued[0] = pt + NB; BQ.extend([pt + NB] * 4)
    assert fin[2] + 3 <= len(seq) - 1
    a.nop(2)
    lt = KV + 16 * (seq[-1][0] % NB)
    OW = O + 48
    mfma(a, OW, lt+8, Pp+8, OW)
    mfma(a, OW, lt+12, Pp+8+4, OW)
    stamp(a, 4)
    if OPT.get("cnt"): a("s_sub_u32 s81, 20001, s14")
    wait_cnt(a, C_R1, None, 66)
    stamp(a, 6)
    a(f"s_mul_i32 s8, s{sW}, 12288\ns_add_u32 s8, s8, {LR}\nv_add_u32 v{TMP}, s8, v3")
    for sl in range(3):
        for g in range(4): a(f"ds_read_b128 {vr(O+16*sl+4*g,4)}, v{TMP} offset:{sl*4096+g*1024}")
    a(f"s_mov_b32 s8, {f32_bits(2.0**-80):#x}\ns_mov_b32 s9, {f32_bits(2.0**100):#x}\ns_mov_b32 s10, {f32_bits(2.0**127):#x}")
    for sl in range(3):
        a(f"s_waitcnt lgkmcnt({4*(2-sl)})")
        for r in (6, 7, 0, 1, 2, 3, 4, 5): a(f"v_pk_add_f32 {vr(OW+2*r,2)}, {vr(OW+2*r,2)}, {vr(O+16*sl+2*r,2)}")
    a(f"v_mov_b32 v{TMP}, v{OW+12}\nv_mov_b32 v{TMP+1}, v{OW+12}")
    for r in range(4): a(f"v_pk_add_f32 {vr(O+2*r,2)}, {vr(OW+4*r,2)}, {vr(OW+4*r+2,2)}")
    a(f"v_permlane32_swap_b32 v{TMP}, v{TMP+1}")
    for r in range(2): a(f"v_pk_add_f32 {vr(O+2*r,2)}, {vr(O+2*r,2)}, {vr(O+2*r+4,2)}")
    a(f"v_cmp_le_f32 s[52:53], s8, v{TMP+1}")
    a(f"v_cmp_ge_f32 s[54:55], s9, v{TMP+1}")
    a(f"v_rcp_f32 v{TMP}, v{TMP+1}")
    a(f"v_pk_add_f32 {vr(O,2)}, {vr(O,2)}, {vr(O+2,2)}")
    a(f"v_add_f32 v{O}, v{O}, v{O+1}")
    a(f"v_cmp_ge_f32 s[56:57], s10, abs(v{O})")
    for r in range(8): a(f"v_pk_mul_f32 {vr(OW+2*r,2)}, {vr(OW+2*r,2)}, {vr(TMP,2)} op_sel_hi:[1,0]")
    a("s_and_b64 s[52:53], s[52:53], s[54:55]\ns_and_b64 s[52:53], s[52:53], s[56:57]")
    for r in range(8): a(f"v_cvt_pk_bf16_f32 v{Pp+r}, v{OW+2*r}, v{OW+2*r+1}")
    a(f"s_mov_b32 exec_lo, 0\nv_mov_b32 v{Pp+6}, 0\nv_mov_b32 v{Pp+7}, 0\ns_mov_b64 exec, -1")
    sign(a, Pp, 8, SG)
    a(f"""s_lshl_b32 s10, s{sQB}, 2
s_add_u32 s10, s10, s{sW}
s_lshl_b32 s10, s10, 4
s_add_u32 s10, s10, s{sH}
s_lshl_b32 s8, s10, 11
s_add_u32 s8, s8, {WS_O}""")
    a(f"s_cmp_lg_u32 s{sPASS}, 0\ns_cbranch_scc1 b_nofail")
    if not OPT.get("forcefail"): a("s_cmp_eq_u64 s[52:53], -1\ns_cbranch_scc1 b_nofail")
    arrive(a, C_FAIL)
    a("s_branch b_nost")
    a("b_nofail:")
    for t in range(2):
        a(f"buffer_store_dwordx4 {vr(Pp+4*t,4)}, v3, {WSD}, s8 offen offset:{t*1024} sc1")
    a("b_nost:")
    a("s_waitcnt lgkmcnt(0)")
    arrive(a, C_R2)
    wait_cnt(a, C_R2, None, 66)
    a(f"s_cmp_lg_u32 s{sPASS}, 0\ns_cbranch_scc1 b_pub")
    a(f"ds_read_b32 v6, v4 offset:{4*C_FAIL}\ns_waitcnt lgkmcnt(0)\nv_readfirstlane_b32 s8, v6\ns_nop 3")
    a("s_cmp_lg_u32 s8, 0\ns_cbranch_scc1 b_slow")
    a("b_pub:")
    stamp(a, 7)
    WF3, OF3, ACC3 = 8, 152, 216
    if not OPT.get("noA") and not OPT.get("astop"): wait_cnt(a, C_WO, 4)
    a(f"""v_lshrrev_b32 v6, 5, v1
v_lshlrev_b32 v6, 4, v6
v_bfe_u32 v7, v1, 2, 2
v_add_u32 v6, v6, v7
v_mul_u32_u24 v6, 224, v6
v_and_b32 v7, 1, v1
v_lshl_add_u32 v6, v7, 5, v6
v_bfe_u32 v7, v1, 4, 1
v_lshl_add_u32 v6, v7, 4, v6
v_bfe_u32 v7, v1, 1, 1
v_lshl_add_u32 v6, v7, 3, v6
s_lshl_b32 s8, s{sW}, 6
v_add_u32 v6, s8, v6""")
    VA = 244
    for g in range(4):
        a(f"s_add_u32 s8, s{sW}, {g}\ns_and_b32 s8, s8, 3\ns_mul_i32 s9, s8, {4*28*224}\nv_add_u32 v{VA+g}, s9, v6")
        if g: a(f"s_lshl_b32 s8, s8, 13\ns_add_u32 s8, s8, {LO}\nv_add_u32 v{VA+3+g}, s8, v3")
    def wo_rd(h0, h1):
        for h in range(h0, h1):
            for t in range(2):
                for aa in range(2):
                    a(f"ds_read_b64_tr_b16 {vr(WF3+8*h+4*t+2*aa,2)}, v{VA+h//4} offset:{LWO+(28*(h%4)+8*t+4*aa)*224}")
    OFS = OPT.get("ofs", 16)
    wo_rd(0, OFS)
    a(f"""s_and_b32 s12, s{sX}, 1
s_lshl_b32 s12, s12, 5
s_lshr_b32 s11, s{sX}, 1
s_lshl_b32 s11, s11, 3
s_add_u32 s12, s12, s11
s_lshr_b32 s11, s{sJ}, 2
s_add_u32 s12, s12, s11""")
    a(f"""s_lshl_b32 s11, s12, 4
s_lshl_b32 s8, s{sW}, 2
s_add_u32 s11, s11, s8""")
    a(f"s_lshl_b32 s11, s11, 11\ns_add_u32 s11, s11, {WS_O}\ns_lshl_b32 s8, s{sW}, 13\ns_add_u32 s8, s8, {LO}")
    a(f"s_mov_b32 s14, 20000\nv_add_u32 v7, s8, v3")
    FL = 52
    for i in range(4): a(f"s_mov_b64 s[{FL+2*i}:{FL+2*i+1}], -1")
    def o_dma(i, md="sc1"):
        for u in range(2):
            a(f"s_add_u32 m0, s8, {(2*i+u)*1024}\ns_add_u32 s9, s11, {(2*i+u)*1024}")
            a(f"buffer_load_dwordx4 v3, {WSD}, s9 offen {md} lds")
    if OFS < 16 or OPT.get("om1") != "sc1":
        for i in range(4): o_dma(i, OPT.get("om1"))
        wo_rd(OFS, 16)
        a("s_branch b_opoll1")
    a("b_opoll:")
    def each(tag, f):
        for i in range(4):
            a(f"s_cmp_eq_u64 s[{FL+2*i}:{FL+2*i+1}], 0\ns_cbranch_scc1 b_o{tag}{i}")
            f(i)
            a(f"b_o{tag}{i}:")
    each("d", o_dma)
    a("b_opoll1:")
    a("s_waitcnt vmcnt(0)")
    each("r", lambda i: [a(f"ds_read_b128 {vr(OF3+8*i+4*u,4)}, v7 offset:{(2*i+u)*1024}") for u in range(2)])
    a("s_waitcnt lgkmcnt(0)")
    for i in range(4):
        a(f"v_bitop3_b32 v{232+i}, v{OF3+8*i}, v{OF3+8*i+4}, v{SG} bitop3:0x7e")
    for i in range(4):
        a(f"v_and_b32 v{232+i}, s{sMSK}, v{232+i}")
    for i in range(4):
        a(f"v_cmp_ne_u32 s[{FL+2*i}:{FL+2*i+1}], 0, v{232+i}")
    a("s_nop 3")
    a(f"s_or_b64 vcc, s[{FL}:{FL+1}], s[{FL+2}:{FL+3}]\ns_or_b64 vcc, vcc, s[{FL+4}:{FL+5}]\ns_or_b64 vcc, vcc, s[{FL+6}:{FL+7}]")
    a("s_cbranch_scc0 b_opoll_d")
    if OPT.get('osleep', 2): a(f"s_sleep {OPT.get('osleep', 2)}")
    a("s_sub_u32 s14, s14, 1\ns_cmp_lg_u32 s14, 0\ns_cbranch_scc1 b_opoll")
    a("b_opoll_d:")
    if OPT.get("cnt"): a("s_sub_u32 s82, 20001, s14")
    stamp(a, 8)
    arrive(a, C_O)
    for i in range(8): mfma(a, ACC3, WF3+4*i, OF3+4*i, None if i == 0 else ACC3)
    wait_cnt(a, C_O, 4)
    stamp(a, 9)
    def rdo(g, dst):
        for i in range(8): a(f"ds_read_b128 {vr(dst+4*i,4)}, v{VA+3+g} offset:{i*1024}")
    rdo(1, OF3+32); rdo(2, OF3)
    for i in range(8):
        a(f"s_waitcnt lgkmcnt({15-i})")
        mfma(a, ACC3, WF3+32+4*i, OF3+32+4*i, ACC3)
    rdo(3, OF3+32)
    for i in range(8):
        a(f"s_waitcnt lgkmcnt({15-i})")
        mfma(a, ACC3, WF3+64+4*i, OF3+4*i, ACC3)
    for i in range(8):
        a(f"s_waitcnt lgkmcnt({7-i})")
        mfma(a, ACC3, WF3+96+4*i, OF3+32+4*i, ACC3)
    a(f"""v_and_b32 v6, 31, v1
v_mul_u32_u24 v6, 1792, v6
v_lshrrev_b32 v7, 5, v1
v_lshl_add_u32 v6, v7, 5, v6
s_mul_i32 s7, s12, 57344
{f"s_mov_b32 s8, s{sJ4}" if OPT.get("b3m") else f"s_lshr_b32 s8, s{sH}, 2"}
s_mul_i32 s8, s8, 224
s_add_u32 s7, s7, s8
s_lshl_b32 s8, s{sW}, 6
s_add_u32 s7, s7, s8
s_add_u32 s7, s7, 896""")
    a.nop(2)
    for r in range(8): a(f"v_cvt_pk_bf16_f32 v{OF3+r}, v{ACC3+2*r}, v{ACC3+2*r+1}")
    a(f"""s_cmp_lg_u32 s{sW}, 3
s_cbranch_scc1 b_st
s_mov_b32 exec_hi, 0
b_st:""")
    for t in range(2):
        a(f"buffer_store_dwordx4 {vr(OF3+4*t,4)}, v6, s[{SRD_OUT}:{SRD_OUT+3}], s7 offen offset:{t*16} {OPT.get('omod', '')}")
    a("s_mov_b64 exec, -1")
    a(f"s_or_b32 s8, s2, s{sW}\ns_cmp_lg_u32 s8, 0\ns_cbranch_scc1 b_noep")
    a(f"s_mov_b64 exec, 1\nv_mov_b32 v6, s67\nv_mov_b32 v7, 0\ns_mov_b32 s8, {WS_EP}")
    a(f"buffer_store_dword v6, v7, {WSD}, s8 offen sc1")
    a("s_mov_b64 exec, -1")
    a("b_noep:")
    stamp(a, 10)
    stamp_out(a, 16)
    a("s_endpgm")
    for (t, iss, l, gd, inl) in retries:
        a(f"{l}_r:")
        a(f"s_sub_u32 s14, s14, 1\ns_cmp_le_i32 s14, 0\ns_cbranch_scc1 {l}_d")
        if OPT.get("rsleep", 1): a(f"s_sleep {OPT.get('rsleep', 1)}")
        if t < 8:
            a(f"s_cmp_gt_u32 s14, {20000 - OPT.get('nloc', 4)}\ns_cbranch_scc1 {l}_g")
            a(f"s_xor_b32 s15, s15, {WS_L}")
        if not gd and OPT.get("ag"): arrive(a, C_W4)
        elif not gd:
            a(f"s_bitcmp1_b32 s14, 0\ns_cbranch_scc1 {l}_g")
            st_glob()
        if t < 8: a(f"{l}_g:")
        for u in range(t, iss + 1): load_kv(u, True)
        a(f"s_waitcnt vmcnt(0)")
        if inl:
            if inl >= 2: g_rd(inl - 2)
            chk_v(KV + 16 * (t % NB))
            a(f"s_cbranch_vccnz {l}_r\ns_branch {l}_d")
        else: a(f"s_branch {l}")
    a("b_slow:")
    a(f"s_mov_b32 s{sPASS}, 1\ns_mov_b32 s66, 8\ns_lshr_b32 s87, s87, 1\ns_add_u32 s87, s87, {WS_JUNK}\ns_mov_b32 s88, s87")
    a("s_waitcnt vmcnt(0)")
    for q in range(4): a(f"v_mov_b32 v{MX+q}, 0xff800000")
    a("s_mov_b32 s14, 16\ns_mov_b32 s69, 20000")
    a("b_mloop:")
    a("s_and_b32 s13, s14, 7\ns_add_u32 s13, s13, s12\ns_and_b32 s13, s13, 31\ns_lshl_b32 s8, s13, 11\ns_bitcmp1_b32 s14, 3\ns_cselect_b32 s9, s15, s68\ns_add_u32 s8, s8, s9")
    for t in range(2):
        a(f"buffer_load_dwordx4 {vr(KV+4*t,4)}, v3, {WSD}, s8 offen offset:{t*1024} sc1")
    a("s_waitcnt vmcnt(0)")
    a(f"v_bitop3_b32 v{CT}, v{KV}, v{KV+4}, v{SG} bitop3:0x7e")
    a(f"v_and_b32 v{CT}, s{sMSK}, v{CT}")
    a(f"v_cmp_ne_u32 vcc, 0, v{CT}")
    a("s_cbranch_vccz b_mok")
    a(f"s_xor_b32 s15, s15, {WS_L}\ns_sub_u32 s69, s69, 1\ns_cmp_gt_i32 s69, 0\ns_cbranch_scc1 b_mloop")
    a("b_mok:")
    for q in range(4):
        mfma(a, S, KV, Q+8*q, None)
        mfma(a, S, KV+4, Q+8*q+4, S)
        a.nop(12)
        for r in range(8): a(f"v_max3_f32 v{MX+q}, v{MX+q}, v{S+2*r}, v{S+2*r+1}")
    a("s_sub_u32 s14, s14, 1\ns_cmp_lg_u32 s14, 0\ns_cbranch_scc1 b_mloop")
    a(f"v_lshlrev_b32 v{TMP}, 2, v1\ns_lshl_b32 s9, s{sW}, 10")
    for q in range(4):
        rot(q, 8, 8, LMX)
        a(f"s_add_u32 s8, s8, s9\nv_add_u32 v{TMP+1}, s8, v{TMP}")
        a(f"ds_write_b32 v{TMP+1}, v{MX+q}")
    a("s_waitcnt lgkmcnt(0)")
    arrive(a, C_M1)
    wait_cnt(a, C_M1, 4)
    a(f"v_and_b32 v{TMP}, 31, v1\nv_lshlrev_b32 v{TMP}, 2, v{TMP}")
    for q in range(4):
        rot(q, 8, 8, LMX)
        a(f"v_add_u32 v{TMP+1}, s8, v{TMP}")
        for w in range(4):
            for hh in range(2):
                a(f"ds_read_b32 v{S+2*w+hh}, v{TMP+1} offset:{w*1024+hh*128}")
        a("s_waitcnt lgkmcnt(0)")
        a(f"v_max3_f32 v{MX+q}, v{S}, v{S+1}, v{S+2}")
        a(f"v_max3_f32 v{MX+q}, v{MX+q}, v{S+3}, v{S+4}")
        a(f"v_max3_f32 v{MX+q}, v{MX+q}, v{S+5}, v{S+6}")
        a(f"v_max_f32 v{MX+q}, v{MX+q}, v{S+7}")
    a("s_mov_b32 s8, -1.0")
    a("s_mov_b32 exec_lo, 0")
    for q in range(4):
        a(f"""v_mul_f32 v{TMP}, s8, v{MX+q}
v_and_b32 v{TMP+1}, 0xffff0000, v{TMP}
v_sub_f32 v{TMP}, v{TMP}, v{TMP+1}
v_and_b32 v{TMP+3}, 0xffff0000, v{TMP}
v_sub_f32 v{TMP}, v{TMP}, v{TMP+3}
v_lshrrev_b32 v{TMP+1}, 16, v{TMP+1}
v_or_b32 v{Q+8*q+6}, v{TMP+1}, v{TMP+3}
v_lshrrev_b32 v{Q+8*q+7}, 16, v{TMP}""")
    a("s_mov_b64 exec, -1")
    a("s_mov_b32 s14, 20000")
    a("s_branch b_main")

    a("a_wave:")
    common()
    a(f"""s_lshr_b32 s{sDQ}, s2, 6
s_lshr_b32 s{sG}, s{sJ}, 2""")
    a(f"""s_lshl_b32 s67, s{sX}, 3
s_and_b32 s9, s{sJ}, 7
s_add_u32 s67, s67, s9
s_lshr_b32 s{sG1}, s{sJ}, 3
s_lshl_b32 s{sG1}, s{sG1}, 1
s_lshr_b32 s9, s{sWL}, 1
s_add_u32 s{sG1}, s{sG1}, s9
s_and_b32 s68, s{sWL}, 1""")
    F, E1C, E1S, E3C, E3X, CSN, CSC = 16, 128, 136, 144, 152, 160, 216
    A1ACC, A1XF, A1XP, A1Y = 168, 184, 200, 184
    VWO = 10
    sK1 = sN2
    a(f"""v_and_b32 v202, 3, v8
v_lshrrev_b32 v203, 3, v8
v_lshl_add_u32 v202, v203, 2, v202
v_bfe_u32 v203, v8, 2, 1
v_lshlrev_b32 v203, 4, v203
s_mul_i32 s9, s{sG1}, 28
v_add3_u32 v202, v202, v203, s9
s_mul_i32 s9, s68, 0x3e800000
v_mov_b32 v204, s9
v_cvt_f32_u32 v202, v202
v_mul_f32 v202, {f32_bits(1/448):#x}, v202
v_lshlrev_b32 v203, 3, v9
v_cvt_f32_u32 v203, v203
v_fma_f32 v204, v203, v202, v204""")
    def gen_F(hooks):
        T0, KK = 168, 200
        a(f"v_cos_f32 v{KK}, v202\ns_nop 0\nv_add_f32 v{KK}, v{KK}, v{KK}\nv_mov_b32 v{KK+1}, v{KK}")
        def seeds(tp):
            T = T0 + 16 * (tp % 2)
            L = []
            for j in range(2):
                for e in range(2):
                    L.append(f"v_fmamk_f32 v{T+2*j+e}, v202, {f32_bits(float(16*(2*tp+e)+j)):#x}, v204")
            for j in range(2):
                for e in range(2):
                    L.append(f"v_cos_f32 v{T+2*j+e}, v{T+2*j+e}")
            return L
        def rec(tp):
            T = T0 + 16 * (tp % 2)
            L = []
            for j in range(2, 8):
                L.append(f"v_pk_fma_f32 {vr(T+2*j,2)}, {vr(KK,2)}, {vr(T+2*j-2,2)}, {vr(T+2*j-4,2)} neg_lo:[0,0,1] neg_hi:[0,0,1]")
                if j % 2 == 0:
                    jp = j // 2 - 1
                    for e in range(2): L.append(f"v_cvt_pk_bf16_f32 v{F+4*(2*tp+e)+jp}, v{T+4*jp+e}, v{T+4*jp+2+e}")
            for e in range(2): L.append(f"v_cvt_pk_bf16_f32 v{F+4*(2*tp+e)+3}, v{T+12+e}, v{T+14+e}")
            return L
        for x in seeds(0): a(x)
        a("s_nop 0")
        for tp in range(14):
            if tp in hooks: hooks[tp]()
            R = rec(tp); S_ = seeds(tp + 1) if tp < 13 else []
            while R or S_:
                if R: a(R.pop(0))
                if S_: a(S_.pop(0))
    W2, WR = 240, 232
    hooks = {}
    if OPT.get("spf") and not OPT.get("noA"):
        st = OPT["spf"]
        L = [("s[6:7]", r * 57344 + c) for r in range(2) for c in range(0, 896, st)]
        if OPT.get("spw"): L += [("s[14:15]", c) for c in range(0, 1800 + st - 4, st - 8)]
        H0 = OPT.get("sph", 2)
        per = -(-len(L) // (14 - H0))
        def h0():
            a(f"""s_lshr_b32 s8, s{sJ}, 3
s_lshl_b32 s8, s8, 2
s_add_u32 s8, s8, s{sWL}
s_mul_i32 s8, s8, {2*57344}
s_mul_i32 s9, s67, 896
s_add_u32 s8, s8, s9
s_lshl_b32 s9, s{sJ}, 1
s_lshr_b32 s10, s{sWL}, 1
s_add_u32 s9, s9, s10
s_lshl_b32 s9, s9, 3
s_add_u32 s9, s9, s{sX}
s_mul_i32 s9, s9, 1800
s_waitcnt lgkmcnt(0)
s_add_u32 s6, s{S_AX}, s8
s_addc_u32 s7, s{S_AX+1}, 0
s_cmp_eq_u32 s68, 0
s_cselect_b32 s14, s{S_WR}, s{S_WI}
s_cselect_b32 s15, s{S_WR+1}, s{S_WI+1}
s_add_u32 s14, s14, s9
s_addc_u32 s15, s15, 0""")
        def mk(tp):
            def f():
                if tp == H0: h0()
                for (b, o) in L[(tp - H0) * per:(tp - H0 + 1) * per]:
                    a(f"s_load_dword s10, {b}, {min(o, 1796) if b == 's[14:15]' else o}")
            return f
        for tp in range(H0, 14): hooks[tp] = mk(tp)
    gen_F(hooks)
    a("s_lshl_b32 s13, s68, 31\ns_lshr_b32 s8, s13, 16\ns_or_b32 s13, s13, s8")
    gen_E(a, 8, 9, 67, 'a1', {'C': E1C, 'Sx': E1S}, 204)
    stamp(a, 8)
    a("s_waitcnt lgkmcnt(0)")
    if STAMPS: a("s_mov_b32 s70, s92")
    srd(a, SRD_WS, S_WS, WS_SIZE)
    t0, t1, t2 = 186, 187, 188
    def gen_CS():
        a(f"""s_lshl_b32 s8, s{sWL}, 4
v_and_b32 v{t0}, 15, v1
v_add_u32 v{t0}, s8, v{t0}
v_cvt_f32_u32 v{t0}, v{t0}
v_mul_f32 v{t0}, {f32_bits(1/64):#x}, v{t0}
v_lshrrev_b32 v{t1}, 4, v1
v_lshlrev_b32 v{t1}, 2, v{t1}
v_cvt_f32_u32 v{t1}, v{t1}
v_mul_f32 v{t1}, v{t1}, v{t0}""")
        for kap in range(2):
            for hf in range(2):
                for i in range(4):
                    a(f"v_fmamk_f32 v{t2+i}, v{t0}, {f32_bits(float(32*kap+16*hf+i)):#x}, v{t1}")
                for i in range(4): a(f"v_cos_f32 v{t2+4+i}, v{t2+i}")
                for i in range(4): a(f"v_sin_f32 v{t2+i}, v{t2+i}")
                o = 4 * kap + 2 * hf
                for i in range(2): a(f"v_cvt_pk_bf16_f32 v{CSC+o+i}, v{t2+4+2*i}, v{t2+4+2*i+1}")
                for i in range(2): a(f"v_cvt_pk_bf16_f32 v{CSC+8+o+i}, v{t2+2*i}, v{t2+2*i+1}")
                for i in range(2): a(f"v_xor_b32 v{CSN+o+i}, 0x80008000, v{CSC+8+o+i}")
    def gen_E3():
        a(f"s_mov_b32 s8, {f32_bits(2.0/(2048*448)):#x}\ns_lshl_b32 s9, s68, 31\ns_xor_b32 s9, s9, s8\ns_xor_b32 s9, s9, 0x80000000")
        a(f"""v_lshlrev_b32 v{t0}, 6, v8
v_add_u32 v{t0}, s67, v{t0}
v_cvt_f32_u32 v{t0}, v{t0}
v_mul_f32 v{t0}, {f32_bits(1/2048):#x}, v{t0}
v_lshlrev_b32 v{t1}, 3, v9
v_cvt_f32_u32 v{t1}, v{t1}
v_mul_f32 v{t1}, v{t1}, v{t0}""")
        for tau in range(2):
            for hf in range(2):
                for i in range(4):
                    a(f"v_fmamk_f32 v{t2+i}, v{t0}, {f32_bits(float(16*tau+4*hf+i)):#x}, v{t1}")
                for i in range(4): a(f"v_cos_f32 v{t2+4+i}, v{t2+i}")
                for i in range(4): a(f"v_sin_f32 v{t2+i}, v{t2+i}")
                for i in range(4): a(f"v_mul_f32 v{t2+4+i}, s8, v{t2+4+i}")
                for i in range(4): a(f"v_mul_f32 v{t2+i}, s9, v{t2+i}")
                o = 4 * tau + 2 * hf
                for i in range(2): a(f"v_cvt_pk_bf16_f32 v{E3C+o+i}, v{t2+4+2*i}, v{t2+4+2*i+1}")
                for i in range(2): a(f"v_cvt_pk_bf16_f32 v{E3X+o+i}, v{t2+2*i}, v{t2+2*i+1}")
    if OPT.get("cs", 1) == 0: gen_CS()
    if OPT.get("e3", 0) == 0: gen_E3()
    srd(a, SRD_B, S_WO, 448 * 896)
    srd(a, SRD_OUT, S_OUT, 2048 * 1792)
    a(f"""v_bfe_u32 v10, v8, 1, 3
v_lshlrev_b32 v6, 7, v8
v_add_u32 v6, {LXA}, v6""")
    for t in range(4):
        a(f"v_add_u32 v7, {2*t}, v9\nv_xor_b32 v7, v7, v10\nv_lshl_add_u32 v{12+t}, v7, 4, v6")
    XS = 7
    a(f"s_setprio {OPT.get('prio', 3)}")
    if OPT.get("noA"): a("s_branch a_fin")
    a("s_mov_b32 s69, 400000")
    a("a_xw:")
    a(f"ds_read_b128 v[200:203], v4 offset:{4*C_XF}")
    a("s_waitcnt lgkmcnt(0)")
    a("v_min3_u32 v200, v200, v201, v202\nv_min_u32 v200, v200, v203\ns_sub_u32 s69, s69, 1")
    a("v_readfirstlane_b32 s8, v200\ns_nop 1")
    a("s_cmp_lg_u32 s8, 0\ns_cbranch_scc1 a_xw_d\ns_sleep 1\ns_cmp_lg_u32 s69, 0\ns_cbranch_scc1 a_xw")
    a("a_xw_d:")
    if OPT.get("a2o", 0) & 1: a("s_waitcnt vmcnt(0)")
    a(f"ds_read_b32 v2, v4 offset:{4*C_EP}")
    stamp(a, 3)
    a(f"s_setprio {OPT.get('gprio', 3)}")
    for c in range(7):
        xf = A1XF + 16 * (c % 2)
        if c == XS:
            if not OPT.get("noA"): vwait("x6")
            arrive(a, C_AX2)
            wait_cnt(a, C_AX2, 4)
        if c == 0 or c == XS:
            for t in range(4): a(f"ds_read_b128 {vr(xf+4*t,4)}, v{12+t} offset:{c*4096}")
        nxt = c < 6 and c + 1 != XS
        if nxt:
            for t in range(4): a(f"ds_read_b128 {vr(A1XF+16*((c+1)%2)+4*t,4)}, v{12+t} offset:{(c+1)*4096}")
        a(f"s_waitcnt lgkmcnt({4 if nxt else 0})")
        for t in range(4):
            mfma(a, A1ACC, xf+4*t, F+4*(4*c+t), None if (c == 0 and t == 0) else A1ACC)
        if c == 1: arrive(a, C_AX)
    a(f"s_setprio {OPT.get('prio', 3)}")
    a(f"s_lshl_b32 s8, s{sWL}, 11\ns_add_u32 s8, s8, {LEX}\nv_add_u32 v6, s8, v3")
    a("v_mov_b32 v11, v6")
    set_tag(a)
    wait_cnt(a, C_AX, 4)
    a("v_mov_b32 v6, v11")
    a.nop(4)
    for r in range(8): a(f"v_cvt_pk_bf16_f32 v{A1XP+r}, v{A1ACC+2*r}, v{A1ACC+2*r+1}")
    for t in range(2): a(f"ds_write_b128 v6, {vr(A1XP+4*t,4)} offset:{t*1024}")
    for t in range(2): mfma(a, A1Y, A1XP+4*t, E1C+4*t, None if t == 0 else A1Y)
    a("s_waitcnt lgkmcnt(0)")
    stamp(a, 4)
    arrive(a, C_AEX)
    wait_cnt(a, C_AEX, 4)
    a(f"s_xor_b32 s8, s{sWL}, 1\ns_lshl_b32 s8, s8, 11\ns_add_u32 s8, s8, {LEX}\nv_add_u32 v6, s8, v3")
    for t in range(2): a(f"ds_read_b128 {vr(A1XP+8+4*t,4)}, v6 offset:{t*1024}")
    a("s_waitcnt lgkmcnt(0)")
    for t in range(2): mfma(a, A1Y, A1XP+8+4*t, E1S+4*t, A1Y)
    sig_regs(a, 128)
    a(f"""s_lshl_b32 s8, s{sG1}, 6
s_add_u32 s8, s8, s67
s_lshl_b32 s8, s8, 12
s_lshl_b32 s9, s68, 6
s_add_u32 s8, s8, s9
s_add_u32 s8, s8, {WS_Y}
s_add_u32 s9, s12, {LYT}
v_lshlrev_b32 v6, 6, v8
v_lshl_add_u32 v6, v9, 5, v6
v_add_u32 v6, s9, v6
v_add_u32 v7, s9, v3
v_lshrrev_b32 v11, 2, v1
v_lshlrev_b32 v11, 7, v11
v_and_b32 v12, 3, v1
v_lshl_add_u32 v11, v12, 4, v11""")
    for r in range(8): a(f"v_cvt_pk_bf16_f32 v{A1XP+r}, v{A1Y+2*r}, v{A1Y+2*r+1}")
    for t in range(2): a(f"ds_write_b128 v6, {vr(A1XP+4*t,4)} offset:{t*16}")
    for t in range(2): a(f"ds_read_b128 {vr(A1XP+8+4*t,4)}, v7 offset:{t*1024}")
    a("s_waitcnt lgkmcnt(0)")
    sign(a, A1XP+8, 8, 128)
    a("s_mov_b32 s10, s8")
    stamp(a, 1)
    if OPT.get("cs", 1) == 2: gen_CS()
    if OPT.get("e3", 0) == 2: gen_E3()
    a(f"""v_lshrrev_b32 v6, 2, v1
s_lshl_b32 s8, s{sWL}, 4
v_add_u32 v6, s8, v6
v_lshlrev_b32 v6, 5, v6
v_add_u32 v6, s{sK1}, v6
v_mul_u32_u24 v6, 450, v6
v_and_b32 v7, 3, v1
v_lshlrev_b32 v7, 4, v7
s_mul_i32 s9, s{sG}, 56
v_add3_u32 v10, v6, v7, s9""")
    srd(a, SRD_TAB, S_WR, 2048 * 450 + 2)
    srd(a, SRD_C, S_WI, 2048 * 450 + 2)
    def wdma():
        for k, sd in enumerate((SRD_TAB, SRD_C)):
            a(f"s_add_u32 m0, s12, {LWW + k*1024}\ns_nop 0")
            a(f"buffer_load_dwordx4 v10, s[{sd}:{sd+3}], 0 offen lds")
    wait_cnt(a, *OPT["ysw"])
    setprio(a, OPT.get('p1', 3))
    AS = OPT.get("astop", 0)
    if AS == 1: a("s_branch a_fin")
    for t in range(2):
        if AS != 3: a(f"buffer_store_dwordx4 {vr(A1XP+8+4*t,4)}, v11, {WSD}, s10 offen offset:{t*2048} {OPT.get('ym', 'sc1')}")
    def odum():
        a(f"""s_lshl_b32 s8, s{sQB}, 2
s_add_u32 s8, s8, s{sWL}
s_lshl_b32 s8, s8, 4
s_add_u32 s8, s8, s{sH}
s_lshl_b32 s8, s8, 11
s_add_u32 s8, s8, {WS_O}
v_not_b32 v168, v128""")
        for t in range(2): a(f"buffer_store_dwordx4 v[168:171], v3, {WSD}, s8 offen offset:{t*1024} sc1")
    if OPT.get("odum") == 1: odum()
    if AS == 2: a("s_branch a_fin")
    if OPT.get("wpos", 0) == 1: wdma()
    if OPT.get("yf", 0):
        a(f"s_lshl_b32 s8, s{sG}, 7\ns_lshl_b32 s9, s67, 1\ns_add_u32 s8, s8, s9\ns_add_u32 s8, s8, s68\ns_lshl_b32 s8, s8, 2\ns_add_u32 s8, s8, {WS_FY}")
        flag_store(a, 8)
    stamp(a, 5)
    if OPT.get("p2") is not None: setprio(a, OPT["p2"])
    THR = OPT.get("thr", 2)
    WOO = 140
    def wo_addr():
        a("s_mov_b32 s9, 0x12492493")
        a(f"s_mov_b32 s8, s{sJ4}" if OPT.get("b3m") else f"s_lshr_b32 s8, s{sH}, 2")
        a("s_mul_i32 s8, s8, 224")
        a(f"""v_mul_hi_u32 v7, v1, s9
v_mul_u32_u24 v6, 14, v7
v_sub_u32 v6, v1, v6
v_mul_u32_u24 v7, 896, v7
v_lshl_add_u32 v7, v6, 4, v7
v_add_u32 v{WOO}, s8, v7""")
    def wo_part(k0, k1, pad):
        n = k1 - k0
        THR = OPT.get("thr", 2) if pad else OPT.get("thr2", OPT.get("thr", 2))
        if not OPT.get("ho"): wo_addr()
        a(f"""s_lshr_b32 s10, s{sJ}, 2
s_mul_i32 s10, s10, {n}
s_lshr_b32 s10, s10, 3
s_add_u32 s10, s10, {k0}
s_lshl_b32 s10, s10, 2
s_add_u32 s10, s10, s{sWL}
s_mul_i32 s10, s10, 896""")
        for k in range(n):
            a(f"s_add_u32 m0, s10, {LWO}\ns_lshl_b32 s13, s10, 2")
            if k > THR: a(f"s_waitcnt vmcnt({THR})")
            a(f"buffer_load_dwordx4 v{WOO}, s[{SRD_B}:{SRD_B+3}], s13 offen lds")
            if k < n - 1: a(f"s_add_u32 s10, s10, {4*896}\ns_sub_u32 s11, s10, {4*n*896}\ns_cmp_ge_u32 s10, {4*k1*896}\ns_cselect_b32 s10, s11, s10")
        if pad:
            a(f"s_mov_b32 m0, {LWO+448*224}\ns_mov_b32 s13, {448*896}")
            a(f"buffer_load_dwordx4 v{WOO}, s[{SRD_B}:{SRD_B+3}], s13 offen lds")
    YF, Z = 168, 200
    VY, VP, VPW, VD = 76, 80, 81, 82
    a(f"""v_and_b32 v14, 15, v1
v_lshrrev_b32 v15, 4, v1
s_lshl_b32 s6, s{sG}, 18
s_lshl_b32 s7, s{sK1}, 7
s_add_u32 s6, s6, s7
s_lshl_b32 s7, s{sWL}, 16
s_add_u32 s6, s6, s7
s_add_u32 s6, s6, {WS_Y}
v_bfe_u32 v6, v1, 1, 2
v_bfe_u32 v7, v1, 4, 2
v_xor_b32 v6, v6, v7
v_and_b32 v7, 1, v1
v_lshl_add_u32 v6, v6, 1, v7
v_lshrrev_b32 v7, 3, v1
v_lshlrev_b32 v7, 12, v7
v_lshl_add_u32 v{VD}, v6, 4, v7
v_and_b32 v6, 3, v6
v_lshlrev_b32 v6, 2, v6
v_lshrrev_b32 v136, v6, s{sSIG}""")
    a(f"""v_lshrrev_b32 v6, 2, v1
v_and_b32 v7, 3, v1
v_lshlrev_b32 v7, 3, v7
v_lshl_add_u32 v{VP}, v6, 6, v7
v_add_u32 v{VP}, {LP}, v{VP}
v_lshl_add_u32 v7, v6, 7, v7
v_add_u32 v7, {LY}, v7
v_bfe_u32 v6, v1, 3, 2""")
    for P_ in range(4):
        a(f"v_xor_b32 v11, {P_}, v6\nv_lshl_add_u32 v{VY+P_}, v11, 5, v7")
    a(f"""s_lshl_b32 s8, s{sWL}, 10
s_add_u32 s8, s8, {LP}
v_lshlrev_b32 v6, 6, v14
v_lshl_add_u32 v6, v15, 3, v6
v_add_u32 v{VPW}, s8, v6
s_add_u32 s8, s12, {LWW}
v_add_u32 v6, s8, v6""")
    if OPT.get("cs", 1) == 1: gen_CS()
    a("v_mov_b32 v12, v6")
    A2O = OPT.get("a2o", 0)
    if A2O & 1:
        for r in range(16): a(f"v_mov_b32 v{W2+r}, 0")
    def wproc():
        if A2O & 1:
            for k in range(4):
                for e in range(4): a(f"ds_read_u16_d16_hi v{W2+4*k+e}, v12 offset:{(k//2)*1024+(k%2)*32+2*e}")
        else:
            for k in range(4):
                a(f"ds_read_b64 {vr(WR+2*k,2)}, v12 offset:{(k//2)*1024+(k%2)*32}")
        a("s_waitcnt lgkmcnt(0)")
        for k in range(4):
            if not A2O & 1: a(f"""v_lshlrev_b32 v{W2+4*k}, 16, v{WR+2*k}
v_and_b32 v{W2+4*k+1}, 0xffff0000, v{WR+2*k}
v_lshlrev_b32 v{W2+4*k+2}, 16, v{WR+2*k+1}
v_and_b32 v{W2+4*k+3}, 0xffff0000, v{WR+2*k+1}""")
        a(f"s_cmp_lg_u32 s{sG}, 0\ns_cbranch_scc1 a_w1")
        a(f"s_mov_b64 exec, 0xffff\nv_mul_f32 v{W2}, 0.5, v{W2}\nv_mul_f32 v{W2+8}, 0.5, v{W2+8}\ns_mov_b64 exec, -1")
        a("a_w1:")
        a(f"s_cmp_lg_u32 s{sG}, 7\ns_cbranch_scc1 a_w2")
        a(f"s_mov_b32 exec_lo, 0\ns_mov_b32 exec_hi, 0xffff0000\nv_mul_f32 v{W2+4}, 0.5, v{W2+4}\nv_mul_f32 v{W2+12}, 0.5, v{W2+12}\ns_mov_b64 exec, -1")
        a("a_w2:")
    if OPT.get("wpos", 0) == 1:
        a("s_waitcnt vmcnt(0)")
        wproc()
    stamp(a, 7)
    def chk8(r0, n, sg, acc):
        for i in range(n // 8): a(f"v_bitop3_b32 v{acc+i}, v{r0+8*i}, v{r0+8*i+4}, v{sg} bitop3:0x7e")
        if n == 8: a(f"v_and_b32 v{acc}, s{sMSK}, v{acc}")
        else:
            a(f"v_or3_b32 v{acc}, v{acc}, v{acc+1}, v{acc+2}")
            a(f"v_bitop3_b32 v{acc}, v{acc}, s{sMSK}, v{acc+3} bitop3:0xc8")
        a(f"v_cmp_ne_u32 vcc, 0, v{acc}")
    if OPT.get("yf", 0):
        a(f"s_lshl_b32 s8, s{sG}, 9\ns_lshl_b32 s9, s{sWL}, 7\ns_add_u32 s8, s8, s9\ns_add_u32 s8, s8, {WS_FY}\nv_lshlrev_b32 v13, 2, v8")
        poll(a, 13, "s8", -1, width=1, vt=132, sleep=OPT.get("fsleep", 2))
        if OPT.get("cnt"): a("s_sub_u32 s71, 20001, s9")
    if AS == 4: a("s_branch a_fin")
    if OPT.get("wop") == 2:
        wait_cnt(a, C_M2, 4)
        wo_part(10, 28, True)
    def wbk(pos, wc=None):
        if OPT.get("wb") is None or OPT.get("wbp", 0) != pos: return
        l = lab("wb")
        a(f"s_and_b32 s8, s{sJ}, {OPT['wb']}\ns_xor_b32 s8, s8, {OPT.get('wbj', 0)}\ns_or_b32 s8, s8, s{sWL}\ns_cmp_lg_u32 s8, 0\ns_cbranch_scc1 {l}")
        if wc is not None: wait_cnt(a, wc, 4, sleep=2)
        a(f"buffer_wbl2 {OPT.get('wbm', 'sc1')}")
        if OPT.get("wbw", 1):
            a("s_waitcnt vmcnt(0)")
            stamp(a, 5)
        a(f"{l}:")
    if OPT.get("ag"):
        a(f"""s_lshl_b32 s10, s{sHP}, 7
s_lshl_b32 s11, s{sQB}, 2
s_add_u32 s10, s10, s11
s_add_u32 s10, s10, s{sWL}
s_lshl_b32 s10, s10, 11
s_and_b32 s11, s{sJ}, 1
s_mul_i32 s11, s11, {WS_V - WS_K}
s_add_u32 s10, s10, s11
s_add_u32 s11, s10, {64*2048}
s_lshl_b32 s13, s{sWL}, 12
s_add_u32 s13, s13, {LKV}
v_add_u32 v13, s13, v3""")
        if OPT.get("ho"):
            if OPT.get("hop") is not None: a(f"s_setprio {OPT['hop']}")
            wo_addr()
            a(f"""s_add_u32 s8, s12, {LTT}
v_lshlrev_b32 v6, 7, v14
v_lshl_add_u32 v6, v15, 3, v6
v_add_u32 v83, s8, v6
v_add_u32 v84, s8, v3
s_lshl_b32 s9, s{sK1}, 5
s_and_b32 s9, s9, 64
v_and_b32 v11, 7, v1
v_lshlrev_b32 v11, 4, v11
v_xor_b32 v11, s9, v11
v_lshrrev_b32 v6, 3, v1
v_lshl_add_u32 v85, v6, 15, v11
v_bfe_u32 v6, v1, 2, 2
v_lshl_add_u32 v6, v9, 3, v6
v_lshlrev_b32 v6, 7, v6
v_bfe_u32 v7, v1, 3, 1
v_xor_b32 v7, s68, v7
v_lshl_add_u32 v14, v7, 6, v6
v_xor_b32 v15, 64, v14
v_bfe_u32 v6, v1, 4, 1
v_lshlrev_b32 v6, 2, v6
v_and_b32 v7, 1, v1
v_lshl_add_u32 v6, v7, 1, v6
v_bfe_u32 v7, v1, 1, 1
v_add_u32 v11, v6, v7
v_lshl_add_u32 v142, v11, 3, v14
v_lshl_add_u32 v143, v11, 3, v15
s_lshl_b32 s8, s{sWL}, 13
v_add_u32 v137, s8, v3
s_mov_b32 s8, 114688
v_mul_lo_u32 v6, v8, s8
v_lshlrev_b32 v7, 5, v9
v_add_u32 v129, v6, v7
v_sub_u32 v130, v6, v7
v_add_u32 v130, 32, v130
s_add_u32 s8, s12, {LEX2}
v_add_u32 v131, s8, v3
v_xor_b32 v141, 2048, v131
s_add_u32 s8, s12, {LY}
v_add_u32 v86, s8, v3""")
            assert LT == 0
            for r in range(4): a(f"v_mov_b32 v{124+r}, 0")
            if OPT.get("hop") is not None: a(f"s_setprio {OPT.get('p1', 3)}")
        wait_cnt(a, OPT.get("agc", C_KV), 4, sleep=1)
        for u in range(4): a(f"ds_read_b128 {vr(Z+4*u,4)}, v13 offset:{u*1024}")
        a("s_mov_b32 s87, s10\ns_mov_b32 s88, s11")
        def ag_st(u):
            a(f"buffer_store_dwordx4 {vr(Z+4*u,4)}, v3, {WSD}, s{87+u//2} offen offset:{(u%2)*1024} {OPT.get('gm', 'sc1')}")
        for u in range(4 - OPT.get("agl", 0)):
            a(f"s_waitcnt lgkmcnt({3-u})")
            if OPT.get("ags") and OPT["ags"][u] is not None: wait_cnt(a, C_W4, 4 * (1 + sum(1 for x in OPT["ags"][:u] if x is not None)), sleep=2)
            ag_st(u)
        a("s_waitcnt lgkmcnt(0)")
    wbk(1, C_Q)
    wbk(4, C_M2)
    if AS == 8: a("s_branch a_fin")
    if OPT.get("ylw") is not None: wait_cnt(a, OPT["ylw"], 4, sleep=2)
    setprio(a, OPT.get('a2prio', 3))
    YCA = 86 if OPT.get("ho") else 13
    a(f"""s_add_u32 s8, s12, {LY}
{"" if OPT.get("ho") else "v_add_u32 v13, s8, v3"}
s_add_u32 s9, s6, {8*4096}
s_mov_b32 s14, 20000""")
    if OPT.get("wpos", 0) == 0: wdma()
    a("a_ypoll:")
    a("s_mov_b32 m0, s8\ns_nop 0")
    a(f"buffer_load_dwordx4 v{VD}, {WSD}, s6 offen sc1 lds")
    a(f"s_add_u32 m0, s8, 1024\ns_nop 0")
    a(f"buffer_load_dwordx4 v{VD}, {WSD}, s9 offen sc1 lds")
    a("s_waitcnt vmcnt(0)")
    for i in range(2): a(f"ds_read_b32 v{YF+4*i}, v{YCA} offset:{i*1024}")
    a("s_waitcnt lgkmcnt(0)")
    chk8(YF, 8, 136, 132)
    a("s_cbranch_vccz a_ypoll_d")
    a(f"s_sleep {OPT.get('psleep', 4)}")
    a("s_sub_u32 s14, s14, 1\ns_cmp_lg_u32 s14, 0\ns_cbranch_scc1 a_ypoll")
    a("a_ypoll_d:")
    if OPT.get("cnt"): a("s_sub_u32 s76, 20001, s14")
    stamp(a, 10)
    arrive(a, C_AY)
    if OPT.get("wpos", 0) == 0: wproc()
    if OPT.get("agl") and OPT.get("aglb"):
        for u in range(4 - OPT["agl"], 4): ag_st(u)
    if OPT.get("wpos", 0) == 2: wdma()
    if OPT.get("agl") and not OPT.get("aglb"):
        for u in range(4 - OPT["agl"], 4): ag_st(u)
    if OPT.get("wpos", 0) == 3:
        wait_cnt(a, C_G, 4)
        wdma()
    wait_cnt(a, C_AY, 4)
    stamp(a, 11)
    yf = lambda ri, ch, kap: YF + 4 * ((ri * 2 + ch) * 2 + kap)
    cs = lambda kap, k: (CSC, CSC + 8, CSN)[k] + 4 * kap
    z = lambda ri, ch: Z + 8 * ri + 4 * ch
    def dft64(rd, k01, k10):
        FR = [(ri, ch, kap) for kap in range(2) for ri in range(2) for ch in range(2)]
        DP = OPT.get("a2d", 3)
        for f_ in FR[:DP]: rd(*f_)
        seen = set()
        for n, (ri, ch, kap) in enumerate(FR):
            a(f"s_waitcnt lgkmcnt({2 * (min(8, n + DP) - n - 1)})")
            for (zo, kk) in ((ri, 0), (1 - ri, k01 if ri else k10)):
                mfma16(a, z(zo,ch), yf(ri,ch,kap), cs(kap,kk), z(zo,ch) if (zo, ch) in seen else None)
                seen.add((zo, ch))
            if n + DP < 8: rd(*FR[n + DP])
    def rdY(ri, ch, kap):
        for aa in range(2): a(f"ds_read_b64_tr_b16 {vr(yf(ri,ch,kap)+2*aa,2)}, v{VY+2*ri+ch} offset:{(32*kap+16*aa)*128}")
    def rdP(ri, ch, kap):
        for aa in range(2): a(f"ds_read_b64_tr_b16 {vr(yf(ri,ch,kap)+2*aa,2)}, v{VP} offset:{ri*4096+(32*kap+16*aa)*64+ch*32}")
    if A2O & 4: dft64(rdY, 1, 2)
    else:
        for ri in range(2):
            for ch in range(2):
                for kap in range(2):
                    for aa in range(2):
                        a(f"ds_read_b64_tr_b16 {vr(yf(ri,ch,kap)+2*aa,2)}, v{VY+2*ri+ch} offset:{(32*kap+16*aa)*128}")
        a("s_waitcnt lgkmcnt(0)")
        cs = lambda kap, k: (CSC, CSC + 8, CSN)[k] + 4 * kap
        z = lambda ri, ch: Z + 8 * ri + 4 * ch
        for kap in range(2):
            for ch in range(2):
                mfma16(a, z(0,ch), yf(0,ch,kap), cs(kap,0), None if kap == 0 else z(0,ch))
                mfma16(a, z(1,ch), yf(1,ch,kap), cs(kap,0), None if kap == 0 else z(1,ch))
        for kap in range(2):
            for ch in range(2):
                mfma16(a, z(0,ch), yf(1,ch,kap), cs(kap,1), z(0,ch))
                mfma16(a, z(1,ch), yf(0,ch,kap), cs(kap,2), z(1,ch))
    if OPT.get("wpos", 0) >= 2:
        a(f"s_waitcnt vmcnt({0 if OPT.get('aglb') else OPT.get('agl', 0)})")
        stamp(a, 7)
        wproc()
    else: a.nop(9)
    for i in range(0, 8, 2) if A2O & 2 else []:
        zr, zi, wr, wi = vr(Z + i, 2), vr(Z + 8 + i, 2), vr(W2 + i, 2), vr(W2 + 8 + i, 2)
        t_, u_ = vr(YF + 2 * i, 2), vr(YF + 2 * i + 2, 2)
        a(f"""v_pk_mul_f32 {t_}, {zi}, {wi}
v_pk_mul_f32 {u_}, {zr}, {wi}
v_pk_fma_f32 {zr}, {zr}, {wr}, {t_} neg_lo:[0,0,1] neg_hi:[0,0,1]
v_pk_fma_f32 {zi}, {zi}, {wr}, {u_}""")
    for i in range(8) if not A2O & 2 else []:
        zr, zi, wr, wi = Z + i, Z + 8 + i, W2 + i, W2 + 8 + i
        a(f"""v_mul_f32 v6, v{zi}, v{wi}
v_mul_f32 v7, v{zr}, v{wi}
v_fma_f32 v{zr}, v{zr}, v{wr}, -v6
v_fma_f32 v{zi}, v{zi}, v{wr}, v7""")
    for i in range(8): a(f"v_cvt_pk_bf16_f32 v{W2+i}, v{Z+2*i}, v{Z+2*i+1}")
    for i in range(4): a(f"ds_write_b64 v{VPW}, {vr(W2+2*i,2)} offset:{(i//2)*4096+(i%2)*32}")
    a("s_waitcnt lgkmcnt(0)")
    arrive(a, C_AP)
    wait_cnt(a, C_AP, 4)
    if A2O & 4: dft64(rdP, 2, 1)
    else:
        for ri in range(2):
            for ch in range(2):
                for kap in range(2):
                    for aa in range(2):
                        a(f"ds_read_b64_tr_b16 {vr(yf(ri,ch,kap)+2*aa,2)}, v{VP} offset:{ri*4096+(32*kap+16*aa)*64+ch*32}")
        a("s_waitcnt lgkmcnt(0)")
        for kap in range(2):
            for ch in range(2):
                mfma16(a, z(0,ch), yf(0,ch,kap), cs(kap,0), None if kap == 0 else z(0,ch))
                mfma16(a, z(1,ch), yf(1,ch,kap), cs(kap,0), None if kap == 0 else z(1,ch))
        for kap in range(2):
            for ch in range(2):
                mfma16(a, z(0,ch), yf(1,ch,kap), cs(kap,2), z(0,ch))
                mfma16(a, z(1,ch), yf(0,ch,kap), cs(kap,1), z(1,ch))
    T6, T7, T11 = (83, 84, 85) if OPT.get("ho") else (6, 7, 11)
    if OPT.get("ho"): a.nop(4)
    else: a(f"""s_add_u32 s8, s12, {LTT}
v_lshlrev_b32 v6, 7, v14
v_lshl_add_u32 v6, v15, 3, v6
v_add_u32 v6, s8, v6
v_add_u32 v7, s8, v3
s_lshl_b32 s9, s{sK1}, 5
s_and_b32 s9, s9, 64
v_and_b32 v11, 7, v1
v_lshlrev_b32 v11, 4, v11
v_xor_b32 v11, s9, v11
v_lshrrev_b32 v12, 3, v1
v_lshl_add_u32 v11, v12, 15, v11""")
    a(f"""s_lshl_b32 s6, s{sG}, 12
s_lshl_b32 s7, s{sK1}, 7
s_add_u32 s6, s6, s7
s_lshl_b32 s7, s{sWL}, 19
s_add_u32 s6, s6, s7
s_add_u32 s6, s6, {WS_T}
s_add_u32 s7, s6, {8*32768}""")
    for i in range(8): a(f"v_cvt_pk_bf16_f32 v{W2+i}, v{Z+2*i}, v{Z+2*i+1}")
    for i in range(4): a(f"ds_write_b64 v{T6}, {vr(W2+2*i,2)} offset:{(i//2)*64+(i%2)*32}")
    for u in range(2): a(f"ds_read_b128 {vr(W2+8+4*u,4)}, v{T7} offset:{u*1024}")
    a("s_waitcnt lgkmcnt(0)")
    sign(a, W2+8, 8, 128)
    for u in range(2):
        a(f"buffer_store_dwordx4 {vr(W2+8+4*u,4)}, v{T11}, {WSD}, s{6+u} offen sc1")
    if OPT.get("odum") == 2: odum()
    stamp(a, 12)
    arrive(a, C_A2D)
    if OPT.get("p3") is not None: setprio(a, OPT["p3"])
    wbk(2)
    TFR = [76, 92, 108, 160, 176, 192, 208, 240]
    UU, UBB, ACCF, NQF = [224, 76], [132, 92], 240, 124
    VT = 142 if OPT.get("ho") else 12
    TCA = 137 if OPT.get("ho") else 10
    if not OPT.get("ho"): a(f"""v_bfe_u32 v6, v1, 2, 2
v_lshl_add_u32 v6, v9, 3, v6
v_lshlrev_b32 v6, 7, v6
v_add_u32 v6, {LT}, v6
v_bfe_u32 v7, v1, 3, 1
v_xor_b32 v7, s68, v7
v_lshl_add_u32 v14, v7, 6, v6
v_xor_b32 v15, 64, v14
v_bfe_u32 v6, v1, 4, 1
v_lshlrev_b32 v6, 2, v6
v_and_b32 v7, 1, v1
v_lshl_add_u32 v6, v7, 1, v6
v_bfe_u32 v7, v1, 1, 1
v_add_u32 v11, v6, v7
v_lshl_add_u32 v{VT}, v11, 3, v14
v_lshl_add_u32 v{VT+1}, v11, 3, v15""")
    def jump(jb):
        if OPT.get("ho"):
            m = sum(1 << l for l in range(32) if 4 * ((l >> 4) & 1) + 2 * (l & 1) + ((l >> 1) & 1) == jb)
            a(f"s_mov_b32 exec_lo, {m:#x}\ns_mov_b32 exec_hi, {m:#x}")
            if OPT["ho"] == 2: a(f"v_lshl_add_u64 {vr(VT,2)}, {vr(VT,2)}, 0, s[10:11]")
            else: a(f"v_add_u32 v{VT}, 4040, v{VT}\nv_add_u32 v{VT+1}, 4040, v{VT+1}")
            a("s_mov_b64 exec, -1")
            return
        a(f"v_cmp_eq_u32 vcc, {jb}, v11\nv_cndmask_b32 v6, 0, v141, vcc\nv_add_u32 v{VT}, v{VT}, v6\nv_add_u32 v{VT+1}, v{VT+1}, v6")
    a(f"""{"" if OPT.get("ho") else "v_mov_b32 v141, 4040"}
s_lshl_b32 s6, s67, 15
s_lshl_b32 s7, s{sWL}, 13
s_add_u32 s6, s6, s7
s_add_u32 s6, s6, {WS_T}
s_add_u32 s7, s7, {LT}
{"" if OPT.get("ho") else "v_add_u32 v10, s7, v3"}
s_lshr_b32 s15, s{sJ}, 3
s_lshl_b32 s15, s15, 11""")
    setprio(a, OPT.get('mprio', 1))
    wait_cnt(a, C_A2D, 4)
    if OPT.get("e3", 0) == 1: gen_E3()
    wait_cnt(a, C_M2, 4)
    if AS == 5: a("s_branch a_fin")
    wait_cnt(a, C_G, 4)
    assert OPT.get("wop") == 1
    WS_ = OPT.get("wsp", 10)
    wo_part(WS_, 28, True)
    arrive(a, C_AX2)
    if AS == 6: a("s_branch a_fin")
    if OPT.get("tlw"): wait_cnt(a, C_YS, 4, sleep=4)
    stamp(a, 13)
    if AS == 12: a("s_waitcnt vmcnt(0)\ns_branch a_fin")
    for i in range(8):
        a(f"s_add_u32 s8, s15, {i*1024}\ns_and_b32 s8, s8, 8191\ns_add_u32 m0, s7, s8\ns_add_u32 s8, s8, s6")
        a(f"buffer_load_dwordx4 v3, {WSD}, s8 offen {OPT.get('tm', '')} lds")
    a("s_mov_b32 s14, 20000")
    a("s_waitcnt vmcnt(0)")
    a(f"a_tchk0:")
    for i in range(8): a(f"ds_read_b32 v{160+4*i}, v{TCA} offset:{i*1024}")
    a("s_waitcnt lgkmcnt(0)")
    chk8(160, 32, 128, 132)
    a(f"s_cbranch_vccnz a_tchk0_r")
    a(f"a_tchk0_d:")
    stamp(a, 14)
    if OPT.get("cnt"): a("s_sub_u32 s78, 20001, s14")
    if AS == 9: a("s_branch a_fin")
    arrive(a, C_AT)
    wait_cnt(a, C_AT, 4)
    if AS == 10: a("s_branch a_fin")
    def rdT(tau_, va, off):
        tf = TFR[tau_]
        if OPT.get("rdp") is not None: a(f"s_setprio {OPT['rdp']}")
        rdT_(tf, va, off)
        if OPT.get("rdp") is not None: a(f"s_setprio {OPT.get('mprio', 1)}")
        if OPT.get("rdw") is not None: a(f"s_waitcnt lgkmcnt({OPT['rdw']})")
    def rdT_(tf, va, off):
        for w_ in range(2):
            for tau in range(2):
                for aa in range(2):
                    a(f"ds_read_b64_tr_b16 {vr(tf+8*w_+4*tau+2*aa,2)}, v{va+w_} offset:{off+(16*tau+4*aa)*128}")
    def st1(tau_, u=None):
        tf = TFR[tau_]; u = UU[tau_ % 2] if u is None else u
        for tau in range(2): mfma(a, u, tf+4*tau, E3C+4*tau, None if tau == 0 else u)
        for tau in range(2): mfma(a, u, tf+8+4*tau, E3X+4*tau, u)
    def cvtU(tau_):
        u = UU[tau_ % 2]; ub = UBB[tau_ % 2]
        for r in range(8): a(f"v_cvt_pk_bf16_f32 v{ub+r}, v{u+2*r}, v{u+2*r+1}")
    def st2(tau_):
        ub = UBB[tau_ % 2]
        for s_ in range(2): mfma(a, ACCF, F+4*(2*tau_+s_), ub+4*s_, ACCF)
    if OPT.get("ho") == 2: a("s_mov_b32 s10, 4040\ns_mov_b32 s11, 4040")
    rdT(7, 14, 7 * 4096 + 56)
    for t_ in range(7):
        jump(7 - t_)
        rdT(t_, VT, t_ * 4104)
        if t_ == 0 and AS != 11:
            a("s_waitcnt lgkmcnt(8)")
            st1(7, UU[0])
    if AS == 11: a("s_branch a_fin")
    if not OPT.get("ho"):
        for r in range(4): a(f"v_mov_b32 v{NQF+r}, 0")
    a(f"s_mov_b32 exec_hi, 0\nv_cvt_pk_bf16_f32 v{NQF}, v{UU[0]}, 0\ns_mov_b64 exec, -1")
    a("s_waitcnt lgkmcnt(0)")
    arrive(a, C_ADONE)
    mfma(a, ACCF, F+4*14, NQF, None)
    stamp(a, 15)
    if AS == 7: a("s_branch a_fin")
    wbk(3)
    wait_cnt(a, C_ADONE, 4)
    wo_part(0, WS_, False)
    a("s_waitcnt vmcnt(0)")
    arrive(a, C_WO)
    if not OPT.get("cnt"): stamp(a, 6)
    OA, OD = (129, 130) if OPT.get("ho") else (10, 11)
    if not OPT.get("ho"): a(f"""s_mov_b32 s8, 114688
v_mul_lo_u32 v6, v8, s8
v_lshlrev_b32 v7, 5, v9
v_add_u32 v10, v6, v7
v_sub_u32 v11, v6, v7
v_add_u32 v11, 32, v11""")
    a(f"""s_mul_i32 s7, s67, 1792
s_mul_i32 s8, s{sG1}, 56
s_lshl_b32 s9, s68, 4
s_add_u32 s8, s8, s9
s_add_u32 s6, s7, s8
s_sub_u32 s7, s7, s8
s_add_u32 s7, s7, 882
s_sub_u32 s7, s7, 32""")
    wbk(0)
    if OPT.get("late", 1):
        wait_cnt(a, OPT.get("latec", C_R1), 4, sleep=OPT.get("lsl", 4))
    stamp(a, 9)
    setprio(a, OPT.get('tprio', 1))
    for t_ in range(8):
        if t_ < 7: st1(t_)
        else: a.nop(10)
        if t_ > 0:
            cvtU(t_ - 1)
            a.nop(1)
            st2(t_ - 1)
    X6, X7 = (131, 141) if OPT.get("ho") else (6, 7)
    if not OPT.get("ho"): a(f"s_add_u32 s8, s12, {LEX2}\nv_add_u32 v6, s8, v3\nv_xor_b32 v7, 2048, v6")
    else: a.nop(3)
    XC, YP, YM = 168, 176, 184
    a.nop(14)
    a("s_cmp_lg_u32 s68, 0\ns_cbranch_scc1 a_x1")
    for ri in range(2):
        if ri: a("a_x1:")
        keep, send = ACCF + 8 * ri, ACCF + 8 * (1 - ri)
        for t in range(2): a(f"ds_write_b128 v{X6}, {vr(send+4*t,4)} offset:{t*1024}")
        a("s_waitcnt lgkmcnt(0)")
        arrive(a, C_AU)
        a(f"v_mov_b32 v{XC+8}, v7")
        wait_cnt(a, C_AU, 4)
        for t in range(2): a(f"ds_read_b128 {vr(XC+4*t,4)}, v{X7} offset:{t*1024}")
        a("s_waitcnt lgkmcnt(0)")
        Cr, Sr = (keep, XC) if ri == 0 else (XC, keep)
        for r in range(8):
            a(f"v_add_f32 v{YP+r}, v{Cr+r}, v{Sr+r}")
            a(f"v_sub_f32 v{YM+r}, v{Cr+r}, v{Sr+r}")
        for i in range(4): a(f"v_cvt_pk_bf16_f32 v{XC+i}, v{YP+2*i}, v{YP+2*i+1}")
        for i in range(4): a(f"v_cvt_pk_bf16_f32 v{XC+4+i}, v{YM+7-2*i}, v{YM+6-2*i}")
        if OPT.get("osw") is not None: wait_cnt(a, OPT["osw"], 4)
        om = OPT.get('amod', OPT.get('omod', ''))
        OS = f"s[{SRD_OUT}:{SRD_OUT+3}]"
        if ri == 0:
            a(f"buffer_store_dwordx4 {vr(XC,4)}, v{OA}, {OS}, s6 offen {om}")
            a(f"s_cmp_lg_u32 s{sG1}, 0\ns_cbranch_scc1 a_o1")
            a("s_mov_b32 exec_hi, 0")
            a(f"buffer_store_dwordx3 {vr(XC+4,3)}, v{OD}, {OS}, s7 offen {om}")
            a(f"buffer_store_short v{XC+7}, v{OD}, {OS}, s7 offen offset:12 {om}")
            a("s_mov_b32 exec_lo, 0\ns_mov_b32 exec_hi, -1")
            a("a_o1:")
            a(f"buffer_store_dwordx4 {vr(XC+4,4)}, v{OD}, {OS}, s7 offen {om}")
            a("s_mov_b64 exec, -1")
            a("s_branch a_x2")
        else:
            a("s_mov_b32 exec_hi, 0")
            a(f"buffer_store_dwordx4 {vr(XC,4)}, v{OA}, {OS}, s6 offen {om}")
            a(f"buffer_store_dwordx4 {vr(XC+4,4)}, v{OD}, {OS}, s7 offen {om}")
            a("s_mov_b32 exec_lo, 0\ns_mov_b32 exec_hi, -1")
            a(f"buffer_store_dwordx2 {vr(XC,2)}, v{OA}, {OS}, s6 offen {om}")
            a(f"buffer_store_dwordx2 {vr(XC+6,2)}, v{OD}, {OS}, s7 offen offset:8 {om}")
            a(f"s_cmp_lg_u32 s{sG1}, 7\ns_cbranch_scc1 a_o2")
            a(f"buffer_store_short v{XC+2}, v{OA}, {OS}, s6 offen offset:8 {om}")
            a("a_o2:")
            a("s_mov_b64 exec, -1")
    a("a_x2:")
    if not OPT.get("cnt"): stamp(a, 2)
    a("s_branch a_fin")
    a(f"a_tchk0_r:")
    a(f"s_sub_u32 s14, s14, 1\ns_cmp_le_i32 s14, 0\ns_cbranch_scc1 a_tchk0_d")
    a(f"s_sleep {OPT.get('psleep', 4)}")
    for i in range(8):
        a(f"s_add_u32 m0, s7, {i*1024}\ns_add_u32 s8, s6, {i*1024}")
        a(f"buffer_load_dwordx4 v3, {WSD}, s8 offen sc1 lds")
    a("s_waitcnt vmcnt(0)")
    a(f"s_branch a_tchk0")
    a("a_fin:")
    stamp_out(a, 16, "A")
    a("k_end:\ns_endpgm")
    return a.text()

def build(path, stamps=False, opt=None):
    global STAMPS, OPT
    STAMPS = stamps; OPT = opt or {}; G.uid = 0; G.plo = None
    code = build_kernel()
    hdr = f"; @launch kernel={NAME} grid=(256,1,1) block=(512,1,1) lds={LDS_SIZE}\n"
    s = hdr + '.amdgcn_target "amdgcn-amd-amdhsa--gfx950"\n.text\n' + code + '.section .rodata,"a"\n' + kd(NAME, 256, 96)
    open(path, "w").write(s)

S2 = {-1: "x0 w0 e x1 w1", 0: "x2 w2 a a", 1: "x3 w3 a a", 2: "x4 w4 a a", 3: "x5 w5 a F", 4: "x6 w6", 5: "q"}
D = {"kvp": 2, "gst": (2, 4, 6, 8), "omod": "nt", "amod": "", "thr": 4, "e3": 0, "cs": 0, "b3m": 1, "om1": "sc1", "wop": 1, "mprio": 3, "sch": S2, "ysw": (C_W0, 4), "ylw": C_G, "tlw": 0,
     "b0prio": 3, "prio": 0, "gprio": 0, "wpos": 2, "latec": C_R2}
if __name__ == "__main__":
    build("f21.s", False, D)
    build("f21_ff.s", False, {"forcefail": 1, **D})
    build("f21_rt.s", "rt", D)
    build("f21_na_rt.s", "rt", {**D, "noA": 1})
    build("v1.s", False, {**D, "osleep": 0})
    build("v2.s", False, {**D, "osleep": 6})
```

```python
import fused22 as f
D = {**f.D, "ns": 1, "ag": 1, "tlw": None, "ags": (None, None, 6, None), "ho": 2, "rdp": 0, "thr": 3, "thr2": 20, "cax": 1, "a2o": 6}
f.build(f"ampn10.s", "amp", {**D, "amp": ("B", 10)})
f.build(f"ampn4.s", "amp", {**D, "amp": ("B", 4)})
```

```python
import numpy as np, sys
from common import Asm, vr, sr, bf16_bits, f32_bits, srd, srd_table, kd, mfma, MFMA
from common import S_AX, S_WR, S_WI, S_BX, S_WQKV, S_WO, S_OUT, S_DBG, S_WS

QSCALE = (28 ** -0.5) * np.log2(np.e)
NAME = "concat_heads__spectral_gfnet__mha_block__prompt_kernel"

WS_K, WS_V, WS_O, WS_Y, WS_T = 0x000000, 0x200000, 0x400000, 0x600000, 0x800000
WS_FG, WS_F2, WS_F3, WS_EP = 0xA00000, 0xA10000, 0xA20000, 0xA80000
FG_F1, FG_F2 = 512, 1024
WS_FY, WS_FT = 0xA10000, 0xA20000
C_XF = 28
C_EP, C_TF = 27, 26
C_WF = 32
sG1 = 91
WS_STAMP = 0xF00000
WS_L = 0x1000000
WS_SIZE = 0x2000000
LX, LW, LWQ, LQ = 0, 32768, 90112, 0
LXA, LEX = 118784, 118784
LE = 122880
LKV = 16384
WS_JUNK = 0x1800000
LWO = 0
LY, LP = 135168, 118784
LT = 0
LYT, LWW, LTT, LEX2 = 126976, 147456, 135168, 151552
LR = 101376
LO = 101376
LMX = 101376
LC = 163840 - 256
LDS_SIZE = 163840
C_AX, C_AEX, C_AT, C_AY, C_AP, C_A2D, C_Q, C_AU, C_ADONE, C_R1, C_R2, C_O, C_WO, C_FAIL, C_M1, C_M2, C_KV, C_AX2, C_G, C_W0, C_W1, C_W2, C_W3, C_YS, C_W4 = range(25)

M16 = "v_mfma_f32_16x16x32_bf16"
def mfma16(a, d, A, B, c=None):
    cs = "0" if c is None else vr(c, 4)
    a(f"{M16} {vr(d,4)}, {vr(A,4)}, {vr(B,4)}, {cs}")

sH, sQB, sW, sTAG, sWL = 3, 4, 5, 34, 35
SRD_A, SRD_B, SRD_WS, SRD_OUT, SRD_C, SRD_TAB = 36, 40, 44, 48, 52, 56
sX, sJ, sN2, sDQ = 60, 61, 62, 63
sPASS = 64
sFAST, sXCC, sFG, sG, sJ4 = 86, 87, 88, 89, 90
sHP = 86
sSIG, sMSK = 92, 93
sPM = 91
KSIG = 0x6A39E5C1
WSD = f"s[{SRD_WS}:{SRD_WS+3}]"
STAMPS = False
OPT = {}

class G:
    uid = 0
    plo = None
    inA = False
def lab(p):
    G.uid += 1
    return f"{p}_{G.uid}"

def arrive(a, c):
    a(f"s_mov_b64 exec, 1")
    a(f"ds_add_u32 v4, v5 offset:{4*c}")
    a(f"s_mov_b64 exec, -1")

def wait_cnt(a, c, target, starget=None, sleep=1):
    l = lab("wc")
    a("s_mov_b32 s69, 400000")
    if G.plo is not None: a("s_setprio 0")
    a(f"{l}:")
    a(f"ds_read_b32 v6, v4 offset:{4*c}")
    a("s_waitcnt lgkmcnt(0)")
    a("v_readfirstlane_b32 s8, v6")
    a("s_sub_u32 s69, s69, 1")
    a(f"s_cmp_ge_u32 s8, {target if starget is None else 's'+str(starget)}")
    a(f"s_cbranch_scc1 {l}_d")
    a(f"s_sleep {sleep}")
    a("s_cmp_lg_u32 s69, 0")
    a(f"s_cbranch_scc1 {l}")
    a(f"{l}_d:")
    if G.plo is not None: a(f"s_setprio {G.plo}")

def setprio(a, p):
    a(f"s_setprio {p}")
    if OPT.get("plo"): G.plo = p if p else None

def poll(a, vaddr, soff, mask, width=1, vt=8, sleep=4):
    l = lab("pl")
    a(f"s_mov_b32 s9, 20000")
    if mask != -1: a(f"s_mov_b32 exec_lo, {mask & 0xffffffff:#x}\ns_mov_b32 exec_hi, {mask >> 32:#x}")
    a(f"{l}:")
    sfx = {1: "", 2: "x2", 4: "x4"}[width]
    a(f"buffer_load_dword{sfx} {vr(vt,width)}, v{vaddr}, {WSD}, {soff} offen sc1")
    a("s_waitcnt vmcnt(0)")
    if width == 1:
        a(f"v_cmp_ne_u32 vcc, s{sTAG}, v{vt}")
    else:
        for i in range(width): a(f"v_xor_b32 v{vt+i}, s{sTAG}, v{vt+i}")
        if width == 2: a(f"v_or_b32 v{vt}, v{vt}, v{vt+1}")
        else: a(f"v_or3_b32 v{vt}, v{vt}, v{vt+1}, v{vt+2}\nv_or_b32 v{vt}, v{vt}, v{vt+3}")
        a(f"v_cmp_ne_u32 vcc, 0, v{vt}")
    a(f"s_cbranch_vccz {l}_d")
    a(f"s_sleep {sleep}")
    a("s_sub_u32 s9, s9, 1")
    a("s_cmp_lg_u32 s9, 0")
    a(f"s_cbranch_scc1 {l}")
    a(f"{l}_d:")
    if mask != -1: a("s_mov_b64 exec, -1")

def both(a, f):
    l = lab("bm")
    a(f"s_cmp_lg_u32 s{sFAST}, 0\ns_cbranch_scc1 {l}_f")
    f("sc1")
    a(f"s_branch {l}_d")
    a(f"{l}_f:")
    f("")
    a(f"{l}_d:")

def flag_store(a, soff, local=False):
    a("s_mov_b64 exec, 1")
    a(f"v_mov_b32 v6, s{sTAG}\nv_mov_b32 v7, 0")
    f = lambda m: a(f"buffer_store_dword v6, v7, {WSD}, s{soff} offen {m}")
    if local: both(a, f)
    else: f("sc1")
    a("s_mov_b64 exec, -1")

def gbar_wait(a, k, fbase, cnt, vt):
    l = lab("gb")
    a(f"s_cmp_lg_u32 s{sWL}, 0\ns_cbranch_scc1 {l}_w")
    a(f"s_add_u32 s10, s{sFG}, {FG_F2 + 128*k}")
    a(f"s_cmp_lg_u32 s{sJ}, 0\ns_cbranch_scc1 {l}_m")
    a(f"s_mov_b32 s12, {fbase}")
    poll(a, 3, "s12", -1, width=4, vt=vt, sleep=OPT.get("lsleep", 2))
    flag_store(a, 10, local=True)
    a(f"s_branch {l}_a")
    a(f"{l}_m:")
    a(f"s_cmp_lg_u32 s{sFAST}, 0\ns_cbranch_scc1 {l}_f")
    a("v_mov_b32 v7, 0")
    poll(a, 7, "s10", 1, width=1, vt=vt, sleep=8)
    a(f"s_branch {l}_a")
    a(f"{l}_f:")
    a("s_mov_b32 s9, 40000")
    a(f"{l}_fl:")
    a(f"s_buffer_load_dword s8, {WSD}, s10 glc")
    a("s_waitcnt lgkmcnt(0)")
    a(f"s_cmp_eq_u32 s8, s{sTAG}\ns_cbranch_scc1 {l}_a")
    a(f"s_sleep {OPT.get('psleep', 2)}")
    a(f"s_sub_u32 s9, s9, 1\ns_cmp_lg_u32 s9, 0\ns_cbranch_scc1 {l}_fl")
    a(f"{l}_a:")
    arrive(a, cnt)
    a(f"{l}_w:")
    wait_cnt(a, cnt, 1)

def set_tag(a, keep=None):
    a(f"v_readfirstlane_b32 s{sTAG}, v2")
    a(f"s_mov_b32 s{sMSK}, 0x00030003")
    a("s_nop 1")
    a(f"s_add_u32 s{sTAG}, s{sTAG}, 1")
    if keep is not None: a(f"s_mov_b32 s{keep}, s{sTAG}")
    a(f"s_bitcmp1_b32 s{sTAG}, 0\ns_cselect_b32 s{sSIG}, {KSIG:#x}, {KSIG ^ 0xffffffff:#x}") if False else None
    a(f"s_bfe_i32 s{sSIG}, s{sTAG}, 0x10000")
    a(f"s_xor_b32 s{sSIG}, s{sSIG}, {KSIG:#x}")
    a(f"s_mul_i32 s{sTAG}, s{sTAG}, 0x9E3779B1")

def sig_regs(a, d, hi=False):
    if hi: a(f"v_lshrrev_b32 v{d}, 4, v1")
    else: a(f"v_and_b32 v{d}, 3, v1")
    a(f"v_lshlrev_b32 v{d}, 2, v{d}")
    a(f"v_lshrrev_b32 v{d}, v{d}, s{sSIG}")

def sign(a, r0, n, sg):
    for r in range(0, n, 4): a(f"v_bfi_b32 v{r0+r}, s{sMSK}, v{sg}, v{r0+r}")

def check(a, r0, n, sg, acc, first=True):
    for r in range(0, n, 2):
        a(f"v_xor_b32 v{acc+1}, v{r0+r}, v{sg + r % 4}")
        a(f"v_xor_b32 v{acc+2}, v{r0+r+1}, v{sg + (r+1) % 4}")
        if first and r == 0: a(f"v_or_b32 v{acc}, v{acc+1}, v{acc+2}")
        else: a(f"v_or3_b32 v{acc}, v{acc}, v{acc+1}, v{acc+2}")

def fx_load(a, vd, va):
    a(f"v_and_b32 v{va}, 31, v1\nv_lshlrev_b32 v{va}, 2, v{va}")
    a(f"buffer_load_dword v{vd}, v{va}, {WSD}, s{sFG} offen sc1")

def fx_eval(a, vd, va):
    l = lab("fx")
    a("s_mov_b32 s9, 20000")
    a(f"{l}:")
    a(f"v_subrev_u32 v{vd}, s{sTAG}, v{vd}")
    a(f"v_cmp_lt_u32 vcc, 14, v{vd}")
    a(f"s_cbranch_vccz {l}_d")
    a("s_sleep 4")
    a(f"buffer_load_dword v{vd}, v{va}, {WSD}, s{sFG} offen sc1")
    a("s_waitcnt vmcnt(0)")
    a("s_sub_u32 s9, s9, 1")
    a("s_cmp_lg_u32 s9, 0")
    a(f"s_cbranch_scc1 {l}")
    a(f"{l}_d:")
    a(f"v_cmp_ne_u32 vcc, s{sXCC}, v{vd}")
    a("s_nop 0")
    a("s_cmp_eq_u64 vcc, 0")
    a(f"s_cselect_b32 s{sFAST}, {0 if OPT.get('slow') else 1}, 0")

def stamp(a, idx, force=False):
    if not STAMPS: return
    if STAMPS == "amp" and not force and not (idx == OPT["amp"][1] and not G.inA): return
    a(f"s_memrealtime s[94:95]" if STAMPS in ("rt", "dbg", "amp") else f"s_memtime s[94:95]")
    a("s_waitcnt lgkmcnt(0)")
    a(f"s_mov_b32 s{70+idx}, s94")

def stamp_out(a, n, who="B"):
    if not STAMPS: return
    a("s_waitcnt vmcnt(0) lgkmcnt(0)")
    if STAMPS == "amp":
        w, j = OPT["amp"]
        if who != w: return
        l = lab("amp")
        stamp(a, 6, True)
        a(f"s_cmp_lg_u32 s{sWL}, 0\ns_cbranch_scc1 {l}_d")
        a(f"s_sub_u32 s8, s{70+j}, s70\ns_min_u32 s8, s8, 10000\ns_mul_i32 s8, s8, 10\ns_add_u32 s8, s8, s76\ns_mov_b32 s9, 100000")
        a(f"{l}:")
        a("s_sleep 8\ns_memrealtime s[94:95]\ns_waitcnt lgkmcnt(0)")
        a(f"s_sub_u32 s10, s94, s8\ns_cmp_ge_i32 s10, 0\ns_cbranch_scc1 {l}_d")
        a(f"s_sub_u32 s9, s9, 1\ns_cmp_lg_u32 s9, 0\ns_cbranch_scc1 {l}")
        a(f"{l}_d:")
        return
    if STAMPS == "dbg":
        if who == "A": stamp(a, 6)
        srd(a, SRD_C, S_DBG, 256)
        a("v_mov_b32 v7, 0\ns_mov_b64 exec, 1")
        a("s_not_b32 s8, s70\nv_mov_b32 v6, s8")
        a(f"buffer_atomic_umax v6, v7, s[{SRD_C}:{SRD_C+3}], 0 offen sc1")
        M = {"B": {1: 0, 2: 11, 3: 1, 4: 3, 5: 4, 6: 8, 7: 10}, "A": {8: 8, 9: 3, 10: 10, 11: 14, 12: 15, 13: 9, 14: 6}}[who]
        for k, v in M.items():
            a(f"v_mov_b32 v{8+k}, s{70+v}")
            a(f"buffer_atomic_umax v{8+k}, v7, s[{SRD_C}:{SRD_C+3}], 0 offen offset:{4*k} sc1")
        a("s_mov_b64 exec, -1")
        return
    a(f"s_lshl_b32 s10, s2, 9\ns_lshl_b32 s11, s{sW}, 6\ns_add_u32 s10, s10, s11\ns_add_u32 s10, s10, {WS_STAMP}")
    a("v_mov_b32 v7, 0\ns_mov_b64 exec, 1")
    for i in range(n):
        a(f"v_mov_b32 v6, s{70+i}")
        a(f"buffer_store_dword v6, v7, {WSD}, s10 offen offset:{4*i}")
    a("s_mov_b64 exec, -1")

def gen_E(a, lanev, hhv, n2s, mode, outs, tmp):
    t0, t1, t2, t3, t4, t5 = range(tmp, tmp + 6)
    if mode == 'a1':
        a(f"v_cvt_f32_u32 v{t0}, v{lanev}")
        a(f"v_mul_f32 v{t0}, {f32_bits(1/2048):#x}, v{t0}")
        a(f"v_lshlrev_b32 v{t1}, 8, v{hhv}")
        a(f"v_add_u32 v{t1}, s{n2s}, v{t1}")
        a(f"v_cvt_f32_u32 v{t1}, v{t1}")
        offs = lambda t, j: 64 * (16 * t + 8 * (j // 4) + j % 4)
    else:
        a(f"v_lshlrev_b32 v{t0}, 6, v{lanev}")
        a(f"v_add_u32 v{t0}, s{n2s}, v{t0}")
        a(f"v_cvt_f32_u32 v{t0}, v{t0}")
        a(f"v_mul_f32 v{t0}, {f32_bits(1/2048):#x}, v{t0}")
        a(f"v_lshlrev_b32 v{t1}, 3, v{hhv}")
        a(f"v_cvt_f32_u32 v{t1}, v{t1}")
        offs = lambda t, j: 16 * t + j
    a(f"v_mul_f32 v{t1}, v{t1}, v{t0}")
    for t in range(2):
        for jp in range(4):
            for e in range(2):
                a(f"v_fmamk_f32 v{t2+e}, v{t0}, {f32_bits(float(offs(t, 2*jp+e))):#x}, v{t1}")
            a(f"v_cos_f32 v{t4}, v{t2}")
            a(f"v_cos_f32 v{t5}, v{t3}")
            a(f"v_sin_f32 v{t2}, v{t2}")
            a(f"v_sin_f32 v{t3}, v{t3}")
            a(f"v_cvt_pk_bf16_f32 v{outs['C']+4*t+jp}, v{t4}, v{t5}")
            if 'S' in outs:
                a(f"v_cvt_pk_bf16_f32 v{outs['S']+4*t+jp}, v{t2}, v{t3}")
                a(f"v_xor_b32 v{outs['NS']+4*t+jp}, 0x80008000, v{outs['S']+4*t+jp}")
            else:
                a(f"v_cvt_pk_bf16_f32 v{outs['Sx']+4*t+jp}, v{t2}, v{t3}")
                a(f"v_xor_b32 v{outs['Sx']+4*t+jp}, s13, v{outs['Sx']+4*t+jp}")


def sg_regs(a, d):
    sig_regs(a, d)
    a("s_mov_b32 exec_lo, 0x10000000\ns_mov_b32 exec_hi, 0x10000000")
    a(f"v_mov_b32 v{d}, 0")
    a("s_mov_b64 exec, -1")

def build_kernel():
    a = Asm()
    a(f""".globl {NAME}
.p2align 8
.type {NAME},@function
{NAME}:""")
    a("s_cmp_ge_u32 s2, 256\ns_cbranch_scc1 k_end")
    a("v_lshrrev_b32 v2, 6, v0")
    a("v_and_b32 v1, 63, v0")
    a(f"v_readfirstlane_b32 s{sW}, v2")
    a(f"v_mov_b32 v4, {LC}\nv_mov_b32 v5, 1")
    a(f"s_cmp_ge_u32 s{sW}, 4\ns_cbranch_scc1 a_pre")
    def kload():
        a("s_load_dwordx16 s[16:31], s[0:1], 0")
        a("s_load_dwordx2 s[32:33], s[0:1], 64")
    def common():
        if STAMPS:
            for i in range(16): a(f"s_mov_b32 s{70+i}, 0")
            a("s_memrealtime s[92:93]")
        a(f"""s_and_b32 s{sX}, s2, 7
s_lshr_b32 s{sJ}, s2, 3
s_and_b32 s15, s{sJ}, 1
s_and_b32 s{sJ4}, s{sJ}, 3
s_lshr_b32 s{sH}, s{sX}, 1
s_lshl_b32 s{sH}, s{sH}, 2
s_add_u32 s{sH}, s{sH}, s{sJ4}
s_lshr_b32 s{sHP}, s{sH}, 1
s_and_b32 s{sQB}, s{sX}, 1
s_lshl_b32 s{sQB}, s{sQB}, 3
s_lshr_b32 s6, s{sJ}, 2
s_add_u32 s{sQB}, s{sQB}, s6""")
        a("v_lshlrev_b32 v3, 4, v1")
        a(f"s_and_b32 s{sWL}, s{sW}, 3")
        a(f"""s_lshl_b32 s11, s{sWL}, 12
s_lshl_b32 s12, s{sWL}, 11
s_lshl_b32 s9, s{sX}, 2
s_add_u32 s{sN2}, s9, s{sJ4}
v_and_b32 v8, 31, v1
v_lshrrev_b32 v9, 5, v1""")
    kload()
    a("s_branch b_go")
    a("a_pre:")
    a(f"s_cmp_lg_u32 s{sW}, 4\ns_cbranch_scc1 k_nz")
    a(f"v_lshl_add_u32 v6, v1, 2, v4\nv_mov_b32 v7, 0")
    a(f"s_mov_b64 exec, {-1}\nds_write_b32 v6, v7\ns_mov_b64 exec, -1")
    a(f"s_lshr_b32 s{sJ}, s2, 3")
    if OPT.get("cpf", 1):
        srd_table(a, SRD_TAB, NAME, "k_end-" + NAME)
        a(f"s_and_b32 s8, s{sJ}, 7\ns_lshl_b32 s8, s8, 13\nv_lshlrev_b32 v6, 7, v1")
        a(f"buffer_load_dword v245, v6, s[{SRD_TAB}:{SRD_TAB+3}], s8 offen")
    a("s_waitcnt lgkmcnt(0)")
    a("k_nz:")
    a("s_barrier")
    kload()
    a("s_branch a_wave")
    a("b_go:")
    if OPT.get("b0prio"): a(f"s_setprio {OPT['b0prio']}")
    common()

    a(f"""s_lshl_b32 s6, s{sJ4}, 1
s_add_u32 s14, s{sQB}, s6
s_mul_i32 s6, s14, 37
s_lshr_b32 s6, s6, 8
s_mul_i32 s6, s6, 7
s_sub_u32 s14, s14, s6""")
    XO, WOF, VWQ, VXA = 10, 14, 15, 16
    a("""v_lshrrev_b32 v6, 3, v1
v_and_b32 v100, 7, v1
v_lshrrev_b32 v101, 1, v6
v_xor_b32 v101, v101, v100
v_mul_u32_u24 v102, 896, v6""")
    a(f"""v_lshl_add_u32 v{XO}, v101, 4, v102
v_mul_u32_u24 v103, 57344, v6
v_lshl_add_u32 v{VXA}, v101, 4, v103
s_and_b32 s8, s{sWL}, 1
s_lshl_b32 s8, s8, 6
v_xor_b32 v{VXA}, s8, v{VXA}
v_xor_b32 v101, 4, v101
v_lshl_add_u32 v{XO+1}, v101, 4, v102
v_add_u32 v{XO+1}, {8*896}, v{XO+1}
v_add_u32 v{XO+2}, {16*896}, v{XO}
v_add_u32 v{XO+3}, {16*896}, v{XO+1}""")
    a(f"""v_bfe_u32 v101, v1, 4, 1
v_lshlrev_b32 v101, 2, v101
v_xor_b32 v101, v101, v100
v_min_u32 v101, 6, v101
v_mul_u32_u24 v102, 2688, v6
v_lshl_add_u32 v{WOF}, v101, 4, v102
v_lshrrev_b32 v6, 2, v1
v_mul_u32_u24 v6, 2688, v6
v_and_b32 v101, 3, v1
v_lshl_add_u32 v{VWQ}, v101, 4, v6""")
    a(f"""s_lshl_b32 s6, s{sQB}, 7
s_lshl_b32 s7, s{sWL}, 5
s_add_u32 s6, s6, s7
s_mul_i32 s6, s6, 896
s_mul_i32 s7, s{sWL}, {16*2688}
s_mul_i32 s8, s15, 896
s_add_u32 s7, s7, s8
s_mul_i32 s8, s{sHP}, 112
s_add_u32 s7, s7, s8
s_add_u32 s7, s7, 896
s_mul_i32 s66, s{sWL}, {16*2688}
s_mul_i32 s8, s{sH}, 56
s_add_u32 s66, s66, s8
s_lshl_b32 s65, s{sWL}, 10
s_lshl_b32 s68, s{sX}, 3
s_and_b32 s8, s{sJ}, 7
s_add_u32 s68, s68, s8
s_mul_i32 s68, s68, 896
s_mul_i32 s8, s{sWL}, {8*57344}
s_add_u32 s68, s68, s8
v_mov_b32 v7, 0""")
    a(f"s_lshr_b32 s13, s{sJ}, 3\ns_lshl_b32 s13, s13, 1")
    srd_table(a, SRD_TAB, NAME, 64)
    VWA = 18
    a("v_mov_b32 v19, 0")
    a(f"""v_lshrrev_b32 v6, 2, v1
s_lshl_b32 s8, s{sWL}, 4
v_add_u32 v6, s8, v6
v_lshlrev_b32 v6, 5, v6
v_add_u32 v6, s{sN2}, v6
v_mul_u32_u24 v6, 450, v6
v_and_b32 v{VWA}, 3, v1
v_lshlrev_b32 v{VWA}, 4, v{VWA}
s_lshr_b32 s9, s{sJ}, 2
s_mul_i32 s9, s9, 56
v_add3_u32 v{VWA}, v6, v{VWA}, s9""")
    a("s_barrier")
    a("s_waitcnt lgkmcnt(0)")
    srd(a, SRD_C, S_AX, 2048 * 896)
    srd(a, SRD_WS, S_WS, WS_SIZE)
    if STAMPS: a("s_mov_b32 s70, s92")
    def xa():
        a(f"s_lshl_b32 s10, s89, 7\ns_add_u32 s10, s10, s68\ns_lshl_b32 s9, s89, 12\ns_add_u32 s9, s9, s65")
        a(f"s_add_u32 m0, s9, {LXA}\ns_add_u32 s89, s89, 1")
        a(f"buffer_load_dwordx4 v{VXA}, s[{SRD_C}:{SRD_C+3}], s10 offen lds")
        a("s_cmp_eq_u32 s89, 7\ns_cselect_b32 s89, 0, s89")
        Q1.append("xa")
    def wa():
        for k, ptr in enumerate((S_WR, S_WI)):
            srd(a, SRD_OUT, ptr, 2048 * 450 + 2)
            a(f"s_add_u32 m0, s12, {LWW + k*1024}\ns_nop 0")
            a(f"buffer_load_dwordx4 v{VWA}, s[{SRD_OUT}:{SRD_OUT+3}], 0 offen lds")
            Q1.append("wa")
    def tlbw():
        sh = OPT.get("tsh", 16)
        a(f"""s_cmp_eq_u32 s{sWL}, 0
s_cselect_b32 s{SRD_OUT}, s{S_WR}, s{S_WI}
s_cselect_b32 s{SRD_OUT+1}, s{S_WR+1}, s{S_WI+1}
s_mov_b32 s{SRD_OUT+2}, {2048*450}
s_mov_b32 s{SRD_OUT+3}, 0x20000
s_cmp_eq_u32 s{sWL}, 2
s_cselect_b32 s{SRD_OUT}, s{S_OUT}, s{SRD_OUT}
s_cselect_b32 s{SRD_OUT+1}, s{S_OUT+1}, s{SRD_OUT+1}
s_cselect_b32 s{SRD_OUT+2}, {2048*1792}, s{SRD_OUT+2}
s_cmp_eq_u32 s{sWL}, 3
s_cselect_b32 s{SRD_OUT}, s{S_WS}, s{SRD_OUT}
s_cselect_b32 s{SRD_OUT+1}, s{S_WS+1}, s{SRD_OUT+1}
s_cselect_b32 s{SRD_OUT+2}, {WS_SIZE}, s{SRD_OUT+2}
s_cselect_b32 s8, 19, {sh}
v_lshlrev_b32 v19, s8, v1""")
        a(f"buffer_load_dword v31, v19, s[{SRD_OUT}:{SRD_OUT+3}], 0 offen")
        Q1.append("tw")
    def wpf():
        a(f"""s_bitcmp1_b32 s{sWL}, 0
s_cselect_b32 s{SRD_OUT}, s{S_WI}, s{S_WR}
s_cselect_b32 s{SRD_OUT+1}, s{S_WI+1}, s{S_WR+1}
s_mov_b32 s{SRD_OUT+2}, {2048*450}
s_mov_b32 s{SRD_OUT+3}, 0x20000
s_lshl_b32 s9, s{sJ}, 1
s_lshr_b32 s10, s{sWL}, 1
s_add_u32 s9, s9, s10
s_lshl_b32 s9, s9, 3
s_add_u32 s9, s9, s{sX}
s_mul_i32 s9, s9, 1800
v_mul_u32_u24 v19, 120, v1
s_mov_b64 exec, 0xffff""")
        a(f"buffer_load_ushort v31, v19, s[{SRD_OUT}:{SRD_OUT+3}], s9 offen")
        a("s_mov_b64 exec, -1")
        srd(a, SRD_OUT, S_OUT, 2048 * 1792)
        Q1.append("vp")
    def xflag():
        a(f"s_mov_b32 m0, {LC + 4*C_EP}\ns_mov_b32 s9, {WS_EP}\ns_mov_b64 exec, 1")
        a(f"buffer_load_dword v7, {WSD}, s9 offen sc1 lds")
        Q1.append("ea")
        a(f"s_lshl_b32 s9, s{sWL}, 2\ns_add_u32 m0, s9, {LC + 4*C_XF}\ns_nop 0")
        a(f"buffer_load_dword v7, s[{SRD_TAB}:{SRD_TAB+3}], 0 offen lds")
        a("s_mov_b64 exec, -1")
        Q1.append("xf")
    def wopf():
        l = lab("wp")
        if OPT.get("b3m"):
            srd(a, SRD_OUT, S_WO, 448 * 896)
            a(f"v_lshlrev_b32 v19, 7, v1\ns_mul_i32 s9, s{sJ}, 12544\ns_mul_i32 s8, s{sWL}, 3200\ns_add_u32 s9, s9, s8\ns_mov_b64 exec, 0x1ffffff")
            a(f"buffer_load_dword v31, v19, s[{SRD_OUT}:{SRD_OUT+3}], s9 offen")
            a("s_mov_b64 exec, -1")
            Q1.append("wp")
            return
        a(f"s_cmp_lg_u32 s{sWL}, 3\ns_cbranch_scc1 {l}")
        srd(a, SRD_OUT, S_WO, 448 * 896)
        a(f"""v_lshrrev_b32 v19, 2, v1
v_mul_u32_u24 v19, 896, v19
v_and_b32 v31, 3, v1
v_mul_u32_u24 v31, 72, v31
v_add_u32 v19, v19, v31
s_mul_i32 s9, s{sJ}, {14*896}
s_lshr_b32 s8, s{sH}, 2
s_mul_i32 s8, s8, 224
s_add_u32 s9, s9, s8
s_mov_b32 exec_hi, 0xffffff""")
        a(f"buffer_load_dword v31, v19, s[{SRD_OUT}:{SRD_OUT+3}], s9 offen")
        a(f"s_mov_b64 exec, -1\ns_branch {l}_d")
        a(f"{l}:")
        a(f"s_mov_b64 exec, 1\nbuffer_load_dword v31, v7, s[{SRD_TAB}:{SRD_TAB+3}], 0 offen\ns_mov_b64 exec, -1")
        a(f"{l}_d:")
        Q1.append("wp")
    a("s_mov_b32 s89, s13")
    Q1 = []
    def vw1(tag):
        a(f"s_waitcnt vmcnt({len(Q1) - 1 - max(i for i, t in enumerate(Q1) if t == tag)})")
    srd(a, SRD_A, S_BX, 2048 * 896)
    srd(a, SRD_B, S_WQKV, 448 * 2688)
    XSL = [0, 1, 0, 1, 0, 1, 0]
    def sig_c(c):
        if c == 0: a("s_mov_b32 s13, s14")
        else: a(f"s_add_u32 s13, s14, {c}\ns_sub_u32 s10, s13, 7\ns_cmp_ge_u32 s13, 7\ns_cselect_b32 s13, s10, s13")
    def dx(c):
        sig_c(c)
        a("s_lshl_b32 s10, s13, 7\ns_add_u32 s10, s10, s6")
        for k in range(4):
            if XSL[c] == 2: a(f"s_add_u32 m0, s12, {LW + (4+k//2)*8192 + (k%2)*1024}\ns_nop 0")
            else: a(f"s_add_u32 m0, s11, {LX + XSL[c]*16384 + k*1024}\ns_nop 0")
            a(f"buffer_load_dwordx4 v{XO+k}, s[{SRD_A}:{SRD_A+3}], s10 offen lds")
        Q1.extend([f"x{c}"] * 4)
    def dw(c):
        sig_c(c)
        a(f"s_mul_i32 s13, s13, {64*2688}\ns_add_u32 s13, s13, s7")
        a(f"s_add_u32 m0, s12, {LW + c*8192}\ns_add_u32 s10, s13, {8*2688}")
        a(f"buffer_load_dwordx4 v{WOF}, s[{SRD_B}:{SRD_B+3}], s13 offen lds")
        a(f"s_add_u32 m0, s12, {LW + c*8192 + 1024}\ns_nop 0")
        a(f"buffer_load_dwordx4 v{WOF}, s[{SRD_B}:{SRD_B+3}], s10 offen lds")
        Q1.extend([f"w{c}"] * 2)
    def dq(c):
        sig_c(c)
        a(f"s_mul_i32 s13, s13, {64*2688}\ns_add_u32 s13, s13, s66\ns_add_u32 m0, s65, {LWQ + c*4096}\ns_nop 0")
        a(f"buffer_load_dwordx4 v{VWQ}, s[{SRD_B}:{SRD_B+3}], s13 offen lds")
        Q1.append("q")
    def epl():
        a(f"s_mov_b32 s9, {WS_EP}")
        a(f"buffer_load_dword v2, v7, {WSD}, s9 offen sc1")
        Q1.append("ep")
    SCH = OPT.get("sch", {-1: "a a a a a a a F x0 w0 e x1 w1", 0: "x2 w2", 1: "x3 w3", 2: "x4 w4", 3: "x5 w5", 4: "x6 w6", 5: "q W"})
    def issue(c):
        for t in SCH.get(c, "").split():
            if t[0] == "x": dx(int(t[1]))
            elif t[0] == "w": dw(int(t[1]))
            elif t == "e": epl()
            elif t == "q":
                for u in range(7): dq(u)
            elif t[0] == "q":
                for u in t[1:]: dq(int(u))
            elif t == "S": stamp(a, 5)
            elif t[0] == "Z":
                if "w" in t:
                    a(f"s_mul_i32 s13, s14, {64*2688}\ns_add_u32 s13, s13, s7\ns_and_b32 s13, s13, -4")
                    a(f"s_load_dword s87, s[{S_WQKV}:{S_WQKV+1}], s13")
                if "e" in t: a(f"s_mov_b32 s13, {WS_EP}\ns_load_dword s88, s[{S_WS}:{S_WS+1}], s13")
                if "a" in t: a(f"s_load_dword s91, s[{S_AX}:{S_AX+1}], s68")
                if "x" in t: a(f"s_load_dword s64, s[{S_BX}:{S_BX+1}], s6")
            elif t == "T": tlbw()
            elif OPT.get("noA"): pass
            elif t == "a": xa()
            elif t == "W": wa()
            elif t == "F": xflag()
            elif t == "P": wopf()
            elif t == "V": wpf()
    issue(-1)
    a(f"""v_and_b32 v6, 31, v1
v_lshrrev_b32 v113, 5, v1
v_bfe_u32 v116, v6, 1, 3
v_lshlrev_b32 v6, 7, v6
v_add_u32 v6, s11, v6""")
    for t in range(4):
        a(f"v_add_u32 v117, {2*t}, v113\nv_xor_b32 v117, v117, v116\nv_lshl_add_u32 v{20+t}, v117, 4, v6")
    a(f"""v_lshlrev_b32 v6, 3, v113
v_bfe_u32 v114, v1, 2, 2
v_add_u32 v6, v6, v114
v_and_b32 v114, 1, v1
v_lshlrev_b32 v114, 5, v114
v_bfe_u32 v117, v1, 4, 1
v_lshl_add_u32 v114, v117, 4, v114
v_bfe_u32 v117, v1, 1, 1
v_lshl_add_u32 v114, v117, 3, v114
v_lshl_add_u32 v26, v6, 6, v114
v_add_u32 v26, {LWQ}, v26
v_bfe_u32 v117, v1, 3, 1
v_lshlrev_b32 v117, 6, v117
v_lshlrev_b32 v6, 7, v6
v_add_u32 v6, {LW}, v6
v_xor_b32 v115, v114, v117
v_add_u32 v24, v6, v115
v_add_u32 v114, 56, v114
v_xor_b32 v115, v114, v117
v_add_u32 v25, v6, v115""")
    srd(a, SRD_OUT, S_OUT, 2048 * 1792)
    ACC, QACC, WF, XR = 32, 40, 80, 144
    SGP = 27
    a("s_cmp_lg_u32 s15, 0\ns_cbranch_scc1 b_v")
    P = 64
    Q1base = list(Q1)
    WQC = OPT.get("wqc", 4)
    EP = OPT.get("ep")
    for ty in range(2):
        if ty: a("b_v:")
        Q1[:] = Q1base
        def rdx(c):
            for t in range(4): a(f"ds_read_b128 {vr(XR+16*c+4*t,4)}, v{20+t} offset:{XSL[c]*16384}")
        def rdw(c):
            wf = WF + 32 * (c % 2)
            for t in range(4):
                for seg in range(2):
                    for aa in range(2):
                        a(f"ds_read_b64_tr_b16 {vr(wf+8*t+4*seg+2*aa,2)}, v{24+seg} offset:{c*8192+(16*t+4*aa)*128}")
        def mm(c, t):
            wf = WF + 32 * (c % 2)
            first = (c == 0 and t == 0)
            for seg in range(2):
                if ty == 0: mfma(a, ACC+16*seg, wf+8*t+4*seg, XR+16*c+4*t, None if first else ACC+16*seg)
                else: mfma(a, ACC+16*seg, XR+16*c+4*t, wf+8*t+4*seg, None if first else ACC+16*seg)
        def vwx(c):
            i = max(i for i, t in enumerate(Q1) if t in (f"x{c}", f"w{c}"))
            a(f"s_waitcnt vmcnt({len(Q1) - 1 - i})")
        def nxt(c):
            a(f"ds_read_b32 v6, v4 offset:{4*C_W0}")
            issue(c)
            l = lab("cw")
            a(f"s_waitcnt lgkmcnt(0)\nv_readfirstlane_b32 s8, v6\ns_nop 1\ns_cmp_ge_u32 s8, {4*(c+1)}\ns_cbranch_scc1 {l}")
            wait_cnt(a, C_W0, 4 * (c + 1))
            a(f"{l}:")
            if c in (0, 1, 3, 5, 6) and not OPT.get("lst") and not OPT.get("qst"): stamp(a, 11 + (0, 1, 3, 5, 6).index(c))
            rdw(c)
        vwx(0)
        if "Z" in SCH[-1]: a("s_waitcnt lgkmcnt(0)")
        rdx(0)
        arrive(a, C_W0)
        a("s_waitcnt lgkmcnt(1)")
        nxt(0)
        for c in range(7):
            a("s_waitcnt lgkmcnt(12)")
            mm(c, 0)
            ex = 0
            if c < 6:
                vwx(c + 1)
                rdx(c + 1)
                arrive(a, C_W0)
                ex = 5
            a(f"s_waitcnt lgkmcnt({8+ex})")
            mm(c, 1)
            if c == 1:
                set_tag(a, 67)
                sg_regs(a, SGP)
            if c == 2 and EP:
                if ty == 0:
                    for seg in range(2): a(f"v_mov_b32 v{P+8*seg+6}, 0x3f803f80\nv_mov_b32 v{P+8*seg+7}, 0x3f80")
                else:
                    a(f"v_and_b32 v{P}, 3, v1\nv_cmp_eq_u32 vcc, 0, v{P}\nv_mov_b32 v{P}, 0x3f803f80\nv_cndmask_b32 v{P}, 0, v{P}, vcc")
                    for r in range(1, 16): a(f"v_mov_b32 v{P+r}, v{P}")
                a(f"s_lshl_b32 s8, s{sW}, 12\nv_add_u32 v31, s8, v3\nv_add_u32 v2, {WS_V}, v3")
                assert LQ == 0
            if c == 6 and EP:
                a(f"""s_lshl_b32 s10, s{sHP}, 7
s_lshl_b32 s11, s{sQB}, 2
s_add_u32 s10, s10, s11
s_add_u32 s10, s10, s{sW}
s_lshl_b32 s10, s10, 11
s_add_u32 s87, s10, {WS_V if ty else WS_K}
s_add_u32 s88, s87, {64*2048}
s_add_u32 s10, s87, {WS_L}
s_add_u32 s11, s88, {WS_L}
v_add_u32 v7, {LKV}, v31""")
            a(f"s_waitcnt lgkmcnt({4+ex})")
            mm(c, 2)
            if c == 6 and EP:
                a(f"""s_lshl_b32 s12, s{sQB}, 2
s_lshl_b32 s13, s{sW}, 3
s_add_u32 s12, s12, s13
s_lshl_b32 s15, s{sH}, 17
s_and_b32 s13, s{sX}, 1
s_lshl_b32 s13, s13, 16
s_add_u32 s15, s15, s13
s_xor_b32 s68, s15, 0x10000
s_add_u32 s15, s15, {WS_L}
s_mov_b32 s{sPASS}, 0
s_mov_b32 s66, 4
s_mov_b32 s14, 20000
s_lshl_b32 s65, s12, 11""")
            a(f"s_waitcnt lgkmcnt({1 if c < 6 else 0})")
            mm(c, 3)
            if c < 6: nxt(c + 1)
        stamp(a, 1)
        if EP:
            vw1("q")
            arrive(a, C_W3)
            if ty: a("s_mov_b32 exec_lo, 0x0fffffff\ns_mov_b32 exec_hi, 0x0fffffff")
            a.nop(8 - 2 * ty)
            for seg in range(2):
                for r in range(8):
                    if ty == 0 and r == 6: a("s_mov_b32 exec_hi, 0")
                    a(f"v_cvt_pk_bf16_f32 v{P+8*seg+r}, v{ACC+16*seg+2*r}, v{ACC+16*seg+2*r+1}")
                a("s_mov_b64 exec, -1")
                sign(a, P + 8 * seg, 8, SGP)
                for t in range(2):
                    a(f"buffer_store_dwordx4 {vr(P+8*seg+4*t,4)}, v3, {WSD}, s{10+seg} offen offset:{t*1024}")
                if ty and seg == 0: a("s_mov_b32 exec_lo, 0x0fffffff\ns_mov_b32 exec_hi, 0x0fffffff")
            if ty == 0: a("s_branch b_st1")
            continue
        a(f"""s_lshl_b32 s10, s{sHP}, 7
s_lshl_b32 s11, s{sQB}, 2
s_add_u32 s10, s10, s11
s_add_u32 s10, s10, s{sW}
s_lshl_b32 s10, s10, 11
s_add_u32 s87, s10, {WS_V if ty else WS_K}
s_add_u32 s88, s87, {64*2048}""")
        a.nop(5)
        for seg in range(2):
            for r in range(8):
                a(f"v_cvt_pk_bf16_f32 v{P+8*seg+r}, v{ACC+16*seg+2*r}, v{ACC+16*seg+2*r+1}")
        if ty == 0:
            a("s_mov_b32 exec_lo, 0")
            for seg in range(2): a(f"v_mov_b32 v{P+8*seg+6}, 0x3f803f80\nv_mov_b32 v{P+8*seg+7}, 0x3f80")
        else:
            a("s_mov_b32 exec_lo, 0xf0000000\ns_mov_b32 exec_hi, 0xf0000000")
            a("v_and_b32 v6, 3, v1\nv_cmp_eq_u32 vcc, 0, v6\nv_mov_b32 v6, 0x3f803f80\nv_cndmask_b32 v6, 0, v6, vcc")
            for r in range(16): a(f"v_mov_b32 v{P+r}, v6")
        a("s_mov_b64 exec, -1")
        if ty == 0: a("s_branch b_st1")
    a("b_st1:")
    a(f"s_setprio {OPT.get('bprio', 2)}")
    if not EP:
        sign(a, P, 16, SGP)
        vw1("q")
        arrive(a, C_W3)
        a(f"s_add_u32 s10, s87, {WS_L}\ns_add_u32 s11, s88, {WS_L}")
        for seg in range(2):
            for t in range(2):
                a(f"buffer_store_dwordx4 {vr(P+8*seg+4*t,4)}, v3, {WSD}, s{10+seg} offen offset:{t*1024} {OPT.get('lm', '')}")
        a(f"s_lshl_b32 s13, s{sW}, 12\ns_add_u32 s13, s13, {LKV}\nv_add_u32 v7, s13, v3")
        for u in range(4): a(f"ds_write_b128 v7, {vr(P+4*u,4)} offset:{u*1024}")
    G4 = 248
    GG = lambda u: G4 + 4 * (u % 2) * OPT.get("g2", 0)
    def g_rd(u): a(f"ds_read_b128 {vr(GG(u),4)}, v7 offset:{u*1024}")
    def g_st(u):
        a("s_waitcnt lgkmcnt(0)")
        a(f"buffer_store_dwordx4 {vr(GG(u),4)}, v3, {WSD}, s{87+u//2} offen offset:{(u%2)*1024} sc1")
    def st_glob():
        for u in range(4):
            a("s_waitcnt vmcnt(0)")
            g_rd(u); g_st(u)
    stamp(a, 2)
    if not EP:
        a(f"s_mov_b32 s10, {f32_bits(QSCALE):#x}\ns_mov_b32 s11, s10")
        a(f"s_lshl_b32 s13, s{sW}, 12\ns_add_u32 s13, s13, {LQ}\nv_add_u32 v31, s13, v3")
    if not EP: a(f"""s_lshl_b32 s12, s{sQB}, 2
s_lshl_b32 s13, s{sW}, 3
s_add_u32 s12, s12, s13
s_lshl_b32 s15, s{sH}, 17
s_and_b32 s13, s{sX}, 1
s_lshl_b32 s13, s13, 16
s_add_u32 s15, s15, s13
s_xor_b32 s68, s15, 0x10000
s_add_u32 s15, s15, {WS_L}
s_mov_b32 s{sPASS}, 0
s_mov_b32 s66, 4
s_mov_b32 s14, 20000""")
    if OPT.get("ns") and not EP: a(f"s_lshl_b32 s65, s12, 11\nv_add_u32 v2, {WS_V}, v3")
    wait_cnt(a, C_W3, 4)
    if OPT.get("agc") == C_W4 and not OPT.get("agp"): arrive(a, C_W4)
    if OPT.get("qst"): stamp(a, 11)
    NB = 5
    Q, O, S, Pp, MX, TMP, KV, SG, CT = 8, 40, 104, 136, 152, 156, 160, 240, 244
    def load_kv(t, force=False):
        buf = t % NB
        md = "sc1" if (force or (OPT.get("kl", "sc1") if t < 8 else OPT.get("kr", "")) == "sc1") else ""
        a(f"s_add_u32 s8, s12, {t%8}\ns_and_b32 s8, s8, 31\ns_lshl_b32 s8, s8, 11\ns_add_u32 s8, s8, s{15 if t < 8 else 68}\ns_add_u32 s9, s8, {WS_V}")
        for u in range(2):
            a(f"buffer_load_dwordx4 {vr(KV+16*buf+4*u,4)}, v3, {WSD}, s8 offen offset:{u*1024} {md}")
        for u in range(2):
            a(f"buffer_load_dwordx4 {vr(KV+16*buf+8+4*u,4)}, v3, {WSD}, s9 offen offset:{u*1024} {md}")
    def kvg(t):
        buf = t % NB
        md = OPT.get("kl", "sc1") if t < 8 else OPT.get("kr", "")
        sal = [f"s_add_u32 s13, s65, {(t%8)*2048}", "s_and_b32 s13, s13, 0xffff", f"s_add_u32 s13, s13, s{15 if t < 8 else 68}",
               f"s_add_u32 s6, s{S_WS}, s13", f"s_addc_u32 s7, s{S_WS+1}, 0"]
        vm = [f"global_load_dwordx4 {vr(KV+16*buf+4*u,4)}, v{3 if u < 2 else 2}, s[6:7] offset:{(u%2)*1024} {md}" for u in range(4)]
        return sal, vm
    NS = OPT.get("ns", 0)
    if NS:
        load_kv_b = load_kv
        def load_kv(t, force=False):
            if force: return load_kv_b(t, True)
            sal, vm = kvg(t)
            for x in sal + vm: a(x)
    WQ = 96
    def rdq(c):
        for t in range(4):
            for aa in range(2):
                a(f"ds_read_b64_tr_b16 {vr(WQ+16*(c%3)+4*t+2*aa,2)}, v26 offset:{c*4096+(16*t+4*aa)*64}")
    rdq(0); rdq(1)
    if EP:
        a(f"s_mov_b32 s10, {f32_bits(QSCALE):#x}\ns_mov_b32 s11, s10")
        assert not OPT.get("qi")
    K5 = OPT.get("kv5", 2)
    KVP = OPT.get("kvp", 4)
    for c in range(7):
        if OPT.get("qi"):
            n0 = len(a.L)
            if c + 2 < 7: rdq(c + 2)
            for t_ in range(K5):
                if c == min(max(KVP + t_, t_ + 2), 6): load_kv(t_)
            fill = a.L[n0:]; del a.L[n0:]
            per = -(-len(fill) // 4)
            for t in range(4):
                nd = sum(1 for x in fill[:per * t] if "ds_read" in x)
                a(f"s_waitcnt lgkmcnt({min(15, (8 if c < 6 else 0) + nd + 2 * (3 - t))})")
                mfma(a, QACC, WQ+16*(c%3)+4*t, XR+16*c+4*t, None if (c == 0 and t == 0) else QACC)
                a.L.extend(fill[per * t:per * (t + 1)])
            continue
        a(f"s_waitcnt lgkmcnt({12 if (EP and c == 1) else 8 if c < 6 else 0})")
        for t in range(4):
            mfma(a, QACC, WQ+16*(c%3)+4*t, XR+16*c+4*t, None if (c == 0 and t == 0) else QACC)
            if EP and c == 0: a(f"ds_write_b128 v7, {vr(P+4*t,4)} offset:{t*1024}")
        if c + 2 < 7: rdq(c + 2)
        if c == KVP: load_kv(0)
        if c == min(KVP + 1, 6): load_kv(1)
        for t_ in range(2, K5):
            if c == min(max(KVP + t_, t_ + 1), 6): load_kv(t_)
    if OPT.get("qst"): stamp(a, 12)
    arrive(a, C_KV)
    a(f"v_mov_b32 v{SG}, v{SGP}")
    a.nop(9)
    QW = Q + 24
    for r in range(8): a(f"v_pk_mul_f32 {vr(QACC+2*r,2)}, {vr(QACC+2*r,2)}, s[10:11]")
    for r in range(8): a(f"v_cvt_pk_bf16_f32 v{QW+r}, v{QACC+2*r}, v{QACC+2*r+1}")
    a(f"s_mov_b32 exec_lo, 0\nv_mov_b32 v{QW+6}, 0\nv_mov_b32 v{QW+7}, 0\ns_mov_b64 exec, -1")
    for t in range(2): a(f"ds_write_b128 v31, {vr(QW+4*t,4)} offset:{t*1024}")
    a("s_waitcnt lgkmcnt(0)")
    arrive(a, C_Q)
    if OPT.get("qst"): stamp(a, 14)
    def rot(sl, dst, sh, base):
        a(f"s_add_u32 s{dst}, s{sW}, {1+sl}\ns_and_b32 s{dst}, s{dst}, 3\ns_lshl_b32 s{dst}, s{dst}, {sh}\ns_add_u32 s{dst}, s{dst}, {base}")
    def getq():
        l = lab("gq")
        a(f"s_cmp_lg_u32 s{sPASS}, 0\ns_cbranch_scc1 {l}")
        wait_cnt(a, C_Q, 4)
        stamp(a, 3)
        for q in range(3):
            rot(q, 8, 12, LQ)
            a(f"v_add_u32 v{TMP+q}, s8, v3")
            for t in range(2): a(f"ds_read_b128 {vr(Q+8*q+4*t,4)}, v{TMP+q} offset:{t*1024}")
        a("s_waitcnt lgkmcnt(0)")
        arrive(a, C_M2)
        a(f"{l}:")
    a("s_branch b_main2")
    a("b_main:")
    for t_ in range(K5): load_kv(t_)
    a("b_main2:")
    NQ = OPT.get("nq", 3)
    seq = [(0, 3), (1, 3), (0, 0), (0, 1), (0, 2), (1, 0), (1, 1), (1, 2)]
    seq += [(t, q) for t in range(2, 16 - NQ) for q in range(4)] + [(t, q) for q in range(4) for t in range(16 - NQ, 16)]
    firstq = {}
    for i, (t, q) in enumerate(seq): firstq.setdefault(q, i)
    retries = []
    issued = [K5 - 1]
    BQ = [t_ for t_ in range(K5) for _ in range(4)]
    gdone = [bool(OPT.get("ag")) and not OPT.get("ags")]
    def chk(t):
        b = KV + 16 * (t % NB)
        a(f"s_waitcnt vmcnt({len(BQ) - 1 - max(i for i, x in enumerate(BQ) if x == t)})")
        if OPT.get("nochk"): return
        l = f"b_chk{t}"
        a(f"{l}:")
        a(f"v_bitop3_b32 v{CT}, v{b}, v{b+4}, v{SG} bitop3:0x7e")
        a(f"v_bitop3_b32 v{CT+1}, v{b+8}, v{b+12}, v{SG} bitop3:0x7e")
        a(f"v_bitop3_b32 v{CT}, v{CT}, s{sMSK}, v{CT+1} bitop3:0xc8")
        a(f"v_cmp_ne_u32 vcc, 0, v{CT}")
        a(f"s_cbranch_vccnz {l}_r")
        a(f"{l}_d:")
        retries.append((t, issued[0], l, gdone[0], False))
    def chk_v(b):
        a(f"v_bitop3_b32 v{CT}, v{b}, v{b+4}, v{SG} bitop3:0x7e")
        a(f"v_bitop3_b32 v{CT+1}, v{b+8}, v{b+12}, v{SG} bitop3:0x7e")
        a(f"v_bitop3_b32 v{CT}, v{CT}, s{sMSK}, v{CT+1} bitop3:0xc8")
        a(f"v_cmp_ne_u32 vcc, 0, v{CT}")
    def chk_a(t):
        a(f"s_waitcnt vmcnt({len(BQ) - 1 - max(i for i, x in enumerate(BQ) if x == t)})")
        chk_v(KV + 16 * (t % NB))
    def chk_b(t):
        l = f"b_chk{t}"
        a(f"s_cbranch_vccnz {l}_r")
        a(f"{l}_d:")
        retries.append((t, issued[0], l, gdone[0], 1 if gpend[0] is None else 2 + gpend[0]))
    SL = {}
    gpend = [None]
    def step(i, extra=None):
        t, q = seq[i]
        par = i % 2
        Sc, Sn = S + 16 * par, S + 16 * (1 - par)
        Pc, Pv = Pp + 8 * par, Pp + 8 * (1 - par)
        ms = [None] * 4
        if i + 1 < len(seq):
            nt, nq = seq[i + 1]; nb = KV + 16 * (nt % NB)
            ms[0] = lambda: mfma(a, Sn, nb, Q+8*nq, None)
            ms[1] = lambda: mfma(a, Sn, nb+4, Q+8*nq+4, Sn)
        if i > 0:
            pt, pq = seq[i - 1]; pb = KV + 16 * (pt % NB)
            ms[2] = lambda: mfma(a, O+16*pq, pb+8, Pv, None if firstq[pq] == i - 1 else O+16*pq)
            ms[3] = lambda: mfma(a, O+16*pq, pb+12, Pv+4, O+16*pq)
        for g in range(4):
            if ms[g]: ms[g]()
            if extra and extra[g]: extra[g]()
            for f in SL.get((i, g), []): f()
            for e in range(4): a(f"v_exp_f32 v{Sc+4*g+e}, v{Sc+4*g+e}")
            a(f"v_cvt_pk_bf16_f32 v{Pc+2*g}, v{Sc+4*g}, v{Sc+4*g+1}")
            a(f"v_cvt_pk_bf16_f32 v{Pc+2*g+1}, v{Sc+4*g+2}, v{Sc+4*g+3}")
    chk(0)
    if OPT.get("qst"): stamp(a, 15)
    mfma(a, S, KV, QW, None)
    mfma(a, S, KV+4, QW+4, S)
    if K5 <= 2:
        if 2 in OPT.get("tat", {}): a.nop(10)
        else:
            load_kv(2); issued[0] = 2; BQ.extend([2] * 4)
            if OPT.get("agp") == 1: arrive(a, C_W4)
            else: a.nop(3)
    else: a.nop(10)
    checked = {0}
    CAX = C_A2D if OPT.get("cax") else C_AX2
    assert not (OPT.get("cax") and OPT.get("odum"))
    last_use = {}
    for i, (t, q) in enumerate(seq): last_use[t] = i
    fin = {}
    for i, (t, q) in enumerate(seq): fin[q] = i
    if NS:
        GS_ = OPT.get("gst", (2, 6, 10, 14))
        busy = set()
        if not OPT.get("ag"):
            for i in GS_: busy |= {(i, 0), (i, 3)}
        firstu = {}
        for i, (t, q) in enumerate(seq): firstu.setdefault(t, i)
        for t in range(2, 16):
            i = firstu[t] - 2
            g = 2 if (i, 3) not in busy else 1
            SL.setdefault((i, g), []).append(lambda t=t: chk_a(t))
            SL.setdefault((i, g + 1), []).append(lambda t=t: chk_b(t))
            busy |= {(i, g), (i, g + 1)}
            checked.add(t)
        def blk(t, vm):
            for x in vm: a(x)
            issued[0] = t; BQ.extend([t] * 4)
        prevb = -1
        for t in range(2 if 2 in OPT.get("tat", {}) else max(3, K5), 16):
            i = t - 3 if t < 5 else last_use[t - NB] + 1
            if t >= 8 and OPT.get("lead"): i = max(i, min(OPT["lead"] + (t - 8) * OPT.get("leadi", 2), firstu[t] - 8))
            if t in OPT.get("tat", {}): i = max(i, OPT["tat"][t])
            sal, vm = kvg(t)
            SL.setdefault((i, 3), []).append(lambda t=t, vm=vm: blk(t, vm))
            busy.add((i, 3))
            k = 4 * i + 2
            sl_ = [sal[3:5]] + [[x] for x in sal[2::-1]] if NS == 1 else [[x] for x in sal[::-1]]
            lo = prevb
            assert 4 * i + 3 > prevb
            prevb = 4 * i + 3
            for n, grp in enumerate(sl_):
                while k > lo and ((k // 4, k % 4) in busy or (k // 4 == 0 and k % 4 >= 2)):
                    assert not (NS == 2 and n == 1), (t, k)
                    k -= 1
                if k <= lo: k = lo + 1
                SL.setdefault((k // 4, k % 4), []).insert(0, lambda grp=grp: [a(x) for x in grp])
                busy.add((k // 4, k % 4))
    for i in range(len(seq)):
        if i + 1 < len(seq) and seq[i + 1][0] not in checked:
            chk(seq[i + 1][0]); checked.add(seq[i + 1][0])
        extra = [None] * 4
        if i == 1: getq()
        LSS = OPT.get("lss", (None, None, 4, 24, 44))
        if OPT.get("lst") and i in LSS:
            stamp(a, 11 + LSS.index(i))
        if i == fin[0] and not OPT.get("noA") and not OPT.get("astop"):
            extra[0] = lambda: a(f"ds_read_b32 v6, v4 offset:{4*CAX}")
        for sl in range(3):
            if i == fin[sl] + 2:
                if sl == 0 and not OPT.get("noA") and not OPT.get("astop"):
                    l = lab("ad")
                    a(f"s_waitcnt lgkmcnt(0)\nv_readfirstlane_b32 s8, v6\ns_nop 3\ns_cmp_ge_u32 s8, 4\ns_cbranch_scc1 {l}")
                    wait_cnt(a, CAX, 4)
                    a(f"{l}:")
                    stamp(a, 5)
                a(f"s_add_u32 s8, s{sW}, {1+sl}\ns_and_b32 s8, s8, 3\ns_mul_i32 s8, s8, 12288\ns_add_u32 s8, s8, {LR+sl*4096}")
                a(f"v_add_u32 v{TMP}, s8, v3")
                wr = lambda g, sl=sl: a(f"ds_write_b128 v{TMP}, {vr(O+16*sl+4*g,4)} offset:{g*1024}")
                extra[1] = lambda wr=wr: (wr(0), wr(1))
                extra[2] = lambda wr=wr: wr(2)
                extra[3] = lambda wr=wr: wr(3)
        if i == fin[2] + 3:
            extra[2] = lambda: (a("s_waitcnt lgkmcnt(0)"), arrive(a, C_R1))
        GS = OPT.get("gst", (2, 6, 10, 14))
        if i in GS and not OPT.get("ag"):
            u = GS.index(i)
            extra[0] = lambda u=u: (g_rd(u), gpend.__setitem__(0, u))
            extra[3] = lambda u=u: (g_st(u), BQ.append(-1), gpend.__setitem__(0, None))
        step(i, extra)
        if i == GS[-1]:
            gdone[0] = True
            arrive(a, C_G)
        if i == OPT.get("tlw"): arrive(a, C_YS)
        if i in OPT.get("ags", ()): arrive(a, C_W4)
        if NS: continue
        if i < 2:
            load_kv(3 + i); issued[0] = 3 + i; BQ.extend([3 + i] * 4)
        if i > 0:
            pt = seq[i - 1][0]
            if last_use[pt] == i - 1 and pt + NB < 16:
                load_kv(pt + NB); issued[0] = pt + NB; BQ.extend([pt + NB] * 4)
    assert fin[2] + 3 <= len(seq) - 1
    a.nop(2)
    lt = KV + 16 * (seq[-1][0] % NB)
    OW = O + 48
    mfma(a, OW, lt+8, Pp+8, OW)
    mfma(a, OW, lt+12, Pp+8+4, OW)
    stamp(a, 4)
    if OPT.get("cnt"): a("s_sub_u32 s81, 20001, s14")
    wait_cnt(a, C_R1, None, 66)
    stamp(a, 6)
    a(f"s_mul_i32 s8, s{sW}, 12288\ns_add_u32 s8, s8, {LR}\nv_add_u32 v{TMP}, s8, v3")
    for sl in range(3):
        for g in range(4): a(f"ds_read_b128 {vr(O+16*sl+4*g,4)}, v{TMP} offset:{sl*4096+g*1024}")
    a(f"s_mov_b32 s8, {f32_bits(2.0**-80):#x}\ns_mov_b32 s9, {f32_bits(2.0**100):#x}\ns_mov_b32 s10, {f32_bits(2.0**127):#x}")
    for sl in range(3):
        a(f"s_waitcnt lgkmcnt({4*(2-sl)})")
        for r in (6, 7, 0, 1, 2, 3, 4, 5): a(f"v_pk_add_f32 {vr(OW+2*r,2)}, {vr(OW+2*r,2)}, {vr(O+16*sl+2*r,2)}")
    a(f"v_mov_b32 v{TMP}, v{OW+12}\nv_mov_b32 v{TMP+1}, v{OW+12}")
    for r in range(4): a(f"v_pk_add_f32 {vr(O+2*r,2)}, {vr(OW+4*r,2)}, {vr(OW+4*r+2,2)}")
    a(f"v_permlane32_swap_b32 v{TMP}, v{TMP+1}")
    for r in range(2): a(f"v_pk_add_f32 {vr(O+2*r,2)}, {vr(O+2*r,2)}, {vr(O+2*r+4,2)}")
    a(f"v_cmp_le_f32 s[52:53], s8, v{TMP+1}")
    a(f"v_cmp_ge_f32 s[54:55], s9, v{TMP+1}")
    a(f"v_rcp_f32 v{TMP}, v{TMP+1}")
    a(f"v_pk_add_f32 {vr(O,2)}, {vr(O,2)}, {vr(O+2,2)}")
    a(f"v_add_f32 v{O}, v{O}, v{O+1}")
    a(f"v_cmp_ge_f32 s[56:57], s10, abs(v{O})")
    for r in range(8): a(f"v_pk_mul_f32 {vr(OW+2*r,2)}, {vr(OW+2*r,2)}, {vr(TMP,2)} op_sel_hi:[1,0]")
    a("s_and_b64 s[52:53], s[52:53], s[54:55]\ns_and_b64 s[52:53], s[52:53], s[56:57]")
    for r in range(8): a(f"v_cvt_pk_bf16_f32 v{Pp+r}, v{OW+2*r}, v{OW+2*r+1}")
    a(f"s_mov_b32 exec_lo, 0\nv_mov_b32 v{Pp+6}, 0\nv_mov_b32 v{Pp+7}, 0\ns_mov_b64 exec, -1")
    sign(a, Pp, 8, SG)
    a(f"""s_lshl_b32 s10, s{sQB}, 2
s_add_u32 s10, s10, s{sW}
s_lshl_b32 s10, s10, 4
s_add_u32 s10, s10, s{sH}
s_lshl_b32 s8, s10, 11
s_add_u32 s8, s8, {WS_O}""")
    a(f"s_cmp_lg_u32 s{sPASS}, 0\ns_cbranch_scc1 b_nofail")
    if not OPT.get("forcefail"): a("s_cmp_eq_u64 s[52:53], -1\ns_cbranch_scc1 b_nofail")
    arrive(a, C_FAIL)
    a("s_branch b_nost")
    a("b_nofail:")
    for t in range(2):
        a(f"buffer_store_dwordx4 {vr(Pp+4*t,4)}, v3, {WSD}, s8 offen offset:{t*1024} sc1")
    a("b_nost:")
    a("s_waitcnt lgkmcnt(0)")
    arrive(a, C_R2)
    wait_cnt(a, C_R2, None, 66)
    a(f"s_cmp_lg_u32 s{sPASS}, 0\ns_cbranch_scc1 b_pub")
    a(f"ds_read_b32 v6, v4 offset:{4*C_FAIL}\ns_waitcnt lgkmcnt(0)\nv_readfirstlane_b32 s8, v6\ns_nop 3")
    a("s_cmp_lg_u32 s8, 0\ns_cbranch_scc1 b_slow")
    a("b_pub:")
    stamp(a, 7)
    WF3, OF3, ACC3 = 8, 152, 216
    if not OPT.get("noA") and not OPT.get("astop"): wait_cnt(a, C_WO, 4)
    a(f"""v_lshrrev_b32 v6, 5, v1
v_lshlrev_b32 v6, 4, v6
v_bfe_u32 v7, v1, 2, 2
v_add_u32 v6, v6, v7
v_mul_u32_u24 v6, 224, v6
v_and_b32 v7, 1, v1
v_lshl_add_u32 v6, v7, 5, v6
v_bfe_u32 v7, v1, 4, 1
v_lshl_add_u32 v6, v7, 4, v6
v_bfe_u32 v7, v1, 1, 1
v_lshl_add_u32 v6, v7, 3, v6
s_lshl_b32 s8, s{sW}, 6
v_add_u32 v6, s8, v6""")
    VA = 244
    for g in range(4):
        a(f"s_add_u32 s8, s{sW}, {g}\ns_and_b32 s8, s8, 3\ns_mul_i32 s9, s8, {4*28*224}\nv_add_u32 v{VA+g}, s9, v6")
        if g: a(f"s_lshl_b32 s8, s8, 13\ns_add_u32 s8, s8, {LO}\nv_add_u32 v{VA+3+g}, s8, v3")
    def wo_rd(h0, h1):
        for h in range(h0, h1):
            for t in range(2):
                for aa in range(2):
                    a(f"ds_read_b64_tr_b16 {vr(WF3+8*h+4*t+2*aa,2)}, v{VA+h//4} offset:{LWO+(28*(h%4)+8*t+4*aa)*224}")
    OFS = OPT.get("ofs", 16)
    wo_rd(0, OFS)
    a(f"""s_and_b32 s12, s{sX}, 1
s_lshl_b32 s12, s12, 5
s_lshr_b32 s11, s{sX}, 1
s_lshl_b32 s11, s11, 3
s_add_u32 s12, s12, s11
s_lshr_b32 s11, s{sJ}, 2
s_add_u32 s12, s12, s11""")
    a(f"""s_lshl_b32 s11, s12, 4
s_lshl_b32 s8, s{sW}, 2
s_add_u32 s11, s11, s8""")
    a(f"s_lshl_b32 s11, s11, 11\ns_add_u32 s11, s11, {WS_O}\ns_lshl_b32 s8, s{sW}, 13\ns_add_u32 s8, s8, {LO}")
    a(f"s_mov_b32 s14, 20000\nv_add_u32 v7, s8, v3")
    FL = 52
    for i in range(4): a(f"s_mov_b64 s[{FL+2*i}:{FL+2*i+1}], -1")
    def o_dma(i, md="sc1"):
        for u in range(2):
            a(f"s_add_u32 m0, s8, {(2*i+u)*1024}\ns_add_u32 s9, s11, {(2*i+u)*1024}")
            a(f"buffer_load_dwordx4 v3, {WSD}, s9 offen {md} lds")
    if OFS < 16 or OPT.get("om1") != "sc1":
        for i in range(4): o_dma(i, OPT.get("om1"))
        wo_rd(OFS, 16)
        a("s_branch b_opoll1")
    a("b_opoll:")
    def each(tag, f):
        for i in range(4):
            a(f"s_cmp_eq_u64 s[{FL+2*i}:{FL+2*i+1}], 0\ns_cbranch_scc1 b_o{tag}{i}")
            f(i)
            a(f"b_o{tag}{i}:")
    each("d", o_dma)
    a("b_opoll1:")
    a("s_waitcnt vmcnt(0)")
    each("r", lambda i: [a(f"ds_read_b128 {vr(OF3+8*i+4*u,4)}, v7 offset:{(2*i+u)*1024}") for u in range(2)])
    a("s_waitcnt lgkmcnt(0)")
    for i in range(4):
        a(f"v_bitop3_b32 v{232+i}, v{OF3+8*i}, v{OF3+8*i+4}, v{SG} bitop3:0x7e")
    for i in range(4):
        a(f"v_and_b32 v{232+i}, s{sMSK}, v{232+i}")
    for i in range(4):
        a(f"v_cmp_ne_u32 s[{FL+2*i}:{FL+2*i+1}], 0, v{232+i}")
    a("s_nop 3")
    a(f"s_or_b64 vcc, s[{FL}:{FL+1}], s[{FL+2}:{FL+3}]\ns_or_b64 vcc, vcc, s[{FL+4}:{FL+5}]\ns_or_b64 vcc, vcc, s[{FL+6}:{FL+7}]")
    a("s_cbranch_scc0 b_opoll_d")
    if OPT.get('osleep', 2): a(f"s_sleep {OPT.get('osleep', 2)}")
    a("s_sub_u32 s14, s14, 1\ns_cmp_lg_u32 s14, 0\ns_cbranch_scc1 b_opoll")
    a("b_opoll_d:")
    if OPT.get("cnt"): a("s_sub_u32 s82, 20001, s14")
    stamp(a, 8)
    arrive(a, C_O)
    for i in range(8): mfma(a, ACC3, WF3+4*i, OF3+4*i, None if i == 0 else ACC3)
    wait_cnt(a, C_O, 4)
    stamp(a, 9)
    def rdo(g, dst):
        for i in range(8): a(f"ds_read_b128 {vr(dst+4*i,4)}, v{VA+3+g} offset:{i*1024}")
    rdo(1, OF3+32); rdo(2, OF3)
    for i in range(8):
        a(f"s_waitcnt lgkmcnt({15-i})")
        mfma(a, ACC3, WF3+32+4*i, OF3+32+4*i, ACC3)
    rdo(3, OF3+32)
    for i in range(8):
        a(f"s_waitcnt lgkmcnt({15-i})")
        mfma(a, ACC3, WF3+64+4*i, OF3+4*i, ACC3)
    for i in range(8):
        a(f"s_waitcnt lgkmcnt({7-i})")
        mfma(a, ACC3, WF3+96+4*i, OF3+32+4*i, ACC3)
    a(f"""v_and_b32 v6, 31, v1
v_mul_u32_u24 v6, 1792, v6
v_lshrrev_b32 v7, 5, v1
v_lshl_add_u32 v6, v7, 5, v6
s_mul_i32 s7, s12, 57344
{f"s_mov_b32 s8, s{sJ4}" if OPT.get("b3m") else f"s_lshr_b32 s8, s{sH}, 2"}
s_mul_i32 s8, s8, 224
s_add_u32 s7, s7, s8
s_lshl_b32 s8, s{sW}, 6
s_add_u32 s7, s7, s8
s_add_u32 s7, s7, 896""")
    a.nop(2)
    for r in range(8): a(f"v_cvt_pk_bf16_f32 v{OF3+r}, v{ACC3+2*r}, v{ACC3+2*r+1}")
    a(f"""s_cmp_lg_u32 s{sW}, 3
s_cbranch_scc1 b_st
s_mov_b32 exec_hi, 0
b_st:""")
    for t in range(2):
        a(f"buffer_store_dwordx4 {vr(OF3+4*t,4)}, v6, s[{SRD_OUT}:{SRD_OUT+3}], s7 offen offset:{t*16} {OPT.get('omod', '')}")
    a("s_mov_b64 exec, -1")
    a(f"s_or_b32 s8, s2, s{sW}\ns_cmp_lg_u32 s8, 0\ns_cbranch_scc1 b_noep")
    a(f"s_mov_b64 exec, 1\nv_mov_b32 v6, s67\nv_mov_b32 v7, 0\ns_mov_b32 s8, {WS_EP}")
    a(f"buffer_store_dword v6, v7, {WSD}, s8 offen sc1")
    a("s_mov_b64 exec, -1")
    a("b_noep:")
    stamp(a, 10)
    stamp_out(a, 16)
    a("s_endpgm")
    for (t, iss, l, gd, inl) in retries:
        a(f"{l}_r:")
        a(f"s_sub_u32 s14, s14, 1\ns_cmp_le_i32 s14, 0\ns_cbranch_scc1 {l}_d")
        if OPT.get("rsleep", 1): a(f"s_sleep {OPT.get('rsleep', 1)}")
        if t < 8:
            a(f"s_cmp_gt_u32 s14, {20000 - OPT.get('nloc', 4)}\ns_cbranch_scc1 {l}_g")
            a(f"s_xor_b32 s15, s15, {WS_L}")
        if not gd and OPT.get("ag"): arrive(a, C_W4)
        elif not gd:
            a(f"s_bitcmp1_b32 s14, 0\ns_cbranch_scc1 {l}_g")
            st_glob()
        if t < 8: a(f"{l}_g:")
        for u in range(t, iss + 1): load_kv(u, True)
        a(f"s_waitcnt vmcnt(0)")
        if inl:
            if inl >= 2: g_rd(inl - 2)
            chk_v(KV + 16 * (t % NB))
            a(f"s_cbranch_vccnz {l}_r\ns_branch {l}_d")
        else: a(f"s_branch {l}")
    a("b_slow:")
    a(f"s_mov_b32 s{sPASS}, 1\ns_mov_b32 s66, 8\ns_lshr_b32 s87, s87, 1\ns_add_u32 s87, s87, {WS_JUNK}\ns_mov_b32 s88, s87")
    a("s_waitcnt vmcnt(0)")
    for q in range(4): a(f"v_mov_b32 v{MX+q}, 0xff800000")
    a("s_mov_b32 s14, 16\ns_mov_b32 s69, 20000")
    a("b_mloop:")
    a("s_and_b32 s13, s14, 7\ns_add_u32 s13, s13, s12\ns_and_b32 s13, s13, 31\ns_lshl_b32 s8, s13, 11\ns_bitcmp1_b32 s14, 3\ns_cselect_b32 s9, s15, s68\ns_add_u32 s8, s8, s9")
    for t in range(2):
        a(f"buffer_load_dwordx4 {vr(KV+4*t,4)}, v3, {WSD}, s8 offen offset:{t*1024} sc1")
    a("s_waitcnt vmcnt(0)")
    a(f"v_bitop3_b32 v{CT}, v{KV}, v{KV+4}, v{SG} bitop3:0x7e")
    a(f"v_and_b32 v{CT}, s{sMSK}, v{CT}")
    a(f"v_cmp_ne_u32 vcc, 0, v{CT}")
    a("s_cbranch_vccz b_mok")
    a(f"s_xor_b32 s15, s15, {WS_L}\ns_sub_u32 s69, s69, 1\ns_cmp_gt_i32 s69, 0\ns_cbranch_scc1 b_mloop")
    a("b_mok:")
    for q in range(4):
        mfma(a, S, KV, Q+8*q, None)
        mfma(a, S, KV+4, Q+8*q+4, S)
        a.nop(12)
        for r in range(8): a(f"v_max3_f32 v{MX+q}, v{MX+q}, v{S+2*r}, v{S+2*r+1}")
    a("s_sub_u32 s14, s14, 1\ns_cmp_lg_u32 s14, 0\ns_cbranch_scc1 b_mloop")
    a(f"v_lshlrev_b32 v{TMP}, 2, v1\ns_lshl_b32 s9, s{sW}, 10")
    for q in range(4):
        rot(q, 8, 8, LMX)
        a(f"s_add_u32 s8, s8, s9\nv_add_u32 v{TMP+1}, s8, v{TMP}")
        a(f"ds_write_b32 v{TMP+1}, v{MX+q}")
    a("s_waitcnt lgkmcnt(0)")
    arrive(a, C_M1)
    wait_cnt(a, C_M1, 4)
    a(f"v_and_b32 v{TMP}, 31, v1\nv_lshlrev_b32 v{TMP}, 2, v{TMP}")
    for q in range(4):
        rot(q, 8, 8, LMX)
        a(f"v_add_u32 v{TMP+1}, s8, v{TMP}")
        for w in range(4):
            for hh in range(2):
                a(f"ds_read_b32 v{S+2*w+hh}, v{TMP+1} offset:{w*1024+hh*128}")
        a("s_waitcnt lgkmcnt(0)")
        a(f"v_max3_f32 v{MX+q}, v{S}, v{S+1}, v{S+2}")
        a(f"v_max3_f32 v{MX+q}, v{MX+q}, v{S+3}, v{S+4}")
        a(f"v_max3_f32 v{MX+q}, v{MX+q}, v{S+5}, v{S+6}")
        a(f"v_max_f32 v{MX+q}, v{MX+q}, v{S+7}")
    a("s_mov_b32 s8, -1.0")
    a("s_mov_b32 exec_lo, 0")
    for q in range(4):
        a(f"""v_mul_f32 v{TMP}, s8, v{MX+q}
v_and_b32 v{TMP+1}, 0xffff0000, v{TMP}
v_sub_f32 v{TMP}, v{TMP}, v{TMP+1}
v_and_b32 v{TMP+3}, 0xffff0000, v{TMP}
v_sub_f32 v{TMP}, v{TMP}, v{TMP+3}
v_lshrrev_b32 v{TMP+1}, 16, v{TMP+1}
v_or_b32 v{Q+8*q+6}, v{TMP+1}, v{TMP+3}
v_lshrrev_b32 v{Q+8*q+7}, 16, v{TMP}""")
    a("s_mov_b64 exec, -1")
    a("s_mov_b32 s14, 20000")
    a("s_branch b_main")

    a("a_wave:")
    G.inA = True
    common()
    a(f"""s_lshr_b32 s{sDQ}, s2, 6
s_lshr_b32 s{sG}, s{sJ}, 2""")
    a(f"""s_lshl_b32 s67, s{sX}, 3
s_and_b32 s9, s{sJ}, 7
s_add_u32 s67, s67, s9
s_lshr_b32 s{sG1}, s{sJ}, 3
s_lshl_b32 s{sG1}, s{sG1}, 1
s_lshr_b32 s9, s{sWL}, 1
s_add_u32 s{sG1}, s{sG1}, s9
s_and_b32 s68, s{sWL}, 1""")
    F, E1C, E1S, E3C, E3X, CSN, CSC = 16, 128, 136, 144, 152, 160, 216
    A1ACC, A1XF, A1XP, A1Y = 168, 184, 200, 184
    VWO = 10
    sK1 = sN2
    a(f"""v_and_b32 v202, 3, v8
v_lshrrev_b32 v203, 3, v8
v_lshl_add_u32 v202, v203, 2, v202
v_bfe_u32 v203, v8, 2, 1
v_lshlrev_b32 v203, 4, v203
s_mul_i32 s9, s{sG1}, 28
v_add3_u32 v202, v202, v203, s9
s_mul_i32 s9, s68, 0x3e800000
v_mov_b32 v204, s9
v_cvt_f32_u32 v202, v202
v_mul_f32 v202, {f32_bits(1/448):#x}, v202
v_lshlrev_b32 v203, 3, v9
v_cvt_f32_u32 v203, v203
v_fma_f32 v204, v203, v202, v204""")
    def gen_F(hooks):
        T0, KK = 168, 200
        a(f"v_cos_f32 v{KK}, v202\ns_nop 0\nv_add_f32 v{KK}, v{KK}, v{KK}\nv_mov_b32 v{KK+1}, v{KK}")
        def seeds(tp):
            T = T0 + 16 * (tp % 2)
            L = []
            for j in range(2):
                for e in range(2):
                    L.append(f"v_fmamk_f32 v{T+2*j+e}, v202, {f32_bits(float(16*(2*tp+e)+j)):#x}, v204")
            for j in range(2):
                for e in range(2):
                    L.append(f"v_cos_f32 v{T+2*j+e}, v{T+2*j+e}")
            return L
        def rec(tp):
            T = T0 + 16 * (tp % 2)
            L = []
            for j in range(2, 8):
                L.append(f"v_pk_fma_f32 {vr(T+2*j,2)}, {vr(KK,2)}, {vr(T+2*j-2,2)}, {vr(T+2*j-4,2)} neg_lo:[0,0,1] neg_hi:[0,0,1]")
                if j % 2 == 0:
                    jp = j // 2 - 1
                    for e in range(2): L.append(f"v_cvt_pk_bf16_f32 v{F+4*(2*tp+e)+jp}, v{T+4*jp+e}, v{T+4*jp+2+e}")
            for e in range(2): L.append(f"v_cvt_pk_bf16_f32 v{F+4*(2*tp+e)+3}, v{T+12+e}, v{T+14+e}")
            return L
        for x in seeds(0): a(x)
        a("s_nop 0")
        for tp in range(14):
            if tp in hooks: hooks[tp]()
            R = rec(tp); S_ = seeds(tp + 1) if tp < 13 else []
            while R or S_:
                if R: a(R.pop(0))
                if S_: a(S_.pop(0))
    W2, WR = 240, 232
    hooks = {}
    if OPT.get("spf") and not OPT.get("noA"):
        st = OPT["spf"]
        L = [("s[6:7]", r * 57344 + c) for r in range(2) for c in range(0, 896, st)]
        if OPT.get("spw"): L += [("s[14:15]", c) for c in range(0, 1800 + st - 4, st - 8)]
        H0 = OPT.get("sph", 2)
        per = -(-len(L) // (14 - H0))
        def h0():
            a(f"""s_lshr_b32 s8, s{sJ}, 3
s_lshl_b32 s8, s8, 2
s_add_u32 s8, s8, s{sWL}
s_mul_i32 s8, s8, {2*57344}
s_mul_i32 s9, s67, 896
s_add_u32 s8, s8, s9
s_lshl_b32 s9, s{sJ}, 1
s_lshr_b32 s10, s{sWL}, 1
s_add_u32 s9, s9, s10
s_lshl_b32 s9, s9, 3
s_add_u32 s9, s9, s{sX}
s_mul_i32 s9, s9, 1800
s_waitcnt lgkmcnt(0)
s_add_u32 s6, s{S_AX}, s8
s_addc_u32 s7, s{S_AX+1}, 0
s_cmp_eq_u32 s68, 0
s_cselect_b32 s14, s{S_WR}, s{S_WI}
s_cselect_b32 s15, s{S_WR+1}, s{S_WI+1}
s_add_u32 s14, s14, s9
s_addc_u32 s15, s15, 0""")
        def mk(tp):
            def f():
                if tp == H0: h0()
                for (b, o) in L[(tp - H0) * per:(tp - H0 + 1) * per]:
                    a(f"s_load_dword s10, {b}, {min(o, 1796) if b == 's[14:15]' else o}")
            return f
        for tp in range(H0, 14): hooks[tp] = mk(tp)
    gen_F(hooks)
    a("s_lshl_b32 s13, s68, 31\ns_lshr_b32 s8, s13, 16\ns_or_b32 s13, s13, s8")
    gen_E(a, 8, 9, 67, 'a1', {'C': E1C, 'Sx': E1S}, 204)
    stamp(a, 8)
    a("s_waitcnt lgkmcnt(0)")
    if STAMPS: a("s_mov_b32 s70, s92")
    srd(a, SRD_WS, S_WS, WS_SIZE)
    t0, t1, t2 = 186, 187, 188
    def gen_CS():
        a(f"""s_lshl_b32 s8, s{sWL}, 4
v_and_b32 v{t0}, 15, v1
v_add_u32 v{t0}, s8, v{t0}
v_cvt_f32_u32 v{t0}, v{t0}
v_mul_f32 v{t0}, {f32_bits(1/64):#x}, v{t0}
v_lshrrev_b32 v{t1}, 4, v1
v_lshlrev_b32 v{t1}, 2, v{t1}
v_cvt_f32_u32 v{t1}, v{t1}
v_mul_f32 v{t1}, v{t1}, v{t0}""")
        for kap in range(2):
            for hf in range(2):
                for i in range(4):
                    a(f"v_fmamk_f32 v{t2+i}, v{t0}, {f32_bits(float(32*kap+16*hf+i)):#x}, v{t1}")
                for i in range(4): a(f"v_cos_f32 v{t2+4+i}, v{t2+i}")
                for i in range(4): a(f"v_sin_f32 v{t2+i}, v{t2+i}")
                o = 4 * kap + 2 * hf
                for i in range(2): a(f"v_cvt_pk_bf16_f32 v{CSC+o+i}, v{t2+4+2*i}, v{t2+4+2*i+1}")
                for i in range(2): a(f"v_cvt_pk_bf16_f32 v{CSC+8+o+i}, v{t2+2*i}, v{t2+2*i+1}")
                for i in range(2): a(f"v_xor_b32 v{CSN+o+i}, 0x80008000, v{CSC+8+o+i}")
    def gen_E3():
        a(f"s_mov_b32 s8, {f32_bits(2.0/(2048*448)):#x}\ns_lshl_b32 s9, s68, 31\ns_xor_b32 s9, s9, s8\ns_xor_b32 s9, s9, 0x80000000")
        a(f"""v_lshlrev_b32 v{t0}, 6, v8
v_add_u32 v{t0}, s67, v{t0}
v_cvt_f32_u32 v{t0}, v{t0}
v_mul_f32 v{t0}, {f32_bits(1/2048):#x}, v{t0}
v_lshlrev_b32 v{t1}, 3, v9
v_cvt_f32_u32 v{t1}, v{t1}
v_mul_f32 v{t1}, v{t1}, v{t0}""")
        for tau in range(2):
            for hf in range(2):
                for i in range(4):
                    a(f"v_fmamk_f32 v{t2+i}, v{t0}, {f32_bits(float(16*tau+4*hf+i)):#x}, v{t1}")
                for i in range(4): a(f"v_cos_f32 v{t2+4+i}, v{t2+i}")
                for i in range(4): a(f"v_sin_f32 v{t2+i}, v{t2+i}")
                for i in range(4): a(f"v_mul_f32 v{t2+4+i}, s8, v{t2+4+i}")
                for i in range(4): a(f"v_mul_f32 v{t2+i}, s9, v{t2+i}")
                o = 4 * tau + 2 * hf
                for i in range(2): a(f"v_cvt_pk_bf16_f32 v{E3C+o+i}, v{t2+4+2*i}, v{t2+4+2*i+1}")
                for i in range(2): a(f"v_cvt_pk_bf16_f32 v{E3X+o+i}, v{t2+2*i}, v{t2+2*i+1}")
    if OPT.get("cs", 1) == 0: gen_CS()
    if OPT.get("e3", 0) == 0: gen_E3()
    srd(a, SRD_B, S_WO, 448 * 896)
    srd(a, SRD_OUT, S_OUT, 2048 * 1792)
    a(f"""v_bfe_u32 v10, v8, 1, 3
v_lshlrev_b32 v6, 7, v8
v_add_u32 v6, {LXA}, v6""")
    for t in range(4):
        a(f"v_add_u32 v7, {2*t}, v9\nv_xor_b32 v7, v7, v10\nv_lshl_add_u32 v{12+t}, v7, 4, v6")
    XS = 7
    a(f"s_setprio {OPT.get('prio', 3)}")
    if OPT.get("noA"): a("s_branch a_fin")
    a("s_mov_b32 s69, 400000")
    a("a_xw:")
    a(f"ds_read_b128 v[200:203], v4 offset:{4*C_XF}")
    a("s_waitcnt lgkmcnt(0)")
    a("v_min3_u32 v200, v200, v201, v202\nv_min_u32 v200, v200, v203\ns_sub_u32 s69, s69, 1")
    a("v_readfirstlane_b32 s8, v200\ns_nop 1")
    a("s_cmp_lg_u32 s8, 0\ns_cbranch_scc1 a_xw_d\ns_sleep 1\ns_cmp_lg_u32 s69, 0\ns_cbranch_scc1 a_xw")
    a("a_xw_d:")
    if OPT.get("a2o", 0) & 1: a("s_waitcnt vmcnt(0)")
    a(f"ds_read_b32 v2, v4 offset:{4*C_EP}")
    stamp(a, 3)
    a(f"s_setprio {OPT.get('gprio', 3)}")
    for c in range(7):
        xf = A1XF + 16 * (c % 2)
        if c == XS:
            if not OPT.get("noA"): vwait("x6")
            arrive(a, C_AX2)
            wait_cnt(a, C_AX2, 4)
        if c == 0 or c == XS:
            for t in range(4): a(f"ds_read_b128 {vr(xf+4*t,4)}, v{12+t} offset:{c*4096}")
        nxt = c < 6 and c + 1 != XS
        if nxt:
            for t in range(4): a(f"ds_read_b128 {vr(A1XF+16*((c+1)%2)+4*t,4)}, v{12+t} offset:{(c+1)*4096}")
        a(f"s_waitcnt lgkmcnt({4 if nxt else 0})")
        for t in range(4):
            mfma(a, A1ACC, xf+4*t, F+4*(4*c+t), None if (c == 0 and t == 0) else A1ACC)
        if c == 1: arrive(a, C_AX)
    a(f"s_setprio {OPT.get('prio', 3)}")
    a(f"s_lshl_b32 s8, s{sWL}, 11\ns_add_u32 s8, s8, {LEX}\nv_add_u32 v6, s8, v3")
    a("v_mov_b32 v11, v6")
    set_tag(a)
    wait_cnt(a, C_AX, 4)
    a("v_mov_b32 v6, v11")
    a.nop(4)
    for r in range(8): a(f"v_cvt_pk_bf16_f32 v{A1XP+r}, v{A1ACC+2*r}, v{A1ACC+2*r+1}")
    for t in range(2): a(f"ds_write_b128 v6, {vr(A1XP+4*t,4)} offset:{t*1024}")
    for t in range(2): mfma(a, A1Y, A1XP+4*t, E1C+4*t, None if t == 0 else A1Y)
    a("s_waitcnt lgkmcnt(0)")
    stamp(a, 4)
    arrive(a, C_AEX)
    wait_cnt(a, C_AEX, 4)
    a(f"s_xor_b32 s8, s{sWL}, 1\ns_lshl_b32 s8, s8, 11\ns_add_u32 s8, s8, {LEX}\nv_add_u32 v6, s8, v3")
    for t in range(2): a(f"ds_read_b128 {vr(A1XP+8+4*t,4)}, v6 offset:{t*1024}")
    a("s_waitcnt lgkmcnt(0)")
    for t in range(2): mfma(a, A1Y, A1XP+8+4*t, E1S+4*t, A1Y)
    sig_regs(a, 128)
    a(f"""s_lshl_b32 s8, s{sG1}, 6
s_add_u32 s8, s8, s67
s_lshl_b32 s8, s8, 12
s_lshl_b32 s9, s68, 6
s_add_u32 s8, s8, s9
s_add_u32 s8, s8, {WS_Y}
s_add_u32 s9, s12, {LYT}
v_lshlrev_b32 v6, 6, v8
v_lshl_add_u32 v6, v9, 5, v6
v_add_u32 v6, s9, v6
v_add_u32 v7, s9, v3
v_lshrrev_b32 v11, 2, v1
v_lshlrev_b32 v11, 7, v11
v_and_b32 v12, 3, v1
v_lshl_add_u32 v11, v12, 4, v11""")
    for r in range(8): a(f"v_cvt_pk_bf16_f32 v{A1XP+r}, v{A1Y+2*r}, v{A1Y+2*r+1}")
    for t in range(2): a(f"ds_write_b128 v6, {vr(A1XP+4*t,4)} offset:{t*16}")
    for t in range(2): a(f"ds_read_b128 {vr(A1XP+8+4*t,4)}, v7 offset:{t*1024}")
    a("s_waitcnt lgkmcnt(0)")
    sign(a, A1XP+8, 8, 128)
    a("s_mov_b32 s10, s8")
    stamp(a, 1)
    if OPT.get("cs", 1) == 2: gen_CS()
    if OPT.get("e3", 0) == 2: gen_E3()
    a(f"""v_lshrrev_b32 v6, 2, v1
s_lshl_b32 s8, s{sWL}, 4
v_add_u32 v6, s8, v6
v_lshlrev_b32 v6, 5, v6
v_add_u32 v6, s{sK1}, v6
v_mul_u32_u24 v6, 450, v6
v_and_b32 v7, 3, v1
v_lshlrev_b32 v7, 4, v7
s_mul_i32 s9, s{sG}, 56
v_add3_u32 v10, v6, v7, s9""")
    srd(a, SRD_TAB, S_WR, 2048 * 450 + 2)
    srd(a, SRD_C, S_WI, 2048 * 450 + 2)
    def wdma():
        for k, sd in enumerate((SRD_TAB, SRD_C)):
            a(f"s_add_u32 m0, s12, {LWW + k*1024}\ns_nop 0")
            a(f"buffer_load_dwordx4 v10, s[{sd}:{sd+3}], 0 offen lds")
    wait_cnt(a, *OPT["ysw"])
    setprio(a, OPT.get('p1', 3))
    AS = OPT.get("astop", 0)
    if AS == 1: a("s_branch a_fin")
    for t in range(2):
        if AS != 3: a(f"buffer_store_dwordx4 {vr(A1XP+8+4*t,4)}, v11, {WSD}, s10 offen offset:{t*2048} {OPT.get('ym', 'sc1')}")
    def odum():
        a(f"""s_lshl_b32 s8, s{sQB}, 2
s_add_u32 s8, s8, s{sWL}
s_lshl_b32 s8, s8, 4
s_add_u32 s8, s8, s{sH}
s_lshl_b32 s8, s8, 11
s_add_u32 s8, s8, {WS_O}
v_not_b32 v168, v128""")
        for t in range(2): a(f"buffer_store_dwordx4 v[168:171], v3, {WSD}, s8 offen offset:{t*1024} sc1")
    if OPT.get("odum") == 1: odum()
    if AS == 2: a("s_branch a_fin")
    if OPT.get("wpos", 0) == 1: wdma()
    if OPT.get("yf", 0):
        a(f"s_lshl_b32 s8, s{sG}, 7\ns_lshl_b32 s9, s67, 1\ns_add_u32 s8, s8, s9\ns_add_u32 s8, s8, s68\ns_lshl_b32 s8, s8, 2\ns_add_u32 s8, s8, {WS_FY}")
        flag_store(a, 8)
    stamp(a, 5)
    if OPT.get("p2") is not None: setprio(a, OPT["p2"])
    THR = OPT.get("thr", 2)
    WOO = 140
    def wo_addr():
        a("s_mov_b32 s9, 0x12492493")
        a(f"s_mov_b32 s8, s{sJ4}" if OPT.get("b3m") else f"s_lshr_b32 s8, s{sH}, 2")
        a("s_mul_i32 s8, s8, 224")
        a(f"""v_mul_hi_u32 v7, v1, s9
v_mul_u32_u24 v6, 14, v7
v_sub_u32 v6, v1, v6
v_mul_u32_u24 v7, 896, v7
v_lshl_add_u32 v7, v6, 4, v7
v_add_u32 v{WOO}, s8, v7""")
    def wo_part(k0, k1, pad):
        n = k1 - k0
        THR = OPT.get("thr", 2) if pad else OPT.get("thr2", OPT.get("thr", 2))
        if not OPT.get("ho"): wo_addr()
        a(f"""s_lshr_b32 s10, s{sJ}, 2
s_mul_i32 s10, s10, {n}
s_lshr_b32 s10, s10, 3
s_add_u32 s10, s10, {k0}
s_lshl_b32 s10, s10, 2
s_add_u32 s10, s10, s{sWL}
s_mul_i32 s10, s10, 896""")
        for k in range(n):
            a(f"s_add_u32 m0, s10, {LWO}\ns_lshl_b32 s13, s10, 2")
            if k > THR: a(f"s_waitcnt vmcnt({THR})")
            a(f"buffer_load_dwordx4 v{WOO}, s[{SRD_B}:{SRD_B+3}], s13 offen lds")
            if k < n - 1: a(f"s_add_u32 s10, s10, {4*896}\ns_sub_u32 s11, s10, {4*n*896}\ns_cmp_ge_u32 s10, {4*k1*896}\ns_cselect_b32 s10, s11, s10")
        if pad:
            a(f"s_mov_b32 m0, {LWO+448*224}\ns_mov_b32 s13, {448*896}")
            a(f"buffer_load_dwordx4 v{WOO}, s[{SRD_B}:{SRD_B+3}], s13 offen lds")
    YF, Z = 168, 200
    VY, VP, VPW, VD = 76, 80, 81, 82
    a(f"""v_and_b32 v14, 15, v1
v_lshrrev_b32 v15, 4, v1
s_lshl_b32 s6, s{sG}, 18
s_lshl_b32 s7, s{sK1}, 7
s_add_u32 s6, s6, s7
s_lshl_b32 s7, s{sWL}, 16
s_add_u32 s6, s6, s7
s_add_u32 s6, s6, {WS_Y}
v_bfe_u32 v6, v1, 1, 2
v_bfe_u32 v7, v1, 4, 2
v_xor_b32 v6, v6, v7
v_and_b32 v7, 1, v1
v_lshl_add_u32 v6, v6, 1, v7
v_lshrrev_b32 v7, 3, v1
v_lshlrev_b32 v7, 12, v7
v_lshl_add_u32 v{VD}, v6, 4, v7
v_and_b32 v6, 3, v6
v_lshlrev_b32 v6, 2, v6
v_lshrrev_b32 v136, v6, s{sSIG}""")
    a(f"""v_lshrrev_b32 v6, 2, v1
v_and_b32 v7, 3, v1
v_lshlrev_b32 v7, 3, v7
v_lshl_add_u32 v{VP}, v6, 6, v7
v_add_u32 v{VP}, {LP}, v{VP}
v_lshl_add_u32 v7, v6, 7, v7
v_add_u32 v7, {LY}, v7
v_bfe_u32 v6, v1, 3, 2""")
    for P_ in range(4):
        a(f"v_xor_b32 v11, {P_}, v6\nv_lshl_add_u32 v{VY+P_}, v11, 5, v7")
    a(f"""s_lshl_b32 s8, s{sWL}, 10
s_add_u32 s8, s8, {LP}
v_lshlrev_b32 v6, 6, v14
v_lshl_add_u32 v6, v15, 3, v6
v_add_u32 v{VPW}, s8, v6
s_add_u32 s8, s12, {LWW}
v_add_u32 v6, s8, v6""")
    if OPT.get("cs", 1) == 1: gen_CS()
    a("v_mov_b32 v12, v6")
    A2O = OPT.get("a2o", 0)
    if A2O & 1:
        for r in range(16): a(f"v_mov_b32 v{W2+r}, 0")
    def wproc():
        if A2O & 1:
            for k in range(4):
                for e in range(4): a(f"ds_read_u16_d16_hi v{W2+4*k+e}, v12 offset:{(k//2)*1024+(k%2)*32+2*e}")
        else:
            for k in range(4):
                a(f"ds_read_b64 {vr(WR+2*k,2)}, v12 offset:{(k//2)*1024+(k%2)*32}")
        a("s_waitcnt lgkmcnt(0)")
        for k in range(4):
            if not A2O & 1: a(f"""v_lshlrev_b32 v{W2+4*k}, 16, v{WR+2*k}
v_and_b32 v{W2+4*k+1}, 0xffff0000, v{WR+2*k}
v_lshlrev_b32 v{W2+4*k+2}, 16, v{WR+2*k+1}
v_and_b32 v{W2+4*k+3}, 0xffff0000, v{WR+2*k+1}""")
        a(f"s_cmp_lg_u32 s{sG}, 0\ns_cbranch_scc1 a_w1")
        a(f"s_mov_b64 exec, 0xffff\nv_mul_f32 v{W2}, 0.5, v{W2}\nv_mul_f32 v{W2+8}, 0.5, v{W2+8}\ns_mov_b64 exec, -1")
        a("a_w1:")
        a(f"s_cmp_lg_u32 s{sG}, 7\ns_cbranch_scc1 a_w2")
        a(f"s_mov_b32 exec_lo, 0\ns_mov_b32 exec_hi, 0xffff0000\nv_mul_f32 v{W2+4}, 0.5, v{W2+4}\nv_mul_f32 v{W2+12}, 0.5, v{W2+12}\ns_mov_b64 exec, -1")
        a("a_w2:")
    if OPT.get("wpos", 0) == 1:
        a("s_waitcnt vmcnt(0)")
        wproc()
    stamp(a, 7)
    def chk8(r0, n, sg, acc):
        for i in range(n // 8): a(f"v_bitop3_b32 v{acc+i}, v{r0+8*i}, v{r0+8*i+4}, v{sg} bitop3:0x7e")
        if n == 8: a(f"v_and_b32 v{acc}, s{sMSK}, v{acc}")
        else:
            a(f"v_or3_b32 v{acc}, v{acc}, v{acc+1}, v{acc+2}")
            a(f"v_bitop3_b32 v{acc}, v{acc}, s{sMSK}, v{acc+3} bitop3:0xc8")
        a(f"v_cmp_ne_u32 vcc, 0, v{acc}")
    if OPT.get("yf", 0):
        a(f"s_lshl_b32 s8, s{sG}, 9\ns_lshl_b32 s9, s{sWL}, 7\ns_add_u32 s8, s8, s9\ns_add_u32 s8, s8, {WS_FY}\nv_lshlrev_b32 v13, 2, v8")
        poll(a, 13, "s8", -1, width=1, vt=132, sleep=OPT.get("fsleep", 2))
        if OPT.get("cnt"): a("s_sub_u32 s71, 20001, s9")
    if AS == 4: a("s_branch a_fin")
    if OPT.get("wop") == 2:
        wait_cnt(a, C_M2, 4)
        wo_part(10, 28, True)
    def wbk(pos, wc=None):
        if OPT.get("wb") is None or OPT.get("wbp", 0) != pos: return
        l = lab("wb")
        a(f"s_and_b32 s8, s{sJ}, {OPT['wb']}\ns_xor_b32 s8, s8, {OPT.get('wbj', 0)}\ns_or_b32 s8, s8, s{sWL}\ns_cmp_lg_u32 s8, 0\ns_cbranch_scc1 {l}")
        if wc is not None: wait_cnt(a, wc, 4, sleep=2)
        a(f"buffer_wbl2 {OPT.get('wbm', 'sc1')}")
        if OPT.get("wbw", 1):
            a("s_waitcnt vmcnt(0)")
            stamp(a, 5)
        a(f"{l}:")
    if OPT.get("ag"):
        a(f"""s_lshl_b32 s10, s{sHP}, 7
s_lshl_b32 s11, s{sQB}, 2
s_add_u32 s10, s10, s11
s_add_u32 s10, s10, s{sWL}
s_lshl_b32 s10, s10, 11
s_and_b32 s11, s{sJ}, 1
s_mul_i32 s11, s11, {WS_V - WS_K}
s_add_u32 s10, s10, s11
s_add_u32 s11, s10, {64*2048}
s_lshl_b32 s13, s{sWL}, 12
s_add_u32 s13, s13, {LKV}
v_add_u32 v13, s13, v3""")
        if OPT.get("ho"):
            if OPT.get("hop") is not None: a(f"s_setprio {OPT['hop']}")
            wo_addr()
            a(f"""s_add_u32 s8, s12, {LTT}
v_lshlrev_b32 v6, 7, v14
v_lshl_add_u32 v6, v15, 3, v6
v_add_u32 v83, s8, v6
v_add_u32 v84, s8, v3
s_lshl_b32 s9, s{sK1}, 5
s_and_b32 s9, s9, 64
v_and_b32 v11, 7, v1
v_lshlrev_b32 v11, 4, v11
v_xor_b32 v11, s9, v11
v_lshrrev_b32 v6, 3, v1
v_lshl_add_u32 v85, v6, 15, v11
v_bfe_u32 v6, v1, 2, 2
v_lshl_add_u32 v6, v9, 3, v6
v_lshlrev_b32 v6, 7, v6
v_bfe_u32 v7, v1, 3, 1
v_xor_b32 v7, s68, v7
v_lshl_add_u32 v14, v7, 6, v6
v_xor_b32 v15, 64, v14
v_bfe_u32 v6, v1, 4, 1
v_lshlrev_b32 v6, 2, v6
v_and_b32 v7, 1, v1
v_lshl_add_u32 v6, v7, 1, v6
v_bfe_u32 v7, v1, 1, 1
v_add_u32 v11, v6, v7
v_lshl_add_u32 v142, v11, 3, v14
v_lshl_add_u32 v143, v11, 3, v15
s_lshl_b32 s8, s{sWL}, 13
v_add_u32 v137, s8, v3
s_mov_b32 s8, 114688
v_mul_lo_u32 v6, v8, s8
v_lshlrev_b32 v7, 5, v9
v_add_u32 v129, v6, v7
v_sub_u32 v130, v6, v7
v_add_u32 v130, 32, v130
s_add_u32 s8, s12, {LEX2}
v_add_u32 v131, s8, v3
v_xor_b32 v141, 2048, v131
s_add_u32 s8, s12, {LY}
v_add_u32 v86, s8, v3""")
            assert LT == 0
            for r in range(4): a(f"v_mov_b32 v{124+r}, 0")
            if OPT.get("hop") is not None: a(f"s_setprio {OPT.get('p1', 3)}")
        wait_cnt(a, OPT.get("agc", C_KV), 4, sleep=1)
        for u in range(4): a(f"ds_read_b128 {vr(Z+4*u,4)}, v13 offset:{u*1024}")
        a("s_mov_b32 s87, s10\ns_mov_b32 s88, s11")
        def ag_st(u):
            a(f"buffer_store_dwordx4 {vr(Z+4*u,4)}, v3, {WSD}, s{87+u//2} offen offset:{(u%2)*1024} {OPT.get('gm', 'sc1')}")
        for u in range(4 - OPT.get("agl", 0)):
            a(f"s_waitcnt lgkmcnt({3-u})")
            if OPT.get("ags") and OPT["ags"][u] is not None: wait_cnt(a, C_W4, 4 * (1 + sum(1 for x in OPT["ags"][:u] if x is not None)), sleep=2)
            ag_st(u)
        a("s_waitcnt lgkmcnt(0)")
    wbk(1, C_Q)
    wbk(4, C_M2)
    if AS == 8: a("s_branch a_fin")
    if OPT.get("ylw") is not None: wait_cnt(a, OPT["ylw"], 4, sleep=2)
    setprio(a, OPT.get('a2prio', 3))
    YCA = 86 if OPT.get("ho") else 13
    a(f"""s_add_u32 s8, s12, {LY}
{"" if OPT.get("ho") else "v_add_u32 v13, s8, v3"}
s_add_u32 s9, s6, {8*4096}
s_mov_b32 s14, 20000""")
    if OPT.get("wpos", 0) == 0: wdma()
    a("a_ypoll:")
    a("s_mov_b32 m0, s8\ns_nop 0")
    a(f"buffer_load_dwordx4 v{VD}, {WSD}, s6 offen sc1 lds")
    a(f"s_add_u32 m0, s8, 1024\ns_nop 0")
    a(f"buffer_load_dwordx4 v{VD}, {WSD}, s9 offen sc1 lds")
    a("s_waitcnt vmcnt(0)")
    for i in range(2): a(f"ds_read_b32 v{YF+4*i}, v{YCA} offset:{i*1024}")
    a("s_waitcnt lgkmcnt(0)")
    chk8(YF, 8, 136, 132)
    a("s_cbranch_vccz a_ypoll_d")
    a(f"s_sleep {OPT.get('psleep', 4)}")
    a("s_sub_u32 s14, s14, 1\ns_cmp_lg_u32 s14, 0\ns_cbranch_scc1 a_ypoll")
    a("a_ypoll_d:")
    if OPT.get("cnt"): a("s_sub_u32 s76, 20001, s14")
    stamp(a, 10)
    arrive(a, C_AY)
    if OPT.get("wpos", 0) == 0: wproc()
    if OPT.get("agl") and OPT.get("aglb"):
        for u in range(4 - OPT["agl"], 4): ag_st(u)
    if OPT.get("wpos", 0) == 2: wdma()
    if OPT.get("agl") and not OPT.get("aglb"):
        for u in range(4 - OPT["agl"], 4): ag_st(u)
    if OPT.get("wpos", 0) == 3:
        wait_cnt(a, C_G, 4)
        wdma()
    wait_cnt(a, C_AY, 4)
    stamp(a, 11)
    yf = lambda ri, ch, kap: YF + 4 * ((ri * 2 + ch) * 2 + kap)
    cs = lambda kap, k: (CSC, CSC + 8, CSN)[k] + 4 * kap
    z = lambda ri, ch: Z + 8 * ri + 4 * ch
    def dft64(rd, k01, k10):
        FR = [(ri, ch, kap) for kap in range(2) for ri in range(2) for ch in range(2)]
        DP = OPT.get("a2d", 3)
        for f_ in FR[:DP]: rd(*f_)
        seen = set()
        for n, (ri, ch, kap) in enumerate(FR):
            a(f"s_waitcnt lgkmcnt({2 * (min(8, n + DP) - n - 1)})")
            for (zo, kk) in ((ri, 0), (1 - ri, k01 if ri else k10)):
                mfma16(a, z(zo,ch), yf(ri,ch,kap), cs(kap,kk), z(zo,ch) if (zo, ch) in seen else None)
                seen.add((zo, ch))
            if n + DP < 8: rd(*FR[n + DP])
    def rdY(ri, ch, kap):
        for aa in range(2): a(f"ds_read_b64_tr_b16 {vr(yf(ri,ch,kap)+2*aa,2)}, v{VY+2*ri+ch} offset:{(32*kap+16*aa)*128}")
    def rdP(ri, ch, kap):
        for aa in range(2): a(f"ds_read_b64_tr_b16 {vr(yf(ri,ch,kap)+2*aa,2)}, v{VP} offset:{ri*4096+(32*kap+16*aa)*64+ch*32}")
    if A2O & 4: dft64(rdY, 1, 2)
    else:
        for ri in range(2):
            for ch in range(2):
                for kap in range(2):
                    for aa in range(2):
                        a(f"ds_read_b64_tr_b16 {vr(yf(ri,ch,kap)+2*aa,2)}, v{VY+2*ri+ch} offset:{(32*kap+16*aa)*128}")
        a("s_waitcnt lgkmcnt(0)")
        cs = lambda kap, k: (CSC, CSC + 8, CSN)[k] + 4 * kap
        z = lambda ri, ch: Z + 8 * ri + 4 * ch
        for kap in range(2):
            for ch in range(2):
                mfma16(a, z(0,ch), yf(0,ch,kap), cs(kap,0), None if kap == 0 else z(0,ch))
                mfma16(a, z(1,ch), yf(1,ch,kap), cs(kap,0), None if kap == 0 else z(1,ch))
        for kap in range(2):
            for ch in range(2):
                mfma16(a, z(0,ch), yf(1,ch,kap), cs(kap,1), z(0,ch))
                mfma16(a, z(1,ch), yf(0,ch,kap), cs(kap,2), z(1,ch))
    if OPT.get("wpos", 0) >= 2:
        a(f"s_waitcnt vmcnt({0 if OPT.get('aglb') else OPT.get('agl', 0)})")
        stamp(a, 7)
        wproc()
    else: a.nop(9)
    for i in range(0, 8, 2) if A2O & 2 else []:
        zr, zi, wr, wi = vr(Z + i, 2), vr(Z + 8 + i, 2), vr(W2 + i, 2), vr(W2 + 8 + i, 2)
        t_, u_ = vr(YF + 2 * i, 2), vr(YF + 2 * i + 2, 2)
        a(f"""v_pk_mul_f32 {t_}, {zi}, {wi}
v_pk_mul_f32 {u_}, {zr}, {wi}
v_pk_fma_f32 {zr}, {zr}, {wr}, {t_} neg_lo:[0,0,1] neg_hi:[0,0,1]
v_pk_fma_f32 {zi}, {zi}, {wr}, {u_}""")
    for i in range(8) if not A2O & 2 else []:
        zr, zi, wr, wi = Z + i, Z + 8 + i, W2 + i, W2 + 8 + i
        a(f"""v_mul_f32 v6, v{zi}, v{wi}
v_mul_f32 v7, v{zr}, v{wi}
v_fma_f32 v{zr}, v{zr}, v{wr}, -v6
v_fma_f32 v{zi}, v{zi}, v{wr}, v7""")
    for i in range(8): a(f"v_cvt_pk_bf16_f32 v{W2+i}, v{Z+2*i}, v{Z+2*i+1}")
    for i in range(4): a(f"ds_write_b64 v{VPW}, {vr(W2+2*i,2)} offset:{(i//2)*4096+(i%2)*32}")
    a("s_waitcnt lgkmcnt(0)")
    arrive(a, C_AP)
    wait_cnt(a, C_AP, 4)
    if A2O & 4: dft64(rdP, 2, 1)
    else:
        for ri in range(2):
            for ch in range(2):
                for kap in range(2):
                    for aa in range(2):
                        a(f"ds_read_b64_tr_b16 {vr(yf(ri,ch,kap)+2*aa,2)}, v{VP} offset:{ri*4096+(32*kap+16*aa)*64+ch*32}")
        a("s_waitcnt lgkmcnt(0)")
        for kap in range(2):
            for ch in range(2):
                mfma16(a, z(0,ch), yf(0,ch,kap), cs(kap,0), None if kap == 0 else z(0,ch))
                mfma16(a, z(1,ch), yf(1,ch,kap), cs(kap,0), None if kap == 0 else z(1,ch))
        for kap in range(2):
            for ch in range(2):
                mfma16(a, z(0,ch), yf(1,ch,kap), cs(kap,2), z(0,ch))
                mfma16(a, z(1,ch), yf(0,ch,kap), cs(kap,1), z(1,ch))
    T6, T7, T11 = (83, 84, 85) if OPT.get("ho") else (6, 7, 11)
    if OPT.get("ho"): a.nop(4)
    else: a(f"""s_add_u32 s8, s12, {LTT}
v_lshlrev_b32 v6, 7, v14
v_lshl_add_u32 v6, v15, 3, v6
v_add_u32 v6, s8, v6
v_add_u32 v7, s8, v3
s_lshl_b32 s9, s{sK1}, 5
s_and_b32 s9, s9, 64
v_and_b32 v11, 7, v1
v_lshlrev_b32 v11, 4, v11
v_xor_b32 v11, s9, v11
v_lshrrev_b32 v12, 3, v1
v_lshl_add_u32 v11, v12, 15, v11""")
    a(f"""s_lshl_b32 s6, s{sG}, 12
s_lshl_b32 s7, s{sK1}, 7
s_add_u32 s6, s6, s7
s_lshl_b32 s7, s{sWL}, 19
s_add_u32 s6, s6, s7
s_add_u32 s6, s6, {WS_T}
s_add_u32 s7, s6, {8*32768}""")
    for i in range(8): a(f"v_cvt_pk_bf16_f32 v{W2+i}, v{Z+2*i}, v{Z+2*i+1}")
    for i in range(4): a(f"ds_write_b64 v{T6}, {vr(W2+2*i,2)} offset:{(i//2)*64+(i%2)*32}")
    for u in range(2): a(f"ds_read_b128 {vr(W2+8+4*u,4)}, v{T7} offset:{u*1024}")
    a("s_waitcnt lgkmcnt(0)")
    sign(a, W2+8, 8, 128)
    for u in range(2):
        a(f"buffer_store_dwordx4 {vr(W2+8+4*u,4)}, v{T11}, {WSD}, s{6+u} offen sc1")
    if OPT.get("odum") == 2: odum()
    stamp(a, 12)
    arrive(a, C_A2D)
    if OPT.get("p3") is not None: setprio(a, OPT["p3"])
    wbk(2)
    TFR = [76, 92, 108, 160, 176, 192, 208, 240]
    UU, UBB, ACCF, NQF = [224, 76], [132, 92], 240, 124
    VT = 142 if OPT.get("ho") else 12
    TCA = 137 if OPT.get("ho") else 10
    if not OPT.get("ho"): a(f"""v_bfe_u32 v6, v1, 2, 2
v_lshl_add_u32 v6, v9, 3, v6
v_lshlrev_b32 v6, 7, v6
v_add_u32 v6, {LT}, v6
v_bfe_u32 v7, v1, 3, 1
v_xor_b32 v7, s68, v7
v_lshl_add_u32 v14, v7, 6, v6
v_xor_b32 v15, 64, v14
v_bfe_u32 v6, v1, 4, 1
v_lshlrev_b32 v6, 2, v6
v_and_b32 v7, 1, v1
v_lshl_add_u32 v6, v7, 1, v6
v_bfe_u32 v7, v1, 1, 1
v_add_u32 v11, v6, v7
v_lshl_add_u32 v{VT}, v11, 3, v14
v_lshl_add_u32 v{VT+1}, v11, 3, v15""")
    def jump(jb):
        if OPT.get("ho"):
            m = sum(1 << l for l in range(32) if 4 * ((l >> 4) & 1) + 2 * (l & 1) + ((l >> 1) & 1) == jb)
            a(f"s_mov_b32 exec_lo, {m:#x}\ns_mov_b32 exec_hi, {m:#x}")
            if OPT["ho"] == 2: a(f"v_lshl_add_u64 {vr(VT,2)}, {vr(VT,2)}, 0, s[10:11]")
            else: a(f"v_add_u32 v{VT}, 4040, v{VT}\nv_add_u32 v{VT+1}, 4040, v{VT+1}")
            a("s_mov_b64 exec, -1")
            return
        a(f"v_cmp_eq_u32 vcc, {jb}, v11\nv_cndmask_b32 v6, 0, v141, vcc\nv_add_u32 v{VT}, v{VT}, v6\nv_add_u32 v{VT+1}, v{VT+1}, v6")
    a(f"""{"" if OPT.get("ho") else "v_mov_b32 v141, 4040"}
s_lshl_b32 s6, s67, 15
s_lshl_b32 s7, s{sWL}, 13
s_add_u32 s6, s6, s7
s_add_u32 s6, s6, {WS_T}
s_add_u32 s7, s7, {LT}
{"" if OPT.get("ho") else "v_add_u32 v10, s7, v3"}
s_lshr_b32 s15, s{sJ}, 3
s_lshl_b32 s15, s15, 11""")
    setprio(a, OPT.get('mprio', 1))
    wait_cnt(a, C_A2D, 4)
    if OPT.get("e3", 0) == 1: gen_E3()
    wait_cnt(a, C_M2, 4)
    if AS == 5: a("s_branch a_fin")
    wait_cnt(a, C_G, 4)
    assert OPT.get("wop") == 1
    WS_ = OPT.get("wsp", 10)
    wo_part(WS_, 28, True)
    arrive(a, C_AX2)
    if AS == 6: a("s_branch a_fin")
    if OPT.get("tlw"): wait_cnt(a, C_YS, 4, sleep=4)
    stamp(a, 13)
    if AS == 12: a("s_waitcnt vmcnt(0)\ns_branch a_fin")
    for i in range(8):
        a(f"s_add_u32 s8, s15, {i*1024}\ns_and_b32 s8, s8, 8191\ns_add_u32 m0, s7, s8\ns_add_u32 s8, s8, s6")
        a(f"buffer_load_dwordx4 v3, {WSD}, s8 offen {OPT.get('tm', '')} lds")
    a("s_mov_b32 s14, 20000")
    a("s_waitcnt vmcnt(0)")
    a(f"a_tchk0:")
    for i in range(8): a(f"ds_read_b32 v{160+4*i}, v{TCA} offset:{i*1024}")
    a("s_waitcnt lgkmcnt(0)")
    chk8(160, 32, 128, 132)
    a(f"s_cbranch_vccnz a_tchk0_r")
    a(f"a_tchk0_d:")
    stamp(a, 14)
    if OPT.get("cnt"): a("s_sub_u32 s78, 20001, s14")
    if AS == 9: a("s_branch a_fin")
    arrive(a, C_AT)
    wait_cnt(a, C_AT, 4)
    if AS == 10: a("s_branch a_fin")
    def rdT(tau_, va, off):
        tf = TFR[tau_]
        if OPT.get("rdp") is not None: a(f"s_setprio {OPT['rdp']}")
        rdT_(tf, va, off)
        if OPT.get("rdp") is not None: a(f"s_setprio {OPT.get('mprio', 1)}")
        if OPT.get("rdw") is not None: a(f"s_waitcnt lgkmcnt({OPT['rdw']})")
    def rdT_(tf, va, off):
        for w_ in range(2):
            for tau in range(2):
                for aa in range(2):
                    a(f"ds_read_b64_tr_b16 {vr(tf+8*w_+4*tau+2*aa,2)}, v{va+w_} offset:{off+(16*tau+4*aa)*128}")
    def st1(tau_, u=None):
        tf = TFR[tau_]; u = UU[tau_ % 2] if u is None else u
        for tau in range(2): mfma(a, u, tf+4*tau, E3C+4*tau, None if tau == 0 else u)
        for tau in range(2): mfma(a, u, tf+8+4*tau, E3X+4*tau, u)
    def cvtU(tau_):
        u = UU[tau_ % 2]; ub = UBB[tau_ % 2]
        for r in range(8): a(f"v_cvt_pk_bf16_f32 v{ub+r}, v{u+2*r}, v{u+2*r+1}")
    def st2(tau_):
        ub = UBB[tau_ % 2]
        for s_ in range(2): mfma(a, ACCF, F+4*(2*tau_+s_), ub+4*s_, ACCF)
    if OPT.get("ho") == 2: a("s_mov_b32 s10, 4040\ns_mov_b32 s11, 4040")
    rdT(7, 14, 7 * 4096 + 56)
    for t_ in range(7):
        jump(7 - t_)
        rdT(t_, VT, t_ * 4104)
        if t_ == 0 and AS != 11:
            a("s_waitcnt lgkmcnt(8)")
            st1(7, UU[0])
    if AS == 11: a("s_branch a_fin")
    if not OPT.get("ho"):
        for r in range(4): a(f"v_mov_b32 v{NQF+r}, 0")
    a(f"s_mov_b32 exec_hi, 0\nv_cvt_pk_bf16_f32 v{NQF}, v{UU[0]}, 0\ns_mov_b64 exec, -1")
    a("s_waitcnt lgkmcnt(0)")
    arrive(a, C_ADONE)
    mfma(a, ACCF, F+4*14, NQF, None)
    stamp(a, 15)
    if AS == 7: a("s_branch a_fin")
    wbk(3)
    wait_cnt(a, C_ADONE, 4)
    wo_part(0, WS_, False)
    a("s_waitcnt vmcnt(0)")
    arrive(a, C_WO)
    if not OPT.get("cnt"): stamp(a, 6)
    OA, OD = (129, 130) if OPT.get("ho") else (10, 11)
    if not OPT.get("ho"): a(f"""s_mov_b32 s8, 114688
v_mul_lo_u32 v6, v8, s8
v_lshlrev_b32 v7, 5, v9
v_add_u32 v10, v6, v7
v_sub_u32 v11, v6, v7
v_add_u32 v11, 32, v11""")
    a(f"""s_mul_i32 s7, s67, 1792
s_mul_i32 s8, s{sG1}, 56
s_lshl_b32 s9, s68, 4
s_add_u32 s8, s8, s9
s_add_u32 s6, s7, s8
s_sub_u32 s7, s7, s8
s_add_u32 s7, s7, 882
s_sub_u32 s7, s7, 32""")
    wbk(0)
    if OPT.get("late", 1):
        wait_cnt(a, OPT.get("latec", C_R1), 4, sleep=OPT.get("lsl", 4))
    stamp(a, 9)
    setprio(a, OPT.get('tprio', 1))
    for t_ in range(8):
        if t_ < 7: st1(t_)
        else: a.nop(10)
        if t_ > 0:
            cvtU(t_ - 1)
            a.nop(1)
            st2(t_ - 1)
    X6, X7 = (131, 141) if OPT.get("ho") else (6, 7)
    if not OPT.get("ho"): a(f"s_add_u32 s8, s12, {LEX2}\nv_add_u32 v6, s8, v3\nv_xor_b32 v7, 2048, v6")
    else: a.nop(3)
    XC, YP, YM = 168, 176, 184
    a.nop(14)
    a("s_cmp_lg_u32 s68, 0\ns_cbranch_scc1 a_x1")
    for ri in range(2):
        if ri: a("a_x1:")
        keep, send = ACCF + 8 * ri, ACCF + 8 * (1 - ri)
        for t in range(2): a(f"ds_write_b128 v{X6}, {vr(send+4*t,4)} offset:{t*1024}")
        a("s_waitcnt lgkmcnt(0)")
        arrive(a, C_AU)
        a(f"v_mov_b32 v{XC+8}, v7")
        wait_cnt(a, C_AU, 4)
        for t in range(2): a(f"ds_read_b128 {vr(XC+4*t,4)}, v{X7} offset:{t*1024}")
        a("s_waitcnt lgkmcnt(0)")
        Cr, Sr = (keep, XC) if ri == 0 else (XC, keep)
        for r in range(8):
            a(f"v_add_f32 v{YP+r}, v{Cr+r}, v{Sr+r}")
            a(f"v_sub_f32 v{YM+r}, v{Cr+r}, v{Sr+r}")
        for i in range(4): a(f"v_cvt_pk_bf16_f32 v{XC+i}, v{YP+2*i}, v{YP+2*i+1}")
        for i in range(4): a(f"v_cvt_pk_bf16_f32 v{XC+4+i}, v{YM+7-2*i}, v{YM+6-2*i}")
        if OPT.get("osw") is not None: wait_cnt(a, OPT["osw"], 4)
        om = OPT.get('amod', OPT.get('omod', ''))
        OS = f"s[{SRD_OUT}:{SRD_OUT+3}]"
        if ri == 0:
            a(f"buffer_store_dwordx4 {vr(XC,4)}, v{OA}, {OS}, s6 offen {om}")
            a(f"s_cmp_lg_u32 s{sG1}, 0\ns_cbranch_scc1 a_o1")
            a("s_mov_b32 exec_hi, 0")
            a(f"buffer_store_dwordx3 {vr(XC+4,3)}, v{OD}, {OS}, s7 offen {om}")
            a(f"buffer_store_short v{XC+7}, v{OD}, {OS}, s7 offen offset:12 {om}")
            a("s_mov_b32 exec_lo, 0\ns_mov_b32 exec_hi, -1")
            a("a_o1:")
            a(f"buffer_store_dwordx4 {vr(XC+4,4)}, v{OD}, {OS}, s7 offen {om}")
            a("s_mov_b64 exec, -1")
            a("s_branch a_x2")
        else:
            a("s_mov_b32 exec_hi, 0")
            a(f"buffer_store_dwordx4 {vr(XC,4)}, v{OA}, {OS}, s6 offen {om}")
            a(f"buffer_store_dwordx4 {vr(XC+4,4)}, v{OD}, {OS}, s7 offen {om}")
            a("s_mov_b32 exec_lo, 0\ns_mov_b32 exec_hi, -1")
            a(f"buffer_store_dwordx2 {vr(XC,2)}, v{OA}, {OS}, s6 offen {om}")
            a(f"buffer_store_dwordx2 {vr(XC+6,2)}, v{OD}, {OS}, s7 offen offset:8 {om}")
            a(f"s_cmp_lg_u32 s{sG1}, 7\ns_cbranch_scc1 a_o2")
            a(f"buffer_store_short v{XC+2}, v{OA}, {OS}, s6 offen offset:8 {om}")
            a("a_o2:")
            a("s_mov_b64 exec, -1")
    a("a_x2:")
    if not OPT.get("cnt"): stamp(a, 2)
    a("s_branch a_fin")
    a(f"a_tchk0_r:")
    a(f"s_sub_u32 s14, s14, 1\ns_cmp_le_i32 s14, 0\ns_cbranch_scc1 a_tchk0_d")
    a(f"s_sleep {OPT.get('psleep', 4)}")
    for i in range(8):
        a(f"s_add_u32 m0, s7, {i*1024}\ns_add_u32 s8, s6, {i*1024}")
        a(f"buffer_load_dwordx4 v3, {WSD}, s8 offen sc1 lds")
    a("s_waitcnt vmcnt(0)")
    a(f"s_branch a_tchk0")
    a("a_fin:")
    stamp_out(a, 16, "A")
    a("k_end:\ns_endpgm")
    return a.text()

def build(path, stamps=False, opt=None):
    global STAMPS, OPT
    STAMPS = stamps; OPT = opt or {}; G.uid = 0; G.plo = None; G.inA = False
    code = build_kernel()
    hdr = f"; @launch kernel={NAME} grid=(256,1,1) block=(512,1,1) lds={LDS_SIZE}\n"
    s = hdr + '.amdgcn_target "amdgcn-amd-amdhsa--gfx950"\n.text\n' + code + '.section .rodata,"a"\n' + kd(NAME, 256, 96)
    open(path, "w").write(s)

S2 = {-1: "x0 w0 e x1 w1", 0: "x2 w2 a a", 1: "x3 w3 a a", 2: "x4 w4 a a", 3: "x5 w5 a F", 4: "x6 w6", 5: "q"}
D = {"kvp": 2, "gst": (2, 4, 6, 8), "omod": "nt", "amod": "", "thr": 4, "e3": 0, "cs": 0, "b3m": 1, "om1": "sc1", "wop": 1, "mprio": 3, "sch": S2, "ysw": (C_W0, 4), "ylw": C_G, "tlw": 0,
     "b0prio": 3, "prio": 0, "gprio": 0, "wpos": 2, "latec": C_R2}
if __name__ == "__main__":
    build("f21.s", False, D)
    build("f21_ff.s", False, {"forcefail": 1, **D})
    build("f21_rt.s", "rt", D)
    build("f21_na_rt.s", "rt", {**D, "noA": 1})
    build("v1.s", False, {**D, "osleep": 0})
    build("v2.s", False, {**D, "osleep": 6})
```

```python
import fused22 as f
D = {**f.D, "ns": 1, "ag": 1, "tlw": None, "ags": (None, None, 6, None), "ho": 2, "rdp": 0, "thr": 3, "thr2": 20, "cax": 1, "a2o": 6}
f.build(f"v0.s", False, D)
f.build(f"v1.s", False, {**D, "wb": 31, "wbp": 3})
f.build(f"v2.s", False, {**D, "wb": 31, "wbp": 3, "amod": "sc1", "omod": "sc1"})
```

```python
import numpy as np, sys
from common import Asm, vr, sr, bf16_bits, f32_bits, srd, srd_table, kd, mfma, MFMA
from common import S_AX, S_WR, S_WI, S_BX, S_WQKV, S_WO, S_OUT, S_DBG, S_WS

QSCALE = (28 ** -0.5) * np.log2(np.e)
NAME = "concat_heads__spectral_gfnet__mha_block__prompt_kernel"

WS_K, WS_V, WS_O, WS_Y, WS_T = 0x000000, 0x200000, 0x400000, 0x600000, 0x800000
WS_FG, WS_F2, WS_F3, WS_EP = 0xA00000, 0xA10000, 0xA20000, 0xA80000
FG_F1, FG_F2 = 512, 1024
WS_FY, WS_FT = 0xA10000, 0xA20000
C_XF = 28
C_EP, C_TF = 27, 26
C_WF = 32
sG1 = 91
WS_STAMP = 0xF00000
WS_L = 0x1000000
WS_SIZE = 0x2000000
LX, LW, LWQ, LQ = 0, 32768, 90112, 0
LXA, LEX = 118784, 118784
LE = 122880
LKV = 16384
WS_JUNK = 0x1800000
LWO = 0
LY, LP = 135168, 118784
LT = 0
LYT, LWW, LTT, LEX2 = 126976, 147456, 135168, 151552
LR = 101376
LO = 101376
LMX = 101376
LC = 163840 - 256
LDS_SIZE = 163840
C_AX, C_AEX, C_AT, C_AY, C_AP, C_A2D, C_Q, C_AU, C_ADONE, C_R1, C_R2, C_O, C_WO, C_FAIL, C_M1, C_M2, C_KV, C_AX2, C_G, C_W0, C_W1, C_W2, C_W3, C_YS, C_W4 = range(25)

M16 = "v_mfma_f32_16x16x32_bf16"
def mfma16(a, d, A, B, c=None):
    cs = "0" if c is None else vr(c, 4)
    a(f"{M16} {vr(d,4)}, {vr(A,4)}, {vr(B,4)}, {cs}")

sH, sQB, sW, sTAG, sWL = 3, 4, 5, 34, 35
SRD_A, SRD_B, SRD_WS, SRD_OUT, SRD_C, SRD_TAB = 36, 40, 44, 48, 52, 56
sX, sJ, sN2, sDQ = 60, 61, 62, 63
sPASS = 64
sFAST, sXCC, sFG, sG, sJ4 = 86, 87, 88, 89, 90
sHP = 86
sSIG, sMSK = 92, 93
sPM = 91
KSIG = 0x6A39E5C1
WSD = f"s[{SRD_WS}:{SRD_WS+3}]"
STAMPS = False
OPT = {}

class G:
    uid = 0
    plo = None
    inA = False
def lab(p):
    G.uid += 1
    return f"{p}_{G.uid}"

def arrive(a, c):
    a(f"s_mov_b64 exec, 1")
    a(f"ds_add_u32 v4, v5 offset:{4*c}")
    a(f"s_mov_b64 exec, -1")

def wait_cnt(a, c, target, starget=None, sleep=1):
    l = lab("wc")
    a("s_mov_b32 s69, 400000")
    if G.plo is not None: a("s_setprio 0")
    a(f"{l}:")
    a(f"ds_read_b32 v6, v4 offset:{4*c}")
    a("s_waitcnt lgkmcnt(0)")
    a("v_readfirstlane_b32 s8, v6")
    a("s_sub_u32 s69, s69, 1")
    a(f"s_cmp_ge_u32 s8, {target if starget is None else 's'+str(starget)}")
    a(f"s_cbranch_scc1 {l}_d")
    a(f"s_sleep {sleep}")
    a("s_cmp_lg_u32 s69, 0")
    a(f"s_cbranch_scc1 {l}")
    a(f"{l}_d:")
    if G.plo is not None: a(f"s_setprio {G.plo}")

def setprio(a, p):
    a(f"s_setprio {p}")
    if OPT.get("plo"): G.plo = p if p else None

def poll(a, vaddr, soff, mask, width=1, vt=8, sleep=4):
    l = lab("pl")
    a(f"s_mov_b32 s9, 20000")
    if mask != -1: a(f"s_mov_b32 exec_lo, {mask & 0xffffffff:#x}\ns_mov_b32 exec_hi, {mask >> 32:#x}")
    a(f"{l}:")
    sfx = {1: "", 2: "x2", 4: "x4"}[width]
    a(f"buffer_load_dword{sfx} {vr(vt,width)}, v{vaddr}, {WSD}, {soff} offen sc1")
    a("s_waitcnt vmcnt(0)")
    if width == 1:
        a(f"v_cmp_ne_u32 vcc, s{sTAG}, v{vt}")
    else:
        for i in range(width): a(f"v_xor_b32 v{vt+i}, s{sTAG}, v{vt+i}")
        if width == 2: a(f"v_or_b32 v{vt}, v{vt}, v{vt+1}")
        else: a(f"v_or3_b32 v{vt}, v{vt}, v{vt+1}, v{vt+2}\nv_or_b32 v{vt}, v{vt}, v{vt+3}")
        a(f"v_cmp_ne_u32 vcc, 0, v{vt}")
    a(f"s_cbranch_vccz {l}_d")
    a(f"s_sleep {sleep}")
    a("s_sub_u32 s9, s9, 1")
    a("s_cmp_lg_u32 s9, 0")
    a(f"s_cbranch_scc1 {l}")
    a(f"{l}_d:")
    if mask != -1: a("s_mov_b64 exec, -1")

def both(a, f):
    l = lab("bm")
    a(f"s_cmp_lg_u32 s{sFAST}, 0\ns_cbranch_scc1 {l}_f")
    f("sc1")
    a(f"s_branch {l}_d")
    a(f"{l}_f:")
    f("")
    a(f"{l}_d:")

def flag_store(a, soff, local=False):
    a("s_mov_b64 exec, 1")
    a(f"v_mov_b32 v6, s{sTAG}\nv_mov_b32 v7, 0")
    f = lambda m: a(f"buffer_store_dword v6, v7, {WSD}, s{soff} offen {m}")
    if local: both(a, f)
    else: f("sc1")
    a("s_mov_b64 exec, -1")

def gbar_wait(a, k, fbase, cnt, vt):
    l = lab("gb")
    a(f"s_cmp_lg_u32 s{sWL}, 0\ns_cbranch_scc1 {l}_w")
    a(f"s_add_u32 s10, s{sFG}, {FG_F2 + 128*k}")
    a(f"s_cmp_lg_u32 s{sJ}, 0\ns_cbranch_scc1 {l}_m")
    a(f"s_mov_b32 s12, {fbase}")
    poll(a, 3, "s12", -1, width=4, vt=vt, sleep=OPT.get("lsleep", 2))
    flag_store(a, 10, local=True)
    a(f"s_branch {l}_a")
    a(f"{l}_m:")
    a(f"s_cmp_lg_u32 s{sFAST}, 0\ns_cbranch_scc1 {l}_f")
    a("v_mov_b32 v7, 0")
    poll(a, 7, "s10", 1, width=1, vt=vt, sleep=8)
    a(f"s_branch {l}_a")
    a(f"{l}_f:")
    a("s_mov_b32 s9, 40000")
    a(f"{l}_fl:")
    a(f"s_buffer_load_dword s8, {WSD}, s10 glc")
    a("s_waitcnt lgkmcnt(0)")
    a(f"s_cmp_eq_u32 s8, s{sTAG}\ns_cbranch_scc1 {l}_a")
    a(f"s_sleep {OPT.get('psleep', 2)}")
    a(f"s_sub_u32 s9, s9, 1\ns_cmp_lg_u32 s9, 0\ns_cbranch_scc1 {l}_fl")
    a(f"{l}_a:")
    arrive(a, cnt)
    a(f"{l}_w:")
    wait_cnt(a, cnt, 1)

def set_tag(a, keep=None):
    a(f"v_readfirstlane_b32 s{sTAG}, v2")
    a(f"s_mov_b32 s{sMSK}, 0x00030003")
    a("s_nop 1")
    a(f"s_add_u32 s{sTAG}, s{sTAG}, 1")
    if keep is not None: a(f"s_mov_b32 s{keep}, s{sTAG}")
    a(f"s_bitcmp1_b32 s{sTAG}, 0\ns_cselect_b32 s{sSIG}, {KSIG:#x}, {KSIG ^ 0xffffffff:#x}") if False else None
    a(f"s_bfe_i32 s{sSIG}, s{sTAG}, 0x10000")
    a(f"s_xor_b32 s{sSIG}, s{sSIG}, {KSIG:#x}")
    a(f"s_mul_i32 s{sTAG}, s{sTAG}, 0x9E3779B1")

def sig_regs(a, d, hi=False):
    if hi: a(f"v_lshrrev_b32 v{d}, 4, v1")
    else: a(f"v_and_b32 v{d}, 3, v1")
    a(f"v_lshlrev_b32 v{d}, 2, v{d}")
    a(f"v_lshrrev_b32 v{d}, v{d}, s{sSIG}")

def sign(a, r0, n, sg):
    for r in range(0, n, 4): a(f"v_bfi_b32 v{r0+r}, s{sMSK}, v{sg}, v{r0+r}")

def check(a, r0, n, sg, acc, first=True):
    for r in range(0, n, 2):
        a(f"v_xor_b32 v{acc+1}, v{r0+r}, v{sg + r % 4}")
        a(f"v_xor_b32 v{acc+2}, v{r0+r+1}, v{sg + (r+1) % 4}")
        if first and r == 0: a(f"v_or_b32 v{acc}, v{acc+1}, v{acc+2}")
        else: a(f"v_or3_b32 v{acc}, v{acc}, v{acc+1}, v{acc+2}")

def fx_load(a, vd, va):
    a(f"v_and_b32 v{va}, 31, v1\nv_lshlrev_b32 v{va}, 2, v{va}")
    a(f"buffer_load_dword v{vd}, v{va}, {WSD}, s{sFG} offen sc1")

def fx_eval(a, vd, va):
    l = lab("fx")
    a("s_mov_b32 s9, 20000")
    a(f"{l}:")
    a(f"v_subrev_u32 v{vd}, s{sTAG}, v{vd}")
    a(f"v_cmp_lt_u32 vcc, 14, v{vd}")
    a(f"s_cbranch_vccz {l}_d")
    a("s_sleep 4")
    a(f"buffer_load_dword v{vd}, v{va}, {WSD}, s{sFG} offen sc1")
    a("s_waitcnt vmcnt(0)")
    a("s_sub_u32 s9, s9, 1")
    a("s_cmp_lg_u32 s9, 0")
    a(f"s_cbranch_scc1 {l}")
    a(f"{l}_d:")
    a(f"v_cmp_ne_u32 vcc, s{sXCC}, v{vd}")
    a("s_nop 0")
    a("s_cmp_eq_u64 vcc, 0")
    a(f"s_cselect_b32 s{sFAST}, {0 if OPT.get('slow') else 1}, 0")

def stamp(a, idx, force=False):
    if not STAMPS: return
    if STAMPS == "amp" and not force and not (idx == OPT["amp"][1] and not G.inA): return
    a(f"s_memrealtime s[94:95]" if STAMPS in ("rt", "dbg", "amp") else f"s_memtime s[94:95]")
    a("s_waitcnt lgkmcnt(0)")
    a(f"s_mov_b32 s{70+idx}, s94")

def stamp_out(a, n, who="B"):
    if not STAMPS: return
    a("s_waitcnt vmcnt(0) lgkmcnt(0)")
    if STAMPS == "amp":
        w, j = OPT["amp"]
        if who != w: return
        l = lab("amp")
        stamp(a, 6, True)
        a(f"s_cmp_lg_u32 s{sWL}, 0\ns_cbranch_scc1 {l}_d")
        a(f"s_sub_u32 s8, s{70+j}, s70\ns_min_u32 s8, s8, 10000\ns_mul_i32 s8, s8, 10\ns_add_u32 s8, s8, s76\ns_mov_b32 s9, 100000")
        a(f"{l}:")
        a("s_sleep 8\ns_memrealtime s[94:95]\ns_waitcnt lgkmcnt(0)")
        a(f"s_sub_u32 s10, s94, s8\ns_cmp_ge_i32 s10, 0\ns_cbranch_scc1 {l}_d")
        a(f"s_sub_u32 s9, s9, 1\ns_cmp_lg_u32 s9, 0\ns_cbranch_scc1 {l}")
        a(f"{l}_d:")
        return
    if STAMPS == "dbg":
        if who == "A": stamp(a, 6)
        srd(a, SRD_C, S_DBG, 256)
        a("v_mov_b32 v7, 0\ns_mov_b64 exec, 1")
        a("s_not_b32 s8, s70\nv_mov_b32 v6, s8")
        a(f"buffer_atomic_umax v6, v7, s[{SRD_C}:{SRD_C+3}], 0 offen sc1")
        M = {"B": {1: 0, 2: 11, 3: 1, 4: 3, 5: 4, 6: 8, 7: 10}, "A": {8: 8, 9: 3, 10: 10, 11: 14, 12: 15, 13: 9, 14: 6}}[who]
        for k, v in M.items():
            a(f"v_mov_b32 v{8+k}, s{70+v}")
            a(f"buffer_atomic_umax v{8+k}, v7, s[{SRD_C}:{SRD_C+3}], 0 offen offset:{4*k} sc1")
        a("s_mov_b64 exec, -1")
        return
    a(f"s_lshl_b32 s10, s2, 9\ns_lshl_b32 s11, s{sW}, 6\ns_add_u32 s10, s10, s11\ns_add_u32 s10, s10, {WS_STAMP}")
    a("v_mov_b32 v7, 0\ns_mov_b64 exec, 1")
    for i in range(n):
        a(f"v_mov_b32 v6, s{70+i}")
        a(f"buffer_store_dword v6, v7, {WSD}, s10 offen offset:{4*i}")
    a("s_mov_b64 exec, -1")

def gen_E(a, lanev, hhv, n2s, mode, outs, tmp):
    t0, t1, t2, t3, t4, t5 = range(tmp, tmp + 6)
    if mode == 'a1':
        a(f"v_cvt_f32_u32 v{t0}, v{lanev}")
        a(f"v_mul_f32 v{t0}, {f32_bits(1/2048):#x}, v{t0}")
        a(f"v_lshlrev_b32 v{t1}, 8, v{hhv}")
        a(f"v_add_u32 v{t1}, s{n2s}, v{t1}")
        a(f"v_cvt_f32_u32 v{t1}, v{t1}")
        offs = lambda t, j: 64 * (16 * t + 8 * (j // 4) + j % 4)
    else:
        a(f"v_lshlrev_b32 v{t0}, 6, v{lanev}")
        a(f"v_add_u32 v{t0}, s{n2s}, v{t0}")
        a(f"v_cvt_f32_u32 v{t0}, v{t0}")
        a(f"v_mul_f32 v{t0}, {f32_bits(1/2048):#x}, v{t0}")
        a(f"v_lshlrev_b32 v{t1}, 3, v{hhv}")
        a(f"v_cvt_f32_u32 v{t1}, v{t1}")
        offs = lambda t, j: 16 * t + j
    a(f"v_mul_f32 v{t1}, v{t1}, v{t0}")
    for t in range(2):
        for jp in range(4):
            for e in range(2):
                a(f"v_fmamk_f32 v{t2+e}, v{t0}, {f32_bits(float(offs(t, 2*jp+e))):#x}, v{t1}")
            a(f"v_cos_f32 v{t4}, v{t2}")
            a(f"v_cos_f32 v{t5}, v{t3}")
            a(f"v_sin_f32 v{t2}, v{t2}")
            a(f"v_sin_f32 v{t3}, v{t3}")
            a(f"v_cvt_pk_bf16_f32 v{outs['C']+4*t+jp}, v{t4}, v{t5}")
            if 'S' in outs:
                a(f"v_cvt_pk_bf16_f32 v{outs['S']+4*t+jp}, v{t2}, v{t3}")
                a(f"v_xor_b32 v{outs['NS']+4*t+jp}, 0x80008000, v{outs['S']+4*t+jp}")
            else:
                a(f"v_cvt_pk_bf16_f32 v{outs['Sx']+4*t+jp}, v{t2}, v{t3}")
                a(f"v_xor_b32 v{outs['Sx']+4*t+jp}, s13, v{outs['Sx']+4*t+jp}")


def sg_regs(a, d):
    sig_regs(a, d)
    a("s_mov_b32 exec_lo, 0x10000000\ns_mov_b32 exec_hi, 0x10000000")
    a(f"v_mov_b32 v{d}, 0")
    a("s_mov_b64 exec, -1")

def build_kernel():
    a = Asm()
    a(f""".globl {NAME}
.p2align 8
.type {NAME},@function
{NAME}:""")
    a("s_cmp_ge_u32 s2, 256\ns_cbranch_scc1 k_end")
    a("v_lshrrev_b32 v2, 6, v0")
    a("v_and_b32 v1, 63, v0")
    a(f"v_readfirstlane_b32 s{sW}, v2")
    a(f"v_mov_b32 v4, {LC}\nv_mov_b32 v5, 1")
    a(f"s_cmp_ge_u32 s{sW}, 4\ns_cbranch_scc1 a_pre")
    def kload():
        a("s_load_dwordx16 s[16:31], s[0:1], 0")
        a("s_load_dwordx2 s[32:33], s[0:1], 64")
    def common():
        if STAMPS:
            for i in range(16): a(f"s_mov_b32 s{70+i}, 0")
            a("s_memrealtime s[92:93]")
        a(f"""s_and_b32 s{sX}, s2, 7
s_lshr_b32 s{sJ}, s2, 3
s_and_b32 s15, s{sJ}, 1
s_and_b32 s{sJ4}, s{sJ}, 3
s_lshr_b32 s{sH}, s{sX}, 1
s_lshl_b32 s{sH}, s{sH}, 2
s_add_u32 s{sH}, s{sH}, s{sJ4}
s_lshr_b32 s{sHP}, s{sH}, 1
s_and_b32 s{sQB}, s{sX}, 1
s_lshl_b32 s{sQB}, s{sQB}, 3
s_lshr_b32 s6, s{sJ}, 2
s_add_u32 s{sQB}, s{sQB}, s6""")
        a("v_lshlrev_b32 v3, 4, v1")
        a(f"s_and_b32 s{sWL}, s{sW}, 3")
        a(f"""s_lshl_b32 s11, s{sWL}, 12
s_lshl_b32 s12, s{sWL}, 11
s_lshl_b32 s9, s{sX}, 2
s_add_u32 s{sN2}, s9, s{sJ4}
v_and_b32 v8, 31, v1
v_lshrrev_b32 v9, 5, v1""")
    kload()
    a("s_branch b_go")
    a("a_pre:")
    a(f"s_cmp_lg_u32 s{sW}, 4\ns_cbranch_scc1 k_nz")
    a(f"v_lshl_add_u32 v6, v1, 2, v4\nv_mov_b32 v7, 0")
    a(f"s_mov_b64 exec, {-1}\nds_write_b32 v6, v7\ns_mov_b64 exec, -1")
    a(f"s_lshr_b32 s{sJ}, s2, 3")
    if OPT.get("cpf", 1):
        srd_table(a, SRD_TAB, NAME, "k_end-" + NAME)
        a(f"s_and_b32 s8, s{sJ}, 7\ns_lshl_b32 s8, s8, 13\nv_lshlrev_b32 v6, 7, v1")
        a(f"buffer_load_dword v245, v6, s[{SRD_TAB}:{SRD_TAB+3}], s8 offen")
    a("s_waitcnt lgkmcnt(0)")
    a("k_nz:")
    if not OPT.get("pro"): a("s_barrier")
    kload()
    a("s_branch a_wave")
    a("b_go:")
    if OPT.get("b0prio"): a(f"s_setprio {OPT['b0prio']}")
    common()

    a(f"""s_lshl_b32 s6, s{sJ4}, 1
s_add_u32 s14, s{sQB}, s6
s_mul_i32 s6, s14, 37
s_lshr_b32 s6, s6, 8
s_mul_i32 s6, s6, 7
s_sub_u32 s14, s14, s6""")
    XO, WOF, VWQ, VXA = 10, 14, 15, 16
    a("""v_lshrrev_b32 v6, 3, v1
v_and_b32 v100, 7, v1
v_lshrrev_b32 v101, 1, v6
v_xor_b32 v101, v101, v100
v_mul_u32_u24 v102, 896, v6""")
    a(f"""v_lshl_add_u32 v{XO}, v101, 4, v102
v_mul_u32_u24 v103, 57344, v6
v_lshl_add_u32 v{VXA}, v101, 4, v103
s_and_b32 s8, s{sWL}, 1
s_lshl_b32 s8, s8, 6
v_xor_b32 v{VXA}, s8, v{VXA}
v_xor_b32 v101, 4, v101
v_lshl_add_u32 v{XO+1}, v101, 4, v102
v_add_u32 v{XO+1}, {8*896}, v{XO+1}
v_add_u32 v{XO+2}, {16*896}, v{XO}
v_add_u32 v{XO+3}, {16*896}, v{XO+1}""")
    a(f"""v_bfe_u32 v101, v1, 4, 1
v_lshlrev_b32 v101, 2, v101
v_xor_b32 v101, v101, v100
v_min_u32 v101, 6, v101
v_mul_u32_u24 v102, 2688, v6
v_lshl_add_u32 v{WOF}, v101, 4, v102
v_lshrrev_b32 v6, 2, v1
v_mul_u32_u24 v6, 2688, v6
v_and_b32 v101, 3, v1
v_lshl_add_u32 v{VWQ}, v101, 4, v6""")
    a(f"""s_lshl_b32 s6, s{sQB}, 7
s_lshl_b32 s7, s{sWL}, 5
s_add_u32 s6, s6, s7
s_mul_i32 s6, s6, 896
s_mul_i32 s7, s{sWL}, {16*2688}
s_mul_i32 s8, s15, 896
s_add_u32 s7, s7, s8
s_mul_i32 s8, s{sHP}, 112
s_add_u32 s7, s7, s8
s_add_u32 s7, s7, 896
s_mul_i32 s66, s{sWL}, {16*2688}
s_mul_i32 s8, s{sH}, 56
s_add_u32 s66, s66, s8
s_lshl_b32 s65, s{sWL}, 10
s_lshl_b32 s68, s{sX}, 3
s_and_b32 s8, s{sJ}, 7
s_add_u32 s68, s68, s8
s_mul_i32 s68, s68, 896
s_mul_i32 s8, s{sWL}, {8*57344}
s_add_u32 s68, s68, s8
v_mov_b32 v7, 0""")
    a(f"s_lshr_b32 s13, s{sJ}, 3\ns_lshl_b32 s13, s13, 1")
    srd_table(a, SRD_TAB, NAME, 64)
    VWA = 18
    a("v_mov_b32 v19, 0")
    a(f"""v_lshrrev_b32 v6, 2, v1
s_lshl_b32 s8, s{sWL}, 4
v_add_u32 v6, s8, v6
v_lshlrev_b32 v6, 5, v6
v_add_u32 v6, s{sN2}, v6
v_mul_u32_u24 v6, 450, v6
v_and_b32 v{VWA}, 3, v1
v_lshlrev_b32 v{VWA}, 4, v{VWA}
s_lshr_b32 s9, s{sJ}, 2
s_mul_i32 s9, s9, 56
v_add3_u32 v{VWA}, v6, v{VWA}, s9""")
    a("s_barrier")
    a("s_waitcnt lgkmcnt(0)")
    srd(a, SRD_C, S_AX, 2048 * 896)
    srd(a, SRD_WS, S_WS, WS_SIZE)
    if STAMPS: a("s_mov_b32 s70, s92")
    def xa():
        a(f"s_lshl_b32 s10, s89, 7\ns_add_u32 s10, s10, s68\ns_lshl_b32 s9, s89, 12\ns_add_u32 s9, s9, s65")
        a(f"s_add_u32 m0, s9, {LXA}\ns_add_u32 s89, s89, 1")
        a(f"buffer_load_dwordx4 v{VXA}, s[{SRD_C}:{SRD_C+3}], s10 offen lds")
        a("s_cmp_eq_u32 s89, 7\ns_cselect_b32 s89, 0, s89")
        Q1.append("xa")
    def wa():
        for k, ptr in enumerate((S_WR, S_WI)):
            srd(a, SRD_OUT, ptr, 2048 * 450 + 2)
            a(f"s_add_u32 m0, s12, {LWW + k*1024}\ns_nop 0")
            a(f"buffer_load_dwordx4 v{VWA}, s[{SRD_OUT}:{SRD_OUT+3}], 0 offen lds")
            Q1.append("wa")
    def tlbw():
        sh = OPT.get("tsh", 16)
        a(f"""s_cmp_eq_u32 s{sWL}, 0
s_cselect_b32 s{SRD_OUT}, s{S_WR}, s{S_WI}
s_cselect_b32 s{SRD_OUT+1}, s{S_WR+1}, s{S_WI+1}
s_mov_b32 s{SRD_OUT+2}, {2048*450}
s_mov_b32 s{SRD_OUT+3}, 0x20000
s_cmp_eq_u32 s{sWL}, 2
s_cselect_b32 s{SRD_OUT}, s{S_OUT}, s{SRD_OUT}
s_cselect_b32 s{SRD_OUT+1}, s{S_OUT+1}, s{SRD_OUT+1}
s_cselect_b32 s{SRD_OUT+2}, {2048*1792}, s{SRD_OUT+2}
s_cmp_eq_u32 s{sWL}, 3
s_cselect_b32 s{SRD_OUT}, s{S_WS}, s{SRD_OUT}
s_cselect_b32 s{SRD_OUT+1}, s{S_WS+1}, s{SRD_OUT+1}
s_cselect_b32 s{SRD_OUT+2}, {WS_SIZE}, s{SRD_OUT+2}
s_cselect_b32 s8, 19, {sh}
v_lshlrev_b32 v19, s8, v1""")
        a(f"buffer_load_dword v31, v19, s[{SRD_OUT}:{SRD_OUT+3}], 0 offen")
        Q1.append("tw")
    def wpf():
        a(f"""s_bitcmp1_b32 s{sWL}, 0
s_cselect_b32 s{SRD_OUT}, s{S_WI}, s{S_WR}
s_cselect_b32 s{SRD_OUT+1}, s{S_WI+1}, s{S_WR+1}
s_mov_b32 s{SRD_OUT+2}, {2048*450}
s_mov_b32 s{SRD_OUT+3}, 0x20000
s_lshl_b32 s9, s{sJ}, 1
s_lshr_b32 s10, s{sWL}, 1
s_add_u32 s9, s9, s10
s_lshl_b32 s9, s9, 3
s_add_u32 s9, s9, s{sX}
s_mul_i32 s9, s9, 1800
v_mul_u32_u24 v19, 120, v1
s_mov_b64 exec, 0xffff""")
        a(f"buffer_load_ushort v31, v19, s[{SRD_OUT}:{SRD_OUT+3}], s9 offen")
        a("s_mov_b64 exec, -1")
        srd(a, SRD_OUT, S_OUT, 2048 * 1792)
        Q1.append("vp")
    def xflag():
        a(f"s_mov_b32 m0, {LC + 4*C_EP}\ns_mov_b32 s9, {WS_EP}\ns_mov_b64 exec, 1")
        a(f"buffer_load_dword v7, {WSD}, s9 offen sc1 lds")
        Q1.append("ea")
        a(f"s_lshl_b32 s9, s{sWL}, 2\ns_add_u32 m0, s9, {LC + 4*C_XF}\ns_nop 0")
        a(f"buffer_load_dword v7, s[{SRD_TAB}:{SRD_TAB+3}], 0 offen lds")
        a("s_mov_b64 exec, -1")
        Q1.append("xf")
    def wopf():
        l = lab("wp")
        if OPT.get("b3m"):
            srd(a, SRD_OUT, S_WO, 448 * 896)
            a(f"v_lshlrev_b32 v19, 7, v1\ns_mul_i32 s9, s{sJ}, 12544\ns_mul_i32 s8, s{sWL}, 3200\ns_add_u32 s9, s9, s8\ns_mov_b64 exec, 0x1ffffff")
            a(f"buffer_load_dword v31, v19, s[{SRD_OUT}:{SRD_OUT+3}], s9 offen")
            a("s_mov_b64 exec, -1")
            Q1.append("wp")
            return
        a(f"s_cmp_lg_u32 s{sWL}, 3\ns_cbranch_scc1 {l}")
        srd(a, SRD_OUT, S_WO, 448 * 896)
        a(f"""v_lshrrev_b32 v19, 2, v1
v_mul_u32_u24 v19, 896, v19
v_and_b32 v31, 3, v1
v_mul_u32_u24 v31, 72, v31
v_add_u32 v19, v19, v31
s_mul_i32 s9, s{sJ}, {14*896}
s_lshr_b32 s8, s{sH}, 2
s_mul_i32 s8, s8, 224
s_add_u32 s9, s9, s8
s_mov_b32 exec_hi, 0xffffff""")
        a(f"buffer_load_dword v31, v19, s[{SRD_OUT}:{SRD_OUT+3}], s9 offen")
        a(f"s_mov_b64 exec, -1\ns_branch {l}_d")
        a(f"{l}:")
        a(f"s_mov_b64 exec, 1\nbuffer_load_dword v31, v7, s[{SRD_TAB}:{SRD_TAB+3}], 0 offen\ns_mov_b64 exec, -1")
        a(f"{l}_d:")
        Q1.append("wp")
    a("s_mov_b32 s89, s13")
    Q1 = []
    def vw1(tag):
        a(f"s_waitcnt vmcnt({len(Q1) - 1 - max(i for i, t in enumerate(Q1) if t == tag)})")
    srd(a, SRD_A, S_BX, 2048 * 896)
    srd(a, SRD_B, S_WQKV, 448 * 2688)
    XSL = [0, 1, 0, 1, 0, 1, 0]
    def sig_c(c):
        if c == 0: a("s_mov_b32 s13, s14")
        else: a(f"s_add_u32 s13, s14, {c}\ns_sub_u32 s10, s13, 7\ns_cmp_ge_u32 s13, 7\ns_cselect_b32 s13, s10, s13")
    def dx(c):
        sig_c(c)
        a("s_lshl_b32 s10, s13, 7\ns_add_u32 s10, s10, s6")
        for k in range(4):
            if XSL[c] == 2: a(f"s_add_u32 m0, s12, {LW + (4+k//2)*8192 + (k%2)*1024}\ns_nop 0")
            else: a(f"s_add_u32 m0, s11, {LX + XSL[c]*16384 + k*1024}\ns_nop 0")
            a(f"buffer_load_dwordx4 v{XO+k}, s[{SRD_A}:{SRD_A+3}], s10 offen lds")
        Q1.extend([f"x{c}"] * 4)
    def dw(c):
        sig_c(c)
        a(f"s_mul_i32 s13, s13, {64*2688}\ns_add_u32 s13, s13, s7")
        a(f"s_add_u32 m0, s12, {LW + c*8192}\ns_add_u32 s10, s13, {8*2688}")
        a(f"buffer_load_dwordx4 v{WOF}, s[{SRD_B}:{SRD_B+3}], s13 offen lds")
        a(f"s_add_u32 m0, s12, {LW + c*8192 + 1024}\ns_nop 0")
        a(f"buffer_load_dwordx4 v{WOF}, s[{SRD_B}:{SRD_B+3}], s10 offen lds")
        Q1.extend([f"w{c}"] * 2)
    def dq(c):
        sig_c(c)
        a(f"s_mul_i32 s13, s13, {64*2688}\ns_add_u32 s13, s13, s66\ns_add_u32 m0, s65, {LWQ + c*4096}\ns_nop 0")
        a(f"buffer_load_dwordx4 v{VWQ}, s[{SRD_B}:{SRD_B+3}], s13 offen lds")
        Q1.append("q")
    def epl():
        a(f"s_mov_b32 s9, {WS_EP}")
        a(f"buffer_load_dword v2, v7, {WSD}, s9 offen sc1")
        Q1.append("ep")
    SCH = OPT.get("sch", {-1: "a a a a a a a F x0 w0 e x1 w1", 0: "x2 w2", 1: "x3 w3", 2: "x4 w4", 3: "x5 w5", 4: "x6 w6", 5: "q W"})
    def issue(c):
        for t in SCH.get(c, "").split():
            if t[0] == "x": dx(int(t[1]))
            elif t[0] == "w": dw(int(t[1]))
            elif t == "e": epl()
            elif t == "q":
                for u in range(7): dq(u)
            elif t[0] == "q":
                for u in t[1:]: dq(int(u))
            elif t == "S": stamp(a, 5)
            elif t[0] == "Z":
                if "w" in t:
                    a(f"s_mul_i32 s13, s14, {64*2688}\ns_add_u32 s13, s13, s7\ns_and_b32 s13, s13, -4")
                    a(f"s_load_dword s87, s[{S_WQKV}:{S_WQKV+1}], s13")
                if "e" in t: a(f"s_mov_b32 s13, {WS_EP}\ns_load_dword s88, s[{S_WS}:{S_WS+1}], s13")
                if "a" in t: a(f"s_load_dword s91, s[{S_AX}:{S_AX+1}], s68")
                if "x" in t: a(f"s_load_dword s64, s[{S_BX}:{S_BX+1}], s6")
            elif t == "T": tlbw()
            elif OPT.get("noA"): pass
            elif t == "a": xa()
            elif t == "W": wa()
            elif t == "F": xflag()
            elif t == "P": wopf()
            elif t == "V": wpf()
    issue(-1)
    if OPT.get("pro"):
        i0 = max(i for i, l in enumerate(a.L) if l == "b_go:") + 1
        body = [l.strip() for l in a.L[i0:]]
        del a.L[i0:]
        iw = body.index("s_waitcnt lgkmcnt(0)")
        pre, post = body[:iw], body[iw + 1:]
        pre.remove("s_barrier")
        first = [f"s_setprio {OPT['b0prio']}", f"s_and_b32 s{sX}, s2, 7", f"s_lshr_b32 s{sJ}, s2, 3", f"s_and_b32 s{sJ4}, s{sJ}, 3",
                 f"s_and_b32 s{sQB}, s{sX}, 1", f"s_lshl_b32 s{sQB}, s{sQB}, 3", f"s_lshr_b32 s6, s{sJ}, 2", f"s_add_u32 s{sQB}, s{sQB}, s6",
                 f"s_and_b32 s{sWL}, s{sW}, 3", f"s_lshl_b32 s11, s{sWL}, 12",
                 f"s_lshl_b32 s6, s{sJ4}, 1", f"s_add_u32 s14, s{sQB}, s6", "s_mul_i32 s6, s14, 37", "s_lshr_b32 s6, s6, 8", "s_mul_i32 s6, s6, 7", "s_sub_u32 s14, s14, s6",
                 "v_lshrrev_b32 v6, 3, v1", "v_and_b32 v100, 7, v1", "v_lshrrev_b32 v101, 1, v6", "v_xor_b32 v101, v101, v100", "v_mul_u32_u24 v102, 896, v6",
                 f"v_lshl_add_u32 v{XO}, v101, 4, v102",
                 f"s_lshl_b32 s6, s{sQB}, 7", f"s_lshl_b32 s7, s{sWL}, 5", "s_add_u32 s6, s6, s7", "s_mul_i32 s6, s6, 896"]
        stl = [l for l in pre if l.startswith("s_memrealtime") or (l.startswith("s_mov_b32 s") and l.endswith(", 0") and 70 <= int(l.split()[1][1:-1]) < 86)]
        for l in first + stl: pre.remove(l)
        iv = pre.index("v_mov_b32 v19, 0"); pre = pre[:iv]
        for l in ("v_and_b32 v8, 31, v1", "v_lshrrev_b32 v9, 5, v1", f"s_lshl_b32 s9, s{sX}, 2", f"s_add_u32 s{sN2}, s9, s{sJ4}"): pre.remove(l)
        for l in ("v_xor_b32 v101, 4, v101", f"v_lshl_add_u32 v{XO+1}, v101, 4, v102", f"v_add_u32 v{XO+1}, {8*896}, v{XO+1}", f"v_add_u32 v{XO+2}, {16*896}, v{XO}", f"v_add_u32 v{XO+3}, {16*896}, v{XO+1}"): pre.remove(l)
        first += [f"v_xor_b32 v{XO+1}, 64, v{XO}", f"v_add_u32 v{XO+2}, {16*896}, v{XO}", f"v_add_u32 v{XO+1}, {8*896}, v{XO+1}", f"v_add_u32 v{XO+3}, {16*896}, v{XO+1}"]
        sa = [l for l in post if l.startswith(f"s_mov_b32 s{SRD_A}") or l.startswith(f"s_mov_b32 s{SRD_A+1}")]
        sc = [l for l in post if l.startswith(f"s_mov_b32 s{SRD_A+2}") or l.startswith(f"s_mov_b32 s{SRD_A+3}")]
        for l in sa + sc: post.remove(l)
        ix = post.index("s_mov_b32 s13, s14")
        srds, iss = post[:ix], post[ix:]
        srds.remove("s_mov_b32 s89, s13")
        pre[pre.index(f"s_lshr_b32 s13, s{sJ}, 3")] = f"s_lshr_b32 s89, s{sJ}, 3"
        pre[pre.index("s_lshl_b32 s13, s13, 1")] = "s_lshl_b32 s89, s89, 1"
        nx = [i for i, l in enumerate(iss) if l.startswith("buffer_load")][3] + 1
        x0, rest = iss[:nx], iss[nx:]
        wneed = [f"s_and_b32 s15, s{sJ}, 1", f"s_lshr_b32 s{sH}, s{sX}, 1", f"s_lshl_b32 s{sH}, s{sH}, 2", f"s_add_u32 s{sH}, s{sH}, s{sJ4}", f"s_lshr_b32 s{sHP}, s{sH}, 1", f"s_lshl_b32 s12, s{sWL}, 11",
                 f"s_mul_i32 s7, s{sWL}, {16*2688}", "s_mul_i32 s8, s15, 896", "s_add_u32 s7, s7, s8", f"s_mul_i32 s8, s{sHP}, 112", "s_add_u32 s7, s7, s8", "s_add_u32 s7, s7, 896", "v_mov_b32 v7, 0"]
        for l in wneed: pre.remove(l)
        k = pre.index(f"v_lshl_add_u32 v{WOF}, v101, 4, v102") + 1
        wv, pre = pre[:k], pre[k:]
        for l in stl + first + sc + x0[:4] + ["s_waitcnt lgkmcnt(0)"] + sa + x0[5:] + wneed + wv + srds + rest + pre + ["s_barrier"]: a(l)
    a(f"""v_and_b32 v6, 31, v1
v_lshrrev_b32 v113, 5, v1
v_bfe_u32 v116, v6, 1, 3
v_lshlrev_b32 v6, 7, v6
v_add_u32 v6, s11, v6""")
    for t in range(4):
        a(f"v_add_u32 v117, {2*t}, v113\nv_xor_b32 v117, v117, v116\nv_lshl_add_u32 v{20+t}, v117, 4, v6")
    a(f"""v_lshlrev_b32 v6, 3, v113
v_bfe_u32 v114, v1, 2, 2
v_add_u32 v6, v6, v114
v_and_b32 v114, 1, v1
v_lshlrev_b32 v114, 5, v114
v_bfe_u32 v117, v1, 4, 1
v_lshl_add_u32 v114, v117, 4, v114
v_bfe_u32 v117, v1, 1, 1
v_lshl_add_u32 v114, v117, 3, v114
v_lshl_add_u32 v26, v6, 6, v114
v_add_u32 v26, {LWQ}, v26
v_bfe_u32 v117, v1, 3, 1
v_lshlrev_b32 v117, 6, v117
v_lshlrev_b32 v6, 7, v6
v_add_u32 v6, {LW}, v6
v_xor_b32 v115, v114, v117
v_add_u32 v24, v6, v115
v_add_u32 v114, 56, v114
v_xor_b32 v115, v114, v117
v_add_u32 v25, v6, v115""")
    srd(a, SRD_OUT, S_OUT, 2048 * 1792)
    ACC, QACC, WF, XR = 32, 40, 80, 144
    SGP = 27
    a("s_cmp_lg_u32 s15, 0\ns_cbranch_scc1 b_v")
    P = 64
    Q1base = list(Q1)
    WQC = OPT.get("wqc", 4)
    EP = OPT.get("ep")
    for ty in range(2):
        if ty: a("b_v:")
        Q1[:] = Q1base
        def rdx(c):
            for t in range(4): a(f"ds_read_b128 {vr(XR+16*c+4*t,4)}, v{20+t} offset:{XSL[c]*16384}")
        def rdw(c):
            wf = WF + 32 * (c % 2)
            for t in range(4):
                for seg in range(2):
                    for aa in range(2):
                        a(f"ds_read_b64_tr_b16 {vr(wf+8*t+4*seg+2*aa,2)}, v{24+seg} offset:{c*8192+(16*t+4*aa)*128}")
        def mm(c, t):
            wf = WF + 32 * (c % 2)
            first = (c == 0 and t == 0)
            for seg in range(2):
                if ty == 0: mfma(a, ACC+16*seg, wf+8*t+4*seg, XR+16*c+4*t, None if first else ACC+16*seg)
                else: mfma(a, ACC+16*seg, XR+16*c+4*t, wf+8*t+4*seg, None if first else ACC+16*seg)
        def vwx(c):
            i = max(i for i, t in enumerate(Q1) if t in (f"x{c}", f"w{c}"))
            a(f"s_waitcnt vmcnt({len(Q1) - 1 - i})")
        def nxt(c):
            a(f"ds_read_b32 v6, v4 offset:{4*C_W0}")
            issue(c)
            l = lab("cw")
            a(f"s_waitcnt lgkmcnt(0)\nv_readfirstlane_b32 s8, v6\ns_nop 1\ns_cmp_ge_u32 s8, {4*(c+1)}\ns_cbranch_scc1 {l}")
            wait_cnt(a, C_W0, 4 * (c + 1))
            a(f"{l}:")
            if c in (0, 1, 3, 5, 6) and not OPT.get("lst") and not OPT.get("qst"): stamp(a, 11 + (0, 1, 3, 5, 6).index(c))
            rdw(c)
        vwx(0)
        if "Z" in SCH[-1]: a("s_waitcnt lgkmcnt(0)")
        rdx(0)
        arrive(a, C_W0)
        a("s_waitcnt lgkmcnt(1)")
        nxt(0)
        for c in range(7):
            a("s_waitcnt lgkmcnt(12)")
            mm(c, 0)
            ex = 0
            if c < 6:
                vwx(c + 1)
                rdx(c + 1)
                arrive(a, C_W0)
                ex = 5
            a(f"s_waitcnt lgkmcnt({8+ex})")
            mm(c, 1)
            if c == 1:
                set_tag(a, 67)
                sg_regs(a, SGP)
            if c == 2 and EP:
                if ty == 0:
                    for seg in range(2): a(f"v_mov_b32 v{P+8*seg+6}, 0x3f803f80\nv_mov_b32 v{P+8*seg+7}, 0x3f80")
                else:
                    a(f"v_and_b32 v{P}, 3, v1\nv_cmp_eq_u32 vcc, 0, v{P}\nv_mov_b32 v{P}, 0x3f803f80\nv_cndmask_b32 v{P}, 0, v{P}, vcc")
                    for r in range(1, 16): a(f"v_mov_b32 v{P+r}, v{P}")
                a(f"s_lshl_b32 s8, s{sW}, 12\nv_add_u32 v31, s8, v3\nv_add_u32 v2, {WS_V}, v3")
                assert LQ == 0
            if c == 6 and EP:
                a(f"""s_lshl_b32 s10, s{sHP}, 7
s_lshl_b32 s11, s{sQB}, 2
s_add_u32 s10, s10, s11
s_add_u32 s10, s10, s{sW}
s_lshl_b32 s10, s10, 11
s_add_u32 s87, s10, {WS_V if ty else WS_K}
s_add_u32 s88, s87, {64*2048}
s_add_u32 s10, s87, {WS_L}
s_add_u32 s11, s88, {WS_L}
v_add_u32 v7, {LKV}, v31""")
            a(f"s_waitcnt lgkmcnt({4+ex})")
            mm(c, 2)
            if c == 6 and EP:
                a(f"""s_lshl_b32 s12, s{sQB}, 2
s_lshl_b32 s13, s{sW}, 3
s_add_u32 s12, s12, s13
s_lshl_b32 s15, s{sH}, 17
s_and_b32 s13, s{sX}, 1
s_lshl_b32 s13, s13, 16
s_add_u32 s15, s15, s13
s_xor_b32 s68, s15, 0x10000
s_add_u32 s15, s15, {WS_L}
s_mov_b32 s{sPASS}, 0
s_mov_b32 s66, 4
s_mov_b32 s14, 20000
s_lshl_b32 s65, s12, 11""")
            a(f"s_waitcnt lgkmcnt({1 if c < 6 else 0})")
            mm(c, 3)
            if c < 6: nxt(c + 1)
        stamp(a, 1)
        if EP:
            vw1("q")
            arrive(a, C_W3)
            if ty: a("s_mov_b32 exec_lo, 0x0fffffff\ns_mov_b32 exec_hi, 0x0fffffff")
            a.nop(8 - 2 * ty)
            for seg in range(2):
                for r in range(8):
                    if ty == 0 and r == 6: a("s_mov_b32 exec_hi, 0")
                    a(f"v_cvt_pk_bf16_f32 v{P+8*seg+r}, v{ACC+16*seg+2*r}, v{ACC+16*seg+2*r+1}")
                a("s_mov_b64 exec, -1")
                sign(a, P + 8 * seg, 8, SGP)
                for t in range(2):
                    a(f"buffer_store_dwordx4 {vr(P+8*seg+4*t,4)}, v3, {WSD}, s{10+seg} offen offset:{t*1024}")
                if ty and seg == 0: a("s_mov_b32 exec_lo, 0x0fffffff\ns_mov_b32 exec_hi, 0x0fffffff")
            if ty == 0: a("s_branch b_st1")
            continue
        a(f"""s_lshl_b32 s10, s{sHP}, 7
s_lshl_b32 s11, s{sQB}, 2
s_add_u32 s10, s10, s11
s_add_u32 s10, s10, s{sW}
s_lshl_b32 s10, s10, 11
s_add_u32 s87, s10, {WS_V if ty else WS_K}
s_add_u32 s88, s87, {64*2048}""")
        a.nop(5)
        for seg in range(2):
            for r in range(8):
                a(f"v_cvt_pk_bf16_f32 v{P+8*seg+r}, v{ACC+16*seg+2*r}, v{ACC+16*seg+2*r+1}")
        if ty == 0:
            a("s_mov_b32 exec_lo, 0")
            for seg in range(2): a(f"v_mov_b32 v{P+8*seg+6}, 0x3f803f80\nv_mov_b32 v{P+8*seg+7}, 0x3f80")
        else:
            a("s_mov_b32 exec_lo, 0xf0000000\ns_mov_b32 exec_hi, 0xf0000000")
            a("v_and_b32 v6, 3, v1\nv_cmp_eq_u32 vcc, 0, v6\nv_mov_b32 v6, 0x3f803f80\nv_cndmask_b32 v6, 0, v6, vcc")
            for r in range(16): a(f"v_mov_b32 v{P+r}, v6")
        a("s_mov_b64 exec, -1")
        if ty == 0: a("s_branch b_st1")
    a("b_st1:")
    a(f"s_setprio {OPT.get('bprio', 2)}")
    if not EP:
        sign(a, P, 16, SGP)
        vw1("q")
        arrive(a, C_W3)
        a(f"s_add_u32 s10, s87, {WS_L}\ns_add_u32 s11, s88, {WS_L}")
        for seg in range(2):
            for t in range(2):
                a(f"buffer_store_dwordx4 {vr(P+8*seg+4*t,4)}, v3, {WSD}, s{10+seg} offen offset:{t*1024} {OPT.get('lm', '')}")
        a(f"s_lshl_b32 s13, s{sW}, 12\ns_add_u32 s13, s13, {LKV}\nv_add_u32 v7, s13, v3")
        for u in range(4): a(f"ds_write_b128 v7, {vr(P+4*u,4)} offset:{u*1024}")
    G4 = 248
    GG = lambda u: G4 + 4 * (u % 2) * OPT.get("g2", 0)
    def g_rd(u): a(f"ds_read_b128 {vr(GG(u),4)}, v7 offset:{u*1024}")
    def g_st(u):
        a("s_waitcnt lgkmcnt(0)")
        a(f"buffer_store_dwordx4 {vr(GG(u),4)}, v3, {WSD}, s{87+u//2} offen offset:{(u%2)*1024} sc1")
    def st_glob():
        for u in range(4):
            a("s_waitcnt vmcnt(0)")
            g_rd(u); g_st(u)
    stamp(a, 2)
    if not EP:
        a(f"s_mov_b32 s10, {f32_bits(QSCALE):#x}\ns_mov_b32 s11, s10")
        a(f"s_lshl_b32 s13, s{sW}, 12\ns_add_u32 s13, s13, {LQ}\nv_add_u32 v31, s13, v3")
    if not EP: a(f"""s_lshl_b32 s12, s{sQB}, 2
s_lshl_b32 s13, s{sW}, 3
s_add_u32 s12, s12, s13
s_lshl_b32 s15, s{sH}, 17
s_and_b32 s13, s{sX}, 1
s_lshl_b32 s13, s13, 16
s_add_u32 s15, s15, s13
s_xor_b32 s68, s15, 0x10000
s_add_u32 s15, s15, {WS_L}
s_mov_b32 s{sPASS}, 0
s_mov_b32 s66, 4
s_mov_b32 s14, 20000""")
    if OPT.get("ns") and not EP: a(f"s_lshl_b32 s65, s12, 11\nv_add_u32 v2, {WS_V}, v3")
    wait_cnt(a, C_W3, 4)
    if OPT.get("agc") == C_W4 and not OPT.get("agp"): arrive(a, C_W4)
    if OPT.get("qst"): stamp(a, 11)
    NB = 5
    Q, O, S, Pp, MX, TMP, KV, SG, CT = 8, 40, 104, 136, 152, 156, 160, 240, 244
    def load_kv(t, force=False):
        buf = t % NB
        md = "sc1" if (force or (OPT.get("kl", "sc1") if t < 8 else OPT.get("kr", "")) == "sc1") else ""
        a(f"s_add_u32 s8, s12, {t%8}\ns_and_b32 s8, s8, 31\ns_lshl_b32 s8, s8, 11\ns_add_u32 s8, s8, s{15 if t < 8 else 68}\ns_add_u32 s9, s8, {WS_V}")
        for u in range(2):
            a(f"buffer_load_dwordx4 {vr(KV+16*buf+4*u,4)}, v3, {WSD}, s8 offen offset:{u*1024} {md}")
        for u in range(2):
            a(f"buffer_load_dwordx4 {vr(KV+16*buf+8+4*u,4)}, v3, {WSD}, s9 offen offset:{u*1024} {md}")
    def kvg(t):
        buf = t % NB
        md = OPT.get("kl", "sc1") if t < 8 else OPT.get("kr", "")
        sal = [f"s_add_u32 s13, s65, {(t%8)*2048}", "s_and_b32 s13, s13, 0xffff", f"s_add_u32 s13, s13, s{15 if t < 8 else 68}",
               f"s_add_u32 s6, s{S_WS}, s13", f"s_addc_u32 s7, s{S_WS+1}, 0"]
        vm = [f"global_load_dwordx4 {vr(KV+16*buf+4*u,4)}, v{3 if u < 2 else 2}, s[6:7] offset:{(u%2)*1024} {md}" for u in range(4)]
        return sal, vm
    NS = OPT.get("ns", 0)
    if NS:
        load_kv_b = load_kv
        def load_kv(t, force=False):
            if force: return load_kv_b(t, True)
            sal, vm = kvg(t)
            for x in sal + vm: a(x)
    WQ = 96
    def rdq(c):
        for t in range(4):
            for aa in range(2):
                a(f"ds_read_b64_tr_b16 {vr(WQ+16*(c%3)+4*t+2*aa,2)}, v26 offset:{c*4096+(16*t+4*aa)*64}")
    rdq(0); rdq(1)
    if EP:
        a(f"s_mov_b32 s10, {f32_bits(QSCALE):#x}\ns_mov_b32 s11, s10")
        assert not OPT.get("qi")
    K5 = OPT.get("kv5", 2)
    KVP = OPT.get("kvp", 4)
    for c in range(7):
        if OPT.get("qi"):
            n0 = len(a.L)
            if c + 2 < 7: rdq(c + 2)
            for t_ in range(K5):
                if c == min(max(KVP + t_, t_ + 2), 6): load_kv(t_)
            fill = a.L[n0:]; del a.L[n0:]
            per = -(-len(fill) // 4)
            for t in range(4):
                nd = sum(1 for x in fill[:per * t] if "ds_read" in x)
                a(f"s_waitcnt lgkmcnt({min(15, (8 if c < 6 else 0) + nd + 2 * (3 - t))})")
                mfma(a, QACC, WQ+16*(c%3)+4*t, XR+16*c+4*t, None if (c == 0 and t == 0) else QACC)
                a.L.extend(fill[per * t:per * (t + 1)])
            continue
        a(f"s_waitcnt lgkmcnt({12 if (EP and c == 1) else 8 if c < 6 else 0})")
        for t in range(4):
            mfma(a, QACC, WQ+16*(c%3)+4*t, XR+16*c+4*t, None if (c == 0 and t == 0) else QACC)
            if EP and c == 0: a(f"ds_write_b128 v7, {vr(P+4*t,4)} offset:{t*1024}")
        if c + 2 < 7: rdq(c + 2)
        if c == KVP: load_kv(0)
        if c == min(KVP + 1, 6): load_kv(1)
        for t_ in range(2, K5):
            if c == min(max(KVP + t_, t_ + 1), 6): load_kv(t_)
    if OPT.get("qst"): stamp(a, 12)
    arrive(a, C_KV)
    a(f"v_mov_b32 v{SG}, v{SGP}")
    a.nop(9)
    QW = Q + 24
    for r in range(8): a(f"v_pk_mul_f32 {vr(QACC+2*r,2)}, {vr(QACC+2*r,2)}, s[10:11]")
    for r in range(8): a(f"v_cvt_pk_bf16_f32 v{QW+r}, v{QACC+2*r}, v{QACC+2*r+1}")
    a(f"s_mov_b32 exec_lo, 0\nv_mov_b32 v{QW+6}, 0\nv_mov_b32 v{QW+7}, 0\ns_mov_b64 exec, -1")
    for t in range(2): a(f"ds_write_b128 v31, {vr(QW+4*t,4)} offset:{t*1024}")
    a("s_waitcnt lgkmcnt(0)")
    arrive(a, C_Q)
    if OPT.get("qst"): stamp(a, 14)
    def rot(sl, dst, sh, base):
        a(f"s_add_u32 s{dst}, s{sW}, {1+sl}\ns_and_b32 s{dst}, s{dst}, 3\ns_lshl_b32 s{dst}, s{dst}, {sh}\ns_add_u32 s{dst}, s{dst}, {base}")
    def getq():
        l = lab("gq")
        a(f"s_cmp_lg_u32 s{sPASS}, 0\ns_cbranch_scc1 {l}")
        wait_cnt(a, C_Q, 4)
        stamp(a, 3)
        for q in range(3):
            rot(q, 8, 12, LQ)
            a(f"v_add_u32 v{TMP+q}, s8, v3")
            for t in range(2): a(f"ds_read_b128 {vr(Q+8*q+4*t,4)}, v{TMP+q} offset:{t*1024}")
        a("s_waitcnt lgkmcnt(0)")
        arrive(a, C_M2)
        a(f"{l}:")
    a("s_branch b_main2")
    a("b_main:")
    for t_ in range(K5): load_kv(t_)
    a("b_main2:")
    NQ = OPT.get("nq", 3)
    seq = [(0, 3), (1, 3), (0, 0), (0, 1), (0, 2), (1, 0), (1, 1), (1, 2)]
    seq += [(t, q) for t in range(2, 16 - NQ) for q in range(4)] + [(t, q) for q in range(4) for t in range(16 - NQ, 16)]
    firstq = {}
    for i, (t, q) in enumerate(seq): firstq.setdefault(q, i)
    retries = []
    issued = [K5 - 1]
    BQ = [t_ for t_ in range(K5) for _ in range(4)]
    gdone = [bool(OPT.get("ag")) and not OPT.get("ags")]
    def chk(t):
        b = KV + 16 * (t % NB)
        a(f"s_waitcnt vmcnt({len(BQ) - 1 - max(i for i, x in enumerate(BQ) if x == t)})")
        if OPT.get("nochk"): return
        l = f"b_chk{t}"
        a(f"{l}:")
        a(f"v_bitop3_b32 v{CT}, v{b}, v{b+4}, v{SG} bitop3:0x7e")
        a(f"v_bitop3_b32 v{CT+1}, v{b+8}, v{b+12}, v{SG} bitop3:0x7e")
        a(f"v_bitop3_b32 v{CT}, v{CT}, s{sMSK}, v{CT+1} bitop3:0xc8")
        a(f"v_cmp_ne_u32 vcc, 0, v{CT}")
        a(f"s_cbranch_vccnz {l}_r")
        a(f"{l}_d:")
        retries.append((t, issued[0], l, gdone[0], False))
    def chk_v(b):
        a(f"v_bitop3_b32 v{CT}, v{b}, v{b+4}, v{SG} bitop3:0x7e")
        a(f"v_bitop3_b32 v{CT+1}, v{b+8}, v{b+12}, v{SG} bitop3:0x7e")
        a(f"v_bitop3_b32 v{CT}, v{CT}, s{sMSK}, v{CT+1} bitop3:0xc8")
        a(f"v_cmp_ne_u32 vcc, 0, v{CT}")
    def chk_a(t):
        a(f"s_waitcnt vmcnt({len(BQ) - 1 - max(i for i, x in enumerate(BQ) if x == t)})")
        chk_v(KV + 16 * (t % NB))
    def chk_b(t):
        l = f"b_chk{t}"
        a(f"s_cbranch_vccnz {l}_r")
        a(f"{l}_d:")
        retries.append((t, issued[0], l, gdone[0], 1 if gpend[0] is None else 2 + gpend[0]))
    SL = {}
    gpend = [None]
    def step(i, extra=None):
        t, q = seq[i]
        par = i % 2
        Sc, Sn = S + 16 * par, S + 16 * (1 - par)
        Pc, Pv = Pp + 8 * par, Pp + 8 * (1 - par)
        ms = [None] * 4
        if i + 1 < len(seq):
            nt, nq = seq[i + 1]; nb = KV + 16 * (nt % NB)
            ms[0] = lambda: mfma(a, Sn, nb, Q+8*nq, None)
            ms[1] = lambda: mfma(a, Sn, nb+4, Q+8*nq+4, Sn)
        if i > 0:
            pt, pq = seq[i - 1]; pb = KV + 16 * (pt % NB)
            ms[2] = lambda: mfma(a, O+16*pq, pb+8, Pv, None if firstq[pq] == i - 1 else O+16*pq)
            ms[3] = lambda: mfma(a, O+16*pq, pb+12, Pv+4, O+16*pq)
        for g in range(4):
            if ms[g]: ms[g]()
            if extra and extra[g]: extra[g]()
            for f in SL.get((i, g), []): f()
            for e in range(4): a(f"v_exp_f32 v{Sc+4*g+e}, v{Sc+4*g+e}")
            a(f"v_cvt_pk_bf16_f32 v{Pc+2*g}, v{Sc+4*g}, v{Sc+4*g+1}")
            a(f"v_cvt_pk_bf16_f32 v{Pc+2*g+1}, v{Sc+4*g+2}, v{Sc+4*g+3}")
    chk(0)
    if OPT.get("qst"): stamp(a, 15)
    mfma(a, S, KV, QW, None)
    mfma(a, S, KV+4, QW+4, S)
    if K5 <= 2:
        if 2 in OPT.get("tat", {}): a.nop(10)
        else:
            load_kv(2); issued[0] = 2; BQ.extend([2] * 4)
            if OPT.get("agp") == 1: arrive(a, C_W4)
            else: a.nop(3)
    else: a.nop(10)
    checked = {0}
    CAX = C_A2D if OPT.get("cax") else C_AX2
    assert not (OPT.get("cax") and OPT.get("odum"))
    last_use = {}
    for i, (t, q) in enumerate(seq): last_use[t] = i
    fin = {}
    for i, (t, q) in enumerate(seq): fin[q] = i
    if NS:
        GS_ = OPT.get("gst", (2, 6, 10, 14))
        busy = set()
        if not OPT.get("ag"):
            for i in GS_: busy |= {(i, 0), (i, 3)}
        firstu = {}
        for i, (t, q) in enumerate(seq): firstu.setdefault(t, i)
        for t in range(2, 16):
            i = firstu[t] - 2
            g = 2 if (i, 3) not in busy else 1
            SL.setdefault((i, g), []).append(lambda t=t: chk_a(t))
            SL.setdefault((i, g + 1), []).append(lambda t=t: chk_b(t))
            busy |= {(i, g), (i, g + 1)}
            checked.add(t)
        def blk(t, vm):
            for x in vm: a(x)
            issued[0] = t; BQ.extend([t] * 4)
        prevb = -1
        for t in range(2 if 2 in OPT.get("tat", {}) else max(3, K5), 16):
            i = t - 3 if t < 5 else last_use[t - NB] + 1
            if t >= 8 and OPT.get("lead"): i = max(i, min(OPT["lead"] + (t - 8) * OPT.get("leadi", 2), firstu[t] - 8))
            if t in OPT.get("tat", {}): i = max(i, OPT["tat"][t])
            sal, vm = kvg(t)
            SL.setdefault((i, 3), []).append(lambda t=t, vm=vm: blk(t, vm))
            busy.add((i, 3))
            k = 4 * i + 2
            sl_ = [sal[3:5]] + [[x] for x in sal[2::-1]] if NS == 1 else [[x] for x in sal[::-1]]
            lo = prevb
            assert 4 * i + 3 > prevb
            prevb = 4 * i + 3
            for n, grp in enumerate(sl_):
                while k > lo and ((k // 4, k % 4) in busy or (k // 4 == 0 and k % 4 >= 2)):
                    assert not (NS == 2 and n == 1), (t, k)
                    k -= 1
                if k <= lo: k = lo + 1
                SL.setdefault((k // 4, k % 4), []).insert(0, lambda grp=grp: [a(x) for x in grp])
                busy.add((k // 4, k % 4))
    for i in range(len(seq)):
        if i + 1 < len(seq) and seq[i + 1][0] not in checked:
            chk(seq[i + 1][0]); checked.add(seq[i + 1][0])
        extra = [None] * 4
        if i == 1: getq()
        LSS = OPT.get("lss", (None, None, 4, 24, 44))
        if OPT.get("lst") and i in LSS:
            stamp(a, 11 + LSS.index(i))
        if i == fin[0] and not OPT.get("noA") and not OPT.get("astop"):
            extra[0] = lambda: a(f"ds_read_b32 v6, v4 offset:{4*CAX}")
        for sl in range(3):
            if i == fin[sl] + 2:
                if sl == 0 and not OPT.get("noA") and not OPT.get("astop"):
                    l = lab("ad")
                    a(f"s_waitcnt lgkmcnt(0)\nv_readfirstlane_b32 s8, v6\ns_nop 3\ns_cmp_ge_u32 s8, 4\ns_cbranch_scc1 {l}")
                    wait_cnt(a, CAX, 4)
                    a(f"{l}:")
                    stamp(a, 5)
                a(f"s_add_u32 s8, s{sW}, {1+sl}\ns_and_b32 s8, s8, 3\ns_mul_i32 s8, s8, 12288\ns_add_u32 s8, s8, {LR+sl*4096}")
                a(f"v_add_u32 v{TMP}, s8, v3")
                wr = lambda g, sl=sl: a(f"ds_write_b128 v{TMP}, {vr(O+16*sl+4*g,4)} offset:{g*1024}")
                extra[1] = lambda wr=wr: (wr(0), wr(1))
                extra[2] = lambda wr=wr: wr(2)
                extra[3] = lambda wr=wr: wr(3)
        if i == fin[2] + 3:
            extra[2] = lambda: (a("s_waitcnt lgkmcnt(0)"), arrive(a, C_R1))
        if OPT.get("er"):
            assert fin[2] + 3 == len(seq) - 1 and OPT.get("tlw") is None
            if i == fin[1] + 3:
                extra[0] = lambda: a(f"s_mul_i32 s8, s{sW}, 12288")
                extra[1] = lambda: a(f"s_add_u32 s8, s8, {LR}\nv_add_u32 v{TMP+1}, s8, v3")
                extra[2] = lambda: (a("s_waitcnt lgkmcnt(0)"), arrive(a, C_YS))
            if i == fin[2] + 2: extra[0] = lambda: a(f"ds_read_b32 v6, v4 offset:{4*C_YS}")
            if i == fin[2] + 3:
                def e1():
                    l = lab("er")
                    a("s_waitcnt lgkmcnt(0)")
                    arrive(a, C_R1)
                    a(f"v_readfirstlane_b32 s8, v6\ns_nop 3\ns_cmp_ge_u32 s8, s66\ns_cbranch_scc1 {l}")
                    wait_cnt(a, C_YS, None, 66)
                    a(f"{l}:")
                extra[1] = e1
                rdp_ = lambda sl: [a(f"ds_read_b128 {vr(O+16*sl+4*g,4)}, v{TMP+1} offset:{sl*4096+g*1024}") for g in range(4)]
                extra[2] = lambda: rdp_(0)
                extra[3] = lambda: rdp_(1)
        GS = OPT.get("gst", (2, 6, 10, 14))
        if i in GS and not OPT.get("ag"):
            u = GS.index(i)
            extra[0] = lambda u=u: (g_rd(u), gpend.__setitem__(0, u))
            extra[3] = lambda u=u: (g_st(u), BQ.append(-1), gpend.__setitem__(0, None))
        step(i, extra)
        if i == GS[-1]:
            gdone[0] = True
            arrive(a, C_G)
        if i == OPT.get("tlw"): arrive(a, C_YS)
        if i in OPT.get("ags", ()): arrive(a, C_W4)
        if NS: continue
        if i < 2:
            load_kv(3 + i); issued[0] = 3 + i; BQ.extend([3 + i] * 4)
        if i > 0:
            pt = seq[i - 1][0]
            if last_use[pt] == i - 1 and pt + NB < 16:
                load_kv(pt + NB); issued[0] = pt + NB; BQ.extend([pt + NB] * 4)
    assert fin[2] + 3 <= len(seq) - 1
    a.nop(2)
    lt = KV + 16 * (seq[-1][0] % NB)
    OW = O + 48
    mfma(a, OW, lt+8, Pp+8, OW)
    mfma(a, OW, lt+12, Pp+8+4, OW)
    stamp(a, 4)
    if OPT.get("cnt"): a("s_sub_u32 s81, 20001, s14")
    wait_cnt(a, C_R1, None, 66)
    stamp(a, 6)
    if OPT.get("er"):
        for g in range(4): a(f"ds_read_b128 {vr(O+32+4*g,4)}, v{TMP+1} offset:{2*4096+g*1024}")
    else:
        a(f"s_mul_i32 s8, s{sW}, 12288\ns_add_u32 s8, s8, {LR}\nv_add_u32 v{TMP}, s8, v3")
        for sl in range(3):
            for g in range(4): a(f"ds_read_b128 {vr(O+16*sl+4*g,4)}, v{TMP} offset:{sl*4096+g*1024}")
    a(f"s_mov_b32 s8, {f32_bits(2.0**-80):#x}\ns_mov_b32 s9, {f32_bits(2.0**100):#x}\ns_mov_b32 s10, {f32_bits(2.0**127):#x}")
    for sl in range(3):
        a(f"s_waitcnt lgkmcnt({4*(2-sl)})")
        for r in (6, 7, 0, 1, 2, 3, 4, 5): a(f"v_pk_add_f32 {vr(OW+2*r,2)}, {vr(OW+2*r,2)}, {vr(O+16*sl+2*r,2)}")
    a(f"v_mov_b32 v{TMP}, v{OW+12}\nv_mov_b32 v{TMP+1}, v{OW+12}")
    for r in range(4): a(f"v_pk_add_f32 {vr(O+2*r,2)}, {vr(OW+4*r,2)}, {vr(OW+4*r+2,2)}")
    a(f"v_permlane32_swap_b32 v{TMP}, v{TMP+1}")
    for r in range(2): a(f"v_pk_add_f32 {vr(O+2*r,2)}, {vr(O+2*r,2)}, {vr(O+2*r+4,2)}")
    a(f"v_cmp_le_f32 s[52:53], s8, v{TMP+1}")
    a(f"v_cmp_ge_f32 s[54:55], s9, v{TMP+1}")
    a(f"v_rcp_f32 v{TMP}, v{TMP+1}")
    a(f"v_pk_add_f32 {vr(O,2)}, {vr(O,2)}, {vr(O+2,2)}")
    a(f"v_add_f32 v{O}, v{O}, v{O+1}")
    a(f"v_cmp_ge_f32 s[56:57], s10, abs(v{O})")
    for r in range(8): a(f"v_pk_mul_f32 {vr(OW+2*r,2)}, {vr(OW+2*r,2)}, {vr(TMP,2)} op_sel_hi:[1,0]")
    a("s_and_b64 s[52:53], s[52:53], s[54:55]\ns_and_b64 s[52:53], s[52:53], s[56:57]")
    for r in range(8): a(f"v_cvt_pk_bf16_f32 v{Pp+r}, v{OW+2*r}, v{OW+2*r+1}")
    a(f"s_mov_b32 exec_lo, 0\nv_mov_b32 v{Pp+6}, 0\nv_mov_b32 v{Pp+7}, 0\ns_mov_b64 exec, -1")
    sign(a, Pp, 8, SG)
    a(f"""s_lshl_b32 s10, s{sQB}, 2
s_add_u32 s10, s10, s{sW}
s_lshl_b32 s10, s10, 4
s_add_u32 s10, s10, s{sH}
s_lshl_b32 s8, s10, 11
s_add_u32 s8, s8, {WS_O}""")
    a(f"s_cmp_lg_u32 s{sPASS}, 0\ns_cbranch_scc1 b_nofail")
    if not OPT.get("forcefail"): a("s_cmp_eq_u64 s[52:53], -1\ns_cbranch_scc1 b_nofail")
    arrive(a, C_FAIL)
    a("s_branch b_nost")
    a("b_nofail:")
    for t in range(2):
        a(f"buffer_store_dwordx4 {vr(Pp+4*t,4)}, v3, {WSD}, s8 offen offset:{t*1024} {OPT.get('osm', 'sc1')}")
    a("b_nost:")
    a("s_waitcnt lgkmcnt(0)")
    arrive(a, C_R2)
    wait_cnt(a, C_R2, None, 66)
    a(f"s_cmp_lg_u32 s{sPASS}, 0\ns_cbranch_scc1 b_pub")
    a(f"ds_read_b32 v6, v4 offset:{4*C_FAIL}\ns_waitcnt lgkmcnt(0)\nv_readfirstlane_b32 s8, v6\ns_nop 3")
    a("s_cmp_lg_u32 s8, 0\ns_cbranch_scc1 b_slow")
    a("b_pub:")
    stamp(a, 7)
    WF3, OF3, ACC3 = 8, 152, 216
    if not OPT.get("noA") and not OPT.get("astop"): wait_cnt(a, C_WO, 4)
    a(f"""v_lshrrev_b32 v6, 5, v1
v_lshlrev_b32 v6, 4, v6
v_bfe_u32 v7, v1, 2, 2
v_add_u32 v6, v6, v7
v_mul_u32_u24 v6, 224, v6
v_and_b32 v7, 1, v1
v_lshl_add_u32 v6, v7, 5, v6
v_bfe_u32 v7, v1, 4, 1
v_lshl_add_u32 v6, v7, 4, v6
v_bfe_u32 v7, v1, 1, 1
v_lshl_add_u32 v6, v7, 3, v6
s_lshl_b32 s8, s{sW}, 6
v_add_u32 v6, s8, v6""")
    VA = 244
    for g in range(4):
        a(f"s_add_u32 s8, s{sW}, {g}\ns_and_b32 s8, s8, 3\ns_mul_i32 s9, s8, {4*28*224}\nv_add_u32 v{VA+g}, s9, v6")
        if g: a(f"s_lshl_b32 s8, s8, 13\ns_add_u32 s8, s8, {LO}\nv_add_u32 v{VA+3+g}, s8, v3")
    def wo_rd(h0, h1):
        for h in range(h0, h1):
            for t in range(2):
                for aa in range(2):
                    a(f"ds_read_b64_tr_b16 {vr(WF3+8*h+4*t+2*aa,2)}, v{VA+h//4} offset:{LWO+(28*(h%4)+8*t+4*aa)*224}")
    OFS = OPT.get("ofs", 16)
    wo_rd(0, OFS)
    a(f"""s_and_b32 s12, s{sX}, 1
s_lshl_b32 s12, s12, 5
s_lshr_b32 s11, s{sX}, 1
s_lshl_b32 s11, s11, 3
s_add_u32 s12, s12, s11
s_lshr_b32 s11, s{sJ}, 2
s_add_u32 s12, s12, s11""")
    a(f"""s_lshl_b32 s11, s12, 4
s_lshl_b32 s8, s{sW}, 2
s_add_u32 s11, s11, s8""")
    a(f"s_lshl_b32 s11, s11, 11\ns_add_u32 s11, s11, {WS_O}\ns_lshl_b32 s8, s{sW}, 13\ns_add_u32 s8, s8, {LO}")
    a(f"s_mov_b32 s14, 20000\nv_add_u32 v7, s8, v3")
    FL = 52
    for i in range(4): a(f"s_mov_b64 s[{FL+2*i}:{FL+2*i+1}], -1")
    def o_dma(i, md="sc1"):
        for u in range(2):
            a(f"s_add_u32 m0, s8, {(2*i+u)*1024}\ns_add_u32 s9, s11, {(2*i+u)*1024}")
            a(f"buffer_load_dwordx4 v3, {WSD}, s9 offen {md} lds")
    if OFS < 16 or OPT.get("om1") != "sc1":
        for i in range(4): o_dma(i, OPT.get("om1"))
        wo_rd(OFS, 16)
        a("s_branch b_opoll1")
    a("b_opoll:")
    def each(tag, f):
        for i in range(4):
            a(f"s_cmp_eq_u64 s[{FL+2*i}:{FL+2*i+1}], 0\ns_cbranch_scc1 b_o{tag}{i}")
            f(i)
            a(f"b_o{tag}{i}:")
    each("d", o_dma)
    a("b_opoll1:")
    a("s_waitcnt vmcnt(0)")
    each("r", lambda i: [a(f"ds_read_b128 {vr(OF3+8*i+4*u,4)}, v7 offset:{(2*i+u)*1024}") for u in range(2)])
    a("s_waitcnt lgkmcnt(0)")
    for i in range(4):
        a(f"v_bitop3_b32 v{232+i}, v{OF3+8*i}, v{OF3+8*i+4}, v{SG} bitop3:0x7e")
    for i in range(4):
        a(f"v_and_b32 v{232+i}, s{sMSK}, v{232+i}")
    for i in range(4):
        a(f"v_cmp_ne_u32 s[{FL+2*i}:{FL+2*i+1}], 0, v{232+i}")
    a("s_nop 3")
    a(f"s_or_b64 vcc, s[{FL}:{FL+1}], s[{FL+2}:{FL+3}]\ns_or_b64 vcc, vcc, s[{FL+4}:{FL+5}]\ns_or_b64 vcc, vcc, s[{FL+6}:{FL+7}]")
    a("s_cbranch_scc0 b_opoll_d")
    if OPT.get('osleep', 2): a(f"s_sleep {OPT.get('osleep', 2)}")
    a("s_sub_u32 s14, s14, 1\ns_cmp_lg_u32 s14, 0\ns_cbranch_scc1 b_opoll")
    a("b_opoll_d:")
    if OPT.get("cnt"): a("s_sub_u32 s82, 20001, s14")
    stamp(a, 8)
    arrive(a, C_O)
    for i in range(8): mfma(a, ACC3, WF3+4*i, OF3+4*i, None if i == 0 else ACC3)
    wait_cnt(a, C_O, 4)
    stamp(a, 9)
    def rdo(g, dst):
        for i in range(8): a(f"ds_read_b128 {vr(dst+4*i,4)}, v{VA+3+g} offset:{i*1024}")
    rdo(1, OF3+32); rdo(2, OF3)
    for i in range(8):
        a(f"s_waitcnt lgkmcnt({15-i})")
        mfma(a, ACC3, WF3+32+4*i, OF3+32+4*i, ACC3)
    rdo(3, OF3+32)
    for i in range(8):
        a(f"s_waitcnt lgkmcnt({15-i})")
        mfma(a, ACC3, WF3+64+4*i, OF3+4*i, ACC3)
    for i in range(8):
        a(f"s_waitcnt lgkmcnt({7-i})")
        mfma(a, ACC3, WF3+96+4*i, OF3+32+4*i, ACC3)
    a(f"""v_and_b32 v6, 31, v1
v_mul_u32_u24 v6, 1792, v6
v_lshrrev_b32 v7, 5, v1
v_lshl_add_u32 v6, v7, 5, v6
s_mul_i32 s7, s12, 57344
{f"s_mov_b32 s8, s{sJ4}" if OPT.get("b3m") else f"s_lshr_b32 s8, s{sH}, 2"}
s_mul_i32 s8, s8, 224
s_add_u32 s7, s7, s8
s_lshl_b32 s8, s{sW}, 6
s_add_u32 s7, s7, s8
s_add_u32 s7, s7, 896""")
    a.nop(2)
    for r in range(8): a(f"v_cvt_pk_bf16_f32 v{OF3+r}, v{ACC3+2*r}, v{ACC3+2*r+1}")
    a(f"""s_cmp_lg_u32 s{sW}, 3
s_cbranch_scc1 b_st
s_mov_b32 exec_hi, 0
b_st:""")
    for t in range(2):
        a(f"buffer_store_dwordx4 {vr(OF3+4*t,4)}, v6, s[{SRD_OUT}:{SRD_OUT+3}], s7 offen offset:{t*16} {OPT.get('omod', '')}")
    a("s_mov_b64 exec, -1")
    a(f"s_or_b32 s8, s2, s{sW}\ns_cmp_lg_u32 s8, 0\ns_cbranch_scc1 b_noep")
    a(f"s_mov_b64 exec, 1\nv_mov_b32 v6, s67\nv_mov_b32 v7, 0\ns_mov_b32 s8, {WS_EP}")
    a(f"buffer_store_dword v6, v7, {WSD}, s8 offen sc1")
    a("s_mov_b64 exec, -1")
    a("b_noep:")
    stamp(a, 10)
    stamp_out(a, 16)
    a("s_endpgm")
    for (t, iss, l, gd, inl) in retries:
        a(f"{l}_r:")
        a(f"s_sub_u32 s14, s14, 1\ns_cmp_le_i32 s14, 0\ns_cbranch_scc1 {l}_d")
        if OPT.get("rsleep", 1): a(f"s_sleep {OPT.get('rsleep', 1)}")
        if t < 8:
            a(f"s_cmp_gt_u32 s14, {20000 - OPT.get('nloc', 4)}\ns_cbranch_scc1 {l}_g")
            a(f"s_xor_b32 s15, s15, {WS_L}")
        if not gd and OPT.get("ag"): arrive(a, C_W4)
        elif not gd:
            a(f"s_bitcmp1_b32 s14, 0\ns_cbranch_scc1 {l}_g")
            st_glob()
        if t < 8: a(f"{l}_g:")
        for u in range(t, iss + 1): load_kv(u, True)
        a(f"s_waitcnt vmcnt(0)")
        if inl:
            if inl >= 2: g_rd(inl - 2)
            chk_v(KV + 16 * (t % NB))
            a(f"s_cbranch_vccnz {l}_r\ns_branch {l}_d")
        else: a(f"s_branch {l}")
    a("b_slow:")
    a(f"s_mov_b32 s{sPASS}, 1\ns_mov_b32 s66, 8\ns_lshr_b32 s87, s87, 1\ns_add_u32 s87, s87, {WS_JUNK}\ns_mov_b32 s88, s87")
    a("s_waitcnt vmcnt(0)")
    for q in range(4): a(f"v_mov_b32 v{MX+q}, 0xff800000")
    a("s_mov_b32 s14, 16\ns_mov_b32 s69, 20000")
    a("b_mloop:")
    a("s_and_b32 s13, s14, 7\ns_add_u32 s13, s13, s12\ns_and_b32 s13, s13, 31\ns_lshl_b32 s8, s13, 11\ns_bitcmp1_b32 s14, 3\ns_cselect_b32 s9, s15, s68\ns_add_u32 s8, s8, s9")
    for t in range(2):
        a(f"buffer_load_dwordx4 {vr(KV+4*t,4)}, v3, {WSD}, s8 offen offset:{t*1024} sc1")
    a("s_waitcnt vmcnt(0)")
    a(f"v_bitop3_b32 v{CT}, v{KV}, v{KV+4}, v{SG} bitop3:0x7e")
    a(f"v_and_b32 v{CT}, s{sMSK}, v{CT}")
    a(f"v_cmp_ne_u32 vcc, 0, v{CT}")
    a("s_cbranch_vccz b_mok")
    a(f"s_xor_b32 s15, s15, {WS_L}\ns_sub_u32 s69, s69, 1\ns_cmp_gt_i32 s69, 0\ns_cbranch_scc1 b_mloop")
    a("b_mok:")
    for q in range(4):
        mfma(a, S, KV, Q+8*q, None)
        mfma(a, S, KV+4, Q+8*q+4, S)
        a.nop(12)
        for r in range(8): a(f"v_max3_f32 v{MX+q}, v{MX+q}, v{S+2*r}, v{S+2*r+1}")
    a("s_sub_u32 s14, s14, 1\ns_cmp_lg_u32 s14, 0\ns_cbranch_scc1 b_mloop")
    a(f"v_lshlrev_b32 v{TMP}, 2, v1\ns_lshl_b32 s9, s{sW}, 10")
    for q in range(4):
        rot(q, 8, 8, LMX)
        a(f"s_add_u32 s8, s8, s9\nv_add_u32 v{TMP+1}, s8, v{TMP}")
        a(f"ds_write_b32 v{TMP+1}, v{MX+q}")
    a("s_waitcnt lgkmcnt(0)")
    arrive(a, C_M1)
    wait_cnt(a, C_M1, 4)
    a(f"v_and_b32 v{TMP}, 31, v1\nv_lshlrev_b32 v{TMP}, 2, v{TMP}")
    for q in range(4):
        rot(q, 8, 8, LMX)
        a(f"v_add_u32 v{TMP+1}, s8, v{TMP}")
        for w in range(4):
            for hh in range(2):
                a(f"ds_read_b32 v{S+2*w+hh}, v{TMP+1} offset:{w*1024+hh*128}")
        a("s_waitcnt lgkmcnt(0)")
        a(f"v_max3_f32 v{MX+q}, v{S}, v{S+1}, v{S+2}")
        a(f"v_max3_f32 v{MX+q}, v{MX+q}, v{S+3}, v{S+4}")
        a(f"v_max3_f32 v{MX+q}, v{MX+q}, v{S+5}, v{S+6}")
        a(f"v_max_f32 v{MX+q}, v{MX+q}, v{S+7}")
    a("s_mov_b32 s8, -1.0")
    a("s_mov_b32 exec_lo, 0")
    for q in range(4):
        a(f"""v_mul_f32 v{TMP}, s8, v{MX+q}
v_and_b32 v{TMP+1}, 0xffff0000, v{TMP}
v_sub_f32 v{TMP}, v{TMP}, v{TMP+1}
v_and_b32 v{TMP+3}, 0xffff0000, v{TMP}
v_sub_f32 v{TMP}, v{TMP}, v{TMP+3}
v_lshrrev_b32 v{TMP+1}, 16, v{TMP+1}
v_or_b32 v{Q+8*q+6}, v{TMP+1}, v{TMP+3}
v_lshrrev_b32 v{Q+8*q+7}, 16, v{TMP}""")
    a("s_mov_b64 exec, -1")
    a("s_mov_b32 s14, 20000")
    a("s_branch b_main")

    a("a_wave:")
    G.inA = True
    common()
    a(f"""s_lshr_b32 s{sDQ}, s2, 6
s_lshr_b32 s{sG}, s{sJ}, 2""")
    a(f"""s_lshl_b32 s67, s{sX}, 3
s_and_b32 s9, s{sJ}, 7
s_add_u32 s67, s67, s9
s_lshr_b32 s{sG1}, s{sJ}, 3
s_lshl_b32 s{sG1}, s{sG1}, 1
s_lshr_b32 s9, s{sWL}, 1
s_add_u32 s{sG1}, s{sG1}, s9
s_and_b32 s68, s{sWL}, 1""")
    F, E1C, E1S, E3C, E3X, CSN, CSC = 16, 128, 136, 144, 152, 160, 216
    A1ACC, A1XF, A1XP, A1Y = 168, 184, 200, 184
    VWO = 10
    sK1 = sN2
    a(f"""v_and_b32 v202, 3, v8
v_lshrrev_b32 v203, 3, v8
v_lshl_add_u32 v202, v203, 2, v202
v_bfe_u32 v203, v8, 2, 1
v_lshlrev_b32 v203, 4, v203
s_mul_i32 s9, s{sG1}, 28
v_add3_u32 v202, v202, v203, s9
s_mul_i32 s9, s68, 0x3e800000
v_mov_b32 v204, s9
v_cvt_f32_u32 v202, v202
v_mul_f32 v202, {f32_bits(1/448):#x}, v202
v_lshlrev_b32 v203, 3, v9
v_cvt_f32_u32 v203, v203
v_fma_f32 v204, v203, v202, v204""")
    def gen_F(hooks):
        T0, KK = 168, 200
        a(f"v_cos_f32 v{KK}, v202\ns_nop 0\nv_add_f32 v{KK}, v{KK}, v{KK}\nv_mov_b32 v{KK+1}, v{KK}")
        def seeds(tp):
            T = T0 + 16 * (tp % 2)
            L = []
            for j in range(2):
                for e in range(2):
                    L.append(f"v_fmamk_f32 v{T+2*j+e}, v202, {f32_bits(float(16*(2*tp+e)+j)):#x}, v204")
            for j in range(2):
                for e in range(2):
                    L.append(f"v_cos_f32 v{T+2*j+e}, v{T+2*j+e}")
            return L
        def rec(tp):
            T = T0 + 16 * (tp % 2)
            L = []
            for j in range(2, 8):
                L.append(f"v_pk_fma_f32 {vr(T+2*j,2)}, {vr(KK,2)}, {vr(T+2*j-2,2)}, {vr(T+2*j-4,2)} neg_lo:[0,0,1] neg_hi:[0,0,1]")
                if j % 2 == 0:
                    jp = j // 2 - 1
                    for e in range(2): L.append(f"v_cvt_pk_bf16_f32 v{F+4*(2*tp+e)+jp}, v{T+4*jp+e}, v{T+4*jp+2+e}")
            for e in range(2): L.append(f"v_cvt_pk_bf16_f32 v{F+4*(2*tp+e)+3}, v{T+12+e}, v{T+14+e}")
            return L
        for x in seeds(0): a(x)
        a("s_nop 0")
        for tp in range(14):
            if tp in hooks: hooks[tp]()
            R = rec(tp); S_ = seeds(tp + 1) if tp < 13 else []
            while R or S_:
                if R: a(R.pop(0))
                if S_: a(S_.pop(0))
    W2, WR = 240, 232
    hooks = {}
    if OPT.get("spf") and not OPT.get("noA"):
        st = OPT["spf"]
        L = [("s[6:7]", r * 57344 + c) for r in range(2) for c in range(0, 896, st)]
        if OPT.get("spw"): L += [("s[14:15]", c) for c in range(0, 1800 + st - 4, st - 8)]
        H0 = OPT.get("sph", 2)
        per = -(-len(L) // (14 - H0))
        def h0():
            a(f"""s_lshr_b32 s8, s{sJ}, 3
s_lshl_b32 s8, s8, 2
s_add_u32 s8, s8, s{sWL}
s_mul_i32 s8, s8, {2*57344}
s_mul_i32 s9, s67, 896
s_add_u32 s8, s8, s9
s_lshl_b32 s9, s{sJ}, 1
s_lshr_b32 s10, s{sWL}, 1
s_add_u32 s9, s9, s10
s_lshl_b32 s9, s9, 3
s_add_u32 s9, s9, s{sX}
s_mul_i32 s9, s9, 1800
s_waitcnt lgkmcnt(0)
s_add_u32 s6, s{S_AX}, s8
s_addc_u32 s7, s{S_AX+1}, 0
s_cmp_eq_u32 s68, 0
s_cselect_b32 s14, s{S_WR}, s{S_WI}
s_cselect_b32 s15, s{S_WR+1}, s{S_WI+1}
s_add_u32 s14, s14, s9
s_addc_u32 s15, s15, 0""")
        def mk(tp):
            def f():
                if tp == H0: h0()
                for (b, o) in L[(tp - H0) * per:(tp - H0 + 1) * per]:
                    a(f"s_load_dword s10, {b}, {min(o, 1796) if b == 's[14:15]' else o}")
            return f
        for tp in range(H0, 14): hooks[tp] = mk(tp)
    if OPT.get("pro"):
        assert not hooks
        hooks[OPT["pro"]] = lambda: a("s_barrier")
    gen_F(hooks)
    a("s_lshl_b32 s13, s68, 31\ns_lshr_b32 s8, s13, 16\ns_or_b32 s13, s13, s8")
    gen_E(a, 8, 9, 67, 'a1', {'C': E1C, 'Sx': E1S}, 204)
    stamp(a, 8)
    a("s_waitcnt lgkmcnt(0)")
    if STAMPS: a("s_mov_b32 s70, s92")
    srd(a, SRD_WS, S_WS, WS_SIZE)
    t0, t1, t2 = 186, 187, 188
    def gen_CS():
        a(f"""s_lshl_b32 s8, s{sWL}, 4
v_and_b32 v{t0}, 15, v1
v_add_u32 v{t0}, s8, v{t0}
v_cvt_f32_u32 v{t0}, v{t0}
v_mul_f32 v{t0}, {f32_bits(1/64):#x}, v{t0}
v_lshrrev_b32 v{t1}, 4, v1
v_lshlrev_b32 v{t1}, 2, v{t1}
v_cvt_f32_u32 v{t1}, v{t1}
v_mul_f32 v{t1}, v{t1}, v{t0}""")
        for kap in range(2):
            for hf in range(2):
                for i in range(4):
                    a(f"v_fmamk_f32 v{t2+i}, v{t0}, {f32_bits(float(32*kap+16*hf+i)):#x}, v{t1}")
                for i in range(4): a(f"v_cos_f32 v{t2+4+i}, v{t2+i}")
                for i in range(4): a(f"v_sin_f32 v{t2+i}, v{t2+i}")
                o = 4 * kap + 2 * hf
                for i in range(2): a(f"v_cvt_pk_bf16_f32 v{CSC+o+i}, v{t2+4+2*i}, v{t2+4+2*i+1}")
                for i in range(2): a(f"v_cvt_pk_bf16_f32 v{CSC+8+o+i}, v{t2+2*i}, v{t2+2*i+1}")
                for i in range(2): a(f"v_xor_b32 v{CSN+o+i}, 0x80008000, v{CSC+8+o+i}")
    def gen_E3():
        a(f"s_mov_b32 s8, {f32_bits(2.0/(2048*448)):#x}\ns_lshl_b32 s9, s68, 31\ns_xor_b32 s9, s9, s8\ns_xor_b32 s9, s9, 0x80000000")
        a(f"""v_lshlrev_b32 v{t0}, 6, v8
v_add_u32 v{t0}, s67, v{t0}
v_cvt_f32_u32 v{t0}, v{t0}
v_mul_f32 v{t0}, {f32_bits(1/2048):#x}, v{t0}
v_lshlrev_b32 v{t1}, 3, v9
v_cvt_f32_u32 v{t1}, v{t1}
v_mul_f32 v{t1}, v{t1}, v{t0}""")
        for tau in range(2):
            for hf in range(2):
                for i in range(4):
                    a(f"v_fmamk_f32 v{t2+i}, v{t0}, {f32_bits(float(16*tau+4*hf+i)):#x}, v{t1}")
                for i in range(4): a(f"v_cos_f32 v{t2+4+i}, v{t2+i}")
                for i in range(4): a(f"v_sin_f32 v{t2+i}, v{t2+i}")
                for i in range(4): a(f"v_mul_f32 v{t2+4+i}, s8, v{t2+4+i}")
                for i in range(4): a(f"v_mul_f32 v{t2+i}, s9, v{t2+i}")
                o = 4 * tau + 2 * hf
                for i in range(2): a(f"v_cvt_pk_bf16_f32 v{E3C+o+i}, v{t2+4+2*i}, v{t2+4+2*i+1}")
                for i in range(2): a(f"v_cvt_pk_bf16_f32 v{E3X+o+i}, v{t2+2*i}, v{t2+2*i+1}")
    if OPT.get("cs", 1) == 0: gen_CS()
    if OPT.get("e3", 0) == 0: gen_E3()
    srd(a, SRD_B, S_WO, 448 * 896)
    srd(a, SRD_OUT, S_OUT, 2048 * 1792)
    a(f"""v_bfe_u32 v10, v8, 1, 3
v_lshlrev_b32 v6, 7, v8
v_add_u32 v6, {LXA}, v6""")
    for t in range(4):
        a(f"v_add_u32 v7, {2*t}, v9\nv_xor_b32 v7, v7, v10\nv_lshl_add_u32 v{12+t}, v7, 4, v6")
    XS = 7
    a(f"s_setprio {OPT.get('prio', 3)}")
    if OPT.get("noA"): a("s_branch a_fin")
    a("s_mov_b32 s69, 400000")
    a("a_xw:")
    a(f"ds_read_b128 v[200:203], v4 offset:{4*C_XF}")
    a("s_waitcnt lgkmcnt(0)")
    a("v_min3_u32 v200, v200, v201, v202\nv_min_u32 v200, v200, v203\ns_sub_u32 s69, s69, 1")
    a("v_readfirstlane_b32 s8, v200\ns_nop 1")
    a("s_cmp_lg_u32 s8, 0\ns_cbranch_scc1 a_xw_d\ns_sleep 1\ns_cmp_lg_u32 s69, 0\ns_cbranch_scc1 a_xw")
    a("a_xw_d:")
    if OPT.get("a2o", 0) & 1: a("s_waitcnt vmcnt(0)")
    a(f"ds_read_b32 v2, v4 offset:{4*C_EP}")
    stamp(a, 3)
    a(f"s_setprio {OPT.get('gprio', 3)}")
    for c in range(7):
        xf = A1XF + 16 * (c % 2)
        if c == XS:
            if not OPT.get("noA"): vwait("x6")
            arrive(a, C_AX2)
            wait_cnt(a, C_AX2, 4)
        if c == 0 or c == XS:
            for t in range(4): a(f"ds_read_b128 {vr(xf+4*t,4)}, v{12+t} offset:{c*4096}")
        nxt = c < 6 and c + 1 != XS
        if nxt:
            for t in range(4): a(f"ds_read_b128 {vr(A1XF+16*((c+1)%2)+4*t,4)}, v{12+t} offset:{(c+1)*4096}")
        a(f"s_waitcnt lgkmcnt({4 if nxt else 0})")
        for t in range(4):
            mfma(a, A1ACC, xf+4*t, F+4*(4*c+t), None if (c == 0 and t == 0) else A1ACC)
        if c == 1: arrive(a, C_AX)
    a(f"s_setprio {OPT.get('prio', 3)}")
    a(f"s_lshl_b32 s8, s{sWL}, 11\ns_add_u32 s8, s8, {LEX}\nv_add_u32 v6, s8, v3")
    a("v_mov_b32 v11, v6")
    set_tag(a)
    wait_cnt(a, C_AX, 4)
    a("v_mov_b32 v6, v11")
    a.nop(4)
    for r in range(8): a(f"v_cvt_pk_bf16_f32 v{A1XP+r}, v{A1ACC+2*r}, v{A1ACC+2*r+1}")
    for t in range(2): a(f"ds_write_b128 v6, {vr(A1XP+4*t,4)} offset:{t*1024}")
    for t in range(2): mfma(a, A1Y, A1XP+4*t, E1C+4*t, None if t == 0 else A1Y)
    a("s_waitcnt lgkmcnt(0)")
    stamp(a, 4)
    arrive(a, C_AEX)
    wait_cnt(a, C_AEX, 4)
    a(f"s_xor_b32 s8, s{sWL}, 1\ns_lshl_b32 s8, s8, 11\ns_add_u32 s8, s8, {LEX}\nv_add_u32 v6, s8, v3")
    for t in range(2): a(f"ds_read_b128 {vr(A1XP+8+4*t,4)}, v6 offset:{t*1024}")
    a("s_waitcnt lgkmcnt(0)")
    for t in range(2): mfma(a, A1Y, A1XP+8+4*t, E1S+4*t, A1Y)
    sig_regs(a, 128)
    a(f"""s_lshl_b32 s8, s{sG1}, 6
s_add_u32 s8, s8, s67
s_lshl_b32 s8, s8, 12
s_lshl_b32 s9, s68, 6
s_add_u32 s8, s8, s9
s_add_u32 s8, s8, {WS_Y}
s_add_u32 s9, s12, {LYT}
v_lshlrev_b32 v6, 6, v8
v_lshl_add_u32 v6, v9, 5, v6
v_add_u32 v6, s9, v6
v_add_u32 v7, s9, v3
v_lshrrev_b32 v11, 2, v1
v_lshlrev_b32 v11, 7, v11
v_and_b32 v12, 3, v1
v_lshl_add_u32 v11, v12, 4, v11""")
    for r in range(8): a(f"v_cvt_pk_bf16_f32 v{A1XP+r}, v{A1Y+2*r}, v{A1Y+2*r+1}")
    for t in range(2): a(f"ds_write_b128 v6, {vr(A1XP+4*t,4)} offset:{t*16}")
    for t in range(2): a(f"ds_read_b128 {vr(A1XP+8+4*t,4)}, v7 offset:{t*1024}")
    a("s_waitcnt lgkmcnt(0)")
    sign(a, A1XP+8, 8, 128)
    a("s_mov_b32 s10, s8")
    stamp(a, 1)
    if OPT.get("cs", 1) == 2: gen_CS()
    if OPT.get("e3", 0) == 2: gen_E3()
    a(f"""v_lshrrev_b32 v6, 2, v1
s_lshl_b32 s8, s{sWL}, 4
v_add_u32 v6, s8, v6
v_lshlrev_b32 v6, 5, v6
v_add_u32 v6, s{sK1}, v6
v_mul_u32_u24 v6, 450, v6
v_and_b32 v7, 3, v1
v_lshlrev_b32 v7, 4, v7
s_mul_i32 s9, s{sG}, 56
v_add3_u32 v10, v6, v7, s9""")
    srd(a, SRD_TAB, S_WR, 2048 * 450 + 2)
    srd(a, SRD_C, S_WI, 2048 * 450 + 2)
    def wdma():
        for k, sd in enumerate((SRD_TAB, SRD_C)):
            a(f"s_add_u32 m0, s12, {LWW + k*1024}\ns_nop 0")
            a(f"buffer_load_dwordx4 v10, s[{sd}:{sd+3}], 0 offen lds")
    wait_cnt(a, *OPT["ysw"])
    setprio(a, OPT.get('p1', 3))
    AS = OPT.get("astop", 0)
    if AS == 1: a("s_branch a_fin")
    for t in range(2):
        if AS != 3: a(f"buffer_store_dwordx4 {vr(A1XP+8+4*t,4)}, v11, {WSD}, s10 offen offset:{t*2048} {OPT.get('ym', 'sc1')}")
    def odum():
        a(f"""s_lshl_b32 s8, s{sQB}, 2
s_add_u32 s8, s8, s{sWL}
s_lshl_b32 s8, s8, 4
s_add_u32 s8, s8, s{sH}
s_lshl_b32 s8, s8, 11
s_add_u32 s8, s8, {WS_O}
v_not_b32 v168, v128""")
        for t in range(2): a(f"buffer_store_dwordx4 v[168:171], v3, {WSD}, s8 offen offset:{t*1024} sc1")
    if OPT.get("odum") == 1: odum()
    if AS == 2: a("s_branch a_fin")
    if OPT.get("wpos", 0) == 1: wdma()
    if OPT.get("yf", 0):
        a(f"s_lshl_b32 s8, s{sG}, 7\ns_lshl_b32 s9, s67, 1\ns_add_u32 s8, s8, s9\ns_add_u32 s8, s8, s68\ns_lshl_b32 s8, s8, 2\ns_add_u32 s8, s8, {WS_FY}")
        flag_store(a, 8)
    stamp(a, 5)
    if OPT.get("p2") is not None: setprio(a, OPT["p2"])
    THR = OPT.get("thr", 2)
    WOO = 140
    def wo_addr():
        a("s_mov_b32 s9, 0x12492493")
        a(f"s_mov_b32 s8, s{sJ4}" if OPT.get("b3m") else f"s_lshr_b32 s8, s{sH}, 2")
        a("s_mul_i32 s8, s8, 224")
        a(f"""v_mul_hi_u32 v7, v1, s9
v_mul_u32_u24 v6, 14, v7
v_sub_u32 v6, v1, v6
v_mul_u32_u24 v7, 896, v7
v_lshl_add_u32 v7, v6, 4, v7
v_add_u32 v{WOO}, s8, v7""")
    def wo_part(k0, k1, pad):
        n = k1 - k0
        THR = OPT.get("thr", 2) if pad else OPT.get("thr2", OPT.get("thr", 2))
        if not OPT.get("ho"): wo_addr()
        a(f"""s_lshr_b32 s10, s{sJ}, 2
s_mul_i32 s10, s10, {n}
s_lshr_b32 s10, s10, 3
s_add_u32 s10, s10, {k0}
s_lshl_b32 s10, s10, 2
s_add_u32 s10, s10, s{sWL}
s_mul_i32 s10, s10, 896""")
        for k in range(n):
            a(f"s_add_u32 m0, s10, {LWO}\ns_lshl_b32 s13, s10, 2")
            if k > THR: a(f"s_waitcnt vmcnt({THR})")
            a(f"buffer_load_dwordx4 v{WOO}, s[{SRD_B}:{SRD_B+3}], s13 offen lds")
            if k < n - 1: a(f"s_add_u32 s10, s10, {4*896}\ns_sub_u32 s11, s10, {4*n*896}\ns_cmp_ge_u32 s10, {4*k1*896}\ns_cselect_b32 s10, s11, s10")
        if pad:
            a(f"s_mov_b32 m0, {LWO+448*224}\ns_mov_b32 s13, {448*896}")
            a(f"buffer_load_dwordx4 v{WOO}, s[{SRD_B}:{SRD_B+3}], s13 offen lds")
    YF, Z = 168, 200
    VY, VP, VPW, VD = 76, 80, 81, 82
    a(f"""v_and_b32 v14, 15, v1
v_lshrrev_b32 v15, 4, v1
s_lshl_b32 s6, s{sG}, 18
s_lshl_b32 s7, s{sK1}, 7
s_add_u32 s6, s6, s7
s_lshl_b32 s7, s{sWL}, 16
s_add_u32 s6, s6, s7
s_add_u32 s6, s6, {WS_Y}
v_bfe_u32 v6, v1, 1, 2
v_bfe_u32 v7, v1, 4, 2
v_xor_b32 v6, v6, v7
v_and_b32 v7, 1, v1
v_lshl_add_u32 v6, v6, 1, v7
v_lshrrev_b32 v7, 3, v1
v_lshlrev_b32 v7, 12, v7
v_lshl_add_u32 v{VD}, v6, 4, v7
v_and_b32 v6, 3, v6
v_lshlrev_b32 v6, 2, v6
v_lshrrev_b32 v136, v6, s{sSIG}""")
    a(f"""v_lshrrev_b32 v6, 2, v1
v_and_b32 v7, 3, v1
v_lshlrev_b32 v7, 3, v7
v_lshl_add_u32 v{VP}, v6, 6, v7
v_add_u32 v{VP}, {LP}, v{VP}
v_lshl_add_u32 v7, v6, 7, v7
v_add_u32 v7, {LY}, v7
v_bfe_u32 v6, v1, 3, 2""")
    for P_ in range(4):
        a(f"v_xor_b32 v11, {P_}, v6\nv_lshl_add_u32 v{VY+P_}, v11, 5, v7")
    a(f"""s_lshl_b32 s8, s{sWL}, 10
s_add_u32 s8, s8, {LP}
v_lshlrev_b32 v6, 6, v14
v_lshl_add_u32 v6, v15, 3, v6
v_add_u32 v{VPW}, s8, v6
s_add_u32 s8, s12, {LWW}
v_add_u32 v6, s8, v6""")
    if OPT.get("cs", 1) == 1: gen_CS()
    a("v_mov_b32 v12, v6")
    A2O = OPT.get("a2o", 0)
    if A2O & 1:
        for r in range(16): a(f"v_mov_b32 v{W2+r}, 0")
    def wproc():
        if A2O & 1:
            for k in range(4):
                for e in range(4): a(f"ds_read_u16_d16_hi v{W2+4*k+e}, v12 offset:{(k//2)*1024+(k%2)*32+2*e}")
        else:
            for k in range(4):
                a(f"ds_read_b64 {vr(WR+2*k,2)}, v12 offset:{(k//2)*1024+(k%2)*32}")
        a("s_waitcnt lgkmcnt(0)")
        for k in range(4):
            if not A2O & 1: a(f"""v_lshlrev_b32 v{W2+4*k}, 16, v{WR+2*k}
v_and_b32 v{W2+4*k+1}, 0xffff0000, v{WR+2*k}
v_lshlrev_b32 v{W2+4*k+2}, 16, v{WR+2*k+1}
v_and_b32 v{W2+4*k+3}, 0xffff0000, v{WR+2*k+1}""")
        a(f"s_cmp_lg_u32 s{sG}, 0\ns_cbranch_scc1 a_w1")
        a(f"s_mov_b64 exec, 0xffff\nv_mul_f32 v{W2}, 0.5, v{W2}\nv_mul_f32 v{W2+8}, 0.5, v{W2+8}\ns_mov_b64 exec, -1")
        a("a_w1:")
        a(f"s_cmp_lg_u32 s{sG}, 7\ns_cbranch_scc1 a_w2")
        a(f"s_mov_b32 exec_lo, 0\ns_mov_b32 exec_hi, 0xffff0000\nv_mul_f32 v{W2+4}, 0.5, v{W2+4}\nv_mul_f32 v{W2+12}, 0.5, v{W2+12}\ns_mov_b64 exec, -1")
        a("a_w2:")
    if OPT.get("wpos", 0) == 1:
        a("s_waitcnt vmcnt(0)")
        wproc()
    stamp(a, 7)
    def chk8(r0, n, sg, acc):
        for i in range(n // 8): a(f"v_bitop3_b32 v{acc+i}, v{r0+8*i}, v{r0+8*i+4}, v{sg} bitop3:0x7e")
        if n == 8: a(f"v_and_b32 v{acc}, s{sMSK}, v{acc}")
        else:
            a(f"v_or3_b32 v{acc}, v{acc}, v{acc+1}, v{acc+2}")
            a(f"v_bitop3_b32 v{acc}, v{acc}, s{sMSK}, v{acc+3} bitop3:0xc8")
        a(f"v_cmp_ne_u32 vcc, 0, v{acc}")
    if OPT.get("yf", 0):
        a(f"s_lshl_b32 s8, s{sG}, 9\ns_lshl_b32 s9, s{sWL}, 7\ns_add_u32 s8, s8, s9\ns_add_u32 s8, s8, {WS_FY}\nv_lshlrev_b32 v13, 2, v8")
        poll(a, 13, "s8", -1, width=1, vt=132, sleep=OPT.get("fsleep", 2))
        if OPT.get("cnt"): a("s_sub_u32 s71, 20001, s9")
    if AS == 4: a("s_branch a_fin")
    if OPT.get("wop") == 2:
        wait_cnt(a, C_M2, 4)
        wo_part(10, 28, True)
    def wbk(pos, wc=None):
        if OPT.get("wb") is None or OPT.get("wbp", 0) != pos: return
        l = lab("wb")
        a(f"s_and_b32 s8, s{sJ}, {OPT['wb']}\ns_xor_b32 s8, s8, {OPT.get('wbj', 0)}\ns_or_b32 s8, s8, s{sWL}\ns_cmp_lg_u32 s8, 0\ns_cbranch_scc1 {l}")
        if wc is not None: wait_cnt(a, wc, 4, sleep=2)
        a(f"buffer_wbl2 {OPT.get('wbm', 'sc1')}")
        if OPT.get("wbw", 1):
            a("s_waitcnt vmcnt(0)")
            stamp(a, 5)
        a(f"{l}:")
    if OPT.get("ag"):
        a(f"""s_lshl_b32 s10, s{sHP}, 7
s_lshl_b32 s11, s{sQB}, 2
s_add_u32 s10, s10, s11
s_add_u32 s10, s10, s{sWL}
s_lshl_b32 s10, s10, 11
s_and_b32 s11, s{sJ}, 1
s_mul_i32 s11, s11, {WS_V - WS_K}
s_add_u32 s10, s10, s11
s_add_u32 s11, s10, {64*2048}
s_lshl_b32 s13, s{sWL}, 12
s_add_u32 s13, s13, {LKV}
v_add_u32 v13, s13, v3""")
        if OPT.get("ho"):
            if OPT.get("hop") is not None: a(f"s_setprio {OPT['hop']}")
            wo_addr()
            a(f"""s_add_u32 s8, s12, {LTT}
v_lshlrev_b32 v6, 7, v14
v_lshl_add_u32 v6, v15, 3, v6
v_add_u32 v83, s8, v6
v_add_u32 v84, s8, v3
s_lshl_b32 s9, s{sK1}, 5
s_and_b32 s9, s9, 64
v_and_b32 v11, 7, v1
v_lshlrev_b32 v11, 4, v11
v_xor_b32 v11, s9, v11
v_lshrrev_b32 v6, 3, v1
v_lshl_add_u32 v85, v6, 15, v11
v_bfe_u32 v6, v1, 2, 2
v_lshl_add_u32 v6, v9, 3, v6
v_lshlrev_b32 v6, 7, v6
v_bfe_u32 v7, v1, 3, 1
v_xor_b32 v7, s68, v7
v_lshl_add_u32 v14, v7, 6, v6
v_xor_b32 v15, 64, v14
v_bfe_u32 v6, v1, 4, 1
v_lshlrev_b32 v6, 2, v6
v_and_b32 v7, 1, v1
v_lshl_add_u32 v6, v7, 1, v6
v_bfe_u32 v7, v1, 1, 1
v_add_u32 v11, v6, v7
v_lshl_add_u32 v142, v11, 3, v14
v_lshl_add_u32 v143, v11, 3, v15
s_lshl_b32 s8, s{sWL}, 13
v_add_u32 v137, s8, v3
s_mov_b32 s8, 114688
v_mul_lo_u32 v6, v8, s8
v_lshlrev_b32 v7, 5, v9
v_add_u32 v129, v6, v7
v_sub_u32 v130, v6, v7
v_add_u32 v130, 32, v130
s_add_u32 s8, s12, {LEX2}
v_add_u32 v131, s8, v3
v_xor_b32 v141, 2048, v131
s_add_u32 s8, s12, {LY}
v_add_u32 v86, s8, v3""")
            assert LT == 0
            for r in range(4): a(f"v_mov_b32 v{124+r}, 0")
            if OPT.get("hop") is not None: a(f"s_setprio {OPT.get('p1', 3)}")
        wait_cnt(a, OPT.get("agc", C_KV), 4, sleep=1)
        for u in range(4): a(f"ds_read_b128 {vr(Z+4*u,4)}, v13 offset:{u*1024}")
        a("s_mov_b32 s87, s10\ns_mov_b32 s88, s11")
        def ag_st(u):
            a(f"buffer_store_dwordx4 {vr(Z+4*u,4)}, v3, {WSD}, s{87+u//2} offen offset:{(u%2)*1024} {OPT.get('gm', 'sc1')}")
        for u in range(4 - OPT.get("agl", 0)):
            a(f"s_waitcnt lgkmcnt({3-u})")
            if OPT.get("ags") and OPT["ags"][u] is not None:
                l = lab("agk")
                if u == 0 and OPT.get("agk"): a(f"s_mov_b32 s8, {OPT['agk']:#x}\ns_bitcmp1_b32 s8, s{sH}\ns_cbranch_scc1 {l}")
                wait_cnt(a, C_W4, 4 * (1 + sum(1 for x in OPT["ags"][:u] if x is not None)), sleep=2)
                a(f"{l}:")
            ag_st(u)
        a("s_waitcnt lgkmcnt(0)")
    wbk(1, C_Q)
    wbk(4, C_M2)
    if AS == 8: a("s_branch a_fin")
    if OPT.get("ylw") is not None: wait_cnt(a, OPT["ylw"], 4, sleep=2)
    setprio(a, OPT.get('a2prio', 3))
    YCA = 86 if OPT.get("ho") else 13
    a(f"""s_add_u32 s8, s12, {LY}
{"" if OPT.get("ho") else "v_add_u32 v13, s8, v3"}
s_add_u32 s9, s6, {8*4096}
s_mov_b32 s14, 20000""")
    if OPT.get("wpos", 0) == 0: wdma()
    a("a_ypoll:")
    a("s_mov_b32 m0, s8\ns_nop 0")
    a(f"buffer_load_dwordx4 v{VD}, {WSD}, s6 offen sc1 lds")
    a(f"s_add_u32 m0, s8, 1024\ns_nop 0")
    a(f"buffer_load_dwordx4 v{VD}, {WSD}, s9 offen sc1 lds")
    a("s_waitcnt vmcnt(0)")
    for i in range(2): a(f"ds_read_b32 v{YF+4*i}, v{YCA} offset:{i*1024}")
    a("s_waitcnt lgkmcnt(0)")
    chk8(YF, 8, 136, 132)
    a("s_cbranch_vccz a_ypoll_d")
    a(f"s_sleep {OPT.get('psleep', 4)}")
    a("s_sub_u32 s14, s14, 1\ns_cmp_lg_u32 s14, 0\ns_cbranch_scc1 a_ypoll")
    a("a_ypoll_d:")
    if OPT.get("cnt"): a("s_sub_u32 s76, 20001, s14")
    stamp(a, 10)
    arrive(a, C_AY)
    if OPT.get("wpos", 0) == 0: wproc()
    if OPT.get("agl") and OPT.get("aglb"):
        for u in range(4 - OPT["agl"], 4): ag_st(u)
    if OPT.get("wpos", 0) == 2: wdma()
    if OPT.get("agl") and not OPT.get("aglb"):
        for u in range(4 - OPT["agl"], 4): ag_st(u)
    if OPT.get("wpos", 0) == 3:
        wait_cnt(a, C_G, 4)
        wdma()
    wait_cnt(a, C_AY, 4)
    stamp(a, 11)
    yf = lambda ri, ch, kap: YF + 4 * ((ri * 2 + ch) * 2 + kap)
    cs = lambda kap, k: (CSC, CSC + 8, CSN)[k] + 4 * kap
    z = lambda ri, ch: Z + 8 * ri + 4 * ch
    def dft64(rd, k01, k10):
        FR = [(ri, ch, kap) for kap in range(2) for ri in range(2) for ch in range(2)]
        DP = OPT.get("a2d", 3)
        for f_ in FR[:DP]: rd(*f_)
        seen = set()
        for n, (ri, ch, kap) in enumerate(FR):
            a(f"s_waitcnt lgkmcnt({2 * (min(8, n + DP) - n - 1)})")
            for (zo, kk) in ((ri, 0), (1 - ri, k01 if ri else k10)):
                mfma16(a, z(zo,ch), yf(ri,ch,kap), cs(kap,kk), z(zo,ch) if (zo, ch) in seen else None)
                seen.add((zo, ch))
            if n + DP < 8: rd(*FR[n + DP])
    def rdY(ri, ch, kap):
        for aa in range(2): a(f"ds_read_b64_tr_b16 {vr(yf(ri,ch,kap)+2*aa,2)}, v{VY+2*ri+ch} offset:{(32*kap+16*aa)*128}")
    def rdP(ri, ch, kap):
        for aa in range(2): a(f"ds_read_b64_tr_b16 {vr(yf(ri,ch,kap)+2*aa,2)}, v{VP} offset:{ri*4096+(32*kap+16*aa)*64+ch*32}")
    if A2O & 4: dft64(rdY, 1, 2)
    else:
        for ri in range(2):
            for ch in range(2):
                for kap in range(2):
                    for aa in range(2):
                        a(f"ds_read_b64_tr_b16 {vr(yf(ri,ch,kap)+2*aa,2)}, v{VY+2*ri+ch} offset:{(32*kap+16*aa)*128}")
        a("s_waitcnt lgkmcnt(0)")
        cs = lambda kap, k: (CSC, CSC + 8, CSN)[k] + 4 * kap
        z = lambda ri, ch: Z + 8 * ri + 4 * ch
        for kap in range(2):
            for ch in range(2):
                mfma16(a, z(0,ch), yf(0,ch,kap), cs(kap,0), None if kap == 0 else z(0,ch))
                mfma16(a, z(1,ch), yf(1,ch,kap), cs(kap,0), None if kap == 0 else z(1,ch))
        for kap in range(2):
            for ch in range(2):
                mfma16(a, z(0,ch), yf(1,ch,kap), cs(kap,1), z(0,ch))
                mfma16(a, z(1,ch), yf(0,ch,kap), cs(kap,2), z(1,ch))
    if OPT.get("wpos", 0) >= 2:
        a(f"s_waitcnt vmcnt({0 if OPT.get('aglb') else OPT.get('agl', 0)})")
        stamp(a, 7)
        wproc()
    else: a.nop(9)
    for i in range(0, 8, 2) if A2O & 2 else []:
        zr, zi, wr, wi = vr(Z + i, 2), vr(Z + 8 + i, 2), vr(W2 + i, 2), vr(W2 + 8 + i, 2)
        t_, u_ = vr(YF + 2 * i, 2), vr(YF + 2 * i + 2, 2)
        a(f"""v_pk_mul_f32 {t_}, {zi}, {wi}
v_pk_mul_f32 {u_}, {zr}, {wi}
v_pk_fma_f32 {zr}, {zr}, {wr}, {t_} neg_lo:[0,0,1] neg_hi:[0,0,1]
v_pk_fma_f32 {zi}, {zi}, {wr}, {u_}""")
    for i in range(8) if not A2O & 2 else []:
        zr, zi, wr, wi = Z + i, Z + 8 + i, W2 + i, W2 + 8 + i
        a(f"""v_mul_f32 v6, v{zi}, v{wi}
v_mul_f32 v7, v{zr}, v{wi}
v_fma_f32 v{zr}, v{zr}, v{wr}, -v6
v_fma_f32 v{zi}, v{zi}, v{wr}, v7""")
    for i in range(8): a(f"v_cvt_pk_bf16_f32 v{W2+i}, v{Z+2*i}, v{Z+2*i+1}")
    for i in range(4): a(f"ds_write_b64 v{VPW}, {vr(W2+2*i,2)} offset:{(i//2)*4096+(i%2)*32}")
    a("s_waitcnt lgkmcnt(0)")
    arrive(a, C_AP)
    wait_cnt(a, C_AP, 4)
    if A2O & 4: dft64(rdP, 2, 1)
    else:
        for ri in range(2):
            for ch in range(2):
                for kap in range(2):
                    for aa in range(2):
                        a(f"ds_read_b64_tr_b16 {vr(yf(ri,ch,kap)+2*aa,2)}, v{VP} offset:{ri*4096+(32*kap+16*aa)*64+ch*32}")
        a("s_waitcnt lgkmcnt(0)")
        for kap in range(2):
            for ch in range(2):
                mfma16(a, z(0,ch), yf(0,ch,kap), cs(kap,0), None if kap == 0 else z(0,ch))
                mfma16(a, z(1,ch), yf(1,ch,kap), cs(kap,0), None if kap == 0 else z(1,ch))
        for kap in range(2):
            for ch in range(2):
                mfma16(a, z(0,ch), yf(1,ch,kap), cs(kap,2), z(0,ch))
                mfma16(a, z(1,ch), yf(0,ch,kap), cs(kap,1), z(1,ch))
    T6, T7, T11 = (83, 84, 85) if OPT.get("ho") else (6, 7, 11)
    if OPT.get("ho"): a.nop(4)
    else: a(f"""s_add_u32 s8, s12, {LTT}
v_lshlrev_b32 v6, 7, v14
v_lshl_add_u32 v6, v15, 3, v6
v_add_u32 v6, s8, v6
v_add_u32 v7, s8, v3
s_lshl_b32 s9, s{sK1}, 5
s_and_b32 s9, s9, 64
v_and_b32 v11, 7, v1
v_lshlrev_b32 v11, 4, v11
v_xor_b32 v11, s9, v11
v_lshrrev_b32 v12, 3, v1
v_lshl_add_u32 v11, v12, 15, v11""")
    a(f"""s_lshl_b32 s6, s{sG}, 12
s_lshl_b32 s7, s{sK1}, 7
s_add_u32 s6, s6, s7
s_lshl_b32 s7, s{sWL}, 19
s_add_u32 s6, s6, s7
s_add_u32 s6, s6, {WS_T}
s_add_u32 s7, s6, {8*32768}""")
    for i in range(8): a(f"v_cvt_pk_bf16_f32 v{W2+i}, v{Z+2*i}, v{Z+2*i+1}")
    for i in range(4): a(f"ds_write_b64 v{T6}, {vr(W2+2*i,2)} offset:{(i//2)*64+(i%2)*32}")
    for u in range(2): a(f"ds_read_b128 {vr(W2+8+4*u,4)}, v{T7} offset:{u*1024}")
    a("s_waitcnt lgkmcnt(0)")
    sign(a, W2+8, 8, 128)
    for u in range(2):
        a(f"buffer_store_dwordx4 {vr(W2+8+4*u,4)}, v{T11}, {WSD}, s{6+u} offen {OPT.get('tsm', 'sc1')}")
    if OPT.get("odum") == 2: odum()
    stamp(a, 12)
    arrive(a, C_A2D)
    if OPT.get("p3") is not None: setprio(a, OPT["p3"])
    wbk(2)
    TFR = [76, 92, 108, 160, 176, 192, 208, 240]
    UU, UBB, ACCF, NQF = [224, 76], [132, 92], 240, 124
    VT = 142 if OPT.get("ho") else 12
    TCA = 137 if OPT.get("ho") else 10
    if not OPT.get("ho"): a(f"""v_bfe_u32 v6, v1, 2, 2
v_lshl_add_u32 v6, v9, 3, v6
v_lshlrev_b32 v6, 7, v6
v_add_u32 v6, {LT}, v6
v_bfe_u32 v7, v1, 3, 1
v_xor_b32 v7, s68, v7
v_lshl_add_u32 v14, v7, 6, v6
v_xor_b32 v15, 64, v14
v_bfe_u32 v6, v1, 4, 1
v_lshlrev_b32 v6, 2, v6
v_and_b32 v7, 1, v1
v_lshl_add_u32 v6, v7, 1, v6
v_bfe_u32 v7, v1, 1, 1
v_add_u32 v11, v6, v7
v_lshl_add_u32 v{VT}, v11, 3, v14
v_lshl_add_u32 v{VT+1}, v11, 3, v15""")
    def jump(jb):
        if OPT.get("ho"):
            m = sum(1 << l for l in range(32) if 4 * ((l >> 4) & 1) + 2 * (l & 1) + ((l >> 1) & 1) == jb)
            a(f"s_mov_b32 exec_lo, {m:#x}\ns_mov_b32 exec_hi, {m:#x}")
            if OPT["ho"] == 2: a(f"v_lshl_add_u64 {vr(VT,2)}, {vr(VT,2)}, 0, s[10:11]")
            else: a(f"v_add_u32 v{VT}, 4040, v{VT}\nv_add_u32 v{VT+1}, 4040, v{VT+1}")
            a("s_mov_b64 exec, -1")
            return
        a(f"v_cmp_eq_u32 vcc, {jb}, v11\nv_cndmask_b32 v6, 0, v141, vcc\nv_add_u32 v{VT}, v{VT}, v6\nv_add_u32 v{VT+1}, v{VT+1}, v6")
    a(f"""{"" if OPT.get("ho") else "v_mov_b32 v141, 4040"}
s_lshl_b32 s6, s67, 15
s_lshl_b32 s7, s{sWL}, 13
s_add_u32 s6, s6, s7
s_add_u32 s6, s6, {WS_T}
s_add_u32 s7, s7, {LT}
{"" if OPT.get("ho") else "v_add_u32 v10, s7, v3"}
s_lshr_b32 s15, s{sJ}, 3
s_lshl_b32 s15, s15, 11""")
    setprio(a, OPT.get('mprio', 1))
    wait_cnt(a, C_A2D, 4)
    if OPT.get("e3", 0) == 1: gen_E3()
    wait_cnt(a, C_M2, 4)
    if AS == 5: a("s_branch a_fin")
    wait_cnt(a, C_G, 4)
    assert OPT.get("wop") == 1
    WS_ = OPT.get("wsp", 10)
    wo_part(WS_, 28, True)
    arrive(a, C_AX2)
    if AS == 6: a("s_branch a_fin")
    if OPT.get("tlw"): wait_cnt(a, C_YS, 4, sleep=4)
    stamp(a, 13)
    if AS == 12: a("s_waitcnt vmcnt(0)\ns_branch a_fin")
    for i in range(8):
        a(f"s_add_u32 s8, s15, {i*1024}\ns_and_b32 s8, s8, 8191\ns_add_u32 m0, s7, s8\ns_add_u32 s8, s8, s6")
        a(f"buffer_load_dwordx4 v3, {WSD}, s8 offen {OPT.get('tm', '')} lds")
    a("s_mov_b32 s14, 20000")
    a("s_waitcnt vmcnt(0)")
    a(f"a_tchk0:")
    for i in range(8): a(f"ds_read_b32 v{160+4*i}, v{TCA} offset:{i*1024}")
    a("s_waitcnt lgkmcnt(0)")
    chk8(160, 32, 128, 132)
    a(f"s_cbranch_vccnz a_tchk0_r")
    a(f"a_tchk0_d:")
    stamp(a, 14)
    if OPT.get("cnt"): a("s_sub_u32 s78, 20001, s14")
    if AS == 9: a("s_branch a_fin")
    arrive(a, C_AT)
    wait_cnt(a, C_AT, 4)
    if AS == 10: a("s_branch a_fin")
    def rdT(tau_, va, off):
        tf = TFR[tau_]
        if OPT.get("rdp") is not None: a(f"s_setprio {OPT['rdp']}")
        rdT_(tf, va, off)
        if OPT.get("rdp") is not None: a(f"s_setprio {OPT.get('mprio', 1)}")
        if OPT.get("rdw") is not None: a(f"s_waitcnt lgkmcnt({OPT['rdw']})")
    def rdT_(tf, va, off):
        for w_ in range(2):
            for tau in range(2):
                for aa in range(2):
                    a(f"ds_read_b64_tr_b16 {vr(tf+8*w_+4*tau+2*aa,2)}, v{va+w_} offset:{off+(16*tau+4*aa)*128}")
    def st1(tau_, u=None):
        tf = TFR[tau_]; u = UU[tau_ % 2] if u is None else u
        for tau in range(2): mfma(a, u, tf+4*tau, E3C+4*tau, None if tau == 0 else u)
        for tau in range(2): mfma(a, u, tf+8+4*tau, E3X+4*tau, u)
    def cvtU(tau_):
        u = UU[tau_ % 2]; ub = UBB[tau_ % 2]
        for r in range(8): a(f"v_cvt_pk_bf16_f32 v{ub+r}, v{u+2*r}, v{u+2*r+1}")
    def st2(tau_):
        ub = UBB[tau_ % 2]
        for s_ in range(2): mfma(a, ACCF, F+4*(2*tau_+s_), ub+4*s_, ACCF)
    if OPT.get("ho") == 2: a("s_mov_b32 s10, 4040\ns_mov_b32 s11, 4040")
    rdT(7, 14, 7 * 4096 + 56)
    for t_ in range(7):
        jump(7 - t_)
        rdT(t_, VT, t_ * 4104)
        if t_ == 0 and AS != 11:
            a("s_waitcnt lgkmcnt(8)")
            st1(7, UU[0])
    if AS == 11: a("s_branch a_fin")
    if not OPT.get("ho"):
        for r in range(4): a(f"v_mov_b32 v{NQF+r}, 0")
    a(f"s_mov_b32 exec_hi, 0\nv_cvt_pk_bf16_f32 v{NQF}, v{UU[0]}, 0\ns_mov_b64 exec, -1")
    a("s_waitcnt lgkmcnt(0)")
    arrive(a, C_ADONE)
    mfma(a, ACCF, F+4*14, NQF, None)
    stamp(a, 15)
    if AS == 7: a("s_branch a_fin")
    wbk(3)
    wait_cnt(a, C_ADONE, 4)
    wo_part(0, WS_, False)
    a("s_waitcnt vmcnt(0)")
    arrive(a, C_WO)
    if not OPT.get("cnt"): stamp(a, 6)
    OA, OD = (129, 130) if OPT.get("ho") else (10, 11)
    if not OPT.get("ho"): a(f"""s_mov_b32 s8, 114688
v_mul_lo_u32 v6, v8, s8
v_lshlrev_b32 v7, 5, v9
v_add_u32 v10, v6, v7
v_sub_u32 v11, v6, v7
v_add_u32 v11, 32, v11""")
    a(f"""s_mul_i32 s7, s67, 1792
s_mul_i32 s8, s{sG1}, 56
s_lshl_b32 s9, s68, 4
s_add_u32 s8, s8, s9
s_add_u32 s6, s7, s8
s_sub_u32 s7, s7, s8
s_add_u32 s7, s7, 882
s_sub_u32 s7, s7, 32""")
    wbk(0)
    if OPT.get("late", 1):
        wait_cnt(a, OPT.get("latec", C_R1), 4, sleep=OPT.get("lsl", 4))
    stamp(a, 9)
    setprio(a, OPT.get('tprio', 1))
    for t_ in range(8):
        if t_ < 7: st1(t_)
        else: a.nop(10)
        if t_ > 0:
            cvtU(t_ - 1)
            a.nop(1)
            st2(t_ - 1)
    X6, X7 = (131, 141) if OPT.get("ho") else (6, 7)
    if not OPT.get("ho"): a(f"s_add_u32 s8, s12, {LEX2}\nv_add_u32 v6, s8, v3\nv_xor_b32 v7, 2048, v6")
    else: a.nop(3)
    XC, YP, YM = 168, 176, 184
    a.nop(14)
    a("s_cmp_lg_u32 s68, 0\ns_cbranch_scc1 a_x1")
    for ri in range(2):
        if ri: a("a_x1:")
        keep, send = ACCF + 8 * ri, ACCF + 8 * (1 - ri)
        for t in range(2): a(f"ds_write_b128 v{X6}, {vr(send+4*t,4)} offset:{t*1024}")
        a("s_waitcnt lgkmcnt(0)")
        arrive(a, C_AU)
        a(f"v_mov_b32 v{XC+8}, v7")
        wait_cnt(a, C_AU, 4)
        for t in range(2): a(f"ds_read_b128 {vr(XC+4*t,4)}, v{X7} offset:{t*1024}")
        a("s_waitcnt lgkmcnt(0)")
        Cr, Sr = (keep, XC) if ri == 0 else (XC, keep)
        for r in range(8):
            a(f"v_add_f32 v{YP+r}, v{Cr+r}, v{Sr+r}")
            a(f"v_sub_f32 v{YM+r}, v{Cr+r}, v{Sr+r}")
        for i in range(4): a(f"v_cvt_pk_bf16_f32 v{XC+i}, v{YP+2*i}, v{YP+2*i+1}")
        for i in range(4): a(f"v_cvt_pk_bf16_f32 v{XC+4+i}, v{YM+7-2*i}, v{YM+6-2*i}")
        if OPT.get("osw") is not None: wait_cnt(a, OPT["osw"], 4)
        om = OPT.get('amod', OPT.get('omod', ''))
        OS = f"s[{SRD_OUT}:{SRD_OUT+3}]"
        if ri == 0:
            a(f"buffer_store_dwordx4 {vr(XC,4)}, v{OA}, {OS}, s6 offen {om}")
            a(f"s_cmp_lg_u32 s{sG1}, 0\ns_cbranch_scc1 a_o1")
            a("s_mov_b32 exec_hi, 0")
            a(f"buffer_store_dwordx3 {vr(XC+4,3)}, v{OD}, {OS}, s7 offen {om}")
            a(f"buffer_store_short v{XC+7}, v{OD}, {OS}, s7 offen offset:12 {om}")
            a("s_mov_b32 exec_lo, 0\ns_mov_b32 exec_hi, -1")
            a("a_o1:")
            a(f"buffer_store_dwordx4 {vr(XC+4,4)}, v{OD}, {OS}, s7 offen {om}")
            a("s_mov_b64 exec, -1")
            a("s_branch a_x2")
        else:
            a("s_mov_b32 exec_hi, 0")
            a(f"buffer_store_dwordx4 {vr(XC,4)}, v{OA}, {OS}, s6 offen {om}")
            a(f"buffer_store_dwordx4 {vr(XC+4,4)}, v{OD}, {OS}, s7 offen {om}")
            a("s_mov_b32 exec_lo, 0\ns_mov_b32 exec_hi, -1")
            a(f"buffer_store_dwordx2 {vr(XC,2)}, v{OA}, {OS}, s6 offen {om}")
            a(f"buffer_store_dwordx2 {vr(XC+6,2)}, v{OD}, {OS}, s7 offen offset:8 {om}")
            a(f"s_cmp_lg_u32 s{sG1}, 7\ns_cbranch_scc1 a_o2")
            a(f"buffer_store_short v{XC+2}, v{OA}, {OS}, s6 offen offset:8 {om}")
            a("a_o2:")
            a("s_mov_b64 exec, -1")
    a("a_x2:")
    if not OPT.get("cnt"): stamp(a, 2)
    a("s_branch a_fin")
    a(f"a_tchk0_r:")
    a(f"s_sub_u32 s14, s14, 1\ns_cmp_le_i32 s14, 0\ns_cbranch_scc1 a_tchk0_d")
    a(f"s_sleep {OPT.get('psleep', 4)}")
    for i in range(8):
        a(f"s_add_u32 m0, s7, {i*1024}\ns_add_u32 s8, s6, {i*1024}")
        a(f"buffer_load_dwordx4 v3, {WSD}, s8 offen sc1 lds")
    a("s_waitcnt vmcnt(0)")
    a(f"s_branch a_tchk0")
    a("a_fin:")
    stamp_out(a, 16, "A")
    a("k_end:\ns_endpgm")
    return a.text()

def build(path, stamps=False, opt=None):
    global STAMPS, OPT
    STAMPS = stamps; OPT = opt or {}; G.uid = 0; G.plo = None; G.inA = False
    code = build_kernel()
    hdr = f"; @launch kernel={NAME} grid=(256,1,1) block=(512,1,1) lds={LDS_SIZE}\n"
    s = hdr + '.amdgcn_target "amdgcn-amd-amdhsa--gfx950"\n.text\n' + code + '.section .rodata,"a"\n' + kd(NAME, 256, 96)
    open(path, "w").write(s)

S2 = {-1: "x0 w0 e x1 w1", 0: "x2 w2 a a", 1: "x3 w3 a a", 2: "x4 w4 a a", 3: "x5 w5 a F", 4: "x6 w6", 5: "q"}
D = {"kvp": 2, "gst": (2, 4, 6, 8), "omod": "nt", "amod": "", "thr": 4, "e3": 0, "cs": 0, "b3m": 1, "om1": "sc1", "wop": 1, "mprio": 3, "sch": S2, "ysw": (C_W0, 4), "ylw": C_G, "tlw": 0,
     "b0prio": 3, "prio": 0, "gprio": 0, "wpos": 2, "latec": C_R2}
if __name__ == "__main__":
    build("f21.s", False, D)
    build("f21_ff.s", False, {"forcefail": 1, **D})
    build("f21_rt.s", "rt", D)
    build("f21_na_rt.s", "rt", {**D, "noA": 1})
    build("v1.s", False, {**D, "osleep": 0})
    build("v2.s", False, {**D, "osleep": 6})
```

```python
import fused22 as f
D = {**f.D, "ns": 1, "ag": 1, "tlw": None, "ags": (None, None, 6, None), "ho": 2, "rdp": 0, "thr": 3, "thr2": 20, "cax": 1, "a2o": 6, "omod": ""}
M = sum(1 << h for h in (2, 4, 6, 9, 11, 13))
M2 = 0xffff & ~sum(1 << h for h in (0, 1, 14, 15, 3, 7))
V = [{}, {"ags": (0, None, 6, None), "agk": M}, {"ags": (1, None, 6, None), "agk": M}, {"ags": (2, None, 6, None), "agk": M}, {"ags": (0, None, 6, None), "agk": M2}, {"ags": (2, None, 6, None), "agk": M2},
     {"ags": (3, None, 7, None), "agk": M}, {"ags": (0, None, 6, None), "agk": 0xffff & ~M}]
for i, v in enumerate(V): f.build(f"w{i}.s", False, {**D, **v})
f.build(f"v1_rt.s", "rt", {**D, **V[2], "qst": 1})
```

```python
import numpy as np, sys
from common import Asm, vr, sr, bf16_bits, f32_bits, srd, srd_table, kd, mfma, MFMA
from common import S_AX, S_WR, S_WI, S_BX, S_WQKV, S_WO, S_OUT, S_DBG, S_WS

QSCALE = (28 ** -0.5) * np.log2(np.e)
NAME = "concat_heads__spectral_gfnet__mha_block__prompt_kernel"

WS_K, WS_V, WS_O, WS_Y, WS_T = 0x000000, 0x200000, 0x400000, 0x600000, 0x800000
WS_FG, WS_F2, WS_F3, WS_EP = 0xA00000, 0xA10000, 0xA20000, 0xA80000
FG_F1, FG_F2 = 512, 1024
WS_FY, WS_FT = 0xA10000, 0xA20000
C_XF = 28
C_EP, C_TF = 27, 26
C_WF = 32
sG1 = 91
WS_STAMP = 0xF00000
WS_L = 0x1000000
WS_SIZE = 0x2000000
LX, LW, LWQ, LQ = 0, 32768, 90112, 0
LXA, LEX = 118784, 118784
LE = 122880
LKV = 16384
WS_JUNK = 0x1800000
LWO = 0
LY, LP = 135168, 118784
LT = 0
LYT, LWW, LTT, LEX2 = 126976, 147456, 135168, 151552
LR = 101376
LO = 101376
LMX = 101376
LC = 163840 - 256
LDS_SIZE = 163840
C_AX, C_AEX, C_AT, C_AY, C_AP, C_A2D, C_Q, C_AU, C_ADONE, C_R1, C_R2, C_O, C_WO, C_FAIL, C_M1, C_M2, C_KV, C_AX2, C_G, C_W0, C_W1, C_W2, C_W3, C_YS, C_W4 = range(25)

M16 = "v_mfma_f32_16x16x32_bf16"
def mfma16(a, d, A, B, c=None):
    cs = "0" if c is None else vr(c, 4)
    a(f"{M16} {vr(d,4)}, {vr(A,4)}, {vr(B,4)}, {cs}")

sH, sQB, sW, sTAG, sWL = 3, 4, 5, 34, 35
SRD_A, SRD_B, SRD_WS, SRD_OUT, SRD_C, SRD_TAB = 36, 40, 44, 48, 52, 56
sX, sJ, sN2, sDQ = 60, 61, 62, 63
sPASS = 64
sFAST, sXCC, sFG, sG, sJ4 = 86, 87, 88, 89, 90
sHP = 86
sSIG, sMSK = 92, 93
sPM = 91
KSIG = 0x6A39E5C1
WSD = f"s[{SRD_WS}:{SRD_WS+3}]"
STAMPS = False
OPT = {}

class G:
    uid = 0
    plo = None
    inA = False
def lab(p):
    G.uid += 1
    return f"{p}_{G.uid}"

def arrive(a, c):
    a(f"s_mov_b64 exec, 1")
    a(f"ds_add_u32 v4, v5 offset:{4*c}")
    a(f"s_mov_b64 exec, -1")

def wait_cnt(a, c, target, starget=None, sleep=1):
    l = lab("wc")
    a("s_mov_b32 s69, 400000")
    if G.plo is not None: a("s_setprio 0")
    a(f"{l}:")
    a(f"ds_read_b32 v6, v4 offset:{4*c}")
    a("s_waitcnt lgkmcnt(0)")
    a("v_readfirstlane_b32 s8, v6")
    a("s_sub_u32 s69, s69, 1")
    a(f"s_cmp_ge_u32 s8, {target if starget is None else 's'+str(starget)}")
    a(f"s_cbranch_scc1 {l}_d")
    a(f"s_sleep {sleep}")
    a("s_cmp_lg_u32 s69, 0")
    a(f"s_cbranch_scc1 {l}")
    a(f"{l}_d:")
    if G.plo is not None: a(f"s_setprio {G.plo}")

def setprio(a, p):
    a(f"s_setprio {p}")
    if OPT.get("plo"): G.plo = p if p else None

def poll(a, vaddr, soff, mask, width=1, vt=8, sleep=4):
    l = lab("pl")
    a(f"s_mov_b32 s9, 20000")
    if mask != -1: a(f"s_mov_b32 exec_lo, {mask & 0xffffffff:#x}\ns_mov_b32 exec_hi, {mask >> 32:#x}")
    a(f"{l}:")
    sfx = {1: "", 2: "x2", 4: "x4"}[width]
    a(f"buffer_load_dword{sfx} {vr(vt,width)}, v{vaddr}, {WSD}, {soff} offen sc1")
    a("s_waitcnt vmcnt(0)")
    if width == 1:
        a(f"v_cmp_ne_u32 vcc, s{sTAG}, v{vt}")
    else:
        for i in range(width): a(f"v_xor_b32 v{vt+i}, s{sTAG}, v{vt+i}")
        if width == 2: a(f"v_or_b32 v{vt}, v{vt}, v{vt+1}")
        else: a(f"v_or3_b32 v{vt}, v{vt}, v{vt+1}, v{vt+2}\nv_or_b32 v{vt}, v{vt}, v{vt+3}")
        a(f"v_cmp_ne_u32 vcc, 0, v{vt}")
    a(f"s_cbranch_vccz {l}_d")
    a(f"s_sleep {sleep}")
    a("s_sub_u32 s9, s9, 1")
    a("s_cmp_lg_u32 s9, 0")
    a(f"s_cbranch_scc1 {l}")
    a(f"{l}_d:")
    if mask != -1: a("s_mov_b64 exec, -1")

def both(a, f):
    l = lab("bm")
    a(f"s_cmp_lg_u32 s{sFAST}, 0\ns_cbranch_scc1 {l}_f")
    f("sc1")
    a(f"s_branch {l}_d")
    a(f"{l}_f:")
    f("")
    a(f"{l}_d:")

def flag_store(a, soff, local=False):
    a("s_mov_b64 exec, 1")
    a(f"v_mov_b32 v6, s{sTAG}\nv_mov_b32 v7, 0")
    f = lambda m: a(f"buffer_store_dword v6, v7, {WSD}, s{soff} offen {m}")
    if local: both(a, f)
    else: f("sc1")
    a("s_mov_b64 exec, -1")

def gbar_wait(a, k, fbase, cnt, vt):
    l = lab("gb")
    a(f"s_cmp_lg_u32 s{sWL}, 0\ns_cbranch_scc1 {l}_w")
    a(f"s_add_u32 s10, s{sFG}, {FG_F2 + 128*k}")
    a(f"s_cmp_lg_u32 s{sJ}, 0\ns_cbranch_scc1 {l}_m")
    a(f"s_mov_b32 s12, {fbase}")
    poll(a, 3, "s12", -1, width=4, vt=vt, sleep=OPT.get("lsleep", 2))
    flag_store(a, 10, local=True)
    a(f"s_branch {l}_a")
    a(f"{l}_m:")
    a(f"s_cmp_lg_u32 s{sFAST}, 0\ns_cbranch_scc1 {l}_f")
    a("v_mov_b32 v7, 0")
    poll(a, 7, "s10", 1, width=1, vt=vt, sleep=8)
    a(f"s_branch {l}_a")
    a(f"{l}_f:")
    a("s_mov_b32 s9, 40000")
    a(f"{l}_fl:")
    a(f"s_buffer_load_dword s8, {WSD}, s10 glc")
    a("s_waitcnt lgkmcnt(0)")
    a(f"s_cmp_eq_u32 s8, s{sTAG}\ns_cbranch_scc1 {l}_a")
    a(f"s_sleep {OPT.get('psleep', 2)}")
    a(f"s_sub_u32 s9, s9, 1\ns_cmp_lg_u32 s9, 0\ns_cbranch_scc1 {l}_fl")
    a(f"{l}_a:")
    arrive(a, cnt)
    a(f"{l}_w:")
    wait_cnt(a, cnt, 1)

def set_tag(a, keep=None):
    a(f"v_readfirstlane_b32 s{sTAG}, v2")
    a(f"s_mov_b32 s{sMSK}, 0x00030003")
    a("s_nop 1")
    a(f"s_add_u32 s{sTAG}, s{sTAG}, 1")
    if keep is not None: a(f"s_mov_b32 s{keep}, s{sTAG}")
    a(f"s_bitcmp1_b32 s{sTAG}, 0\ns_cselect_b32 s{sSIG}, {KSIG:#x}, {KSIG ^ 0xffffffff:#x}") if False else None
    a(f"s_bfe_i32 s{sSIG}, s{sTAG}, 0x10000")
    a(f"s_xor_b32 s{sSIG}, s{sSIG}, {KSIG:#x}")
    a(f"s_mul_i32 s{sTAG}, s{sTAG}, 0x9E3779B1")

def sig_regs(a, d, hi=False):
    if hi: a(f"v_lshrrev_b32 v{d}, 4, v1")
    else: a(f"v_and_b32 v{d}, 3, v1")
    a(f"v_lshlrev_b32 v{d}, 2, v{d}")
    a(f"v_lshrrev_b32 v{d}, v{d}, s{sSIG}")

def sign(a, r0, n, sg):
    for r in range(0, n, 4): a(f"v_bfi_b32 v{r0+r}, s{sMSK}, v{sg}, v{r0+r}")

def check(a, r0, n, sg, acc, first=True):
    for r in range(0, n, 2):
        a(f"v_xor_b32 v{acc+1}, v{r0+r}, v{sg + r % 4}")
        a(f"v_xor_b32 v{acc+2}, v{r0+r+1}, v{sg + (r+1) % 4}")
        if first and r == 0: a(f"v_or_b32 v{acc}, v{acc+1}, v{acc+2}")
        else: a(f"v_or3_b32 v{acc}, v{acc}, v{acc+1}, v{acc+2}")

def fx_load(a, vd, va):
    a(f"v_and_b32 v{va}, 31, v1\nv_lshlrev_b32 v{va}, 2, v{va}")
    a(f"buffer_load_dword v{vd}, v{va}, {WSD}, s{sFG} offen sc1")

def fx_eval(a, vd, va):
    l = lab("fx")
    a("s_mov_b32 s9, 20000")
    a(f"{l}:")
    a(f"v_subrev_u32 v{vd}, s{sTAG}, v{vd}")
    a(f"v_cmp_lt_u32 vcc, 14, v{vd}")
    a(f"s_cbranch_vccz {l}_d")
    a("s_sleep 4")
    a(f"buffer_load_dword v{vd}, v{va}, {WSD}, s{sFG} offen sc1")
    a("s_waitcnt vmcnt(0)")
    a("s_sub_u32 s9, s9, 1")
    a("s_cmp_lg_u32 s9, 0")
    a(f"s_cbranch_scc1 {l}")
    a(f"{l}_d:")
    a(f"v_cmp_ne_u32 vcc, s{sXCC}, v{vd}")
    a("s_nop 0")
    a("s_cmp_eq_u64 vcc, 0")
    a(f"s_cselect_b32 s{sFAST}, {0 if OPT.get('slow') else 1}, 0")

def stamp(a, idx, force=False):
    if not STAMPS: return
    if STAMPS == "amp" and not force and not (idx == OPT["amp"][1] and not G.inA): return
    a(f"s_memrealtime s[94:95]" if STAMPS in ("rt", "dbg", "amp") else f"s_memtime s[94:95]")
    a("s_waitcnt lgkmcnt(0)")
    a(f"s_mov_b32 s{70+idx}, s94")

def stamp_out(a, n, who="B"):
    if not STAMPS: return
    a("s_waitcnt vmcnt(0) lgkmcnt(0)")
    if STAMPS == "amp":
        w, j = OPT["amp"]
        if who != w: return
        l = lab("amp")
        stamp(a, 6, True)
        a(f"s_cmp_lg_u32 s{sWL}, 0\ns_cbranch_scc1 {l}_d")
        a(f"s_sub_u32 s8, s{70+j}, s70\ns_min_u32 s8, s8, 10000\ns_mul_i32 s8, s8, 10\ns_add_u32 s8, s8, s76\ns_mov_b32 s9, 100000")
        a(f"{l}:")
        a("s_sleep 8\ns_memrealtime s[94:95]\ns_waitcnt lgkmcnt(0)")
        a(f"s_sub_u32 s10, s94, s8\ns_cmp_ge_i32 s10, 0\ns_cbranch_scc1 {l}_d")
        a(f"s_sub_u32 s9, s9, 1\ns_cmp_lg_u32 s9, 0\ns_cbranch_scc1 {l}")
        a(f"{l}_d:")
        return
    if STAMPS == "dbg":
        if who == "A": stamp(a, 6)
        srd(a, SRD_C, S_DBG, 256)
        a("v_mov_b32 v7, 0\ns_mov_b64 exec, 1")
        a("s_not_b32 s8, s70\nv_mov_b32 v6, s8")
        a(f"buffer_atomic_umax v6, v7, s[{SRD_C}:{SRD_C+3}], 0 offen sc1")
        M = {"B": {1: 0, 2: 11, 3: 1, 4: 3, 5: 4, 6: 8, 7: 10}, "A": {8: 8, 9: 3, 10: 10, 11: 14, 12: 15, 13: 9, 14: 6}}[who]
        for k, v in M.items():
            a(f"v_mov_b32 v{8+k}, s{70+v}")
            a(f"buffer_atomic_umax v{8+k}, v7, s[{SRD_C}:{SRD_C+3}], 0 offen offset:{4*k} sc1")
        a("s_mov_b64 exec, -1")
        return
    a(f"s_lshl_b32 s10, s2, 9\ns_lshl_b32 s11, s{sW}, 6\ns_add_u32 s10, s10, s11\ns_add_u32 s10, s10, {WS_STAMP}")
    a("v_mov_b32 v7, 0\ns_mov_b64 exec, 1")
    for i in range(n):
        a(f"v_mov_b32 v6, s{70+i}")
        a(f"buffer_store_dword v6, v7, {WSD}, s10 offen offset:{4*i}")
    a("s_mov_b64 exec, -1")

def gen_E(a, lanev, hhv, n2s, mode, outs, tmp):
    t0, t1, t2, t3, t4, t5 = range(tmp, tmp + 6)
    if mode == 'a1':
        a(f"v_cvt_f32_u32 v{t0}, v{lanev}")
        a(f"v_mul_f32 v{t0}, {f32_bits(1/2048):#x}, v{t0}")
        a(f"v_lshlrev_b32 v{t1}, 8, v{hhv}")
        a(f"v_add_u32 v{t1}, s{n2s}, v{t1}")
        a(f"v_cvt_f32_u32 v{t1}, v{t1}")
        offs = lambda t, j: 64 * (16 * t + 8 * (j // 4) + j % 4)
    else:
        a(f"v_lshlrev_b32 v{t0}, 6, v{lanev}")
        a(f"v_add_u32 v{t0}, s{n2s}, v{t0}")
        a(f"v_cvt_f32_u32 v{t0}, v{t0}")
        a(f"v_mul_f32 v{t0}, {f32_bits(1/2048):#x}, v{t0}")
        a(f"v_lshlrev_b32 v{t1}, 3, v{hhv}")
        a(f"v_cvt_f32_u32 v{t1}, v{t1}")
        offs = lambda t, j: 16 * t + j
    a(f"v_mul_f32 v{t1}, v{t1}, v{t0}")
    for t in range(2):
        for jp in range(4):
            for e in range(2):
                a(f"v_fmamk_f32 v{t2+e}, v{t0}, {f32_bits(float(offs(t, 2*jp+e))):#x}, v{t1}")
            a(f"v_cos_f32 v{t4}, v{t2}")
            a(f"v_cos_f32 v{t5}, v{t3}")
            a(f"v_sin_f32 v{t2}, v{t2}")
            a(f"v_sin_f32 v{t3}, v{t3}")
            a(f"v_cvt_pk_bf16_f32 v{outs['C']+4*t+jp}, v{t4}, v{t5}")
            if 'S' in outs:
                a(f"v_cvt_pk_bf16_f32 v{outs['S']+4*t+jp}, v{t2}, v{t3}")
                a(f"v_xor_b32 v{outs['NS']+4*t+jp}, 0x80008000, v{outs['S']+4*t+jp}")
            else:
                a(f"v_cvt_pk_bf16_f32 v{outs['Sx']+4*t+jp}, v{t2}, v{t3}")
                a(f"v_xor_b32 v{outs['Sx']+4*t+jp}, s13, v{outs['Sx']+4*t+jp}")


def sg_regs(a, d):
    sig_regs(a, d)
    a("s_mov_b32 exec_lo, 0x10000000\ns_mov_b32 exec_hi, 0x10000000")
    a(f"v_mov_b32 v{d}, 0")
    a("s_mov_b64 exec, -1")

def build_kernel():
    a = Asm()
    a(f""".globl {NAME}
.p2align 8
.type {NAME},@function
{NAME}:""")
    a("s_cmp_ge_u32 s2, 256\ns_cbranch_scc1 k_end")
    a("v_lshrrev_b32 v2, 6, v0")
    a("v_and_b32 v1, 63, v0")
    a(f"v_readfirstlane_b32 s{sW}, v2")
    a(f"v_mov_b32 v4, {LC}\nv_mov_b32 v5, 1")
    a(f"s_cmp_ge_u32 s{sW}, 4\ns_cbranch_scc1 a_pre")
    def kload():
        a("s_load_dwordx16 s[16:31], s[0:1], 0")
        a("s_load_dwordx2 s[32:33], s[0:1], 64")
    def common():
        if STAMPS:
            for i in range(16): a(f"s_mov_b32 s{70+i}, 0")
            a("s_memrealtime s[92:93]")
        a(f"""s_and_b32 s{sX}, s2, 7
s_lshr_b32 s{sJ}, s2, 3
s_and_b32 s15, s{sJ}, 1
s_and_b32 s{sJ4}, s{sJ}, 3
s_lshr_b32 s{sH}, s{sX}, 1
s_lshl_b32 s{sH}, s{sH}, 2
s_add_u32 s{sH}, s{sH}, s{sJ4}
s_lshr_b32 s{sHP}, s{sH}, 1
s_and_b32 s{sQB}, s{sX}, 1
s_lshl_b32 s{sQB}, s{sQB}, 3
s_lshr_b32 s6, s{sJ}, 2
s_add_u32 s{sQB}, s{sQB}, s6""")
        a("v_lshlrev_b32 v3, 4, v1")
        a(f"s_and_b32 s{sWL}, s{sW}, 3")
        a(f"""s_lshl_b32 s11, s{sWL}, 12
s_lshl_b32 s12, s{sWL}, 11
s_lshl_b32 s9, s{sX}, 2
s_add_u32 s{sN2}, s9, s{sJ4}
v_and_b32 v8, 31, v1
v_lshrrev_b32 v9, 5, v1""")
    kload()
    a("s_branch b_go")
    a("a_pre:")
    a(f"s_cmp_lg_u32 s{sW}, 4\ns_cbranch_scc1 k_nz")
    a(f"v_lshl_add_u32 v6, v1, 2, v4\nv_mov_b32 v7, 0")
    a(f"s_mov_b64 exec, {-1}\nds_write_b32 v6, v7\ns_mov_b64 exec, -1")
    a(f"s_lshr_b32 s{sJ}, s2, 3")
    if OPT.get("cpf", 1):
        srd_table(a, SRD_TAB, NAME, "k_end-" + NAME)
        a(f"s_and_b32 s8, s{sJ}, 7\ns_lshl_b32 s8, s8, 13\nv_lshlrev_b32 v6, 7, v1")
        a(f"buffer_load_dword v245, v6, s[{SRD_TAB}:{SRD_TAB+3}], s8 offen")
    a("s_waitcnt lgkmcnt(0)")
    a("k_nz:")
    if not OPT.get("pro"): a("s_barrier")
    kload()
    a("s_branch a_wave")
    a("b_go:")
    if OPT.get("b0prio"): a(f"s_setprio {OPT['b0prio']}")
    common()

    a(f"""s_lshl_b32 s6, s{sJ4}, 1
s_add_u32 s14, s{sQB}, s6
s_mul_i32 s6, s14, 37
s_lshr_b32 s6, s6, 8
s_mul_i32 s6, s6, 7
s_sub_u32 s14, s14, s6""")
    XO, WOF, VWQ, VXA = 10, 14, 15, 16
    a("""v_lshrrev_b32 v6, 3, v1
v_and_b32 v100, 7, v1
v_lshrrev_b32 v101, 1, v6
v_xor_b32 v101, v101, v100
v_mul_u32_u24 v102, 896, v6""")
    a(f"""v_lshl_add_u32 v{XO}, v101, 4, v102
v_mul_u32_u24 v103, 57344, v6
v_lshl_add_u32 v{VXA}, v101, 4, v103
s_and_b32 s8, s{sWL}, 1
s_lshl_b32 s8, s8, 6
v_xor_b32 v{VXA}, s8, v{VXA}
v_xor_b32 v101, 4, v101
v_lshl_add_u32 v{XO+1}, v101, 4, v102
v_add_u32 v{XO+1}, {8*896}, v{XO+1}
v_add_u32 v{XO+2}, {16*896}, v{XO}
v_add_u32 v{XO+3}, {16*896}, v{XO+1}""")
    a(f"""v_bfe_u32 v101, v1, 4, 1
v_lshlrev_b32 v101, 2, v101
v_xor_b32 v101, v101, v100
v_min_u32 v101, 6, v101
v_mul_u32_u24 v102, 2688, v6
v_lshl_add_u32 v{WOF}, v101, 4, v102
v_lshrrev_b32 v6, 2, v1
v_mul_u32_u24 v6, 2688, v6
v_and_b32 v101, 3, v1
v_lshl_add_u32 v{VWQ}, v101, 4, v6""")
    a(f"""s_lshl_b32 s6, s{sQB}, 7
s_lshl_b32 s7, s{sWL}, 5
s_add_u32 s6, s6, s7
s_mul_i32 s6, s6, 896
s_mul_i32 s7, s{sWL}, {16*2688}
s_mul_i32 s8, s15, 896
s_add_u32 s7, s7, s8
s_mul_i32 s8, s{sHP}, 112
s_add_u32 s7, s7, s8
s_add_u32 s7, s7, 896
s_mul_i32 s66, s{sWL}, {16*2688}
s_mul_i32 s8, s{sH}, 56
s_add_u32 s66, s66, s8
s_lshl_b32 s65, s{sWL}, 10
s_lshl_b32 s68, s{sX}, 3
s_and_b32 s8, s{sJ}, 7
s_add_u32 s68, s68, s8
s_mul_i32 s68, s68, 896
s_mul_i32 s8, s{sWL}, {8*57344}
s_add_u32 s68, s68, s8
v_mov_b32 v7, 0""")
    a(f"s_lshr_b32 s13, s{sJ}, 3\ns_lshl_b32 s13, s13, 1")
    srd_table(a, SRD_TAB, NAME, 64)
    VWA = 18
    a("v_mov_b32 v19, 0")
    a(f"""v_lshrrev_b32 v6, 2, v1
s_lshl_b32 s8, s{sWL}, 4
v_add_u32 v6, s8, v6
v_lshlrev_b32 v6, 5, v6
v_add_u32 v6, s{sN2}, v6
v_mul_u32_u24 v6, 450, v6
v_and_b32 v{VWA}, 3, v1
v_lshlrev_b32 v{VWA}, 4, v{VWA}
s_lshr_b32 s9, s{sJ}, 2
s_mul_i32 s9, s9, 56
v_add3_u32 v{VWA}, v6, v{VWA}, s9""")
    a("s_barrier")
    a("s_waitcnt lgkmcnt(0)")
    srd(a, SRD_C, S_AX, 2048 * 896)
    srd(a, SRD_WS, S_WS, WS_SIZE)
    if STAMPS: a("s_mov_b32 s70, s92")
    def xa():
        a(f"s_lshl_b32 s10, s89, 7\ns_add_u32 s10, s10, s68\ns_lshl_b32 s9, s89, 12\ns_add_u32 s9, s9, s65")
        a(f"s_add_u32 m0, s9, {LXA}\ns_add_u32 s89, s89, 1")
        a(f"buffer_load_dwordx4 v{VXA}, s[{SRD_C}:{SRD_C+3}], s10 offen lds")
        a("s_cmp_eq_u32 s89, 7\ns_cselect_b32 s89, 0, s89")
        Q1.append("xa")
    def wa():
        for k, ptr in enumerate((S_WR, S_WI)):
            srd(a, SRD_OUT, ptr, 2048 * 450 + 2)
            a(f"s_add_u32 m0, s12, {LWW + k*1024}\ns_nop 0")
            a(f"buffer_load_dwordx4 v{VWA}, s[{SRD_OUT}:{SRD_OUT+3}], 0 offen lds")
            Q1.append("wa")
    def tlbw():
        sh = OPT.get("tsh", 16)
        a(f"""s_cmp_eq_u32 s{sWL}, 0
s_cselect_b32 s{SRD_OUT}, s{S_WR}, s{S_WI}
s_cselect_b32 s{SRD_OUT+1}, s{S_WR+1}, s{S_WI+1}
s_mov_b32 s{SRD_OUT+2}, {2048*450}
s_mov_b32 s{SRD_OUT+3}, 0x20000
s_cmp_eq_u32 s{sWL}, 2
s_cselect_b32 s{SRD_OUT}, s{S_OUT}, s{SRD_OUT}
s_cselect_b32 s{SRD_OUT+1}, s{S_OUT+1}, s{SRD_OUT+1}
s_cselect_b32 s{SRD_OUT+2}, {2048*1792}, s{SRD_OUT+2}
s_cmp_eq_u32 s{sWL}, 3
s_cselect_b32 s{SRD_OUT}, s{S_WS}, s{SRD_OUT}
s_cselect_b32 s{SRD_OUT+1}, s{S_WS+1}, s{SRD_OUT+1}
s_cselect_b32 s{SRD_OUT+2}, {WS_SIZE}, s{SRD_OUT+2}
s_cselect_b32 s8, 19, {sh}
v_lshlrev_b32 v19, s8, v1""")
        a(f"buffer_load_dword v31, v19, s[{SRD_OUT}:{SRD_OUT+3}], 0 offen")
        Q1.append("tw")
    def wpf():
        a(f"""s_bitcmp1_b32 s{sWL}, 0
s_cselect_b32 s{SRD_OUT}, s{S_WI}, s{S_WR}
s_cselect_b32 s{SRD_OUT+1}, s{S_WI+1}, s{S_WR+1}
s_mov_b32 s{SRD_OUT+2}, {2048*450}
s_mov_b32 s{SRD_OUT+3}, 0x20000
s_lshl_b32 s9, s{sJ}, 1
s_lshr_b32 s10, s{sWL}, 1
s_add_u32 s9, s9, s10
s_lshl_b32 s9, s9, 3
s_add_u32 s9, s9, s{sX}
s_mul_i32 s9, s9, 1800
v_mul_u32_u24 v19, 120, v1
s_mov_b64 exec, 0xffff""")
        a(f"buffer_load_ushort v31, v19, s[{SRD_OUT}:{SRD_OUT+3}], s9 offen")
        a("s_mov_b64 exec, -1")
        srd(a, SRD_OUT, S_OUT, 2048 * 1792)
        Q1.append("vp")
    def xflag():
        a(f"s_mov_b32 m0, {LC + 4*C_EP}\ns_mov_b32 s9, {WS_EP}\ns_mov_b64 exec, 1")
        a(f"buffer_load_dword v7, {WSD}, s9 offen sc1 lds")
        Q1.append("ea")
        a(f"s_lshl_b32 s9, s{sWL}, 2\ns_add_u32 m0, s9, {LC + 4*C_XF}\ns_nop 0")
        a(f"buffer_load_dword v7, s[{SRD_TAB}:{SRD_TAB+3}], 0 offen lds")
        a("s_mov_b64 exec, -1")
        Q1.append("xf")
    def wopf():
        l = lab("wp")
        if OPT.get("b3m"):
            srd(a, SRD_OUT, S_WO, 448 * 896)
            a(f"v_lshlrev_b32 v19, 7, v1\ns_mul_i32 s9, s{sJ}, 12544\ns_mul_i32 s8, s{sWL}, 3200\ns_add_u32 s9, s9, s8\ns_mov_b64 exec, 0x1ffffff")
            a(f"buffer_load_dword v31, v19, s[{SRD_OUT}:{SRD_OUT+3}], s9 offen")
            a("s_mov_b64 exec, -1")
            Q1.append("wp")
            return
        a(f"s_cmp_lg_u32 s{sWL}, 3\ns_cbranch_scc1 {l}")
        srd(a, SRD_OUT, S_WO, 448 * 896)
        a(f"""v_lshrrev_b32 v19, 2, v1
v_mul_u32_u24 v19, 896, v19
v_and_b32 v31, 3, v1
v_mul_u32_u24 v31, 72, v31
v_add_u32 v19, v19, v31
s_mul_i32 s9, s{sJ}, {14*896}
s_lshr_b32 s8, s{sH}, 2
s_mul_i32 s8, s8, 224
s_add_u32 s9, s9, s8
s_mov_b32 exec_hi, 0xffffff""")
        a(f"buffer_load_dword v31, v19, s[{SRD_OUT}:{SRD_OUT+3}], s9 offen")
        a(f"s_mov_b64 exec, -1\ns_branch {l}_d")
        a(f"{l}:")
        a(f"s_mov_b64 exec, 1\nbuffer_load_dword v31, v7, s[{SRD_TAB}:{SRD_TAB+3}], 0 offen\ns_mov_b64 exec, -1")
        a(f"{l}_d:")
        Q1.append("wp")
    a("s_mov_b32 s89, s13")
    Q1 = []
    def vw1(tag):
        a(f"s_waitcnt vmcnt({len(Q1) - 1 - max(i for i, t in enumerate(Q1) if t == tag)})")
    srd(a, SRD_A, S_BX, 2048 * 896)
    srd(a, SRD_B, S_WQKV, 448 * 2688)
    XSL = [0, 1, 0, 1, 0, 1, 0]
    def sig_c(c):
        if c == 0: a("s_mov_b32 s13, s14")
        else: a(f"s_add_u32 s13, s14, {c}\ns_sub_u32 s10, s13, 7\ns_cmp_ge_u32 s13, 7\ns_cselect_b32 s13, s10, s13")
    def dx(c):
        sig_c(c)
        a("s_lshl_b32 s10, s13, 7\ns_add_u32 s10, s10, s6")
        for k in range(4):
            if XSL[c] == 2: a(f"s_add_u32 m0, s12, {LW + (4+k//2)*8192 + (k%2)*1024}\ns_nop 0")
            else: a(f"s_add_u32 m0, s11, {LX + XSL[c]*16384 + k*1024}\ns_nop 0")
            a(f"buffer_load_dwordx4 v{XO+k}, s[{SRD_A}:{SRD_A+3}], s10 offen lds")
        Q1.extend([f"x{c}"] * 4)
    def dw(c):
        sig_c(c)
        a(f"s_mul_i32 s13, s13, {64*2688}\ns_add_u32 s13, s13, s7")
        a(f"s_add_u32 m0, s12, {LW + c*8192}\ns_add_u32 s10, s13, {8*2688}")
        a(f"buffer_load_dwordx4 v{WOF}, s[{SRD_B}:{SRD_B+3}], s13 offen lds")
        a(f"s_add_u32 m0, s12, {LW + c*8192 + 1024}\ns_nop 0")
        a(f"buffer_load_dwordx4 v{WOF}, s[{SRD_B}:{SRD_B+3}], s10 offen lds")
        Q1.extend([f"w{c}"] * 2)
    def dq(c):
        sig_c(c)
        a(f"s_mul_i32 s13, s13, {64*2688}\ns_add_u32 s13, s13, s66\ns_add_u32 m0, s65, {LWQ + c*4096}\ns_nop 0")
        a(f"buffer_load_dwordx4 v{VWQ}, s[{SRD_B}:{SRD_B+3}], s13 offen lds")
        Q1.append("q")
    def epl():
        a(f"s_mov_b32 s9, {WS_EP}")
        a(f"buffer_load_dword v2, v7, {WSD}, s9 offen sc1")
        Q1.append("ep")
    SCH = OPT.get("sch", {-1: "a a a a a a a F x0 w0 e x1 w1", 0: "x2 w2", 1: "x3 w3", 2: "x4 w4", 3: "x5 w5", 4: "x6 w6", 5: "q W"})
    def issue(c):
        for t in SCH.get(c, "").split():
            if t[0] == "x": dx(int(t[1]))
            elif t[0] == "w": dw(int(t[1]))
            elif t == "e": epl()
            elif t == "q":
                for u in range(7): dq(u)
            elif t[0] == "q":
                for u in t[1:]: dq(int(u))
            elif t == "S": stamp(a, 5)
            elif t[0] == "Z":
                if "w" in t:
                    a(f"s_mul_i32 s13, s14, {64*2688}\ns_add_u32 s13, s13, s7\ns_and_b32 s13, s13, -4")
                    a(f"s_load_dword s87, s[{S_WQKV}:{S_WQKV+1}], s13")
                if "e" in t: a(f"s_mov_b32 s13, {WS_EP}\ns_load_dword s88, s[{S_WS}:{S_WS+1}], s13")
                if "a" in t: a(f"s_load_dword s91, s[{S_AX}:{S_AX+1}], s68")
                if "x" in t: a(f"s_load_dword s64, s[{S_BX}:{S_BX+1}], s6")
            elif t == "T": tlbw()
            elif OPT.get("noA"): pass
            elif t == "a": xa()
            elif t == "W": wa()
            elif t == "F": xflag()
            elif t == "P": wopf()
            elif t == "V": wpf()
    issue(-1)
    if OPT.get("pro"):
        i0 = max(i for i, l in enumerate(a.L) if l == "b_go:") + 1
        body = [l.strip() for l in a.L[i0:]]
        del a.L[i0:]
        iw = body.index("s_waitcnt lgkmcnt(0)")
        pre, post = body[:iw], body[iw + 1:]
        pre.remove("s_barrier")
        first = [f"s_setprio {OPT['b0prio']}", f"s_and_b32 s{sX}, s2, 7", f"s_lshr_b32 s{sJ}, s2, 3", f"s_and_b32 s{sJ4}, s{sJ}, 3",
                 f"s_and_b32 s{sQB}, s{sX}, 1", f"s_lshl_b32 s{sQB}, s{sQB}, 3", f"s_lshr_b32 s6, s{sJ}, 2", f"s_add_u32 s{sQB}, s{sQB}, s6",
                 f"s_and_b32 s{sWL}, s{sW}, 3", f"s_lshl_b32 s11, s{sWL}, 12",
                 f"s_lshl_b32 s6, s{sJ4}, 1", f"s_add_u32 s14, s{sQB}, s6", "s_mul_i32 s6, s14, 37", "s_lshr_b32 s6, s6, 8", "s_mul_i32 s6, s6, 7", "s_sub_u32 s14, s14, s6",
                 "v_lshrrev_b32 v6, 3, v1", "v_and_b32 v100, 7, v1", "v_lshrrev_b32 v101, 1, v6", "v_xor_b32 v101, v101, v100", "v_mul_u32_u24 v102, 896, v6",
                 f"v_lshl_add_u32 v{XO}, v101, 4, v102",
                 f"s_lshl_b32 s6, s{sQB}, 7", f"s_lshl_b32 s7, s{sWL}, 5", "s_add_u32 s6, s6, s7", "s_mul_i32 s6, s6, 896"]
        stl = [l for l in pre if l.startswith("s_memrealtime") or (l.startswith("s_mov_b32 s") and l.endswith(", 0") and 70 <= int(l.split()[1][1:-1]) < 86)]
        for l in first + stl: pre.remove(l)
        iv = pre.index("v_mov_b32 v19, 0"); pre = pre[:iv]
        for l in ("v_and_b32 v8, 31, v1", "v_lshrrev_b32 v9, 5, v1", f"s_lshl_b32 s9, s{sX}, 2", f"s_add_u32 s{sN2}, s9, s{sJ4}"): pre.remove(l)
        for l in ("v_xor_b32 v101, 4, v101", f"v_lshl_add_u32 v{XO+1}, v101, 4, v102", f"v_add_u32 v{XO+1}, {8*896}, v{XO+1}", f"v_add_u32 v{XO+2}, {16*896}, v{XO}", f"v_add_u32 v{XO+3}, {16*896}, v{XO+1}"): pre.remove(l)
        first += [f"v_xor_b32 v{XO+1}, 64, v{XO}", f"v_add_u32 v{XO+2}, {16*896}, v{XO}", f"v_add_u32 v{XO+1}, {8*896}, v{XO+1}", f"v_add_u32 v{XO+3}, {16*896}, v{XO+1}"]
        sa = [l for l in post if l.startswith(f"s_mov_b32 s{SRD_A}") or l.startswith(f"s_mov_b32 s{SRD_A+1}")]
        sc = [l for l in post if l.startswith(f"s_mov_b32 s{SRD_A+2}") or l.startswith(f"s_mov_b32 s{SRD_A+3}")]
        for l in sa + sc: post.remove(l)
        ix = post.index("s_mov_b32 s13, s14")
        srds, iss = post[:ix], post[ix:]
        srds.remove("s_mov_b32 s89, s13")
        pre[pre.index(f"s_lshr_b32 s13, s{sJ}, 3")] = f"s_lshr_b32 s89, s{sJ}, 3"
        pre[pre.index("s_lshl_b32 s13, s13, 1")] = "s_lshl_b32 s89, s89, 1"
        nx = [i for i, l in enumerate(iss) if l.startswith("buffer_load")][3] + 1
        x0, rest = iss[:nx], iss[nx:]
        wneed = [f"s_and_b32 s15, s{sJ}, 1", f"s_lshr_b32 s{sH}, s{sX}, 1", f"s_lshl_b32 s{sH}, s{sH}, 2", f"s_add_u32 s{sH}, s{sH}, s{sJ4}", f"s_lshr_b32 s{sHP}, s{sH}, 1", f"s_lshl_b32 s12, s{sWL}, 11",
                 f"s_mul_i32 s7, s{sWL}, {16*2688}", "s_mul_i32 s8, s15, 896", "s_add_u32 s7, s7, s8", f"s_mul_i32 s8, s{sHP}, 112", "s_add_u32 s7, s7, s8", "s_add_u32 s7, s7, 896", "v_mov_b32 v7, 0"]
        for l in wneed: pre.remove(l)
        k = pre.index(f"v_lshl_add_u32 v{WOF}, v101, 4, v102") + 1
        wv, pre = pre[:k], pre[k:]
        for l in stl + first + sc + x0[:4] + ["s_waitcnt lgkmcnt(0)"] + sa + x0[5:] + wneed + wv + srds + rest + pre + ["s_barrier"]: a(l)
    a(f"""v_and_b32 v6, 31, v1
v_lshrrev_b32 v113, 5, v1
v_bfe_u32 v116, v6, 1, 3
v_lshlrev_b32 v6, 7, v6
v_add_u32 v6, s11, v6""")
    for t in range(4):
        a(f"v_add_u32 v117, {2*t}, v113\nv_xor_b32 v117, v117, v116\nv_lshl_add_u32 v{20+t}, v117, 4, v6")
    a(f"""v_lshlrev_b32 v6, 3, v113
v_bfe_u32 v114, v1, 2, 2
v_add_u32 v6, v6, v114
v_and_b32 v114, 1, v1
v_lshlrev_b32 v114, 5, v114
v_bfe_u32 v117, v1, 4, 1
v_lshl_add_u32 v114, v117, 4, v114
v_bfe_u32 v117, v1, 1, 1
v_lshl_add_u32 v114, v117, 3, v114
v_lshl_add_u32 v26, v6, 6, v114
v_add_u32 v26, {LWQ}, v26
v_bfe_u32 v117, v1, 3, 1
v_lshlrev_b32 v117, 6, v117
v_lshlrev_b32 v6, 7, v6
v_add_u32 v6, {LW}, v6
v_xor_b32 v115, v114, v117
v_add_u32 v24, v6, v115
v_add_u32 v114, 56, v114
v_xor_b32 v115, v114, v117
v_add_u32 v25, v6, v115""")
    srd(a, SRD_OUT, S_OUT, 2048 * 1792)
    ACC, QACC, WF, XR = 32, 40, 80, 144
    SGP = 27
    a("s_cmp_lg_u32 s15, 0\ns_cbranch_scc1 b_v")
    P = 64
    Q1base = list(Q1)
    WQC = OPT.get("wqc", 4)
    EP = OPT.get("ep")
    for ty in range(2):
        if ty: a("b_v:")
        Q1[:] = Q1base
        def rdx(c):
            for t in range(4): a(f"ds_read_b128 {vr(XR+16*c+4*t,4)}, v{20+t} offset:{XSL[c]*16384}")
        def rdw(c):
            wf = WF + 32 * (c % 2)
            for t in range(4):
                for seg in range(2):
                    for aa in range(2):
                        a(f"ds_read_b64_tr_b16 {vr(wf+8*t+4*seg+2*aa,2)}, v{24+seg} offset:{c*8192+(16*t+4*aa)*128}")
        def mm(c, t):
            wf = WF + 32 * (c % 2)
            first = (c == 0 and t == 0)
            for seg in range(2):
                if ty == 0: mfma(a, ACC+16*seg, wf+8*t+4*seg, XR+16*c+4*t, None if first else ACC+16*seg)
                else: mfma(a, ACC+16*seg, XR+16*c+4*t, wf+8*t+4*seg, None if first else ACC+16*seg)
        def vwx(c):
            i = max(i for i, t in enumerate(Q1) if t in (f"x{c}", f"w{c}"))
            a(f"s_waitcnt vmcnt({len(Q1) - 1 - i})")
        def nxt(c):
            a(f"ds_read_b32 v6, v4 offset:{4*C_W0}")
            issue(c)
            l = lab("cw")
            a(f"s_waitcnt lgkmcnt(0)\nv_readfirstlane_b32 s8, v6\ns_nop 1\ns_cmp_ge_u32 s8, {4*(c+1)}\ns_cbranch_scc1 {l}")
            wait_cnt(a, C_W0, 4 * (c + 1))
            a(f"{l}:")
            if c in (0, 1, 3, 5, 6) and not OPT.get("lst") and not OPT.get("qst"): stamp(a, 11 + (0, 1, 3, 5, 6).index(c))
            rdw(c)
        vwx(0)
        if "Z" in SCH[-1]: a("s_waitcnt lgkmcnt(0)")
        rdx(0)
        arrive(a, C_W0)
        a("s_waitcnt lgkmcnt(1)")
        nxt(0)
        for c in range(7):
            a("s_waitcnt lgkmcnt(12)")
            mm(c, 0)
            ex = 0
            if c < 6:
                vwx(c + 1)
                rdx(c + 1)
                arrive(a, C_W0)
                ex = 5
            a(f"s_waitcnt lgkmcnt({8+ex})")
            mm(c, 1)
            if c == 1:
                set_tag(a, 67)
                sg_regs(a, SGP)
            if c == 2 and EP:
                if ty == 0:
                    for seg in range(2): a(f"v_mov_b32 v{P+8*seg+6}, 0x3f803f80\nv_mov_b32 v{P+8*seg+7}, 0x3f80")
                else:
                    a(f"v_and_b32 v{P}, 3, v1\nv_cmp_eq_u32 vcc, 0, v{P}\nv_mov_b32 v{P}, 0x3f803f80\nv_cndmask_b32 v{P}, 0, v{P}, vcc")
                    for r in range(1, 16): a(f"v_mov_b32 v{P+r}, v{P}")
                a(f"s_lshl_b32 s8, s{sW}, 12\nv_add_u32 v31, s8, v3\nv_add_u32 v2, {WS_V}, v3")
                assert LQ == 0
            if c == 6 and EP:
                a(f"""s_lshl_b32 s10, s{sHP}, 7
s_lshl_b32 s11, s{sQB}, 2
s_add_u32 s10, s10, s11
s_add_u32 s10, s10, s{sW}
s_lshl_b32 s10, s10, 11
s_add_u32 s87, s10, {WS_V if ty else WS_K}
s_add_u32 s88, s87, {64*2048}
s_add_u32 s10, s87, {WS_L}
s_add_u32 s11, s88, {WS_L}
v_add_u32 v7, {LKV}, v31""")
            a(f"s_waitcnt lgkmcnt({4+ex})")
            mm(c, 2)
            if c == 6 and EP:
                a(f"""s_lshl_b32 s12, s{sQB}, 2
s_lshl_b32 s13, s{sW}, 3
s_add_u32 s12, s12, s13
s_lshl_b32 s15, s{sH}, 17
s_and_b32 s13, s{sX}, 1
s_lshl_b32 s13, s13, 16
s_add_u32 s15, s15, s13
s_xor_b32 s68, s15, 0x10000
s_add_u32 s15, s15, {WS_L}
s_mov_b32 s{sPASS}, 0
s_mov_b32 s66, 4
s_mov_b32 s14, 20000
s_lshl_b32 s65, s12, 11""")
            a(f"s_waitcnt lgkmcnt({1 if c < 6 else 0})")
            mm(c, 3)
            if c < 6: nxt(c + 1)
        stamp(a, 1)
        if EP:
            vw1("q")
            arrive(a, C_W3)
            if ty: a("s_mov_b32 exec_lo, 0x0fffffff\ns_mov_b32 exec_hi, 0x0fffffff")
            a.nop(8 - 2 * ty)
            for seg in range(2):
                for r in range(8):
                    if ty == 0 and r == 6: a("s_mov_b32 exec_hi, 0")
                    a(f"v_cvt_pk_bf16_f32 v{P+8*seg+r}, v{ACC+16*seg+2*r}, v{ACC+16*seg+2*r+1}")
                a("s_mov_b64 exec, -1")
                sign(a, P + 8 * seg, 8, SGP)
                for t in range(2):
                    a(f"buffer_store_dwordx4 {vr(P+8*seg+4*t,4)}, v3, {WSD}, s{10+seg} offen offset:{t*1024}")
                if ty and seg == 0: a("s_mov_b32 exec_lo, 0x0fffffff\ns_mov_b32 exec_hi, 0x0fffffff")
            if ty == 0: a("s_branch b_st1")
            continue
        a(f"""s_lshl_b32 s10, s{sHP}, 7
s_lshl_b32 s11, s{sQB}, 2
s_add_u32 s10, s10, s11
s_add_u32 s10, s10, s{sW}
s_lshl_b32 s10, s10, 11
s_add_u32 s87, s10, {WS_V if ty else WS_K}
s_add_u32 s88, s87, {64*2048}""")
        a.nop(5)
        for seg in range(2):
            for r in range(8):
                a(f"v_cvt_pk_bf16_f32 v{P+8*seg+r}, v{ACC+16*seg+2*r}, v{ACC+16*seg+2*r+1}")
        if ty == 0:
            a("s_mov_b32 exec_lo, 0")
            for seg in range(2): a(f"v_mov_b32 v{P+8*seg+6}, 0x3f803f80\nv_mov_b32 v{P+8*seg+7}, 0x3f80")
        else:
            a("s_mov_b32 exec_lo, 0xf0000000\ns_mov_b32 exec_hi, 0xf0000000")
            a("v_and_b32 v6, 3, v1\nv_cmp_eq_u32 vcc, 0, v6\nv_mov_b32 v6, 0x3f803f80\nv_cndmask_b32 v6, 0, v6, vcc")
            for r in range(16): a(f"v_mov_b32 v{P+r}, v6")
        a("s_mov_b64 exec, -1")
        if ty == 0: a("s_branch b_st1")
    a("b_st1:")
    a(f"s_setprio {OPT.get('bprio', 2)}")
    if not EP:
        sign(a, P, 16, SGP)
        vw1("q")
        arrive(a, C_W3)
        a(f"s_add_u32 s10, s87, {WS_L}\ns_add_u32 s11, s88, {WS_L}")
        for seg in range(2):
            for t in range(2):
                a(f"buffer_store_dwordx4 {vr(P+8*seg+4*t,4)}, v3, {WSD}, s{10+seg} offen offset:{t*1024} {OPT.get('lm', '')}")
        a(f"s_lshl_b32 s13, s{sW}, 12\ns_add_u32 s13, s13, {LKV}\nv_add_u32 v7, s13, v3")
        for u in range(4): a(f"ds_write_b128 v7, {vr(P+4*u,4)} offset:{u*1024}")
    G4 = 248
    GG = lambda u: G4 + 4 * (u % 2) * OPT.get("g2", 0)
    def g_rd(u): a(f"ds_read_b128 {vr(GG(u),4)}, v7 offset:{u*1024}")
    def g_st(u):
        a("s_waitcnt lgkmcnt(0)")
        a(f"buffer_store_dwordx4 {vr(GG(u),4)}, v3, {WSD}, s{87+u//2} offen offset:{(u%2)*1024} sc1")
    def st_glob():
        for u in range(4):
            a("s_waitcnt vmcnt(0)")
            g_rd(u); g_st(u)
    stamp(a, 2)
    if not EP:
        a(f"s_mov_b32 s10, {f32_bits(QSCALE):#x}\ns_mov_b32 s11, s10")
        a(f"s_lshl_b32 s13, s{sW}, 12\ns_add_u32 s13, s13, {LQ}\nv_add_u32 v31, s13, v3")
    if not EP: a(f"""s_lshl_b32 s12, s{sQB}, 2
s_lshl_b32 s13, s{sW}, 3
s_add_u32 s12, s12, s13
s_lshl_b32 s15, s{sH}, 17
s_and_b32 s13, s{sX}, 1
s_lshl_b32 s13, s13, 16
s_add_u32 s15, s15, s13
s_xor_b32 s68, s15, 0x10000
s_add_u32 s15, s15, {WS_L}
s_mov_b32 s{sPASS}, 0
s_mov_b32 s66, 4
s_mov_b32 s14, 20000""")
    if OPT.get("ns") and not EP: a(f"s_lshl_b32 s65, s12, 11\nv_add_u32 v2, {WS_V}, v3")
    wait_cnt(a, C_W3, 4)
    if OPT.get("agc") == C_W4 and not OPT.get("agp"): arrive(a, C_W4)
    if OPT.get("qst"): stamp(a, 11)
    NB = 5
    Q, O, S, Pp, MX, TMP, KV, SG, CT = 8, 40, 104, 136, 152, 156, 160, 240, 244
    def load_kv(t, force=False):
        buf = t % NB
        md = "sc1" if (force or (OPT.get("kl", "sc1") if t < 8 else OPT.get("kr", "")) == "sc1") else ""
        a(f"s_add_u32 s8, s12, {t%8}\ns_and_b32 s8, s8, 31\ns_lshl_b32 s8, s8, 11\ns_add_u32 s8, s8, s{15 if t < 8 else 68}\ns_add_u32 s9, s8, {WS_V}")
        for u in range(2):
            a(f"buffer_load_dwordx4 {vr(KV+16*buf+4*u,4)}, v3, {WSD}, s8 offen offset:{u*1024} {md}")
        for u in range(2):
            a(f"buffer_load_dwordx4 {vr(KV+16*buf+8+4*u,4)}, v3, {WSD}, s9 offen offset:{u*1024} {md}")
    def kvg(t):
        buf = t % NB
        md = OPT.get("kl", "sc1") if t < 8 else OPT.get("kr", "")
        sal = [f"s_add_u32 s13, s65, {(t%8)*2048}", "s_and_b32 s13, s13, 0xffff", f"s_add_u32 s13, s13, s{15 if t < 8 else 68}",
               f"s_add_u32 s6, s{S_WS}, s13", f"s_addc_u32 s7, s{S_WS+1}, 0"]
        vm = [f"global_load_dwordx4 {vr(KV+16*buf+4*u,4)}, v{3 if u < 2 else 2}, s[6:7] offset:{(u%2)*1024} {md}" for u in range(4)]
        return sal, vm
    NS = OPT.get("ns", 0)
    if NS:
        load_kv_b = load_kv
        def load_kv(t, force=False):
            if force: return load_kv_b(t, True)
            sal, vm = kvg(t)
            for x in sal + vm: a(x)
    WQ = 96
    def rdq(c):
        for t in range(4):
            for aa in range(2):
                a(f"ds_read_b64_tr_b16 {vr(WQ+16*(c%3)+4*t+2*aa,2)}, v26 offset:{c*4096+(16*t+4*aa)*64}")
    rdq(0); rdq(1)
    if EP:
        a(f"s_mov_b32 s10, {f32_bits(QSCALE):#x}\ns_mov_b32 s11, s10")
        assert not OPT.get("qi")
    K5 = OPT.get("kv5", 2)
    KVP = OPT.get("kvp", 4)
    for c in range(7):
        if OPT.get("qi"):
            n0 = len(a.L)
            if c + 2 < 7: rdq(c + 2)
            for t_ in range(K5):
                if c == min(max(KVP + t_, t_ + 2), 6): load_kv(t_)
            fill = a.L[n0:]; del a.L[n0:]
            per = -(-len(fill) // 4)
            for t in range(4):
                nd = sum(1 for x in fill[:per * t] if "ds_read" in x)
                a(f"s_waitcnt lgkmcnt({min(15, (8 if c < 6 else 0) + nd + 2 * (3 - t))})")
                mfma(a, QACC, WQ+16*(c%3)+4*t, XR+16*c+4*t, None if (c == 0 and t == 0) else QACC)
                a.L.extend(fill[per * t:per * (t + 1)])
            continue
        a(f"s_waitcnt lgkmcnt({12 if (EP and c == 1) else 8 if c < 6 else 0})")
        for t in range(4):
            mfma(a, QACC, WQ+16*(c%3)+4*t, XR+16*c+4*t, None if (c == 0 and t == 0) else QACC)
            if EP and c == 0: a(f"ds_write_b128 v7, {vr(P+4*t,4)} offset:{t*1024}")
        if c + 2 < 7: rdq(c + 2)
        if c == KVP: load_kv(0)
        if c == min(KVP + 1, 6): load_kv(1)
        for t_ in range(2, K5):
            if c == min(max(KVP + t_, t_ + 1), 6): load_kv(t_)
    if OPT.get("qst"): stamp(a, 12)
    arrive(a, C_KV)
    a(f"v_mov_b32 v{SG}, v{SGP}")
    if OPT.get("gq"):
        assert LQ == 0
        for q in range(3): a(f"s_add_u32 s8, s{sW}, {1+q}\ns_and_b32 s8, s8, 3\ns_lshl_b32 s8, s8, 12\nv_add_u32 v{TMP+q}, s8, v3")
    else: a.nop(9)
    QW = Q + 24
    for r in range(8): a(f"v_pk_mul_f32 {vr(QACC+2*r,2)}, {vr(QACC+2*r,2)}, s[10:11]")
    for r in range(8): a(f"v_cvt_pk_bf16_f32 v{QW+r}, v{QACC+2*r}, v{QACC+2*r+1}")
    a(f"s_mov_b32 exec_lo, 0\nv_mov_b32 v{QW+6}, 0\nv_mov_b32 v{QW+7}, 0\ns_mov_b64 exec, -1")
    for t in range(2): a(f"ds_write_b128 v31, {vr(QW+4*t,4)} offset:{t*1024}")
    a("s_waitcnt lgkmcnt(0)")
    arrive(a, C_Q)
    if OPT.get("qst"): stamp(a, 14)
    def rot(sl, dst, sh, base):
        a(f"s_add_u32 s{dst}, s{sW}, {1+sl}\ns_and_b32 s{dst}, s{dst}, 3\ns_lshl_b32 s{dst}, s{dst}, {sh}\ns_add_u32 s{dst}, s{dst}, {base}")
    def getq():
        l = lab("gq")
        a(f"s_cmp_lg_u32 s{sPASS}, 0\ns_cbranch_scc1 {l}")
        wait_cnt(a, C_Q, 4)
        stamp(a, 3)
        for q in range(3):
            rot(q, 8, 12, LQ)
            a(f"v_add_u32 v{TMP+q}, s8, v3")
            for t in range(2): a(f"ds_read_b128 {vr(Q+8*q+4*t,4)}, v{TMP+q} offset:{t*1024}")
        a("s_waitcnt lgkmcnt(0)")
        arrive(a, C_M2)
        a(f"{l}:")
    a("s_branch b_main2")
    a("b_main:")
    for t_ in range(K5): load_kv(t_)
    a("b_main2:")
    NQ = OPT.get("nq", 3)
    seq = [(0, 3), (1, 3), (0, 0), (0, 1), (0, 2), (1, 0), (1, 1), (1, 2)]
    seq += [(t, q) for t in range(2, 16 - NQ) for q in range(4)] + [(t, q) for q in range(4) for t in range(16 - NQ, 16)]
    if OPT.get("tq"):
        assert NQ == 3
        seq[52:58] = [(13, 0), (14, 0), (13, 1), (14, 1), (15, 0), (15, 1)]
    firstq = {}
    for i, (t, q) in enumerate(seq): firstq.setdefault(q, i)
    retries = []
    issued = [K5 - 1]
    BQ = [t_ for t_ in range(K5) for _ in range(4)]
    gdone = [bool(OPT.get("ag")) and not OPT.get("ags")]
    def chk(t):
        b = KV + 16 * (t % NB)
        a(f"s_waitcnt vmcnt({len(BQ) - 1 - max(i for i, x in enumerate(BQ) if x == t)})")
        if OPT.get("nochk"): return
        l = f"b_chk{t}"
        a(f"{l}:")
        a(f"v_bitop3_b32 v{CT}, v{b}, v{b+4}, v{SG} bitop3:0x7e")
        a(f"v_bitop3_b32 v{CT+1}, v{b+8}, v{b+12}, v{SG} bitop3:0x7e")
        a(f"v_bitop3_b32 v{CT}, v{CT}, s{sMSK}, v{CT+1} bitop3:0xc8")
        a(f"v_cmp_ne_u32 vcc, 0, v{CT}")
        a(f"s_cbranch_vccnz {l}_r")
        a(f"{l}_d:")
        retries.append((t, issued[0], l, gdone[0], False))
    def chk_v(b):
        a(f"v_bitop3_b32 v{CT}, v{b}, v{b+4}, v{SG} bitop3:0x7e")
        a(f"v_bitop3_b32 v{CT+1}, v{b+8}, v{b+12}, v{SG} bitop3:0x7e")
        a(f"v_bitop3_b32 v{CT}, v{CT}, s{sMSK}, v{CT+1} bitop3:0xc8")
        a(f"v_cmp_ne_u32 vcc, 0, v{CT}")
    def chk_a(t):
        a(f"s_waitcnt vmcnt({len(BQ) - 1 - max(i for i, x in enumerate(BQ) if x == t)})")
        chk_v(KV + 16 * (t % NB))
    def chk_b(t):
        l = f"b_chk{t}"
        a(f"s_cbranch_vccnz {l}_r")
        a(f"{l}_d:")
        retries.append((t, issued[0], l, gdone[0], 1 if gpend[0] is None else 2 + gpend[0]))
    SL = {}
    gpend = [None]
    def step(i, extra=None):
        t, q = seq[i]
        par = i % 2
        Sc, Sn = S + 16 * par, S + 16 * (1 - par)
        Pc, Pv = Pp + 8 * par, Pp + 8 * (1 - par)
        ms = [None] * 4
        if i + 1 < len(seq):
            nt, nq = seq[i + 1]; nb = KV + 16 * (nt % NB)
            ms[0] = lambda: mfma(a, Sn, nb, Q+8*nq, None)
            ms[1] = lambda: mfma(a, Sn, nb+4, Q+8*nq+4, Sn)
        if i > 0:
            pt, pq = seq[i - 1]; pb = KV + 16 * (pt % NB)
            ms[2] = lambda: mfma(a, O+16*pq, pb+8, Pv, None if firstq[pq] == i - 1 else O+16*pq)
            ms[3] = lambda: mfma(a, O+16*pq, pb+12, Pv+4, O+16*pq)
        for g in range(4):
            if ms[g]: ms[g]()
            if extra and extra[g]: extra[g]()
            for f in SL.get((i, g), []): f()
            for e in range(4): a(f"v_exp_f32 v{Sc+4*g+e}, v{Sc+4*g+e}")
            a(f"v_cvt_pk_bf16_f32 v{Pc+2*g}, v{Sc+4*g}, v{Sc+4*g+1}")
            a(f"v_cvt_pk_bf16_f32 v{Pc+2*g+1}, v{Sc+4*g+2}, v{Sc+4*g+3}")
    chk(0)
    if OPT.get("qst"): stamp(a, 15)
    mfma(a, S, KV, QW, None)
    mfma(a, S, KV+4, QW+4, S)
    if K5 <= 2:
        if 2 in OPT.get("tat", {}): a.nop(10)
        else:
            load_kv(2); issued[0] = 2; BQ.extend([2] * 4)
            if OPT.get("agp") == 1: arrive(a, C_W4)
            else: a.nop(3)
    else: a.nop(10)
    checked = {0}
    CAX = C_A2D if OPT.get("cax") else C_AX2
    assert not (OPT.get("cax") and OPT.get("odum"))
    last_use = {}
    for i, (t, q) in enumerate(seq): last_use[t] = i
    fin = {}
    for i, (t, q) in enumerate(seq): fin[q] = i
    if NS:
        GS_ = OPT.get("gst", (2, 6, 10, 14))
        busy = set()
        if not OPT.get("ag"):
            for i in GS_: busy |= {(i, 0), (i, 3)}
        firstu = {}
        for i, (t, q) in enumerate(seq): firstu.setdefault(t, i)
        for t in range(2, 16):
            i = firstu[t] - 2
            g = 2 if (i, 3) not in busy else 1
            SL.setdefault((i, g), []).append(lambda t=t: chk_a(t))
            SL.setdefault((i, g + 1), []).append(lambda t=t: chk_b(t))
            busy |= {(i, g), (i, g + 1)}
            checked.add(t)
        def blk(t, vm):
            for x in vm: a(x)
            issued[0] = t; BQ.extend([t] * 4)
        prevb = -1
        for t in range(2 if 2 in OPT.get("tat", {}) else max(3, K5), 16):
            i = t - 3 if t < 5 else last_use[t - NB] + 1
            if t >= 8 and OPT.get("lead"): i = max(i, min(OPT["lead"] + (t - 8) * OPT.get("leadi", 2), firstu[t] - 8))
            if t in OPT.get("tat", {}): i = max(i, OPT["tat"][t])
            sal, vm = kvg(t)
            SL.setdefault((i, 3), []).append(lambda t=t, vm=vm: blk(t, vm))
            busy.add((i, 3))
            k = 4 * i + 2
            sl_ = [sal[3:5]] + [[x] for x in sal[2::-1]] if NS == 1 else [[x] for x in sal[::-1]]
            lo = prevb
            assert 4 * i + 3 > prevb
            prevb = 4 * i + 3
            for n, grp in enumerate(sl_):
                while k > lo and ((k // 4, k % 4) in busy or (k // 4 == 0 and k % 4 >= 2)):
                    assert not (NS == 2 and n == 1), (t, k)
                    k -= 1
                if k <= lo: k = lo + 1
                SL.setdefault((k // 4, k % 4), []).insert(0, lambda grp=grp: [a(x) for x in grp])
                busy.add((k // 4, k % 4))
    for i in range(len(seq)):
        if i + 1 < len(seq) and seq[i + 1][0] not in checked:
            chk(seq[i + 1][0]); checked.add(seq[i + 1][0])
        extra = [None] * 4
        if i == 1 and not OPT.get("gq"): getq()
        if i == 0 and OPT.get("gq"):
            def gq1():
                l = lab("gq")
                a(f"s_cmp_lg_u32 s{sPASS}, 0\ns_cbranch_scc1 {l}")
                a(f"s_waitcnt lgkmcnt(0)\nv_readfirstlane_b32 s8, v6\ns_nop 3\ns_cmp_ge_u32 s8, 4\ns_cbranch_scc1 {l}_r")
                wait_cnt(a, C_Q, 4)
                a(f"{l}_r:")
                for q in range(3):
                    for t in range(2): a(f"ds_read_b128 {vr(Q+8*q+4*t,4)}, v{TMP+q} offset:{t*1024}")
                a(f"{l}:")
            extra[0] = lambda: a(f"ds_read_b32 v6, v4 offset:{4*C_Q}")
            extra[OPT["gq"]] = gq1
        if i == 1 and OPT.get("gq"):
            a("s_waitcnt lgkmcnt(4)")
            stamp(a, 3)
            extra[2] = lambda: (a("s_waitcnt lgkmcnt(0)"), arrive(a, C_M2))
        LSS = OPT.get("lss", (None, None, 4, 24, 44))
        if OPT.get("lst") and i in LSS:
            stamp(a, 11 + LSS.index(i))
        if i == fin[0] and not OPT.get("noA") and not OPT.get("astop"):
            extra[0] = lambda: a(f"ds_read_b32 v6, v4 offset:{4*CAX}")
        for sl in range(3):
            if i == fin[sl] + 2:
                if sl == 0 and not OPT.get("noA") and not OPT.get("astop"):
                    l = lab("ad")
                    a(f"s_waitcnt lgkmcnt(0)\nv_readfirstlane_b32 s8, v6\ns_nop 3\ns_cmp_ge_u32 s8, 4\ns_cbranch_scc1 {l}")
                    wait_cnt(a, CAX, 4)
                    a(f"{l}:")
                    stamp(a, 5)
                a(f"s_add_u32 s8, s{sW}, {1+sl}\ns_and_b32 s8, s8, 3\ns_mul_i32 s8, s8, 12288\ns_add_u32 s8, s8, {LR+sl*4096}")
                a(f"v_add_u32 v{TMP}, s8, v3")
                wr = lambda g, sl=sl: a(f"ds_write_b128 v{TMP}, {vr(O+16*sl+4*g,4)} offset:{g*1024}")
                extra[1] = lambda wr=wr: (wr(0), wr(1))
                extra[2] = lambda wr=wr: wr(2)
                extra[3] = lambda wr=wr: wr(3)
        if i == fin[2] + 3:
            extra[2] = lambda: (a("s_waitcnt lgkmcnt(0)"), arrive(a, C_R1))
        if OPT.get("er"):
            assert fin[2] + 3 == len(seq) - 1 and OPT.get("tlw") is None
            if i == fin[1] + 3:
                extra[0] = lambda: a(f"s_mul_i32 s8, s{sW}, 12288")
                extra[1] = lambda: a(f"s_add_u32 s8, s8, {LR}\nv_add_u32 v{TMP+1}, s8, v3")
                extra[2] = lambda: (a("s_waitcnt lgkmcnt(0)"), arrive(a, C_YS))
            if i == fin[2] + 2: extra[0] = lambda: a(f"ds_read_b32 v6, v4 offset:{4*C_YS}")
            if i == fin[2] + 3:
                def e1():
                    l = lab("er")
                    a("s_waitcnt lgkmcnt(0)")
                    arrive(a, C_R1)
                    a(f"v_readfirstlane_b32 s8, v6\ns_nop 3\ns_cmp_ge_u32 s8, s66\ns_cbranch_scc1 {l}")
                    wait_cnt(a, C_YS, None, 66)
                    a(f"{l}:")
                extra[1] = e1
                rdp_ = lambda sl: [a(f"ds_read_b128 {vr(O+16*sl+4*g,4)}, v{TMP+1} offset:{sl*4096+g*1024}") for g in range(4)]
                extra[2] = lambda: rdp_(0)
                extra[3] = lambda: rdp_(1)
        GS = OPT.get("gst", (2, 6, 10, 14))
        if i in GS and not OPT.get("ag"):
            u = GS.index(i)
            extra[0] = lambda u=u: (g_rd(u), gpend.__setitem__(0, u))
            extra[3] = lambda u=u: (g_st(u), BQ.append(-1), gpend.__setitem__(0, None))
        step(i, extra)
        if i == GS[-1]:
            gdone[0] = True
            arrive(a, C_G)
        if i == OPT.get("tlw"): arrive(a, C_YS)
        if i in OPT.get("ags", ()): arrive(a, C_W4)
        if NS: continue
        if i < 2:
            load_kv(3 + i); issued[0] = 3 + i; BQ.extend([3 + i] * 4)
        if i > 0:
            pt = seq[i - 1][0]
            if last_use[pt] == i - 1 and pt + NB < 16:
                load_kv(pt + NB); issued[0] = pt + NB; BQ.extend([pt + NB] * 4)
    assert fin[2] + 3 <= len(seq) - 1
    a.nop(2)
    lt = KV + 16 * (seq[-1][0] % NB)
    OW = O + 48
    mfma(a, OW, lt+8, Pp+8, OW)
    mfma(a, OW, lt+12, Pp+8+4, OW)
    stamp(a, 4)
    if OPT.get("cnt"): a("s_sub_u32 s81, 20001, s14")
    wait_cnt(a, C_R1, None, 66)
    stamp(a, 6)
    if OPT.get("er"):
        for g in range(4): a(f"ds_read_b128 {vr(O+32+4*g,4)}, v{TMP+1} offset:{2*4096+g*1024}")
    else:
        a(f"s_mul_i32 s8, s{sW}, 12288\ns_add_u32 s8, s8, {LR}\nv_add_u32 v{TMP}, s8, v3")
        for sl in range(3):
            for g in range(4): a(f"ds_read_b128 {vr(O+16*sl+4*g,4)}, v{TMP} offset:{sl*4096+g*1024}")
    a(f"s_mov_b32 s8, {f32_bits(2.0**-80):#x}\ns_mov_b32 s9, {f32_bits(2.0**100):#x}\ns_mov_b32 s10, {f32_bits(2.0**127):#x}")
    for sl in range(3):
        a(f"s_waitcnt lgkmcnt({4*(2-sl)})")
        for r in (6, 7, 0, 1, 2, 3, 4, 5): a(f"v_pk_add_f32 {vr(OW+2*r,2)}, {vr(OW+2*r,2)}, {vr(O+16*sl+2*r,2)}")
    a(f"v_mov_b32 v{TMP}, v{OW+12}\nv_mov_b32 v{TMP+1}, v{OW+12}")
    for r in range(4): a(f"v_pk_add_f32 {vr(O+2*r,2)}, {vr(OW+4*r,2)}, {vr(OW+4*r+2,2)}")
    a(f"v_permlane32_swap_b32 v{TMP}, v{TMP+1}")
    for r in range(2): a(f"v_pk_add_f32 {vr(O+2*r,2)}, {vr(O+2*r,2)}, {vr(O+2*r+4,2)}")
    a(f"v_cmp_le_f32 s[52:53], s8, v{TMP+1}")
    a(f"v_cmp_ge_f32 s[54:55], s9, v{TMP+1}")
    a(f"v_rcp_f32 v{TMP}, v{TMP+1}")
    a(f"v_pk_add_f32 {vr(O,2)}, {vr(O,2)}, {vr(O+2,2)}")
    a(f"v_add_f32 v{O}, v{O}, v{O+1}")
    a(f"v_cmp_ge_f32 s[56:57], s10, abs(v{O})")
    for r in range(8): a(f"v_pk_mul_f32 {vr(OW+2*r,2)}, {vr(OW+2*r,2)}, {vr(TMP,2)} op_sel_hi:[1,0]")
    a("s_and_b64 s[52:53], s[52:53], s[54:55]\ns_and_b64 s[52:53], s[52:53], s[56:57]")
    for r in range(8): a(f"v_cvt_pk_bf16_f32 v{Pp+r}, v{OW+2*r}, v{OW+2*r+1}")
    a(f"s_mov_b32 exec_lo, 0\nv_mov_b32 v{Pp+6}, 0\nv_mov_b32 v{Pp+7}, 0\ns_mov_b64 exec, -1")
    sign(a, Pp, 8, SG)
    a(f"""s_lshl_b32 s10, s{sQB}, 2
s_add_u32 s10, s10, s{sW}
s_lshl_b32 s10, s10, 4
s_add_u32 s10, s10, s{sH}
s_lshl_b32 s8, s10, 11
s_add_u32 s8, s8, {WS_O}""")
    a(f"s_cmp_lg_u32 s{sPASS}, 0\ns_cbranch_scc1 b_nofail")
    if not OPT.get("forcefail"): a("s_cmp_eq_u64 s[52:53], -1\ns_cbranch_scc1 b_nofail")
    arrive(a, C_FAIL)
    a("s_branch b_nost")
    a("b_nofail:")
    for t in range(2):
        a(f"buffer_store_dwordx4 {vr(Pp+4*t,4)}, v3, {WSD}, s8 offen offset:{t*1024} {OPT.get('osm', 'sc1')}")
    a("b_nost:")
    a("s_waitcnt lgkmcnt(0)")
    arrive(a, C_R2)
    wait_cnt(a, C_R2, None, 66)
    a(f"s_cmp_lg_u32 s{sPASS}, 0\ns_cbranch_scc1 b_pub")
    a(f"ds_read_b32 v6, v4 offset:{4*C_FAIL}\ns_waitcnt lgkmcnt(0)\nv_readfirstlane_b32 s8, v6\ns_nop 3")
    a("s_cmp_lg_u32 s8, 0\ns_cbranch_scc1 b_slow")
    a("b_pub:")
    stamp(a, 7)
    WF3, OF3, ACC3 = 8, 152, 216
    if not OPT.get("noA") and not OPT.get("astop"): wait_cnt(a, C_WO, 4)
    a(f"""v_lshrrev_b32 v6, 5, v1
v_lshlrev_b32 v6, 4, v6
v_bfe_u32 v7, v1, 2, 2
v_add_u32 v6, v6, v7
v_mul_u32_u24 v6, 224, v6
v_and_b32 v7, 1, v1
v_lshl_add_u32 v6, v7, 5, v6
v_bfe_u32 v7, v1, 4, 1
v_lshl_add_u32 v6, v7, 4, v6
v_bfe_u32 v7, v1, 1, 1
v_lshl_add_u32 v6, v7, 3, v6
s_lshl_b32 s8, s{sW}, 6
v_add_u32 v6, s8, v6""")
    VA = 244
    for g in range(4):
        a(f"s_add_u32 s8, s{sW}, {g}\ns_and_b32 s8, s8, 3\ns_mul_i32 s9, s8, {4*28*224}\nv_add_u32 v{VA+g}, s9, v6")
        if g: a(f"s_lshl_b32 s8, s8, 13\ns_add_u32 s8, s8, {LO}\nv_add_u32 v{VA+3+g}, s8, v3")
    def wo_rd(h0, h1):
        for h in range(h0, h1):
            for t in range(2):
                for aa in range(2):
                    a(f"ds_read_b64_tr_b16 {vr(WF3+8*h+4*t+2*aa,2)}, v{VA+h//4} offset:{LWO+(28*(h%4)+8*t+4*aa)*224}")
    OFS = OPT.get("ofs", 16)
    wo_rd(0, OFS)
    a(f"""s_and_b32 s12, s{sX}, 1
s_lshl_b32 s12, s12, 5
s_lshr_b32 s11, s{sX}, 1
s_lshl_b32 s11, s11, 3
s_add_u32 s12, s12, s11
s_lshr_b32 s11, s{sJ}, 2
s_add_u32 s12, s12, s11""")
    a(f"""s_lshl_b32 s11, s12, 4
s_lshl_b32 s8, s{sW}, 2
s_add_u32 s11, s11, s8""")
    a(f"s_lshl_b32 s11, s11, 11\ns_add_u32 s11, s11, {WS_O}\ns_lshl_b32 s8, s{sW}, 13\ns_add_u32 s8, s8, {LO}")
    a(f"s_mov_b32 s14, 20000\nv_add_u32 v7, s8, v3")
    FL = 52
    for i in range(4): a(f"s_mov_b64 s[{FL+2*i}:{FL+2*i+1}], -1")
    def o_dma(i, md="sc1"):
        for u in range(2):
            a(f"s_add_u32 m0, s8, {(2*i+u)*1024}\ns_add_u32 s9, s11, {(2*i+u)*1024}")
            a(f"buffer_load_dwordx4 v3, {WSD}, s9 offen {md} lds")
    if OFS < 16 or OPT.get("om1") != "sc1":
        for i in range(4): o_dma(i, OPT.get("om1"))
        wo_rd(OFS, 16)
        a("s_branch b_opoll1")
    a("b_opoll:")
    def each(tag, f):
        for i in range(4):
            a(f"s_cmp_eq_u64 s[{FL+2*i}:{FL+2*i+1}], 0\ns_cbranch_scc1 b_o{tag}{i}")
            f(i)
            a(f"b_o{tag}{i}:")
    each("d", o_dma)
    a("b_opoll1:")
    a("s_waitcnt vmcnt(0)")
    each("r", lambda i: [a(f"ds_read_b128 {vr(OF3+8*i+4*u,4)}, v7 offset:{(2*i+u)*1024}") for u in range(2)])
    a("s_waitcnt lgkmcnt(0)")
    for i in range(4):
        a(f"v_bitop3_b32 v{232+i}, v{OF3+8*i}, v{OF3+8*i+4}, v{SG} bitop3:0x7e")
    for i in range(4):
        a(f"v_and_b32 v{232+i}, s{sMSK}, v{232+i}")
    for i in range(4):
        a(f"v_cmp_ne_u32 s[{FL+2*i}:{FL+2*i+1}], 0, v{232+i}")
    a("s_nop 3")
    a(f"s_or_b64 vcc, s[{FL}:{FL+1}], s[{FL+2}:{FL+3}]\ns_or_b64 vcc, vcc, s[{FL+4}:{FL+5}]\ns_or_b64 vcc, vcc, s[{FL+6}:{FL+7}]")
    a("s_cbranch_scc0 b_opoll_d")
    if OPT.get('osleep', 2): a(f"s_sleep {OPT.get('osleep', 2)}")
    a("s_sub_u32 s14, s14, 1\ns_cmp_lg_u32 s14, 0\ns_cbranch_scc1 b_opoll")
    a("b_opoll_d:")
    if OPT.get("cnt"): a("s_sub_u32 s82, 20001, s14")
    stamp(a, 8)
    arrive(a, C_O)
    for i in range(8): mfma(a, ACC3, WF3+4*i, OF3+4*i, None if i == 0 else ACC3)
    wait_cnt(a, C_O, 4)
    stamp(a, 9)
    def rdo(g, dst):
        for i in range(8): a(f"ds_read_b128 {vr(dst+4*i,4)}, v{VA+3+g} offset:{i*1024}")
    rdo(1, OF3+32); rdo(2, OF3)
    for i in range(8):
        a(f"s_waitcnt lgkmcnt({15-i})")
        mfma(a, ACC3, WF3+32+4*i, OF3+32+4*i, ACC3)
    rdo(3, OF3+32)
    for i in range(8):
        a(f"s_waitcnt lgkmcnt({15-i})")
        mfma(a, ACC3, WF3+64+4*i, OF3+4*i, ACC3)
    for i in range(8):
        a(f"s_waitcnt lgkmcnt({7-i})")
        mfma(a, ACC3, WF3+96+4*i, OF3+32+4*i, ACC3)
    a(f"""v_and_b32 v6, 31, v1
v_mul_u32_u24 v6, 1792, v6
v_lshrrev_b32 v7, 5, v1
v_lshl_add_u32 v6, v7, 5, v6
s_mul_i32 s7, s12, 57344
{f"s_mov_b32 s8, s{sJ4}" if OPT.get("b3m") else f"s_lshr_b32 s8, s{sH}, 2"}
s_mul_i32 s8, s8, 224
s_add_u32 s7, s7, s8
s_lshl_b32 s8, s{sW}, 6
s_add_u32 s7, s7, s8
s_add_u32 s7, s7, 896""")
    a.nop(2)
    for r in range(8): a(f"v_cvt_pk_bf16_f32 v{OF3+r}, v{ACC3+2*r}, v{ACC3+2*r+1}")
    a(f"""s_cmp_lg_u32 s{sW}, 3
s_cbranch_scc1 b_st
s_mov_b32 exec_hi, 0
b_st:""")
    for t in range(2):
        a(f"buffer_store_dwordx4 {vr(OF3+4*t,4)}, v6, s[{SRD_OUT}:{SRD_OUT+3}], s7 offen offset:{t*16} {OPT.get('omod', '')}")
    a("s_mov_b64 exec, -1")
    a(f"s_or_b32 s8, s2, s{sW}\ns_cmp_lg_u32 s8, 0\ns_cbranch_scc1 b_noep")
    a(f"s_mov_b64 exec, 1\nv_mov_b32 v6, s67\nv_mov_b32 v7, 0\ns_mov_b32 s8, {WS_EP}")
    a(f"buffer_store_dword v6, v7, {WSD}, s8 offen sc1")
    a("s_mov_b64 exec, -1")
    a("b_noep:")
    stamp(a, 10)
    stamp_out(a, 16)
    a("s_endpgm")
    for (t, iss, l, gd, inl) in retries:
        a(f"{l}_r:")
        a(f"s_sub_u32 s14, s14, 1\ns_cmp_le_i32 s14, 0\ns_cbranch_scc1 {l}_d")
        if OPT.get("rsleep", 1): a(f"s_sleep {OPT.get('rsleep', 1)}")
        if t < 8:
            a(f"s_cmp_gt_u32 s14, {20000 - OPT.get('nloc', 4)}\ns_cbranch_scc1 {l}_g")
            a(f"s_xor_b32 s15, s15, {WS_L}")
        if not gd and OPT.get("ag"): arrive(a, C_W4)
        elif not gd:
            a(f"s_bitcmp1_b32 s14, 0\ns_cbranch_scc1 {l}_g")
            st_glob()
        if t < 8: a(f"{l}_g:")
        for u in range(t, iss + 1): load_kv(u, True)
        a(f"s_waitcnt vmcnt(0)")
        if inl:
            if inl >= 2: g_rd(inl - 2)
            chk_v(KV + 16 * (t % NB))
            a(f"s_cbranch_vccnz {l}_r\ns_branch {l}_d")
        else: a(f"s_branch {l}")
    a("b_slow:")
    a(f"s_mov_b32 s{sPASS}, 1\ns_mov_b32 s66, 8\ns_lshr_b32 s87, s87, 1\ns_add_u32 s87, s87, {WS_JUNK}\ns_mov_b32 s88, s87")
    a("s_waitcnt vmcnt(0)")
    for q in range(4): a(f"v_mov_b32 v{MX+q}, 0xff800000")
    a("s_mov_b32 s14, 16\ns_mov_b32 s69, 20000")
    a("b_mloop:")
    a("s_and_b32 s13, s14, 7\ns_add_u32 s13, s13, s12\ns_and_b32 s13, s13, 31\ns_lshl_b32 s8, s13, 11\ns_bitcmp1_b32 s14, 3\ns_cselect_b32 s9, s15, s68\ns_add_u32 s8, s8, s9")
    for t in range(2):
        a(f"buffer_load_dwordx4 {vr(KV+4*t,4)}, v3, {WSD}, s8 offen offset:{t*1024} sc1")
    a("s_waitcnt vmcnt(0)")
    a(f"v_bitop3_b32 v{CT}, v{KV}, v{KV+4}, v{SG} bitop3:0x7e")
    a(f"v_and_b32 v{CT}, s{sMSK}, v{CT}")
    a(f"v_cmp_ne_u32 vcc, 0, v{CT}")
    a("s_cbranch_vccz b_mok")
    a(f"s_xor_b32 s15, s15, {WS_L}\ns_sub_u32 s69, s69, 1\ns_cmp_gt_i32 s69, 0\ns_cbranch_scc1 b_mloop")
    a("b_mok:")
    for q in range(4):
        mfma(a, S, KV, Q+8*q, None)
        mfma(a, S, KV+4, Q+8*q+4, S)
        a.nop(12)
        for r in range(8): a(f"v_max3_f32 v{MX+q}, v{MX+q}, v{S+2*r}, v{S+2*r+1}")
    a("s_sub_u32 s14, s14, 1\ns_cmp_lg_u32 s14, 0\ns_cbranch_scc1 b_mloop")
    a(f"v_lshlrev_b32 v{TMP}, 2, v1\ns_lshl_b32 s9, s{sW}, 10")
    for q in range(4):
        rot(q, 8, 8, LMX)
        a(f"s_add_u32 s8, s8, s9\nv_add_u32 v{TMP+1}, s8, v{TMP}")
        a(f"ds_write_b32 v{TMP+1}, v{MX+q}")
    a("s_waitcnt lgkmcnt(0)")
    arrive(a, C_M1)
    wait_cnt(a, C_M1, 4)
    a(f"v_and_b32 v{TMP}, 31, v1\nv_lshlrev_b32 v{TMP}, 2, v{TMP}")
    for q in range(4):
        rot(q, 8, 8, LMX)
        a(f"v_add_u32 v{TMP+1}, s8, v{TMP}")
        for w in range(4):
            for hh in range(2):
                a(f"ds_read_b32 v{S+2*w+hh}, v{TMP+1} offset:{w*1024+hh*128}")
        a("s_waitcnt lgkmcnt(0)")
        a(f"v_max3_f32 v{MX+q}, v{S}, v{S+1}, v{S+2}")
        a(f"v_max3_f32 v{MX+q}, v{MX+q}, v{S+3}, v{S+4}")
        a(f"v_max3_f32 v{MX+q}, v{MX+q}, v{S+5}, v{S+6}")
        a(f"v_max_f32 v{MX+q}, v{MX+q}, v{S+7}")
    a("s_mov_b32 s8, -1.0")
    a("s_mov_b32 exec_lo, 0")
    for q in range(4):
        a(f"""v_mul_f32 v{TMP}, s8, v{MX+q}
v_and_b32 v{TMP+1}, 0xffff0000, v{TMP}
v_sub_f32 v{TMP}, v{TMP}, v{TMP+1}
v_and_b32 v{TMP+3}, 0xffff0000, v{TMP}
v_sub_f32 v{TMP}, v{TMP}, v{TMP+3}
v_lshrrev_b32 v{TMP+1}, 16, v{TMP+1}
v_or_b32 v{Q+8*q+6}, v{TMP+1}, v{TMP+3}
v_lshrrev_b32 v{Q+8*q+7}, 16, v{TMP}""")
    a("s_mov_b64 exec, -1")
    a("s_mov_b32 s14, 20000")
    a("s_branch b_main")

    a("a_wave:")
    G.inA = True
    common()
    a(f"""s_lshr_b32 s{sDQ}, s2, 6
s_lshr_b32 s{sG}, s{sJ}, 2""")
    a(f"""s_lshl_b32 s67, s{sX}, 3
s_and_b32 s9, s{sJ}, 7
s_add_u32 s67, s67, s9
s_lshr_b32 s{sG1}, s{sJ}, 3
s_lshl_b32 s{sG1}, s{sG1}, 1
s_lshr_b32 s9, s{sWL}, 1
s_add_u32 s{sG1}, s{sG1}, s9
s_and_b32 s68, s{sWL}, 1""")
    F, E1C, E1S, E3C, E3X, CSN, CSC = 16, 128, 136, 144, 152, 160, 216
    A1ACC, A1XF, A1XP, A1Y = 168, 184, 200, 184
    VWO = 10
    sK1 = sN2
    a(f"""v_and_b32 v202, 3, v8
v_lshrrev_b32 v203, 3, v8
v_lshl_add_u32 v202, v203, 2, v202
v_bfe_u32 v203, v8, 2, 1
v_lshlrev_b32 v203, 4, v203
s_mul_i32 s9, s{sG1}, 28
v_add3_u32 v202, v202, v203, s9
s_mul_i32 s9, s68, 0x3e800000
v_mov_b32 v204, s9
v_cvt_f32_u32 v202, v202
v_mul_f32 v202, {f32_bits(1/448):#x}, v202
v_lshlrev_b32 v203, 3, v9
v_cvt_f32_u32 v203, v203
v_fma_f32 v204, v203, v202, v204""")
    def gen_F(hooks):
        T0, KK = 168, 200
        a(f"v_cos_f32 v{KK}, v202\ns_nop 0\nv_add_f32 v{KK}, v{KK}, v{KK}\nv_mov_b32 v{KK+1}, v{KK}")
        def seeds(tp):
            T = T0 + 16 * (tp % 2)
            L = []
            for j in range(2):
                for e in range(2):
                    L.append(f"v_fmamk_f32 v{T+2*j+e}, v202, {f32_bits(float(16*(2*tp+e)+j)):#x}, v204")
            for j in range(2):
                for e in range(2):
                    L.append(f"v_cos_f32 v{T+2*j+e}, v{T+2*j+e}")
            return L
        def rec(tp):
            T = T0 + 16 * (tp % 2)
            L = []
            for j in range(2, 8):
                L.append(f"v_pk_fma_f32 {vr(T+2*j,2)}, {vr(KK,2)}, {vr(T+2*j-2,2)}, {vr(T+2*j-4,2)} neg_lo:[0,0,1] neg_hi:[0,0,1]")
                if j % 2 == 0:
                    jp = j // 2 - 1
                    for e in range(2): L.append(f"v_cvt_pk_bf16_f32 v{F+4*(2*tp+e)+jp}, v{T+4*jp+e}, v{T+4*jp+2+e}")
            for e in range(2): L.append(f"v_cvt_pk_bf16_f32 v{F+4*(2*tp+e)+3}, v{T+12+e}, v{T+14+e}")
            return L
        for x in seeds(0): a(x)
        a("s_nop 0")
        for tp in range(14):
            if tp in hooks: hooks[tp]()
            R = rec(tp); S_ = seeds(tp + 1) if tp < 13 else []
            while R or S_:
                if R: a(R.pop(0))
                if S_: a(S_.pop(0))
    W2, WR = 240, 232
    hooks = {}
    if OPT.get("spf") and not OPT.get("noA"):
        st = OPT["spf"]
        L = [("s[6:7]", r * 57344 + c) for r in range(2) for c in range(0, 896, st)]
        if OPT.get("spw"): L += [("s[14:15]", c) for c in range(0, 1800 + st - 4, st - 8)]
        H0 = OPT.get("sph", 2)
        per = -(-len(L) // (14 - H0))
        def h0():
            a(f"""s_lshr_b32 s8, s{sJ}, 3
s_lshl_b32 s8, s8, 2
s_add_u32 s8, s8, s{sWL}
s_mul_i32 s8, s8, {2*57344}
s_mul_i32 s9, s67, 896
s_add_u32 s8, s8, s9
s_lshl_b32 s9, s{sJ}, 1
s_lshr_b32 s10, s{sWL}, 1
s_add_u32 s9, s9, s10
s_lshl_b32 s9, s9, 3
s_add_u32 s9, s9, s{sX}
s_mul_i32 s9, s9, 1800
s_waitcnt lgkmcnt(0)
s_add_u32 s6, s{S_AX}, s8
s_addc_u32 s7, s{S_AX+1}, 0
s_cmp_eq_u32 s68, 0
s_cselect_b32 s14, s{S_WR}, s{S_WI}
s_cselect_b32 s15, s{S_WR+1}, s{S_WI+1}
s_add_u32 s14, s14, s9
s_addc_u32 s15, s15, 0""")
        def mk(tp):
            def f():
                if tp == H0: h0()
                for (b, o) in L[(tp - H0) * per:(tp - H0 + 1) * per]:
                    a(f"s_load_dword s10, {b}, {min(o, 1796) if b == 's[14:15]' else o}")
            return f
        for tp in range(H0, 14): hooks[tp] = mk(tp)
    if OPT.get("pro"):
        assert not hooks
        hooks[OPT["pro"]] = lambda: a("s_barrier")
    gen_F(hooks)
    a("s_lshl_b32 s13, s68, 31\ns_lshr_b32 s8, s13, 16\ns_or_b32 s13, s13, s8")
    gen_E(a, 8, 9, 67, 'a1', {'C': E1C, 'Sx': E1S}, 204)
    stamp(a, 8)
    a("s_waitcnt lgkmcnt(0)")
    if STAMPS: a("s_mov_b32 s70, s92")
    srd(a, SRD_WS, S_WS, WS_SIZE)
    t0, t1, t2 = 186, 187, 188
    def gen_CS():
        a(f"""s_lshl_b32 s8, s{sWL}, 4
v_and_b32 v{t0}, 15, v1
v_add_u32 v{t0}, s8, v{t0}
v_cvt_f32_u32 v{t0}, v{t0}
v_mul_f32 v{t0}, {f32_bits(1/64):#x}, v{t0}
v_lshrrev_b32 v{t1}, 4, v1
v_lshlrev_b32 v{t1}, 2, v{t1}
v_cvt_f32_u32 v{t1}, v{t1}
v_mul_f32 v{t1}, v{t1}, v{t0}""")
        for kap in range(2):
            for hf in range(2):
                for i in range(4):
                    a(f"v_fmamk_f32 v{t2+i}, v{t0}, {f32_bits(float(32*kap+16*hf+i)):#x}, v{t1}")
                for i in range(4): a(f"v_cos_f32 v{t2+4+i}, v{t2+i}")
                for i in range(4): a(f"v_sin_f32 v{t2+i}, v{t2+i}")
                o = 4 * kap + 2 * hf
                for i in range(2): a(f"v_cvt_pk_bf16_f32 v{CSC+o+i}, v{t2+4+2*i}, v{t2+4+2*i+1}")
                for i in range(2): a(f"v_cvt_pk_bf16_f32 v{CSC+8+o+i}, v{t2+2*i}, v{t2+2*i+1}")
                for i in range(2): a(f"v_xor_b32 v{CSN+o+i}, 0x80008000, v{CSC+8+o+i}")
    def gen_E3():
        a(f"s_mov_b32 s8, {f32_bits(2.0/(2048*448)):#x}\ns_lshl_b32 s9, s68, 31\ns_xor_b32 s9, s9, s8\ns_xor_b32 s9, s9, 0x80000000")
        a(f"""v_lshlrev_b32 v{t0}, 6, v8
v_add_u32 v{t0}, s67, v{t0}
v_cvt_f32_u32 v{t0}, v{t0}
v_mul_f32 v{t0}, {f32_bits(1/2048):#x}, v{t0}
v_lshlrev_b32 v{t1}, 3, v9
v_cvt_f32_u32 v{t1}, v{t1}
v_mul_f32 v{t1}, v{t1}, v{t0}""")
        for tau in range(2):
            for hf in range(2):
                for i in range(4):
                    a(f"v_fmamk_f32 v{t2+i}, v{t0}, {f32_bits(float(16*tau+4*hf+i)):#x}, v{t1}")
                for i in range(4): a(f"v_cos_f32 v{t2+4+i}, v{t2+i}")
                for i in range(4): a(f"v_sin_f32 v{t2+i}, v{t2+i}")
                for i in range(4): a(f"v_mul_f32 v{t2+4+i}, s8, v{t2+4+i}")
                for i in range(4): a(f"v_mul_f32 v{t2+i}, s9, v{t2+i}")
                o = 4 * tau + 2 * hf
                for i in range(2): a(f"v_cvt_pk_bf16_f32 v{E3C+o+i}, v{t2+4+2*i}, v{t2+4+2*i+1}")
                for i in range(2): a(f"v_cvt_pk_bf16_f32 v{E3X+o+i}, v{t2+2*i}, v{t2+2*i+1}")
    if OPT.get("cs", 1) == 0: gen_CS()
    if OPT.get("e3", 0) == 0: gen_E3()
    srd(a, SRD_B, S_WO, 448 * 896)
    srd(a, SRD_OUT, S_OUT, 2048 * 1792)
    a(f"""v_bfe_u32 v10, v8, 1, 3
v_lshlrev_b32 v6, 7, v8
v_add_u32 v6, {LXA}, v6""")
    for t in range(4):
        a(f"v_add_u32 v7, {2*t}, v9\nv_xor_b32 v7, v7, v10\nv_lshl_add_u32 v{12+t}, v7, 4, v6")
    XS = 7
    a(f"s_setprio {OPT.get('prio', 3)}")
    if OPT.get("noA"): a("s_branch a_fin")
    a("s_mov_b32 s69, 400000")
    a("a_xw:")
    a(f"ds_read_b128 v[200:203], v4 offset:{4*C_XF}")
    a("s_waitcnt lgkmcnt(0)")
    a("v_min3_u32 v200, v200, v201, v202\nv_min_u32 v200, v200, v203\ns_sub_u32 s69, s69, 1")
    a("v_readfirstlane_b32 s8, v200\ns_nop 1")
    a("s_cmp_lg_u32 s8, 0\ns_cbranch_scc1 a_xw_d\ns_sleep 1\ns_cmp_lg_u32 s69, 0\ns_cbranch_scc1 a_xw")
    a("a_xw_d:")
    if OPT.get("a2o", 0) & 1: a("s_waitcnt vmcnt(0)")
    a(f"ds_read_b32 v2, v4 offset:{4*C_EP}")
    stamp(a, 3)
    a(f"s_setprio {OPT.get('gprio', 3)}")
    for c in range(7):
        xf = A1XF + 16 * (c % 2)
        if c == XS:
            if not OPT.get("noA"): vwait("x6")
            arrive(a, C_AX2)
            wait_cnt(a, C_AX2, 4)
        if c == 0 or c == XS:
            for t in range(4): a(f"ds_read_b128 {vr(xf+4*t,4)}, v{12+t} offset:{c*4096}")
        nxt = c < 6 and c + 1 != XS
        if nxt:
            for t in range(4): a(f"ds_read_b128 {vr(A1XF+16*((c+1)%2)+4*t,4)}, v{12+t} offset:{(c+1)*4096}")
        a(f"s_waitcnt lgkmcnt({4 if nxt else 0})")
        for t in range(4):
            mfma(a, A1ACC, xf+4*t, F+4*(4*c+t), None if (c == 0 and t == 0) else A1ACC)
        if c == 1: arrive(a, C_AX)
    a(f"s_setprio {OPT.get('prio', 3)}")
    a(f"s_lshl_b32 s8, s{sWL}, 11\ns_add_u32 s8, s8, {LEX}\nv_add_u32 v6, s8, v3")
    a("v_mov_b32 v11, v6")
    set_tag(a)
    wait_cnt(a, C_AX, 4)
    a("v_mov_b32 v6, v11")
    a.nop(4)
    for r in range(8): a(f"v_cvt_pk_bf16_f32 v{A1XP+r}, v{A1ACC+2*r}, v{A1ACC+2*r+1}")
    for t in range(2): a(f"ds_write_b128 v6, {vr(A1XP+4*t,4)} offset:{t*1024}")
    for t in range(2): mfma(a, A1Y, A1XP+4*t, E1C+4*t, None if t == 0 else A1Y)
    a("s_waitcnt lgkmcnt(0)")
    stamp(a, 4)
    arrive(a, C_AEX)
    wait_cnt(a, C_AEX, 4)
    if OPT.get("p0") is not None: a(f"s_setprio {OPT['p0']}")
    a(f"s_xor_b32 s8, s{sWL}, 1\ns_lshl_b32 s8, s8, 11\ns_add_u32 s8, s8, {LEX}\nv_add_u32 v6, s8, v3")
    for t in range(2): a(f"ds_read_b128 {vr(A1XP+8+4*t,4)}, v6 offset:{t*1024}")
    a("s_waitcnt lgkmcnt(0)")
    for t in range(2): mfma(a, A1Y, A1XP+8+4*t, E1S+4*t, A1Y)
    sig_regs(a, 128)
    a(f"""s_lshl_b32 s8, s{sG1}, 6
s_add_u32 s8, s8, s67
s_lshl_b32 s8, s8, 12
s_lshl_b32 s9, s68, 6
s_add_u32 s8, s8, s9
s_add_u32 s8, s8, {WS_Y}
s_add_u32 s9, s12, {LYT}
v_lshlrev_b32 v6, 6, v8
v_lshl_add_u32 v6, v9, 5, v6
v_add_u32 v6, s9, v6
v_add_u32 v7, s9, v3
v_lshrrev_b32 v11, 2, v1
v_lshlrev_b32 v11, 7, v11
v_and_b32 v12, 3, v1
v_lshl_add_u32 v11, v12, 4, v11""")
    YL = OPT.get("yl")
    if YL:
        a(f"""s_lshl_b32 s9, s68, 6
s_sub_u32 s8, s8, s9
s_lshl_b32 s10, s68, 11
s_add_u32 s8, s8, s10
s_lshr_b32 s10, s{sWL}, 1
s_lshl_b32 s10, s10, 12
s_add_u32 s10, s10, {LYT}
s_add_u32 s10, s10, s9
v_lshlrev_b32 v6, 7, v8
v_lshl_add_u32 v6, v9, 5, v6
v_add_u32 v6, s10, v6
v_mov_b32 v11, v3""")
    for r in range(8): a(f"v_cvt_pk_bf16_f32 v{A1XP+r}, v{A1Y+2*r}, v{A1Y+2*r+1}")
    for t in range(2): a(f"ds_write_b128 v6, {vr(A1XP+4*t,4)} offset:{t*16}")
    if YL:
        a("s_mov_b32 s10, s8\ns_waitcnt lgkmcnt(0)")
        arrive(a, C_W1)
        wait_cnt(a, C_W1, 4)
        a("s_mov_b32 s8, s10")
    for t in range(2): a(f"ds_read_b128 {vr(A1XP+8+4*t,4)}, v7 offset:{t*1024}")
    a("s_waitcnt lgkmcnt(0)")
    sign(a, A1XP+8, 8, 128)
    a("s_mov_b32 s10, s8")
    if OPT.get("ye"):
        for t in range(2): a(f"buffer_store_dwordx4 {vr(A1XP+8+4*t,4)}, v11, {WSD}, s10 offen offset:{t*2048} sc1")
    stamp(a, 1)
    if OPT.get("cs", 1) == 2: gen_CS()
    if OPT.get("e3", 0) == 2: gen_E3()
    a(f"""v_lshrrev_b32 v6, 2, v1
s_lshl_b32 s8, s{sWL}, 4
v_add_u32 v6, s8, v6
v_lshlrev_b32 v6, 5, v6
v_add_u32 v6, s{sK1}, v6
v_mul_u32_u24 v6, 450, v6
v_and_b32 v7, 3, v1
v_lshlrev_b32 v7, 4, v7
s_mul_i32 s9, s{sG}, 56
v_add3_u32 v10, v6, v7, s9""")
    srd(a, SRD_TAB, S_WR, 2048 * 450 + 2)
    srd(a, SRD_C, S_WI, 2048 * 450 + 2)
    def wdma():
        for k, sd in enumerate((SRD_TAB, SRD_C)):
            a(f"s_add_u32 m0, s12, {LWW + k*1024}\ns_nop 0")
            a(f"buffer_load_dwordx4 v10, s[{sd}:{sd+3}], 0 offen lds")
    NW = OPT.get("nw", 0)
    if not NW & 1: wait_cnt(a, *OPT["ysw"])
    setprio(a, OPT.get('p1', 3))
    AS = OPT.get("astop", 0)
    if AS == 1: a("s_branch a_fin")
    for t in range(2):
        if AS != 3 and not OPT.get("ye"): a(f"buffer_store_dwordx4 {vr(A1XP+8+4*t,4)}, v11, {WSD}, s10 offen offset:{t*(1024 if YL else 2048)} {OPT.get('ym', 'sc1')}")
    def odum():
        a(f"""s_lshl_b32 s8, s{sQB}, 2
s_add_u32 s8, s8, s{sWL}
s_lshl_b32 s8, s8, 4
s_add_u32 s8, s8, s{sH}
s_lshl_b32 s8, s8, 11
s_add_u32 s8, s8, {WS_O}
v_not_b32 v168, v128""")
        for t in range(2): a(f"buffer_store_dwordx4 v[168:171], v3, {WSD}, s8 offen offset:{t*1024} sc1")
    if OPT.get("odum") == 1: odum()
    if AS == 2: a("s_branch a_fin")
    if OPT.get("wpos", 0) == 1: wdma()
    if OPT.get("yf", 0):
        a(f"s_lshl_b32 s8, s{sG}, 7\ns_lshl_b32 s9, s67, 1\ns_add_u32 s8, s8, s9\ns_add_u32 s8, s8, s68\ns_lshl_b32 s8, s8, 2\ns_add_u32 s8, s8, {WS_FY}")
        flag_store(a, 8)
    stamp(a, 5)
    if OPT.get("p2") is not None: setprio(a, OPT["p2"])
    THR = OPT.get("thr", 2)
    WOO = 140
    def wo_addr():
        a("s_mov_b32 s9, 0x12492493")
        a(f"s_mov_b32 s8, s{sJ4}" if OPT.get("b3m") else f"s_lshr_b32 s8, s{sH}, 2")
        a("s_mul_i32 s8, s8, 224")
        a(f"""v_mul_hi_u32 v7, v1, s9
v_mul_u32_u24 v6, 14, v7
v_sub_u32 v6, v1, v6
v_mul_u32_u24 v7, 896, v7
v_lshl_add_u32 v7, v6, 4, v7
v_add_u32 v{WOO}, s8, v7""")
    def wo_part(k0, k1, pad):
        n = k1 - k0
        THR = OPT.get("thr", 2) if pad else OPT.get("thr2", OPT.get("thr", 2))
        if not OPT.get("ho"): wo_addr()
        a(f"""s_lshr_b32 s10, s{sJ}, 2
s_mul_i32 s10, s10, {n}
s_lshr_b32 s10, s10, 3
s_add_u32 s10, s10, {k0}
s_lshl_b32 s10, s10, 2
s_add_u32 s10, s10, s{sWL}
s_mul_i32 s10, s10, 896""")
        for k in range(n):
            a(f"s_add_u32 m0, s10, {LWO}\ns_lshl_b32 s13, s10, 2")
            if k > THR: a(f"s_waitcnt vmcnt({THR})")
            a(f"buffer_load_dwordx4 v{WOO}, s[{SRD_B}:{SRD_B+3}], s13 offen lds")
            if k < n - 1: a(f"s_add_u32 s10, s10, {4*896}\ns_sub_u32 s11, s10, {4*n*896}\ns_cmp_ge_u32 s10, {4*k1*896}\ns_cselect_b32 s10, s11, s10")
        if pad:
            a(f"s_mov_b32 m0, {LWO+448*224}\ns_mov_b32 s13, {448*896}")
            a(f"buffer_load_dwordx4 v{WOO}, s[{SRD_B}:{SRD_B+3}], s13 offen lds")
    YF, Z = 168, 200
    VY, VP, VPW, VD = 76, 80, 81, 82
    a(f"""v_and_b32 v14, 15, v1
v_lshrrev_b32 v15, 4, v1
s_lshl_b32 s6, s{sG}, 18
s_lshl_b32 s7, s{sK1}, 7
s_add_u32 s6, s6, s7
s_lshl_b32 s7, s{sWL}, 16
s_add_u32 s6, s6, s7
s_add_u32 s6, s6, {WS_Y}
v_bfe_u32 v6, v1, 1, 2
v_bfe_u32 v7, v1, 4, 2
v_xor_b32 v6, v6, v7
v_and_b32 v7, 1, v1
v_lshl_add_u32 v6, v6, 1, v7
v_lshrrev_b32 v7, 3, v1
v_lshlrev_b32 v7, 12, v7
v_lshl_add_u32 v{VD}, v6, 4, v7
v_and_b32 v6, 3, v6
v_lshlrev_b32 v6, 2, v6
v_lshrrev_b32 v136, v6, s{sSIG}""")
    a(f"""v_lshrrev_b32 v6, 2, v1
v_and_b32 v7, 3, v1
v_lshlrev_b32 v7, 3, v7
v_lshl_add_u32 v{VP}, v6, 6, v7
v_add_u32 v{VP}, {LP}, v{VP}
v_lshl_add_u32 v7, v6, 7, v7
v_add_u32 v7, {LY}, v7
v_bfe_u32 v6, v1, 3, 2""")
    for P_ in range(4):
        a(f"v_xor_b32 v11, {P_}, v6\nv_lshl_add_u32 v{VY+P_}, v11, 5, v7")
    a(f"""s_lshl_b32 s8, s{sWL}, 10
s_add_u32 s8, s8, {LP}
v_lshlrev_b32 v6, 6, v14
v_lshl_add_u32 v6, v15, 3, v6
v_add_u32 v{VPW}, s8, v6
s_add_u32 s8, s12, {LWW}
v_add_u32 v6, s8, v6""")
    if OPT.get("cs", 1) == 1: gen_CS()
    a("v_mov_b32 v12, v6")
    A2O = OPT.get("a2o", 0)
    if A2O & 1:
        for r in range(16): a(f"v_mov_b32 v{W2+r}, 0")
    def wproc():
        if A2O & 1:
            for k in range(4):
                for e in range(4): a(f"ds_read_u16_d16_hi v{W2+4*k+e}, v12 offset:{(k//2)*1024+(k%2)*32+2*e}")
        else:
            for k in range(4):
                a(f"ds_read_b64 {vr(WR+2*k,2)}, v12 offset:{(k//2)*1024+(k%2)*32}")
        a("s_waitcnt lgkmcnt(0)")
        for k in range(4):
            if not A2O & 1: a(f"""v_lshlrev_b32 v{W2+4*k}, 16, v{WR+2*k}
v_and_b32 v{W2+4*k+1}, 0xffff0000, v{WR+2*k}
v_lshlrev_b32 v{W2+4*k+2}, 16, v{WR+2*k+1}
v_and_b32 v{W2+4*k+3}, 0xffff0000, v{WR+2*k+1}""")
        a(f"s_cmp_lg_u32 s{sG}, 0\ns_cbranch_scc1 a_w1")
        a(f"s_mov_b64 exec, 0xffff\nv_mul_f32 v{W2}, 0.5, v{W2}\nv_mul_f32 v{W2+8}, 0.5, v{W2+8}\ns_mov_b64 exec, -1")
        a("a_w1:")
        a(f"s_cmp_lg_u32 s{sG}, 7\ns_cbranch_scc1 a_w2")
        a(f"s_mov_b32 exec_lo, 0\ns_mov_b32 exec_hi, 0xffff0000\nv_mul_f32 v{W2+4}, 0.5, v{W2+4}\nv_mul_f32 v{W2+12}, 0.5, v{W2+12}\ns_mov_b64 exec, -1")
        a("a_w2:")
    if OPT.get("wpos", 0) == 1:
        a("s_waitcnt vmcnt(0)")
        wproc()
    stamp(a, 7)
    def chk8(r0, n, sg, acc):
        for i in range(n // 8): a(f"v_bitop3_b32 v{acc+i}, v{r0+8*i}, v{r0+8*i+4}, v{sg} bitop3:0x7e")
        if n == 8: a(f"v_and_b32 v{acc}, s{sMSK}, v{acc}")
        else:
            a(f"v_or3_b32 v{acc}, v{acc}, v{acc+1}, v{acc+2}")
            a(f"v_bitop3_b32 v{acc}, v{acc}, s{sMSK}, v{acc+3} bitop3:0xc8")
        a(f"v_cmp_ne_u32 vcc, 0, v{acc}")
    if OPT.get("yf", 0):
        a(f"s_lshl_b32 s8, s{sG}, 9\ns_lshl_b32 s9, s{sWL}, 7\ns_add_u32 s8, s8, s9\ns_add_u32 s8, s8, {WS_FY}\nv_lshlrev_b32 v13, 2, v8")
        poll(a, 13, "s8", -1, width=1, vt=132, sleep=OPT.get("fsleep", 2))
        if OPT.get("cnt"): a("s_sub_u32 s71, 20001, s9")
    if AS == 4: a("s_branch a_fin")
    if OPT.get("wop") == 2:
        wait_cnt(a, C_M2, 4)
        wo_part(10, 28, True)
    def wbk(pos, wc=None):
        if OPT.get("wb") is None or OPT.get("wbp", 0) != pos: return
        l = lab("wb")
        a(f"s_and_b32 s8, s{sJ}, {OPT['wb']}\ns_xor_b32 s8, s8, {OPT.get('wbj', 0)}\ns_or_b32 s8, s8, s{sWL}\ns_cmp_lg_u32 s8, 0\ns_cbranch_scc1 {l}")
        if wc is not None: wait_cnt(a, wc, 4, sleep=2)
        a(f"buffer_wbl2 {OPT.get('wbm', 'sc1')}")
        if OPT.get("wbw", 1):
            a("s_waitcnt vmcnt(0)")
            stamp(a, 5)
        a(f"{l}:")
    if OPT.get("ag"):
        a(f"""s_lshl_b32 s10, s{sHP}, 7
s_lshl_b32 s11, s{sQB}, 2
s_add_u32 s10, s10, s11
s_add_u32 s10, s10, s{sWL}
s_lshl_b32 s10, s10, 11
s_and_b32 s11, s{sJ}, 1
s_mul_i32 s11, s11, {WS_V - WS_K}
s_add_u32 s10, s10, s11
s_add_u32 s11, s10, {64*2048}
s_lshl_b32 s13, s{sWL}, 12
s_add_u32 s13, s13, {LKV}
v_add_u32 v13, s13, v3""")
        if OPT.get("ho"):
            if OPT.get("hop") is not None: a(f"s_setprio {OPT['hop']}")
            wo_addr()
            a(f"""s_add_u32 s8, s12, {LTT}
v_lshlrev_b32 v6, 7, v14
v_lshl_add_u32 v6, v15, 3, v6
v_add_u32 v83, s8, v6
v_add_u32 v84, s8, v3
s_lshl_b32 s9, s{sK1}, 5
s_and_b32 s9, s9, 64
v_and_b32 v11, 7, v1
v_lshlrev_b32 v11, 4, v11
v_xor_b32 v11, s9, v11
v_lshrrev_b32 v6, 3, v1
v_lshl_add_u32 v85, v6, 15, v11
v_bfe_u32 v6, v1, 2, 2
v_lshl_add_u32 v6, v9, 3, v6
v_lshlrev_b32 v6, 7, v6
v_bfe_u32 v7, v1, 3, 1
v_xor_b32 v7, s68, v7
v_lshl_add_u32 v14, v7, 6, v6
v_xor_b32 v15, 64, v14
v_bfe_u32 v6, v1, 4, 1
v_lshlrev_b32 v6, 2, v6
v_and_b32 v7, 1, v1
v_lshl_add_u32 v6, v7, 1, v6
v_bfe_u32 v7, v1, 1, 1
v_add_u32 v11, v6, v7
v_lshl_add_u32 v142, v11, 3, v14
v_lshl_add_u32 v143, v11, 3, v15
s_lshl_b32 s8, s{sWL}, 13
v_add_u32 v137, s8, v3
s_mov_b32 s8, 114688
v_mul_lo_u32 v6, v8, s8
v_lshlrev_b32 v7, 5, v9
v_add_u32 v129, v6, v7
v_sub_u32 v130, v6, v7
v_add_u32 v130, 32, v130
s_add_u32 s8, s12, {LEX2}
v_add_u32 v131, s8, v3
v_xor_b32 v141, 2048, v131
s_add_u32 s8, s12, {LY}
v_add_u32 v86, s8, v3""")
            assert LT == 0
            for r in range(4): a(f"v_mov_b32 v{124+r}, 0")
            if OPT.get("hop") is not None: a(f"s_setprio {OPT.get('p1', 3)}")
        wait_cnt(a, OPT.get("agc", C_KV), 4, sleep=1)
        for u in range(4): a(f"ds_read_b128 {vr(Z+4*u,4)}, v13 offset:{u*1024}")
        a("s_mov_b32 s87, s10\ns_mov_b32 s88, s11")
        def ag_st(u):
            a(f"buffer_store_dwordx4 {vr(Z+4*u,4)}, v3, {WSD}, s{87+u//2} offen offset:{(u%2)*1024} {OPT.get('gm', 'sc1')}")
        for u in range(4 - OPT.get("agl", 0)):
            a(f"s_waitcnt lgkmcnt({3-u})")
            if OPT.get("ags") and OPT["ags"][u] is not None:
                l = lab("agk")
                if u == 0 and OPT.get("agk"): a(f"s_mov_b32 s8, {OPT['agk']:#x}\ns_bitcmp1_b32 s8, s{sH}\ns_cbranch_scc1 {l}")
                wait_cnt(a, C_W4, 4 * (1 + sum(1 for x in OPT["ags"][:u] if x is not None)), sleep=2)
                a(f"{l}:")
            ag_st(u)
        a("s_waitcnt lgkmcnt(0)")
    wbk(1, C_Q)
    wbk(4, C_M2)
    if AS == 8: a("s_branch a_fin")
    if OPT.get("ylw") is not None: wait_cnt(a, OPT["ylw"], 4, sleep=2)
    setprio(a, OPT.get('a2prio', 3))
    YCA = 86 if OPT.get("ho") else 13
    a(f"""s_add_u32 s8, s12, {LY}
{"" if OPT.get("ho") else "v_add_u32 v13, s8, v3"}
s_add_u32 s9, s6, {8*4096}
s_mov_b32 s14, 20000""")
    if OPT.get("wpos", 0) == 0: wdma()
    a("a_ypoll:")
    a("s_mov_b32 m0, s8\ns_nop 0")
    a(f"buffer_load_dwordx4 v{VD}, {WSD}, s6 offen sc1 lds")
    a(f"s_add_u32 m0, s8, 1024\ns_nop 0")
    a(f"buffer_load_dwordx4 v{VD}, {WSD}, s9 offen sc1 lds")
    a("s_waitcnt vmcnt(0)")
    for i in range(2): a(f"ds_read_b32 v{YF+4*i}, v{YCA} offset:{i*1024}")
    a("s_waitcnt lgkmcnt(0)")
    chk8(YF, 8, 136, 132)
    a("s_cbranch_vccz a_ypoll_d")
    a(f"s_sleep {OPT.get('psleep', 4)}")
    a("s_sub_u32 s14, s14, 1\ns_cmp_lg_u32 s14, 0\ns_cbranch_scc1 a_ypoll")
    a("a_ypoll_d:")
    if OPT.get("cnt"): a("s_sub_u32 s76, 20001, s14")
    stamp(a, 10)
    arrive(a, C_AY)
    if OPT.get("wpos", 0) == 0: wproc()
    if OPT.get("agl") and OPT.get("aglb"):
        for u in range(4 - OPT["agl"], 4): ag_st(u)
    if OPT.get("wpos", 0) == 2: wdma()
    if OPT.get("agl") and not OPT.get("aglb"):
        for u in range(4 - OPT["agl"], 4): ag_st(u)
    if OPT.get("wpos", 0) == 3:
        wait_cnt(a, C_G, 4)
        wdma()
    wait_cnt(a, C_AY, 4)
    stamp(a, 11)
    yf = lambda ri, ch, kap: YF + 4 * ((ri * 2 + ch) * 2 + kap)
    cs = lambda kap, k: (CSC, CSC + 8, CSN)[k] + 4 * kap
    z = lambda ri, ch: Z + 8 * ri + 4 * ch
    def dft64(rd, k01, k10):
        FR = [(ri, ch, kap) for kap in range(2) for ri in range(2) for ch in range(2)]
        DP = OPT.get("a2d", 3)
        for f_ in FR[:DP]: rd(*f_)
        seen = set()
        for n, (ri, ch, kap) in enumerate(FR):
            a(f"s_waitcnt lgkmcnt({2 * (min(8, n + DP) - n - 1)})")
            for (zo, kk) in ((ri, 0), (1 - ri, k01 if ri else k10)):
                mfma16(a, z(zo,ch), yf(ri,ch,kap), cs(kap,kk), z(zo,ch) if (zo, ch) in seen else None)
                seen.add((zo, ch))
            if n + DP < 8: rd(*FR[n + DP])
    def rdY(ri, ch, kap):
        for aa in range(2): a(f"ds_read_b64_tr_b16 {vr(yf(ri,ch,kap)+2*aa,2)}, v{VY+2*ri+ch} offset:{(32*kap+16*aa)*128}")
    def rdP(ri, ch, kap):
        for aa in range(2): a(f"ds_read_b64_tr_b16 {vr(yf(ri,ch,kap)+2*aa,2)}, v{VP} offset:{ri*4096+(32*kap+16*aa)*64+ch*32}")
    if A2O & 4: dft64(rdY, 1, 2)
    else:
        for ri in range(2):
            for ch in range(2):
                for kap in range(2):
                    for aa in range(2):
                        a(f"ds_read_b64_tr_b16 {vr(yf(ri,ch,kap)+2*aa,2)}, v{VY+2*ri+ch} offset:{(32*kap+16*aa)*128}")
        a("s_waitcnt lgkmcnt(0)")
        cs = lambda kap, k: (CSC, CSC + 8, CSN)[k] + 4 * kap
        z = lambda ri, ch: Z + 8 * ri + 4 * ch
        for kap in range(2):
            for ch in range(2):
                mfma16(a, z(0,ch), yf(0,ch,kap), cs(kap,0), None if kap == 0 else z(0,ch))
                mfma16(a, z(1,ch), yf(1,ch,kap), cs(kap,0), None if kap == 0 else z(1,ch))
        for kap in range(2):
            for ch in range(2):
                mfma16(a, z(0,ch), yf(1,ch,kap), cs(kap,1), z(0,ch))
                mfma16(a, z(1,ch), yf(0,ch,kap), cs(kap,2), z(1,ch))
    if OPT.get("wpos", 0) >= 2:
        a(f"s_waitcnt vmcnt({0 if OPT.get('aglb') else OPT.get('agl', 0)})")
        stamp(a, 7)
        wproc()
    else: a.nop(9)
    for i in range(0, 8, 2) if A2O & 2 else []:
        zr, zi, wr, wi = vr(Z + i, 2), vr(Z + 8 + i, 2), vr(W2 + i, 2), vr(W2 + 8 + i, 2)
        t_, u_ = vr(YF + 2 * i, 2), vr(YF + 2 * i + 2, 2)
        a(f"""v_pk_mul_f32 {t_}, {zi}, {wi}
v_pk_mul_f32 {u_}, {zr}, {wi}
v_pk_fma_f32 {zr}, {zr}, {wr}, {t_} neg_lo:[0,0,1] neg_hi:[0,0,1]
v_pk_fma_f32 {zi}, {zi}, {wr}, {u_}""")
    for i in range(8) if not A2O & 2 else []:
        zr, zi, wr, wi = Z + i, Z + 8 + i, W2 + i, W2 + 8 + i
        a(f"""v_mul_f32 v6, v{zi}, v{wi}
v_mul_f32 v7, v{zr}, v{wi}
v_fma_f32 v{zr}, v{zr}, v{wr}, -v6
v_fma_f32 v{zi}, v{zi}, v{wr}, v7""")
    for i in range(8): a(f"v_cvt_pk_bf16_f32 v{W2+i}, v{Z+2*i}, v{Z+2*i+1}")
    for i in range(4): a(f"ds_write_b64 v{VPW}, {vr(W2+2*i,2)} offset:{(i//2)*4096+(i%2)*32}")
    a("s_waitcnt lgkmcnt(0)")
    arrive(a, C_AP)
    wait_cnt(a, C_AP, 4)
    if A2O & 4: dft64(rdP, 2, 1)
    else:
        for ri in range(2):
            for ch in range(2):
                for kap in range(2):
                    for aa in range(2):
                        a(f"ds_read_b64_tr_b16 {vr(yf(ri,ch,kap)+2*aa,2)}, v{VP} offset:{ri*4096+(32*kap+16*aa)*64+ch*32}")
        a("s_waitcnt lgkmcnt(0)")
        for kap in range(2):
            for ch in range(2):
                mfma16(a, z(0,ch), yf(0,ch,kap), cs(kap,0), None if kap == 0 else z(0,ch))
                mfma16(a, z(1,ch), yf(1,ch,kap), cs(kap,0), None if kap == 0 else z(1,ch))
        for kap in range(2):
            for ch in range(2):
                mfma16(a, z(0,ch), yf(1,ch,kap), cs(kap,2), z(0,ch))
                mfma16(a, z(1,ch), yf(0,ch,kap), cs(kap,1), z(1,ch))
    T6, T7, T11 = (83, 84, 85) if OPT.get("ho") else (6, 7, 11)
    if OPT.get("ho"): a.nop(4)
    else: a(f"""s_add_u32 s8, s12, {LTT}
v_lshlrev_b32 v6, 7, v14
v_lshl_add_u32 v6, v15, 3, v6
v_add_u32 v6, s8, v6
v_add_u32 v7, s8, v3
s_lshl_b32 s9, s{sK1}, 5
s_and_b32 s9, s9, 64
v_and_b32 v11, 7, v1
v_lshlrev_b32 v11, 4, v11
v_xor_b32 v11, s9, v11
v_lshrrev_b32 v12, 3, v1
v_lshl_add_u32 v11, v12, 15, v11""")
    a(f"""s_lshl_b32 s6, s{sG}, 12
s_lshl_b32 s7, s{sK1}, 7
s_add_u32 s6, s6, s7
s_lshl_b32 s7, s{sWL}, 19
s_add_u32 s6, s6, s7
s_add_u32 s6, s6, {WS_T}
s_add_u32 s7, s6, {8*32768}""")
    for i in range(8): a(f"v_cvt_pk_bf16_f32 v{W2+i}, v{Z+2*i}, v{Z+2*i+1}")
    for i in range(4): a(f"ds_write_b64 v{T6}, {vr(W2+2*i,2)} offset:{(i//2)*64+(i%2)*32}")
    for u in range(2): a(f"ds_read_b128 {vr(W2+8+4*u,4)}, v{T7} offset:{u*1024}")
    a("s_waitcnt lgkmcnt(0)")
    sign(a, W2+8, 8, 128)
    for u in range(2):
        a(f"buffer_store_dwordx4 {vr(W2+8+4*u,4)}, v{T11}, {WSD}, s{6+u} offen {OPT.get('tsm', 'sc1')}")
    if OPT.get("odum") == 2: odum()
    stamp(a, 12)
    arrive(a, C_A2D)
    if OPT.get("p3") is not None: setprio(a, OPT["p3"])
    wbk(2)
    TFR = [76, 92, 108, 160, 176, 192, 208, 240]
    UU, UBB, ACCF, NQF = [224, 76], [132, 92], 240, 124
    VT = 142 if OPT.get("ho") else 12
    TCA = 137 if OPT.get("ho") else 10
    if not OPT.get("ho"): a(f"""v_bfe_u32 v6, v1, 2, 2
v_lshl_add_u32 v6, v9, 3, v6
v_lshlrev_b32 v6, 7, v6
v_add_u32 v6, {LT}, v6
v_bfe_u32 v7, v1, 3, 1
v_xor_b32 v7, s68, v7
v_lshl_add_u32 v14, v7, 6, v6
v_xor_b32 v15, 64, v14
v_bfe_u32 v6, v1, 4, 1
v_lshlrev_b32 v6, 2, v6
v_and_b32 v7, 1, v1
v_lshl_add_u32 v6, v7, 1, v6
v_bfe_u32 v7, v1, 1, 1
v_add_u32 v11, v6, v7
v_lshl_add_u32 v{VT}, v11, 3, v14
v_lshl_add_u32 v{VT+1}, v11, 3, v15""")
    def jump(jb):
        if OPT.get("ho"):
            m = sum(1 << l for l in range(32) if 4 * ((l >> 4) & 1) + 2 * (l & 1) + ((l >> 1) & 1) == jb)
            a(f"s_mov_b32 exec_lo, {m:#x}\ns_mov_b32 exec_hi, {m:#x}")
            if OPT["ho"] == 2: a(f"v_lshl_add_u64 {vr(VT,2)}, {vr(VT,2)}, 0, s[10:11]")
            else: a(f"v_add_u32 v{VT}, 4040, v{VT}\nv_add_u32 v{VT+1}, 4040, v{VT+1}")
            a("s_mov_b64 exec, -1")
            return
        a(f"v_cmp_eq_u32 vcc, {jb}, v11\nv_cndmask_b32 v6, 0, v141, vcc\nv_add_u32 v{VT}, v{VT}, v6\nv_add_u32 v{VT+1}, v{VT+1}, v6")
    a(f"""{"" if OPT.get("ho") else "v_mov_b32 v141, 4040"}
s_lshl_b32 s6, s67, 15
s_lshl_b32 s7, s{sWL}, 13
s_add_u32 s6, s6, s7
s_add_u32 s6, s6, {WS_T}
s_add_u32 s7, s7, {LT}
{"" if OPT.get("ho") else "v_add_u32 v10, s7, v3"}
s_lshr_b32 s15, s{sJ}, 3
s_lshl_b32 s15, s15, 11""")
    setprio(a, OPT.get('mprio', 1))
    if NW & 2: assert OPT.get("ylw") == C_G and OPT.get("ag")
    if not NW & 4: wait_cnt(a, C_A2D, 4)
    if OPT.get("e3", 0) == 1: gen_E3()
    if not NW & 2: wait_cnt(a, C_M2, 4)
    if AS == 5: a("s_branch a_fin")
    if not NW & 2: wait_cnt(a, C_G, 4)
    assert OPT.get("wop") == 1
    WS_ = OPT.get("wsp", 10)
    wo_part(WS_, 28, True)
    arrive(a, C_AX2)
    if AS == 6: a("s_branch a_fin")
    if OPT.get("tlw"): wait_cnt(a, C_YS, 4, sleep=4)
    stamp(a, 13)
    if AS == 12: a("s_waitcnt vmcnt(0)\ns_branch a_fin")
    for i in range(8):
        a(f"s_add_u32 s8, s15, {i*1024}\ns_and_b32 s8, s8, 8191\ns_add_u32 m0, s7, s8\ns_add_u32 s8, s8, s6")
        a(f"buffer_load_dwordx4 v3, {WSD}, s8 offen {OPT.get('tm', '')} lds")
    a("s_mov_b32 s14, 20000")
    a("s_waitcnt vmcnt(0)")
    a(f"a_tchk0:")
    for i in range(8): a(f"ds_read_b32 v{160+4*i}, v{TCA} offset:{i*1024}")
    a("s_waitcnt lgkmcnt(0)")
    chk8(160, 32, 128, 132)
    a(f"s_cbranch_vccnz a_tchk0_r")
    a(f"a_tchk0_d:")
    stamp(a, 14)
    if OPT.get("cnt"): a("s_sub_u32 s78, 20001, s14")
    if AS == 9: a("s_branch a_fin")
    arrive(a, C_AT)
    wait_cnt(a, C_AT, 4)
    if AS == 10: a("s_branch a_fin")
    def rdT(tau_, va, off):
        tf = TFR[tau_]
        if OPT.get("rdp") is not None: a(f"s_setprio {OPT['rdp']}")
        rdT_(tf, va, off)
        if OPT.get("rdp") is not None: a(f"s_setprio {OPT.get('mprio', 1)}")
        if OPT.get("rdw") is not None: a(f"s_waitcnt lgkmcnt({OPT['rdw']})")
    def rdT_(tf, va, off):
        for w_ in range(2):
            for tau in range(2):
                for aa in range(2):
                    a(f"ds_read_b64_tr_b16 {vr(tf+8*w_+4*tau+2*aa,2)}, v{va+w_} offset:{off+(16*tau+4*aa)*128}")
    def st1(tau_, u=None):
        tf = TFR[tau_]; u = UU[tau_ % 2] if u is None else u
        for tau in range(2): mfma(a, u, tf+4*tau, E3C+4*tau, None if tau == 0 else u)
        for tau in range(2): mfma(a, u, tf+8+4*tau, E3X+4*tau, u)
    def cvtU(tau_):
        u = UU[tau_ % 2]; ub = UBB[tau_ % 2]
        for r in range(8): a(f"v_cvt_pk_bf16_f32 v{ub+r}, v{u+2*r}, v{u+2*r+1}")
    def st2(tau_):
        ub = UBB[tau_ % 2]
        for s_ in range(2): mfma(a, ACCF, F+4*(2*tau_+s_), ub+4*s_, ACCF)
    if OPT.get("ho") == 2: a("s_mov_b32 s10, 4040\ns_mov_b32 s11, 4040")
    rdT(7, 14, 7 * 4096 + 56)
    for t_ in range(7):
        jump(7 - t_)
        rdT(t_, VT, t_ * 4104)
        if t_ == 0 and AS != 11:
            a("s_waitcnt lgkmcnt(8)")
            st1(7, UU[0])
    if AS == 11: a("s_branch a_fin")
    if not OPT.get("ho"):
        for r in range(4): a(f"v_mov_b32 v{NQF+r}, 0")
    a(f"s_mov_b32 exec_hi, 0\nv_cvt_pk_bf16_f32 v{NQF}, v{UU[0]}, 0\ns_mov_b64 exec, -1")
    a("s_waitcnt lgkmcnt(0)")
    arrive(a, C_ADONE)
    mfma(a, ACCF, F+4*14, NQF, None)
    stamp(a, 15)
    if AS == 7: a("s_branch a_fin")
    wbk(3)
    wait_cnt(a, C_ADONE, 4)
    wo_part(0, WS_, False)
    a("s_waitcnt vmcnt(0)")
    arrive(a, C_WO)
    if not OPT.get("cnt"): stamp(a, 6)
    OA, OD = (129, 130) if OPT.get("ho") else (10, 11)
    if not OPT.get("ho"): a(f"""s_mov_b32 s8, 114688
v_mul_lo_u32 v6, v8, s8
v_lshlrev_b32 v7, 5, v9
v_add_u32 v10, v6, v7
v_sub_u32 v11, v6, v7
v_add_u32 v11, 32, v11""")
    a(f"""s_mul_i32 s7, s67, 1792
s_mul_i32 s8, s{sG1}, 56
s_lshl_b32 s9, s68, 4
s_add_u32 s8, s8, s9
s_add_u32 s6, s7, s8
s_sub_u32 s7, s7, s8
s_add_u32 s7, s7, 882
s_sub_u32 s7, s7, 32""")
    wbk(0)
    if OPT.get("late", 1):
        wait_cnt(a, OPT.get("latec", C_R1), 4, sleep=OPT.get("lsl", 4))
    stamp(a, 9)
    setprio(a, OPT.get('tprio', 1))
    for t_ in range(8):
        if t_ < 7: st1(t_)
        else: a.nop(10)
        if t_ > 0:
            cvtU(t_ - 1)
            a.nop(1)
            st2(t_ - 1)
    X6, X7 = (131, 141) if OPT.get("ho") else (6, 7)
    if not OPT.get("ho"): a(f"s_add_u32 s8, s12, {LEX2}\nv_add_u32 v6, s8, v3\nv_xor_b32 v7, 2048, v6")
    else: a.nop(3)
    XC, YP, YM = 168, 176, 184
    a.nop(14)
    a("s_cmp_lg_u32 s68, 0\ns_cbranch_scc1 a_x1")
    for ri in range(2):
        if ri: a("a_x1:")
        keep, send = ACCF + 8 * ri, ACCF + 8 * (1 - ri)
        for t in range(2): a(f"ds_write_b128 v{X6}, {vr(send+4*t,4)} offset:{t*1024}")
        a("s_waitcnt lgkmcnt(0)")
        arrive(a, C_AU)
        a(f"v_mov_b32 v{XC+8}, v7")
        wait_cnt(a, C_AU, 4)
        for t in range(2): a(f"ds_read_b128 {vr(XC+4*t,4)}, v{X7} offset:{t*1024}")
        a("s_waitcnt lgkmcnt(0)")
        Cr, Sr = (keep, XC) if ri == 0 else (XC, keep)
        for r in range(8):
            a(f"v_add_f32 v{YP+r}, v{Cr+r}, v{Sr+r}")
            a(f"v_sub_f32 v{YM+r}, v{Cr+r}, v{Sr+r}")
        for i in range(4): a(f"v_cvt_pk_bf16_f32 v{XC+i}, v{YP+2*i}, v{YP+2*i+1}")
        for i in range(4): a(f"v_cvt_pk_bf16_f32 v{XC+4+i}, v{YM+7-2*i}, v{YM+6-2*i}")
        if OPT.get("osw") is not None: wait_cnt(a, OPT["osw"], 4)
        om = OPT.get('amod', OPT.get('omod', ''))
        OS = f"s[{SRD_OUT}:{SRD_OUT+3}]"
        if ri == 0:
            a(f"buffer_store_dwordx4 {vr(XC,4)}, v{OA}, {OS}, s6 offen {om}")
            a(f"s_cmp_lg_u32 s{sG1}, 0\ns_cbranch_scc1 a_o1")
            a("s_mov_b32 exec_hi, 0")
            a(f"buffer_store_dwordx3 {vr(XC+4,3)}, v{OD}, {OS}, s7 offen {om}")
            a(f"buffer_store_short v{XC+7}, v{OD}, {OS}, s7 offen offset:12 {om}")
            a("s_mov_b32 exec_lo, 0\ns_mov_b32 exec_hi, -1")
            a("a_o1:")
            a(f"buffer_store_dwordx4 {vr(XC+4,4)}, v{OD}, {OS}, s7 offen {om}")
            a("s_mov_b64 exec, -1")
            a("s_branch a_x2")
        else:
            a("s_mov_b32 exec_hi, 0")
            a(f"buffer_store_dwordx4 {vr(XC,4)}, v{OA}, {OS}, s6 offen {om}")
            a(f"buffer_store_dwordx4 {vr(XC+4,4)}, v{OD}, {OS}, s7 offen {om}")
            a("s_mov_b32 exec_lo, 0\ns_mov_b32 exec_hi, -1")
            a(f"buffer_store_dwordx2 {vr(XC,2)}, v{OA}, {OS}, s6 offen {om}")
            a(f"buffer_store_dwordx2 {vr(XC+6,2)}, v{OD}, {OS}, s7 offen offset:8 {om}")
            a(f"s_cmp_lg_u32 s{sG1}, 7\ns_cbranch_scc1 a_o2")
            a(f"buffer_store_short v{XC+2}, v{OA}, {OS}, s6 offen offset:8 {om}")
            a("a_o2:")
            a("s_mov_b64 exec, -1")
    a("a_x2:")
    if not OPT.get("cnt"): stamp(a, 2)
    a("s_branch a_fin")
    a(f"a_tchk0_r:")
    a(f"s_sub_u32 s14, s14, 1\ns_cmp_le_i32 s14, 0\ns_cbranch_scc1 a_tchk0_d")
    a(f"s_sleep {OPT.get('psleep', 4)}")
    for i in range(8):
        a(f"s_add_u32 m0, s7, {i*1024}\ns_add_u32 s8, s6, {i*1024}")
        a(f"buffer_load_dwordx4 v3, {WSD}, s8 offen sc1 lds")
    a("s_waitcnt vmcnt(0)")
    a(f"s_branch a_tchk0")
    a("a_fin:")
    stamp_out(a, 16, "A")
    a("k_end:\ns_endpgm")
    return a.text()

def build(path, stamps=False, opt=None):
    global STAMPS, OPT
    STAMPS = stamps; OPT = opt or {}; G.uid = 0; G.plo = None; G.inA = False
    code = build_kernel()
    hdr = f"; @launch kernel={NAME} grid=(256,1,1) block=(512,1,1) lds={LDS_SIZE}\n"
    s = hdr + '.amdgcn_target "amdgcn-amd-amdhsa--gfx950"\n.text\n' + code + '.section .rodata,"a"\n' + kd(NAME, 256, 96)
    open(path, "w").write(s)

S2 = {-1: "x0 w0 e x1 w1", 0: "x2 w2 a a", 1: "x3 w3 a a", 2: "x4 w4 a a", 3: "x5 w5 a F", 4: "x6 w6", 5: "q"}
D = {"kvp": 2, "gst": (2, 4, 6, 8), "omod": "nt", "amod": "", "thr": 4, "e3": 0, "cs": 0, "b3m": 1, "om1": "sc1", "wop": 1, "mprio": 3, "sch": S2, "ysw": (C_W0, 4), "ylw": C_G, "tlw": 0,
     "b0prio": 3, "prio": 0, "gprio": 0, "wpos": 2, "latec": C_R2}
if __name__ == "__main__":
    build("f21.s", False, D)
    build("f21_ff.s", False, {"forcefail": 1, **D})
    build("f21_rt.s", "rt", D)
    build("f21_na_rt.s", "rt", {**D, "noA": 1})
    build("v1.s", False, {**D, "osleep": 0})
    build("v2.s", False, {**D, "osleep": 6})
```

```python
import fused22 as f
D = {**f.D, "ns": 1, "ag": 1, "tlw": None, "ags": (None, None, 6, None), "ho": 2, "rdp": 0, "thr": 3, "thr2": 20, "cax": 1, "a2o": 6, "omod": "", "nw": 1, "ye": 1, "p0": 3}
SA = {-1: "x0 w0 e x1 w1", 0: "x2 w2 a a a", 1: "x3 w3 a a", 2: "x4 w4 a a F", 3: "x5 w5", 4: "x6 w6", 5: "q"}
SD = {-1: "x0 w0 e x1 w1", 0: "x2 w2 a a a a", 1: "x3 w3 a a a F", 2: "x4 w4", 3: "x5 w5", 4: "x6 w6", 5: "q"}
V = [{}, {"gprio": 3, "prio": 3}, {"sch": SA}, {"sch": SA, "gprio": 3, "prio": 3}, {"sch": SD}, {"sch": SD, "gprio": 3, "prio": 3, "b0prio": 2}, {"prio": 3}, {"sch": SA, "gst": (7,), "ags": (None, None, 5, None)}, {}]
for i, v in enumerate(V): f.build(f"w{i}.s", False, {**D, **v})
```

```python
import fused22 as f, sys
D = {**f.D, "ns": 1, "ag": 1, "tlw": None, "ags": (None, None, 6, None), "ho": 2, "rdp": 0, "thr": 3, "thr2": 20, "cax": 1, "a2o": 6, "omod": "", "nw": 1, "ye": 1, "p0": 3, "gq": 2, "amp": ("B", 10)}
V = eval(sys.argv[1])
for i, v in enumerate(V): f.build(f"am{i}.s", "amp", {**D, **v})
```
